```python
import torch

def _softmax(x, axis=-1):
    return torch.softmax(x, dim=axis)
def _gelu(x):
    return torch.nn.functional.gelu(x, approximate="tanh")
def _silu(x):
    return torch.nn.functional.silu(x)
def _sigmoid(x):
    return torch.sigmoid(x)
def _layernorm(x, axis=-1, eps=1e-5):
    m = x.mean(dim=axis, keepdim=True)
    v = x.var(dim=axis, keepdim=True, unbiased=False)
    return (x - m) / torch.sqrt(v + eps)
def _scatter_add(tgt, idx, src, axis=0):
    return tgt.clone().index_add_(axis, idx, src)
def _segment_sum(src, seg, n):
    out = torch.zeros((n,) + src.shape[1:], dtype=src.dtype)
    return out.index_add_(0, seg, src)
def _pad(x, pw):
    flat = tuple(v for pair in reversed(pw) for v in pair)
    return torch.nn.functional.pad(x, flat)

kernel_name = 'gated_mix__ssm_conv_h3__mixer_s_mlp__prompt'

def setup_inputs():

    _w = (lambda a: (lambda t: t.to(torch.bfloat16) if t.is_floating_point() else t)(torch.as_tensor(a)))
    def _A_setup():
        B, S, D = 1, 2048, 576
        ks = 4
        return {
            "q": _w((lambda *s: torch.randn(*s, dtype=torch.bfloat16) * 0.05)(B, S, D)),
            "k": _w((lambda *s: torch.randn(*s, dtype=torch.bfloat16) * 1.6)(B, S, D)),
            "v": _w((lambda *s: torch.randn(*s, dtype=torch.bfloat16) * 1.6)(B, S, D)),
            "shift_k": _w((lambda *s: torch.randn(*s, dtype=torch.bfloat16) * 1.6)(D, ks) * 0.5),
            "ssm_k": _w((lambda *s: torch.randn(*s, dtype=torch.bfloat16) * 3.2)(D, S) * (1.0 / S ** 0.5)),
            "ssm_D": _w((lambda *s: torch.randn(*s, dtype=torch.bfloat16) * 1.6)(D)),
        }
    _A_in = _A_setup()

    def _B_setup():
        B, S, D, F = 1, 2048, 576, 4608
        return {
            "x":  _w((lambda *s: torch.randn(*s, dtype=torch.bfloat16) * 0.05)(B, S, D)),
            "w1": _w((lambda *s: torch.randn(*s, dtype=torch.bfloat16) * 3.2)(D, D) * (D ** -0.5)),
            "w2": _w((lambda *s: torch.randn(*s, dtype=torch.bfloat16) * 3.2)(D, D) * (D ** -0.5)),
            "w3": _w((lambda *s: torch.randn(*s, dtype=torch.bfloat16) * 3.2)(D, F) * (D ** -0.5)),
            "w4": _w((lambda *s: torch.randn(*s, dtype=torch.bfloat16) * 1.6)(F, D) * (F ** -0.5)),
        }
    _B_in = _B_setup()

    return {
        "A_q": _A_in["q"],
        "A_k": _A_in["k"],
        "A_v": _A_in["v"],
        "A_shift_k": _A_in["shift_k"],
        "A_ssm_k": _A_in["ssm_k"],
        "A_ssm_D": _A_in["ssm_D"],
        "B_x": _B_in["x"],
        "B_w1": _B_in["w1"],
        "B_w2": _B_in["w2"],
        "B_w3": _B_in["w3"],
        "B_w4": _B_in["w4"],
        "gate_w": _w((lambda *s: torch.randn(*s, dtype=torch.bfloat16) * 0.05)(576) * 16.0),
    }

def reference(A_q, A_k, A_v, A_shift_k, A_ssm_k, A_ssm_D, B_x, B_w1, B_w2, B_w3, B_w4, gate_w):
    def _A_ref(q, k, v, shift_k, ssm_k, ssm_D):
        B, S, D = q.shape
        ks = shift_k.shape[-1]
        k_pad = _pad(k, ((0, 0), (ks - 1, 0), (0, 0)))
        k_shift = torch.zeros_like(k)
        for t in range(ks):
            k_shift = k_shift + k_pad[:, t:t + S, :] * shift_k[:, ks - 1 - t][None, None, :]
        kv = k_shift * v
        L = 2 * S
        kv_pad = _pad(kv, ((0, 0), (0, S), (0, 0)))
        kf_pad = _pad(ssm_k, ((0, 0), (0, S)))
        kv_f = (lambda x, axes=(-2,-1): torch.fft.rfft2(x.float(), dim=axes))(kv_pad[:, None, :, :], axes=(1, 2))
        kf_f = (lambda x, axes=(-2,-1): torch.fft.rfft2(x.float(), dim=axes))(kf_pad[:, None, :], axes=(1, 2))
        kf_f = (lambda x, *d: x.permute(*d))(kf_f, 1, 2, 0)
        y_f = kv_f * kf_f[None, :, :, :]
        y = (lambda x, s, axes=(-2,-1): torch.fft.irfft2(x, s=s, dim=axes).to(torch.bfloat16))(y_f, (1, L), axes=(1, 2))[:, 0, :S, :]
        y = y + kv * ssm_D[None, None, :]
        return q * y

    def _B_ref(x, w1, w2, w3, w4):
        B, S, D = x.shape
        h = _gelu(_layernorm(x, axis=-1) @ w1)
        c = D // 4
        g0 = _pad(h[:, :, 0*c:1*c], ((0, 0), (1, 0), (0, 0)))[:, :S, :]
        g1 = _pad(h[:, :, 1*c:2*c], ((0, 0), (0, 1), (0, 0)))[:, 1:, :]
        g2 = _pad(h[:, :, 2*c:3*c], ((0, 0), (2, 0), (0, 0)))[:, :S, :]
        g3 = _pad(h[:, :, 3*c:   ], ((0, 0), (0, 2), (0, 0)))[:, 2:, :]
        hs = torch.concatenate([g0, g1, g2, g3], axis=-1) @ w2
        x1 = x + hs
        h2 = _gelu(_layernorm(x1, axis=-1) @ w3) @ w4
        return x1 + h2

    x = A_q
    g = _sigmoid((x * gate_w).sum(-1, keepdims=True))
    a = _A_ref(x, A_k, A_v, A_shift_k, A_ssm_k, A_ssm_D)
    b = _B_ref(x, B_w1, B_w2, B_w3, B_w4)
    return g * a + (1 - g) * b
```

```python
class Asm:
    def __init__(self):
        self.lines = []
        self.kernels = []
        self.launches = []
        self._lab = 0
    def e(self, s):
        for ln in s.strip("\n").split("\n"):
            self.lines.append("    " + ln.strip())
    def label(self, name):
        self.lines.append(name + ":")
    def newlabel(self, p="L"):
        self._lab += 1
        return f"{p}_{self._lab}"
    def begin(self, name):
        self.lines.append(f".globl {name}")
        self.lines.append(".p2align 8")
        self.lines.append(f".type {name},@function")
        self.lines.append(f"{name}:")
    def end(self, name, vgpr, sgpr=102, accum=None, wgy=False):
        if accum is None:
            accum = (vgpr + 3) // 4 * 4
        self.kernels.append((name, vgpr, sgpr, accum, wgy))
    def launch(self, name, grid, block, lds):
        self.launches.append(f"; @launch kernel={name} grid=({grid[0]},{grid[1]},{grid[2]}) block=({block},1,1) lds={lds}")
    def srd(self, d, base, nbytes):
        self.e(f"s_mov_b32 s{d}, s{base}")
        self.e(f"s_and_b32 s{d+1}, s{base+1}, 0xffff")
        self.e(f"s_mov_b32 s{d+2}, {nbytes}")
        self.e(f"s_mov_b32 s{d+3}, 0x20000")
    def text(self, header=""):
        out = []
        if header:
            out.append(header.rstrip("\n"))
        out += self.launches
        out.append('.amdgcn_target "amdgcn-amd-amdhsa--gfx950"')
        out.append(".text")
        out += self.lines
        out.append('.section .rodata,"a"')
        for (name, vgpr, sgpr, accum, wgy) in self.kernels:
            out.append(".p2align 6")
            out.append(f".amdhsa_kernel {name}")
            out.append(f"  .amdhsa_next_free_vgpr {vgpr}")
            out.append(f"  .amdhsa_next_free_sgpr {sgpr}")
            out.append(f"  .amdhsa_accum_offset {accum}")
            out.append("  .amdhsa_group_segment_fixed_size 0")
            out.append("  .amdhsa_kernarg_size 120")
            out.append("  .amdhsa_user_sgpr_count 2")
            out.append("  .amdhsa_user_sgpr_kernarg_segment_ptr 1")
            out.append("  .amdhsa_system_sgpr_workgroup_id_x 1")
            if wgy:
                out.append("  .amdhsa_system_sgpr_workgroup_id_y 1")
            out.append(".end_amdhsa_kernel")
        return "\n".join(out) + "\n"
```

```python
import sys, math
from asmlib import Asm

S, D, F = 2048, 576, 4608
OFF_HS, OFF_X1, OFF_UR, OFF_Z4 = 0x0, 0x240000, 0x480000, 0x900000
OFF_ST, OFF_G, OFF_CS3 = 0xB40000, 0xB80000, 0xB90000
OFF_H2, OFF_PART = 0xC00000, 0x1E00000
SZ_ACT = S * D * 2
KA = dict(q=0, k=8, v=16, shk=24, ssmk=32, ssmD=40, w1=56, w2=64, w3=72, w4=80, gw=88, out=96, dbg=104, ws=112)
import struct
def f2u(x): return struct.unpack("<I", struct.pack("<f", x))[0]
GK = 2.0 * 0.7978845608028654 * 1.4426950408889634

class K(Asm):
    def __init__(self):
        super().__init__()
        self.vm = []
        self.lg = []
    def reset(self):
        self.vm = []; self.lg = []
    def vmem(self, s, tag=None):
        self.e(s); self.vm.append(tag)
    def lds(self, s, tag=None):
        self.e(s); self.lg.append(tag)
    def wait_vm(self, tag):
        idx = max(i for i, t in enumerate(self.vm) if t == tag)
        n = len(self.vm) - 1 - idx
        assert n <= 63
        self.e(f"s_waitcnt vmcnt({n})")
        self.vm = self.vm[idx+1:]
    def wait_vm_if(self, tag):
        if tag in self.vm: self.wait_vm(tag)
    def wait_lg(self, tag):
        idx = max(i for i, t in enumerate(self.lg) if t == tag)
        n = len(self.lg) - 1 - idx
        if n > 15: n = 15; idx = len(self.lg) - 1 - 15
        self.e(f"s_waitcnt lgkmcnt({n})")
        self.lg = self.lg[idx+1:]
    def wait_lg_if(self, tag):
        if tag in self.lg: self.wait_lg(tag)
    def wait_all(self):
        self.e("s_waitcnt vmcnt(0) lgkmcnt(0)"); self.reset()
    def wait_lg0(self):
        self.e("s_waitcnt lgkmcnt(0)"); self.lg = []
    def wait_vm0(self):
        self.e("s_waitcnt vmcnt(0)"); self.vm = []
    def ldarg(self, sreg, name):
        self.e(f"s_load_dwordx2 s[{sreg}:{sreg+1}], s[0:1], {KA[name]}")
    def srd_off(self, d, base, off, nbytes):
        self.e(f"s_add_u32 s{d}, s{base}, {off}")
        self.e(f"s_addc_u32 s{d+1}, s{base+1}, 0")
        self.e(f"s_and_b32 s{d+1}, s{d+1}, 0xffff")
        self.e(f"s_mov_b32 s{d+2}, {nbytes}")
        self.e(f"s_mov_b32 s{d+3}, 0x20000")
    def mfma(self, acc, a, b, c=None):
        cs = f"{acc}" if c is None else c
        self.e(f"v_mfma_f32_16x16x32_bf16 {acc}, {a}, {b}, {cs}")
    def bf16r(self, d, s):
        self.e(f"v_cvt_pk_bf16_f32 v{d}, v{s}, v{s}")
        self.e(f"v_lshlrev_b32 v{d}, 16, v{d}")
    def xsum4(self, v, t):
        self.e(f"v_mov_b32 v{t}, v{v}")
        self.e("s_nop 1")
        self.e(f"v_permlane32_swap_b32 v{v}, v{t}")
        self.e("s_nop 1")
        self.e(f"v_add_f32 v{v}, v{v}, v{t}")
        self.e(f"v_mov_b32 v{t}, v{v}")
        self.e("s_nop 1")
        self.e(f"v_permlane16_swap_b32 v{v}, v{t}")
        self.e("s_nop 1")
        self.e(f"v_add_f32 v{v}, v{v}, v{t}")
    def ln_consts(self, vsum, vsq, negm, c1, c2, sd, t):
        self.e(f"v_mul_f32 v{vsum}, {hex(f2u(1.0/576))}, v{vsum}")
        self.e(f"v_mul_f32 v{vsq}, {hex(f2u(1.0/576))}, v{vsq}")
        self.e(f"v_fma_f32 v{vsq}, -v{vsum}, v{vsum}, v{vsq}")
        self.e(f"v_max_f32 v{vsq}, 0, v{vsq}")
        self.bf16r(negm, vsum)
        self.e(f"v_xor_b32 v{negm}, 0x80000000, v{negm}")
        self.bf16r(vsq, vsq)
        self.e(f"v_add_f32 v{vsq}, {hex(f2u(1e-5))}, v{vsq}")
        self.bf16r(vsq, vsq)
        self.e(f"v_sqrt_f32 v{vsq}, v{vsq}")
        self.e("s_nop 0")
        self.bf16r(sd, vsq)
        self.e(f"v_rcp_f32 v{t}, v{sd}")
        self.e("s_nop 0")
        self.e(f"v_mul_f32 v{c1}, {hex(f2u(-GK))}, v{t}")
        self.e(f"v_mul_f32 v{c2}, v{t}, v{t}")
        self.e(f"v_mul_f32 v{c2}, v{c2}, v{c1}")
        self.e(f"v_mul_f32 v{c2}, {hex(f2u(0.044715))}, v{c2}")
    def gelu_seq(self, a, t, c1, c2, sd):
        return [f"v_mul_f32 v{t}, v{a}, v{a}",
                f"v_fma_f32 v{t}, v{t}, v{c2}, v{c1}",
                f"v_mul_f32 v{t}, v{a}, v{t}",
                f"v_exp_f32 v{t}, v{t}",
                f"v_fma_f32 v{t}, v{t}, v{sd}, v{sd}",
                f"v_rcp_f32 v{t}, v{t}",
                f"v_mul_f32 v{t}, v{a}, v{t}"]

def interleave(seqs):
    out = []
    n = max(len(s) for s in seqs)
    for i in range(n):
        for s in seqs:
            if i < len(s): out.append(s[i])
    return out
def vr(b, n=4): return f"v[{b}:{b+n-1}]"

def small_gemm(a, which, done):
    a.reset()
    sW, sX, sWS, sGW, sQ = 4, 6, 8, 10, 12
    rW, rA, rO, rQ, rS = 16, 20, 24, 28, 32
    sTM, sTN, sWV = 36, 37, 38
    a.ldarg(sW, "w1" if which == 1 else "w2")
    a.ldarg(sQ, "q")
    a.ldarg(sWS, "ws")
    if which == 1: a.ldarg(sGW, "gw")
    a.e(f"""
    s_and_b32 s40, s3, 7
    s_lshr_b32 s41, s3, 3
    s_cmp_ge_u32 s41, 9
    s_cselect_b32 s42, 1, 0
    s_lshl_b32 s{sTM}, s40, 1
    s_add_u32 s{sTM}, s{sTM}, s42
    s_mul_i32 s42, s42, 9
    s_sub_u32 s{sTN}, s41, s42
    v_lshrrev_b32 v1, 6, v0
    v_and_b32 v0, 63, v0
    v_readfirstlane_b32 s{sWV}, v1
    v_and_b32 v2, 15, v0
    v_lshrrev_b32 v3, 4, v0
    """)
    vXA, vWD, vTR, vSTA = 4, 5, 6, 10
    XF = 16
    ACC = 160
    ST = 192
    CS = 200
    WF = 216
    SF = 248
    SQ = 12
    a.e("s_waitcnt lgkmcnt(0)")
    a.srd(rW, sW, D*D*2)
    a.srd(rQ, sQ, SZ_ACT)
    if which == 1:
        a.srd_off(rO, sWS, OFF_HS, SZ_ACT)
        a.srd_off(rS, sWS, OFF_G, S*4)
        a.srd(rA, sGW, D*2)
    else:
        a.srd_off(rA, sWS, OFF_HS, SZ_ACT)
        a.srd_off(rO, sWS, OFF_X1, SZ_ACT)
        a.srd_off(rS, sWS, OFF_ST, 9*S*8)
    a.e(f"""
    s_lshl_b32 s43, s{sTM}, 7
    s_lshl_b32 s44, s{sWV}, 5
    s_add_u32 s43, s43, s44
    """)
    if which == 1:
        a.e(f"s_lshl_b32 s45, s{sWV}, 10")
        a.e(f"v_lshl_add_u32 v14, v0, 4, s45")
        a.vmem(f"buffer_load_dwordx4 {vr(WF)}, v14, s[{rA}:{rA+3}], 0 offen", "gw")
        a.e(f"v_add_u32 v{vXA}, s43, v2")
        a.e(f"v_mul_u32_u24 v{vXA}, 1152, v{vXA}")
        a.e(f"v_lshl_add_u32 v{vXA}, v3, 4, v{vXA}")
        a.e(f"s_mov_b32 s46, {16*1152}")
    else:
        a.e(f"s_lshr_b32 s45, s43, 4")
        a.e(f"s_mul_i32 s45, s45, 18432")
        a.e(f"v_lshl_add_u32 v{vXA}, v0, 4, s45")
    a.e(f"""
    v_lshrrev_b32 v14, 3, v0
    s_lshl_b32 s45, s{sWV}, 3
    v_add_u32 v14, s45, v14
    v_and_b32 v15, 6, v14
    v_and_b32 v{vWD}, 7, v0
    v_xor_b32 v{vWD}, v{vWD}, v15
    v_lshlrev_b32 v{vWD}, 4, v{vWD}
    """)
    if which == 1:
        a.e(f"""
        v_and_b32 v15, 12, v14
        v_lshlrev_b32 v15, 1, v15
        v_and_b32 v11, 3, v14
        v_add_u32 v15, v15, v11
        v_lshrrev_b32 v11, 4, v14
        v_lshl_add_u32 v14, v11, 2, v15
        """)
    a.e(f"""
    v_mul_u32_u24 v14, 1152, v14
    v_add_u32 v{vWD}, v{vWD}, v14
    s_lshl_b32 s45, s{sTN}, 7
    v_add_u32 v{vWD}, s45, v{vWD}
    s_lshl_b32 s47, s{sWV}, 10
    s_mov_b32 s48, 0
    s_mov_b32 s49, 0
    """)
    for ks in range(18):
        a.e(f"s_add_u32 m0, s47, {ks*4096}")
        if which == 2:
            a.e(f"s_add_u32 s50, s49, 18432")
        else:
            a.e("s_nop 0")
        a.vmem(f"buffer_load_dwordx4 v{vWD}, s[{rW}:{rW+3}], s48 offen lds", f"k{ks}")
        a.e(f"s_add_u32 s48, s48, {32*1152}")
        if which == 1:
            a.vmem(f"buffer_load_dwordx4 {vr(XF+ks*4)}, v{vXA}, s[{rQ}:{rQ+3}], 0 offen offset:{ks*64}", f"k{ks}")
            a.vmem(f"buffer_load_dwordx4 {vr(XF+72+ks*4)}, v{vXA}, s[{rQ}:{rQ+3}], s46 offen offset:{ks*64}", f"k{ks}")
        else:
            a.vmem(f"buffer_load_dwordx4 {vr(XF+ks*4)}, v{vXA}, s[{rA}:{rA+3}], s49 offen", f"k{ks}")
            a.vmem(f"buffer_load_dwordx4 {vr(XF+72+ks*4)}, v{vXA}, s[{rA}:{rA+3}], s50 offen", f"k{ks}")
            a.e(f"s_add_u32 s49, s49, 1024")
    a.e(f"""
    v_lshrrev_b32 v14, 2, v0
    v_lshlrev_b32 v14, 7, v14
    v_and_b32 v15, 3, v0
    v_lshl_add_u32 v14, v15, 3, v14
    v_bfe_u32 v15, v0, 3, 2
    """)
    if which == 1:
        a.e(f"v_xor_b32 v15, s{sWV}, v15")
    for i in range(4):
        a.e(f"v_xor_b32 v11, {i}, v15")
        a.e(f"v_lshl_add_u32 v{vTR+i}, v11, 5, v14")
    LST = 73728
    if which == 1:
        a.e(f"""
        v_and_b32 v11, 3, v0
        v_mov_b32 v{vSTA}, {LST+2304}
        v_mov_b32 v14, {LST+1152}
        v_cmp_eq_u32 vcc, 0, v11
        s_nop 1
        v_cndmask_b32 v{vSTA}, v{vSTA}, v14, vcc
        v_mov_b32 v14, {LST}
        v_cmp_eq_u32 vcc, 1, v11
        s_nop 1
        v_cndmask_b32 v{vSTA}, v{vSTA}, v14, vcc
        v_lshl_add_u32 v{vSTA}, v3, 4, v{vSTA}
        v_mov_b32 v{SF+4}, 0x3f803f80
        v_mov_b32 v{SF+5}, 0x3f803f80
        v_mov_b32 v{SF+6}, 0x3f803f80
        v_mov_b32 v{SF+7}, 0x3f803f80
        v_mov_b32 v{SF}, 0
        v_mov_b32 v{SF+1}, 0
        v_mov_b32 v{SF+2}, 0
        v_mov_b32 v{SF+3}, 0
        v_mov_b32 v{SQ}, 0
        v_mov_b32 v{SQ+1}, 0
        """)
        a.e(f"s_lshl_b32 s45, s{sWV}, 10")
        a.e(f"v_lshl_add_u32 v14, v0, 4, s45")
        a.e(f"v_cmp_gt_u32 vcc, 1152, v14")
        a.e(f"v_add_u32 v14, {LST}, v14")
        a.wait_vm("gw")
        a.e("s_and_saveexec_b64 s[52:53], vcc")
        a.e(f"ds_write_b128 v14, {vr(WF)}")
        a.e(f"ds_write_b128 v14, {vr(SF+4)} offset:1152")
        a.e(f"ds_write_b128 v14, {vr(SF)} offset:2304")
        a.e("s_mov_b64 exec, s[52:53]")
        a.e("s_waitcnt lgkmcnt(0)")
    else:
        a.e(f"v_add_u32 v14, s43, v2")
        a.e(f"v_mul_u32_u24 v14, 1152, v14")
        a.e(f"v_lshl_add_u32 v14, v3, 3, v14")
        a.e(f"s_lshl_b32 s45, s{sTN}, 7")
        a.e(f"s_add_u32 s46, s45, {16*1152}")
        for tt in range(2):
            for i in range(4):
                a.vmem(f"buffer_load_dwordx2 {vr(192+(tt*4+i)*2, 2)}, v14, s[{rQ}:{rQ+3}], s{45+tt} offen offset:{i*32}", "xres")
    groups = [[0], [1, 2], [3, 4, 5], [6, 7, 8], [9, 10, 11], [12, 13, 14], [15, 16, 17]]
    def wread(ks):
        buf = WF + (ks & 1) * 16
        off = ks * 4096
        if ks == 16:
            for i in range(4): a.e(f"v_add_u32 v{vTR+i}, 0x10000, v{vTR+i}")
        if ks >= 16: off -= 65536
        for i in range(4):
            a.lds(f"ds_read_b64_tr_b16 {vr(buf+i*4, 2)}, v{vTR+i} offset:{off}", f"w{ks}")
            a.lds(f"ds_read_b64_tr_b16 {vr(buf+i*4+2, 2)}, v{vTR+i} offset:{off+2048}", f"w{ks}")
    for g in groups:
        a.wait_vm(f"k{g[-1]}")
        a.e("s_barrier")
        wread(g[0])
        for j, ks in enumerate(g):
            if which == 1:
                a.lds(f"ds_read_b128 {vr(SF)}, v{vSTA} offset:{ks*64}", f"w{ks}")
            if j + 1 < len(g):
                a.wait_lg(f"w{ks}")
                wread(g[j+1])
            else:
                a.wait_lg(f"w{ks}")
            buf = WF + (ks & 1) * 16
            for i in range(4):
                for tt in range(2):
                    acc = vr(ACC + tt*16 + i*4)
                    a.mfma(acc, vr(buf+i*4), vr(XF+tt*72+ks*4), "0" if ks == 0 else None)
            if which == 1:
                a.mfma(vr(CS), vr(buf), vr(SF+4), "0" if ks == 0 else None)
                for tt in range(2):
                    a.mfma(vr(ST+tt*4), vr(SF), vr(XF+tt*72+ks*4), "0" if ks == 0 else None)
                for tt in range(2):
                    for r in range(4):
                        x = XF+tt*72+ks*4+r
                        a.e(f"v_dot2c_f32_bf16 v{SQ+tt}, v{x}, v{x}")
    a.e("s_nop 7")
    a.e("s_nop 1")
    if which == 1:
        a.e(f"s_lshl_b32 s45, s{sWV}, 6")
        a.e(f"v_lshl_add_u32 v14, v3, 4, s45")
        a.e(f"v_add_u32 v14, {LST+3456}, v14")
        a.e(f"v_cmp_eq_u32 vcc, 0, v2")
        a.e("s_and_saveexec_b64 s[52:53], vcc")
        a.e(f"ds_write_b128 v14, {vr(CS)}")
        a.e("s_mov_b64 exec, s[52:53]")
        a.e("s_waitcnt lgkmcnt(0)")
        a.e("s_barrier")
        for i in range(4):
            a.e(f"s_xor_b32 s45, s{sWV}, {i}")
            a.e(f"s_lshl_b32 s45, s45, 6")
            a.e(f"v_lshl_add_u32 v14, v3, 4, s45")
            a.e(f"v_add_u32 v14, {LST+3456}, v14")
            a.e(f"ds_read_b128 {vr(CS+i*4)}, v14")
        C = 16
        for tt in range(2):
            a.xsum4(SQ+tt, 14)
            a.ln_consts(ST+tt*4, SQ+tt, C+tt*4, C+tt*4+1, C+tt*4+2, C+tt*4+3, 14)
        lab = a.newlabel("nog")
        a.e(f"s_cmp_lg_u32 s{sTN}, 0")
        a.e(f"s_cbranch_scc1 {lab}")
        for tt in range(2):
            g = 24 + tt
            a.bf16r(g, ST+tt*4+1)
            a.e(f"v_mul_f32 v{g}, {hex(f2u(-1.4426950408889634))}, v{g}")
            a.e(f"v_exp_f32 v{g}, v{g}")
            a.e("s_nop 0")
            a.e(f"v_add_f32 v{g}, 1.0, v{g}")
            a.e(f"v_rcp_f32 v{g}, v{g}")
            a.e("s_nop 0")
            a.bf16r(g, g)
        a.e(f"v_add_u32 v14, s43, v2")
        a.e(f"v_lshlrev_b32 v14, 2, v14")
        a.e(f"v_cmp_eq_u32 vcc, 0, v3")
        a.e("s_and_saveexec_b64 s[52:53], vcc")
        a.e(f"buffer_store_dword v24, v14, s[{rS}:{rS+3}], 0 offen")
        a.e(f"buffer_store_dword v25, v14, s[{rS}:{rS+3}], 0 offen offset:64")
        a.e("s_mov_b64 exec, s[52:53]")
        a.label(lab)
        a.e("s_waitcnt lgkmcnt(0)")
        T = 32
        for i in range(4):
            a.e(f"""
            s_xor_b32 s45, s{sWV}, {i}
            s_lshl_b32 s46, s{sTN}, 2
            s_add_u32 s45, s45, s46
            s_mul_i32 s46, s45, 57
            s_lshr_b32 s46, s46, 9
            s_lshr_b32 s47, s46, 1
            s_add_u32 s47, s47, 1
            s_sub_u32 s48, 0, s47
            s_bitcmp1_b32 s46, 0
            s_cselect_b32 s47, s48, s47
            s_add_u32 s47, s47, s43
            s_lshr_b32 s48, s45, 1
            s_lshl_b32 s48, s48, 10
            s_and_b32 s49, s45, 1
            s_lshl_b32 s49, s49, 3
            s_add_u32 s48, s48, s49
            """)
            seqs = []
            for tt in range(2):
                for r in range(4):
                    acc = ACC + tt*16 + i*4 + r
                    seqs.append([f"v_fma_f32 v{acc}, v{C+tt*4}, v{CS+i*4+r}, v{acc}"] +
                                a.gelu_seq(acc, T+tt*4+r, C+tt*4+1, C+tt*4+2, C+tt*4+3))
            for x in interleave(seqs): a.e(x)
            for tt in range(2):
                P = 64 + (i*2+tt)*2
                a.e(f"v_cvt_pk_bf16_f32 v{P}, v{T+tt*4}, v{T+tt*4+1}")
                a.e(f"v_cvt_pk_bf16_f32 v{P+1}, v{T+tt*4+2}, v{T+tt*4+3}")
                ad = 96 + i*2 + tt
                a.e(f"v_add_u32 v{ad}, s47, v2")
                if tt: a.e(f"v_add_u32 v{ad}, 16, v{ad}")
                a.e(f"v_cmp_gt_u32 vcc, {S}, v{ad}")
                a.e(f"v_and_b32 v{ad}, {S-1}, v{ad}")
                a.e(f"v_lshrrev_b32 v14, 4, v{ad}")
                a.e(f"v_mul_u32_u24 v14, 18432, v14")
                a.e(f"v_cndmask_b32 v{P}, 0, v{P}, vcc")
                a.e(f"v_cndmask_b32 v{P+1}, 0, v{P+1}, vcc")
                a.e(f"v_and_b32 v{ad}, 15, v{ad}")
                a.e(f"v_lshl_add_u32 v{ad}, v3, 4, v{ad}")
                a.e(f"v_lshl_add_u32 v{ad}, v{ad}, 4, v14")
                a.e(f"buffer_store_dwordx2 {vr(P,2)}, v{ad}, s[{rO}:{rO+3}], s48 offen")
    else:
        a.wait_vm0()
        T = 16
        a.e(f"s_lshr_b32 s45, s43, 4")
        a.e(f"s_mul_i32 s45, s45, 18432")
        a.e(f"s_lshl_b32 s46, s{sTN}, 11")
        a.e(f"s_add_u32 s45, s45, s46")
        a.e(f"s_add_u32 s46, s45, 18432")
        a.e(f"v_lshlrev_b32 v15, 4, v0")
        for tt in range(2):
            sm, sq = 12, 13
            for i in range(4):
                acc = ACC + tt*16 + i*4
                xr = 192 + (tt*4+i)*2
                t = T + i*8
                P = 64 + tt*8 + i*2
                a.e(f"v_cvt_pk_bf16_f32 v{t}, v{acc}, v{acc+1}")
                a.e(f"v_cvt_pk_bf16_f32 v{t+1}, v{acc+2}, v{acc+3}")
                a.e(f"v_lshlrev_b32 v{acc}, 16, v{t}")
                a.e(f"v_and_b32 v{acc+1}, 0xffff0000, v{t}")
                a.e(f"v_lshlrev_b32 v{acc+2}, 16, v{t+1}")
                a.e(f"v_and_b32 v{acc+3}, 0xffff0000, v{t+1}")
                a.e(f"v_lshlrev_b32 v{t+2}, 16, v{xr}")
                a.e(f"v_and_b32 v{t+3}, 0xffff0000, v{xr}")
                a.e(f"v_lshlrev_b32 v{t+4}, 16, v{xr+1}")
                a.e(f"v_and_b32 v{t+5}, 0xffff0000, v{xr+1}")
                for r in range(4):
                    a.e(f"v_add_f32 v{acc+r}, v{acc+r}, v{t+2+r}")
                a.e(f"v_cvt_pk_bf16_f32 v{P}, v{acc}, v{acc+1}")
                a.e(f"v_cvt_pk_bf16_f32 v{P+1}, v{acc+2}, v{acc+3}")
                a.e(f"v_lshlrev_b32 v{acc}, 16, v{P}")
                a.e(f"v_and_b32 v{acc+1}, 0xffff0000, v{P}")
                a.e(f"v_lshlrev_b32 v{acc+2}, 16, v{P+1}")
                a.e(f"v_and_b32 v{acc+3}, 0xffff0000, v{P+1}")
                for r in range(4):
                    if i == 0 and r == 0:
                        a.e(f"v_mov_b32 v{sm}, v{acc}")
                        a.e(f"v_mul_f32 v{sq}, v{acc}, v{acc}")
                    else:
                        a.e(f"v_add_f32 v{sm}, v{sm}, v{acc+r}")
                        a.e(f"v_fma_f32 v{sq}, v{acc+r}, v{acc+r}, v{sq}")
            P = 64 + tt*8
            a.e(f"buffer_store_dwordx4 {vr(P)}, v15, s[{rO}:{rO+3}], s{45+tt} offen")
            a.e(f"buffer_store_dwordx4 {vr(P+4)}, v15, s[{rO}:{rO+3}], s{45+tt} offen offset:1024")
            a.xsum4(sm, 14)
            a.xsum4(sq, 14)
            a.e(f"v_add_u32 v14, s43, v2")
            a.e(f"v_lshlrev_b32 v14, 3, v14")
            a.e(f"s_lshl_b32 s47, s{sTN}, 14")
            a.e(f"v_mov_b32 v{80+tt*2}, v{sm}")
            a.e(f"v_mov_b32 v{81+tt*2}, v{sq}")
            a.e(f"v_cmp_eq_u32 vcc, 0, v3")
            a.e("s_and_saveexec_b64 s[52:53], vcc")
            a.e(f"buffer_store_dwordx2 {vr(80+tt*2,2)}, v14, s[{rS}:{rS+3}], s47 offen offset:{tt*128}")
            a.e("s_mov_b64 exec, s[52:53]")
    a.e(f"s_branch {done}")

def prep(a, done):
    a.reset()
    rK, rV, rSH, rU = 16, 20, 24, 28
    a.ldarg(4, "k"); a.ldarg(6, "v"); a.ldarg(8, "shk"); a.ldarg(10, "ws")
    a.e(f"""
    v_lshrrev_b32 v1, 6, v0
    v_and_b32 v0, 63, v0
    v_readfirstlane_b32 s38, v1
    v_and_b32 v2, 15, v0
    v_lshrrev_b32 v3, 4, v0
    s_lshl_b32 s36, s3, 2
    s_add_u32 s36, s36, s38
    s_mul_i32 s37, s36, 7282
    s_lshr_b32 s37, s37, 16
    s_mul_i32 s39, s37, 9
    s_sub_u32 s39, s36, s39
    """)
    a.e("s_waitcnt lgkmcnt(0)")
    a.srd(rK, 4, SZ_ACT); a.srd(rV, 6, SZ_ACT); a.srd(rSH, 8, D*8)
    a.srd_off(rU, 10, OFF_UR, D*8192)
    a.e(f"""
    s_lshl_b32 s40, s37, 5
    v_lshl_add_u32 v4, v3, 3, s40
    s_lshl_b32 s41, s39, 6
    v_lshl_add_u32 v5, v2, 2, s41
    v_mul_u32_u24 v6, 1152, v4
    v_lshl_add_u32 v7, v5, 1, v6
    v_subrev_u32 v6, 4608, v7
    v_add_u32 v8, 4608, v7
    v_lshlrev_b32 v9, 3, v5
    """)
    KR, VR, WR = 16, 40, 60
    a.vmem(f"buffer_load_dwordx4 {vr(WR)}, v9, s[{rSH}:{rSH+3}], 0 offen")
    a.vmem(f"buffer_load_dwordx4 {vr(WR+4)}, v9, s[{rSH}:{rSH+3}], 0 offen offset:16")
    for r in range(12):
        a.vmem(f"buffer_load_dwordx2 {vr(KR+2*r,2)}, v{6+r//4}, s[{rK}:{rK+3}], 0 offen offset:{(r%4)*1152}")
    for r in range(9):
        rr = r + 3
        a.vmem(f"buffer_load_dwordx2 {vr(VR+2*r,2)}, v{6+rr//4}, s[{rV}:{rV+3}], 0 offen offset:{(rr%4)*1152}")
    a.e(f"""
    v_lshlrev_b32 v10, 13, v5
    v_sub_u32 v11, 2040, v4
    v_lshl_add_u32 v10, v11, 1, v10
    s_mov_b32 s42, 0
    """)
    a.wait_vm0()
    KF, WFl, U, VF, P = 72, 84, 88, 100, 112
    for ch in range(4):
        un = (lambda d, s: f"v_lshlrev_b32 v{d}, 16, v{s}") if ch % 2 == 0 else (lambda d, s: f"v_and_b32 v{d}, 0xffff0000, v{s}")
        for r in range(12): a.e(un(KF+r, KR+2*r+ch//2))
        for r in range(9): a.e(un(VF+r, VR+2*r+ch//2))
        a.e(f"v_lshlrev_b32 v{WFl}, 16, v{WR+2*ch}")
        a.e(f"v_and_b32 v{WFl+1}, 0xffff0000, v{WR+2*ch}")
        a.e(f"v_lshlrev_b32 v{WFl+2}, 16, v{WR+2*ch+1}")
        a.e(f"v_and_b32 v{WFl+3}, 0xffff0000, v{WR+2*ch+1}")
        for e in range(9): a.e(f"v_mul_f32 v{U+e}, v{KF+e}, v{WFl+3}")
        for j in (2, 1, 0):
            for e in range(9): a.e(f"v_fma_f32 v{U+e}, v{KF+e+3-j}, v{WFl+j}, v{U+e}")
        for e in range(9): a.e(f"v_mul_f32 v{U+e}, v{U+e}, v{VF+e}")
        PP = P + ch*8
        for m in range(4):
            a.e(f"v_cvt_pk_bf16_f32 v{PP+m}, v{U+8-2*m}, v{U+7-2*m}")
            a.e(f"v_cvt_pk_bf16_f32 v{PP+4+m}, v{U+7-2*m}, v{U+6-2*m}")
        a.e(f"buffer_store_dwordx4 {vr(PP)}, v10, s[{rU}:{rU+3}], s42 offen")
        a.e(f"s_add_u32 s42, s42, 4096")
        a.e(f"buffer_store_dwordx4 {vr(PP+4)}, v10, s[{rU}:{rU+3}], s42 offen")
        a.e(f"s_add_u32 s42, s42, 4096")
    a.e(f"s_branch {done}")

def colsum3(a, done):
    a.reset()
    rW, rC = 16, 20
    a.ldarg(4, "w3"); a.ldarg(10, "ws")
    a.e(f"""
    v_lshrrev_b32 v1, 3, v0
    v_and_b32 v2, 7, v0
    v_mul_u32_u24 v3, 9216, v1
    v_lshl_add_u32 v3, v2, 4, v3
    s_lshl_b32 s36, s3, 7
    s_waitcnt lgkmcnt(0)
    """)
    a.srd(rW, 4, D*F*2)
    a.srd_off(rC, 10, OFF_CS3, F*4)
    for i in range(18):
        a.vmem(f"buffer_load_dwordx4 {vr(16+4*i)}, v3, s[{rW}:{rW+3}], s36 offen", i)
        a.e(f"s_add_u32 s36, s36, {32*9216}")
    for i in range(18):
        a.wait_vm(i)
        for r in range(4):
            x = 16+4*i+r
            if i == 0:
                a.e(f"v_lshlrev_b32 v{8+2*r}, 16, v{x}")
                a.e(f"v_and_b32 v{9+2*r}, 0xffff0000, v{x}")
            else:
                a.e(f"v_lshlrev_b32 v4, 16, v{x}")
                a.e(f"v_and_b32 v5, 0xffff0000, v{x}")
                a.e(f"v_add_f32 v{8+2*r}, v{8+2*r}, v4")
                a.e(f"v_add_f32 v{9+2*r}, v{9+2*r}, v5")
    a.e(f"""
    v_lshlrev_b32 v4, 5, v0
    ds_write_b128 v4, v[8:11]
    ds_write_b128 v4, v[12:15] offset:16
    s_waitcnt lgkmcnt(0)
    s_barrier
    v_cmp_gt_u32 vcc, 64, v0
    s_and_saveexec_b64 s[52:53], vcc
    s_cbranch_execz {done}
    v_lshlrev_b32 v4, 2, v0
    """)
    for half in range(2):
        for r in range(16):
            a.e(f"ds_read_b32 v{16+r}, v4 offset:{(half*16+r)*256}")
            if r == 7: a.e("s_waitcnt lgkmcnt(0)")
        a.e("s_waitcnt lgkmcnt(0)")
        for r in range(16):
            if half == 0 and r == 0: a.e("v_mov_b32 v8, v16")
            else: a.e(f"v_add_f32 v8, v8, v{16+r}")
    a.e(f"s_lshl_b32 s36, s3, 8")
    a.e(f"buffer_store_dword v8, v4, s[{rC}:{rC+3}], s36 offen")
    a.e(f"s_branch {done}")

def conv(a, done):
    a.reset()
    rU, rH, rZ = 16, 20, 24
    RS = 13120
    a.ldarg(4, "ssmk"); a.ldarg(6, "ssmD"); a.ldarg(10, "ws")
    a.e(f"""
    v_lshrrev_b32 v1, 6, v0
    v_and_b32 v0, 63, v0
    v_readfirstlane_b32 s38, v1
    v_and_b32 v2, 15, v0
    v_lshrrev_b32 v3, 4, v0
    s_lshl_b32 s36, s3, 2
    s_add_u32 s36, s36, s38
    s_mul_i32 s39, s38, {RS}
    s_lshl_b32 s40, s3, 3
    s_waitcnt lgkmcnt(0)
    s_load_dwordx2 s[44:45], s[6:7], s40
    """)
    a.srd(rH, 4, D*S*2)
    a.srd_off(rU, 10, OFF_UR, D*8192)
    a.srd_off(rZ, 10, OFF_Z4, SZ_ACT)
    a.e(f"""
    v_lshlrev_b32 v4, 4, v0
    s_lshl_b32 s41, s36, 13
    s_lshl_b32 s42, s36, 12
    s_mov_b32 m0, s39
    s_add_u32 s43, s41, 4096
    """)
    for i in range(4):
        a.vmem(f"buffer_load_dwordx4 v4, s[{rU}:{rU+3}], s41 offen offset:{i*1024} lds")
    a.e(f"s_add_u32 m0, s39, 4160")
    a.e("s_nop 0")
    for i in range(4):
        a.vmem(f"buffer_load_dwordx4 v4, s[{rU}:{rU+3}], s43 offen offset:{i*1024} lds")
    a.e(f"s_add_u32 m0, s39, {8320+512}")
    a.e("s_nop 0")
    for i in range(4):
        a.vmem(f"buffer_load_dwordx4 v4, s[{rH}:{rH+3}], s42 offen offset:{i*1024} lds")
    a.e(f"""
    v_mov_b32 v8, 0
    v_mov_b32 v9, 0
    v_mov_b32 v10, 0
    v_mov_b32 v11, 0
    v_add_u32 v5, s39, v4
    v_cmp_gt_u32 vcc, 36, v0
    s_and_saveexec_b64 s[52:53], vcc
    ds_write_b128 v5, v[8:11] offset:8256
    v_cmp_gt_u32 vcc, 4, v0
    s_and_b64 exec, exec, vcc
    ds_write_b128 v5, v[8:11] offset:4096
    s_mov_b64 exec, s[52:53]
    """)
    a.e(f"""
    v_or_b32 v5, 1, v2
    v_sub_u32 v5, 15, v5
    v_lshl_add_u32 v5, v3, 3, v5
    v_lshlrev_b32 v5, 1, v5
    v_and_b32 v6, 1, v2
    v_xor_b32 v6, 1, v6
    v_mul_u32_u24 v6, 4160, v6
    v_add3_u32 v12, v5, v6, s39
    v_add_u32 v13, 1024, v12
    v_add_u32 v14, 2048, v12
    v_add_u32 v15, 3072, v12
    v_lshlrev_b32 v5, 5, v2
    v_lshl_add_u32 v5, v3, 4, v5
    v_add_u32 v7, s39, v5
    v_add_u32 v7, {8320+32}, v7
    """)
    a.e("s_waitcnt vmcnt(0) lgkmcnt(0)"); a.reset()
    ACC = 16; FB = 48
    def loads(rho):
        buf = FB + (rho & 1) * 64
        out = []
        for x in range(8):
            p = 8*x + rho
            boff = 64*(63-p)
            base = 12 + boff // 1024
            o = (boff % 1024) // 4
            out.append((f"ds_read2_b32 {vr(buf+x*4,2)}, v{base} offset0:{o} offset1:{o+1}", f"r{rho}"))
            out.append((f"ds_read2_b32 {vr(buf+x*4+2,2)}, v{base} offset0:{o+2} offset1:{o+3}", f"r{rho}"))
            n = 8*x - rho
            out.append((f"ds_read_b128 {vr(buf+32+x*4)}, v7 offset:{64*(n+7)}", f"r{rho}"))
        return out
    for (s, t) in loads(0):
        a.lds(s, t)
        if len(a.lg) >= 12: a.wait_lg0()
    for rho in range(8):
        a.wait_lg0()
        buf = FB + (rho & 1) * 64
        nxt = loads(rho+1) if rho < 7 else []
        k = 0; cnt = 0
        for c in range(8):
            for x in range(c+1):
                first = (rho == 0 and x == 0)
                a.mfma(vr(ACC+c*4), vr(buf+x*4), vr(buf+32+(c-x)*4), "0" if first else None)
                cnt += 1
                if k < len(nxt) and cnt <= 30:
                    a.lds(*nxt[k]); k += 1
                    if k in (12,):
                        pass
        assert k == len(nxt)
    a.e(f"""
    v_lshlrev_b32 v5, 5, v2
    v_lshl_add_u32 v5, v3, 3, v5
    v_sub_u32 v6, 504, v5
    v_add_u32 v6, s39, v6
    v_add_u32 v5, s39, v5
    s_lshr_b32 s46, s38, 1
    s_cmp_eq_u32 s46, 0
    s_cselect_b32 s44, s44, s45
    s_bitcmp1_b32 s38, 0
    s_cselect_b32 s46, 0, 16
    s_lshl_b32 s44, s44, s46
    s_and_b32 s44, s44, 0xffff0000
    """)
    U = 48
    for c in range(8):
        a.e(f"ds_read_b64 {vr(U+2*c,2)}, v6 offset:{512*(7-c)}")
    a.e("s_waitcnt lgkmcnt(0)")
    a.e("s_nop 7")
    for c in range(8):
        acc = ACC + c*4; t = 64 + c*8
        a.e(f"v_and_b32 v{t}, 0xffff0000, v{U+2*c+1}")
        a.e(f"v_lshlrev_b32 v{t+1}, 16, v{U+2*c+1}")
        a.e(f"v_and_b32 v{t+2}, 0xffff0000, v{U+2*c}")
        a.e(f"v_lshlrev_b32 v{t+3}, 16, v{U+2*c}")
        for r in range(4): a.e(f"v_mul_f32 v{t+r}, s44, v{t+r}")
        a.e(f"v_cvt_pk_bf16_f32 v{t+4}, v{t}, v{t+1}")
        a.e(f"v_cvt_pk_bf16_f32 v{t+5}, v{t+2}, v{t+3}")
        a.e(f"v_cvt_pk_bf16_f32 v{t+6}, v{acc}, v{acc+1}")
        a.e(f"v_cvt_pk_bf16_f32 v{t+7}, v{acc+2}, v{acc+3}")
        a.e(f"v_lshlrev_b32 v{t}, 16, v{t+4}")
        a.e(f"v_and_b32 v{t+1}, 0xffff0000, v{t+4}")
        a.e(f"v_lshlrev_b32 v{t+2}, 16, v{t+5}")
        a.e(f"v_and_b32 v{t+3}, 0xffff0000, v{t+5}")
        a.e(f"v_lshlrev_b32 v{acc}, 16, v{t+6}")
        a.e(f"v_and_b32 v{acc+1}, 0xffff0000, v{t+6}")
        a.e(f"v_lshlrev_b32 v{acc+2}, 16, v{t+7}")
        a.e(f"v_and_b32 v{acc+3}, 0xffff0000, v{t+7}")
        for r in range(4): a.e(f"v_add_f32 v{t+r}, v{t+r}, v{acc+r}")
        a.e(f"v_cvt_pk_bf16_f32 v{t+4}, v{t}, v{t+1}")
        a.e(f"v_cvt_pk_bf16_f32 v{t+5}, v{t+2}, v{t+3}")
        a.e(f"ds_write_b64 v5, {vr(t+4,2)} offset:{8320+512*c}")
    a.e("s_waitcnt lgkmcnt(0)")
    a.e("s_barrier")
    a.e(f"""
    v_bfe_u32 v5, v0, 2, 2
    v_mul_u32_u24 v5, {RS}, v5
    v_lshl_add_u32 v5, v3, 5, v5
    v_and_b32 v6, 3, v0
    v_lshl_add_u32 v5, v6, 3, v5
    s_lshl_b32 s46, s38, 10
    v_add_u32 v5, s46, v5
    v_lshlrev_b32 v6, 3, v0
    s_lshl_b32 s47, s3, 14
    s_lshl_b32 s46, s38, 12
    s_add_u32 s47, s47, s46
    """)
    for j in range(8):
        a.e(f"ds_read_b64_tr_b16 {vr(16+2*j,2)}, v5 offset:{8320+128*j}")
    a.e("s_waitcnt lgkmcnt(0)")
    for j in range(8):
        a.e(f"buffer_store_dwordx2 {vr(16+2*j,2)}, v6, s[{rZ}:{rZ+3}], s47 offen offset:{512*j}")
    a.e(f"s_branch {done}")

def k3(a):
    name = "k3_kernel"
    a.launch(name, (256,1,1), 512, 156672)
    a.begin(name)
    a.reset()
    done = "k3_done"
    rW, rX, rH, rS, rC = 16, 20, 24, 28, 32
    a.e(f"s_cmp_ge_u32 s2, 256")
    a.e(f"s_cbranch_scc1 {done}")
    a.ldarg(4, "w3"); a.ldarg(10, "ws")
    a.e(f"""
    s_and_b32 s40, s2, 7
    s_lshr_b32 s41, s2, 3
    s_and_b32 s36, s40, 1
    s_lshl_b32 s36, s36, 2
    s_and_b32 s42, s41, 3
    s_add_u32 s36, s36, s42
    s_lshr_b32 s37, s40, 1
    s_lshl_b32 s37, s37, 3
    s_lshr_b32 s42, s41, 2
    s_add_u32 s37, s37, s42
    v_lshrrev_b32 v1, 6, v0
    v_mov_b32 v4, v0
    v_readfirstlane_b32 s38, v1
    v_and_b32 v0, 63, v0
    v_and_b32 v2, 15, v0
    v_lshrrev_b32 v3, 4, v0
    """)
    a.e(f"""
    v_mul_u32_u24 v5, 3641, v4
    v_lshrrev_b32 v5, 16, v5
    v_mul_u32_u24 v6, 18, v5
    v_sub_u32 v6, v4, v6
    v_mul_u32_u24 v5, 9216, v5
    v_lshl_add_u32 v5, v6, 4, v5
    s_mul_i32 s42, s37, 288
    v_add_u32 v5, s42, v5
    s_lshl_b32 s43, s36, 4
    s_lshl_b32 s44, s38, 1
    s_add_u32 s43, s43, s44
    s_mul_i32 s45, s43, 18432
    v_lshl_add_u32 v7, v0, 4, s45
    s_lshl_b32 s47, s38, 10
    s_waitcnt lgkmcnt(0)
    """)
    a.srd(rW, 4, D*F*2)
    a.srd_off(rX, 10, OFF_X1, SZ_ACT)
    a.srd_off(rH, 10, OFF_H2, S*F*2)
    a.srd_off(rS, 10, OFF_ST, 9*S*8)
    a.srd_off(rC, 10, OFF_CS3, F*4)
    XF, ACC, WF = 16, 160, 232
    def adv():
        a.e(f"""
        v_add_u32 v6, 8, v6
        v_add_u32 v5, {28*9216+128}, v5
        v_cmp_le_u32 vcc, 18, v6
        v_subrev_u32 v8, 18, v6
        v_add_u32 v9, {9216-288}, v5
        v_cndmask_b32 v6, v6, v8, vcc
        v_cndmask_b32 v5, v5, v9, vcc
        """)
    a.e("s_mov_b32 s49, 0")
    a.e("s_mov_b32 s50, 18432")
    m = 0
    for ks in range(18):
        need = (9*ks + 8) // 8
        while m <= min(need, 18):
            a.e(f"s_add_u32 m0, s47, {m*8192}")
            a.e("s_nop 0")
            a.vmem(f"buffer_load_dwordx4 v5, s[{rW}:{rW+3}], 0 offen lds", f"k{ks}")
            adv()
            m += 1
        a.vmem(f"buffer_load_dwordx4 {vr(XF+ks*8)}, v7, s[{rX}:{rX+3}], s49 offen", f"k{ks}")
        a.vmem(f"buffer_load_dwordx4 {vr(XF+ks*8+4)}, v7, s[{rX}:{rX+3}], s50 offen", f"k{ks}")
        a.e("s_add_u32 s49, s49, 1024")
        a.e("s_add_u32 s50, s50, 1024")
    assert m == 19
    a.e(f"""
    v_lshrrev_b32 v10, 2, v0
    v_mul_u32_u24 v10, 288, v10
    v_and_b32 v11, 3, v0
    v_lshl_add_u32 v10, v11, 3, v10
    v_add_u32 v11, {7*9216}, v10
    v_add_u32 v12, {14*9216}, v10
    """)
    groups = [[0], [1], [2, 3], [4, 5, 6], [7, 8, 9, 10], [11, 12, 13, 14, 15], [16, 17]]
    seq = []
    fi = 0
    def wread(ks, t, slot):
        sl = ks if ks < 17 else 0
        base = 10 + sl // 7
        off = (sl % 7) * 9216 + t * 32
        a.lds(f"ds_read_b64_tr_b16 {vr(WF+slot*4,2)}, v{base} offset:{off}", (ks, t))
        a.lds(f"ds_read_b64_tr_b16 {vr(WF+slot*4+2,2)}, v{base} offset:{off+16*288}", (ks, t))
    for gi, g in enumerate(groups):
        if g[0] == 16:
            a.wait_vm0()
        else:
            a.wait_vm(f"k{g[-1]}")
        a.e("s_barrier")
        if gi == 2:
            a.e(f"s_sub_u32 s51, s47, 1024")
            a.e(f"s_cmp_eq_u32 s38, 0")
            a.e(f"s_cselect_b32 m0, {152*1024}, s51")
            a.e("s_nop 0")
            a.vmem(f"buffer_load_dwordx4 v5, s[{rW}:{rW+3}], 0 offen lds", "late")
            adv()
            lab = a.newlabel("k3s")
            a.e(f"s_cmp_ge_u32 s38, 2")
            a.e(f"s_cbranch_scc1 {lab}")
            a.e(f"s_add_u32 m0, s47, {7*1024}")
            a.e("s_nop 0")
            a.e(f"buffer_load_dwordx4 v5, s[{rW}:{rW+3}], 0 offen lds")
            a.label(lab)
        items = [(ks, t) for ks in g for t in range(9)]
        PD = 5
        for j in range(min(PD, len(items))):
            wread(items[j][0], items[j][1], (fi + j) % 6)
        for j, (ks, t) in enumerate(items):
            a.wait_lg((ks, t))
            slot = (fi + j) % 6
            for tt in range(2):
                a.mfma(vr(ACC+(t*2+tt)*4), vr(WF+slot*4), vr(XF+ks*8+tt*4), "0" if ks == 0 else None)
            if j + PD < len(items):
                wread(items[j+PD][0], items[j+PD][1], (fi + j + PD) % 6)
        fi += len(items)
        if g[-1] == 6:
            a.e(f"s_lshl_b32 s45, s43, 4")
            a.e(f"v_add_u32 v13, s45, v2")
            a.e(f"v_lshlrev_b32 v13, 3, v13")
            a.e("s_mov_b32 s46, 0")
            for n in range(9):
                for tt in range(2):
                    a.vmem(f"buffer_load_dwordx2 {vr(16+(tt*9+n)*2,2)}, v13, s[{rS}:{rS+3}], s46 offen offset:{tt*128}", "st")
                a.e(f"s_add_u32 s46, s46, 16384")
        if g[-1] == 10:
            a.e(f"s_mul_i32 s46, s37, 576")
            a.e(f"v_lshlrev_b32 v13, 4, v3")
            for t in range(9):
                a.vmem(f"buffer_load_dwordx4 {vr(52+t*4)}, v13, s[{rC}:{rC+3}], s46 offen offset:{t*64}", "cs")
    C = 88
    for tt in range(2):
        b = 16 + tt*18
        for n in range(1, 9):
            a.e(f"v_add_f32 v{b}, v{b}, v{b+2*n}")
            a.e(f"v_add_f32 v{b+1}, v{b+1}, v{b+2*n+1}")
        a.ln_consts(b, b+1, C+tt*4, C+tt*4+1, C+tt*4+2, C+tt*4+3, 14)
    a.e(f"""
    s_mul_i32 s45, s43, 147456
    s_lshr_b32 s46, s37, 3
    s_mul_i32 s46, s46, {36*1024}
    s_add_u32 s45, s45, s46
    s_and_b32 s46, s37, 7
    s_lshl_b32 s48, s46, 12
    s_add_u32 s48, s48, s45
    s_add_u32 s49, s48, 147456
    s_lshr_b32 s50, s46, 1
    s_add_u32 s50, s50, 32
    s_lshl_b32 s50, s50, 10
    s_and_b32 s46, s46, 1
    s_lshl_b32 s46, s46, 3
    s_add_u32 s50, s50, s46
    s_add_u32 s50, s50, s45
    s_add_u32 s51, s50, 147456
    v_lshlrev_b32 v13, 4, v0
    """)
    T = 96; P = 112
    for t in range(9):
        seqs = []
        for tt in range(2):
            for r in range(4):
                acc = ACC + (t*2+tt)*4 + r
                seqs.append([f"v_fma_f32 v{acc}, v{C+tt*4}, v{52+t*4+r}, v{acc}"] +
                            a.gelu_seq(acc, T+tt*4+r, C+tt*4+1, C+tt*4+2, C+tt*4+3))
        for x in interleave(seqs): a.e(x)
        for tt in range(2):
            pp = P + ((t >> 1) & 1)*8 + tt*4 + (t & 1)*2
            a.e(f"v_cvt_pk_bf16_f32 v{pp}, v{T+tt*4}, v{T+tt*4+1}")
            a.e(f"v_cvt_pk_bf16_f32 v{pp+1}, v{T+tt*4+2}, v{T+tt*4+3}")
        for tt in range(2):
            pb = P + ((t >> 1) & 1)*8 + tt*4
            if t & 1:
                a.e(f"buffer_store_dwordx4 {vr(pb)}, v13, s[{rH}:{rH+3}], s{48+tt} offen offset:{(t>>1)*1024}")
            elif t == 8:
                a.e(f"buffer_store_dwordx2 {vr(pb,2)}, v13, s[{rH}:{rH+3}], s{50+tt} offen")
    a.label(done)
    a.e("s_endpgm")
    a.end(name, 256, 64)

def k4(a):
    name = "k4_kernel"
    a.launch(name, (256,1,1), 256, 147456)
    a.begin(name)
    a.reset()
    done = "k4_done"
    rW, rH, rP = 16, 20, 24
    a.e(f"s_cmp_ge_u32 s2, 256")
    a.e(f"s_cbranch_scc1 {done}")
    a.ldarg(4, "w4"); a.ldarg(10, "ws")
    a.e(f"""
    s_and_b32 s40, s2, 7
    s_lshr_b32 s41, s2, 3
    s_lshr_b32 s39, s40, 1
    s_and_b32 s36, s40, 1
    s_lshl_b32 s36, s36, 3
    s_lshr_b32 s42, s41, 2
    s_add_u32 s36, s36, s42
    s_and_b32 s37, s41, 3
    v_lshrrev_b32 v1, 6, v0
    v_and_b32 v0, 63, v0
    v_readfirstlane_b32 s38, v1
    """)
    VO, VL = 8, 17
    for i in range(9):
        a.e(f"""
        v_add_u32 v1, {64*i}, v0
        v_mul_u32_u24 v2, 3641, v1
        v_lshrrev_b32 v2, 16, v2
        v_mul_u32_u24 v3, 18, v2
        v_sub_u32 v3, v1, v3
        v_mul_u32_u24 v1, 1152, v2
        v_lshl_add_u32 v{VO+i}, v3, 4, v1
        v_lshrrev_b32 v2, 4, v2
        v_mul_u32_u24 v2, {128*1152}, v2
        v_add_u32 v{VL+i}, v{VO+i}, v2
        """)
    a.e(f"""
    s_mul_i32 s44, s39, {1152*1152}
    s_mul_i32 s45, s37, 288
    s_add_u32 s44, s44, s45
    s_mul_i32 s45, s38, {32*1152}
    s_add_u32 s46, s44, s45
    s_mul_i32 s45, s38, {288*1152}
    s_add_u32 s47, s44, s45
    s_add_u32 s47, s47, {128*1152}
    s_mul_i32 s48, s38, 9216
    s_lshl_b32 s43, s36, 3
    s_lshl_b32 s45, s38, 1
    s_add_u32 s43, s43, s45
    s_mul_i32 s49, s43, 147456
    s_mul_i32 s45, s39, {36*1024}
    s_add_u32 s49, s49, s45
    s_add_u32 s50, s49, 147456
    v_lshlrev_b32 v1, 4, v0
    v_lshrrev_b32 v4, 2, v0
    v_mul_u32_u24 v4, 288, v4
    v_and_b32 v2, 3, v0
    v_lshl_add_u32 v4, v2, 3, v4
    v_add_u32 v5, {36864}, v4
    v_add_u32 v6, {2*36864}, v4
    v_add_u32 v7, {3*36864}, v4
    s_waitcnt lgkmcnt(0)
    """)
    a.srd(rW, 4, F*D*2)
    a.srd_off(rH, 10, OFF_H2, S*F*2)
    a.srd_off(rP, 10, OFF_PART, 4*S*D*4)
    XF, WF = 28, 124
    NWF = 8
    ar = lambda b: f"a[{b}:{b+3}]"
    def dma(s, i):
        slot = s % 4
        a.e(f"s_add_u32 m0, s48, {slot*36864 + i*1024}")
        a.e("s_nop 0")
        if s < 8:
            a.vmem(f"buffer_load_dwordx4 v{VO+i}, s[{rW}:{rW+3}], s46 offen lds", f"w{s}")
            if i == 8: a.e(f"s_add_u32 s46, s46, {144*1152}")
        else:
            a.vmem(f"buffer_load_dwordx4 v{VL+i}, s[{rW}:{rW+3}], s47 offen lds", f"w{s}")
    def xld(s, j, tt):
        b = XF + (s % 3)*32 + j*8 + tt*4
        a.vmem(f"buffer_load_dwordx4 {vr(b)}, v1, s[{rH}:{rH+3}], s{49+tt} offen offset:{j*1024}", f"x{s}")
        if j == 3: a.e(f"s_add_u32 s{49+tt}, s{49+tt}, 4096")
    for s in range(4):
        for i in range(9): dma(s, i)
        if s < 3:
            for j in range(4):
                for tt in range(2): xld(s, j, tt)
    items = [(s, j, t) for s in range(9) for j in range(4) for t in range(9)]
    def wread(n):
        s, j, t = items[n]
        base = 4 + s % 4
        off = j*9216 + t*32
        r = WF + (n % NWF)*4
        a.lds(f"ds_read_b64_tr_b16 {vr(r,2)}, v{base} offset:{off}", n)
        a.lds(f"ds_read_b64_tr_b16 {vr(r+2,2)}, v{base} offset:{off+16*288}", n)
    PD = 7
    a.wait_vm("w0")
    a.e("s_barrier")
    for n in range(PD): wread(n)
    for n, (s, j, t) in enumerate(items):
        if j == 0 and t == 0:
            a.wait_vm_if(f"x{s}")
        a.wait_lg(n)
        r = WF + (n % NWF)*4
        for tt in range(2):
            a.mfma(ar((t*2+tt)*4), vr(r), vr(XF+(s%3)*32+j*8+tt*4), "0" if (s == 0 and j == 0) else None)
        nn = n + PD
        if nn < len(items):
            if items[nn][1] == 0 and items[nn][2] == 0:
                a.wait_vm_if(f"w{s+1}")
                a.e("s_barrier")
            wread(nn)
        idx = j*9 + t
        if s >= 2 and s + 2 <= 8 and idx < 27 and idx % 3 == 0:
            dma(s+2, idx // 3)
        if s >= 1 and s + 2 <= 8 and idx < 24 and idx % 3 == 1:
            q = idx // 3
            xld(s+2, q >> 1, q & 1)
    a.e("s_nop 7")
    a.e("s_nop 1")
    a.e(f"""
    s_lshl_b32 s44, s39, 7
    s_add_u32 s44, s44, s43
    s_mul_i32 s44, s44, 36
    s_mul_i32 s45, s37, 9
    s_add_u32 s44, s44, s45
    s_lshl_b32 s44, s44, 10
    s_add_u32 s45, s44, {36*1024}
    """)
    for t in range(9):
        for tt in range(2):
            a.e(f"buffer_store_dwordx4 {ar((t*2+tt)*4)}, v1, s[{rP}:{rP+3}], s{44+tt} offen offset:{(t%4)*1024}")
        if t % 4 == 3:
            a.e("s_add_u32 s44, s44, 4096")
            a.e("s_add_u32 s45, s45, 4096")
    a.label(done)
    a.e("s_endpgm")
    a.end(name, 160+72, 64, accum=160)

def k5(a):
    name = "k5_kernel"
    a.launch(name, (288,1,1), 256, 0)
    a.begin(name)
    a.reset()
    done = "k5_done"
    rP, rX, rQ, rZ, rG, rO = 16, 20, 24, 28, 32, 44
    a.e(f"s_cmp_ge_u32 s2, 288")
    a.e(f"s_cbranch_scc1 {done}")
    a.ldarg(4, "q"); a.ldarg(6, "out"); a.ldarg(10, "ws")
    a.e(f"""
    s_mul_i32 s36, s2, 7282
    s_lshr_b32 s36, s36, 16
    s_mul_i32 s37, s36, 9
    s_sub_u32 s37, s2, s37
    v_lshrrev_b32 v1, 6, v0
    v_and_b32 v0, 63, v0
    v_readfirstlane_b32 s38, v1
    v_and_b32 v2, 15, v0
    v_lshrrev_b32 v3, 4, v0
    s_lshl_b32 s39, s36, 2
    s_add_u32 s39, s39, s38
    v_lshlrev_b32 v1, 4, v0
    s_waitcnt lgkmcnt(0)
    """)
    a.srd_off(rP, 10, OFF_PART, 4*S*D*4)
    a.srd_off(rX, 10, OFF_X1, SZ_ACT)
    a.srd_off(rZ, 10, OFF_Z4, SZ_ACT)
    a.srd_off(rG, 10, OFF_G, S*4)
    a.srd(rQ, 4, SZ_ACT)
    a.srd(rO, 6, SZ_ACT)
    a.e(f"""
    s_mul_i32 s40, s39, 36
    s_lshl_b32 s41, s37, 2
    s_add_u32 s40, s40, s41
    s_lshl_b32 s40, s40, 10
    s_mul_i32 s41, s39, 18432
    s_lshl_b32 s42, s37, 11
    s_add_u32 s41, s41, s42
    s_lshl_b32 s42, s39, 4
    v_add_u32 v4, s42, v2
    v_lshlrev_b32 v5, 2, v4
    v_mul_u32_u24 v6, 1152, v4
    v_lshl_add_u32 v6, v3, 3, v6
    s_lshl_b32 s42, s37, 7
    v_lshlrev_b32 v7, 3, v4
    v_lshl_add_u32 v7, v3, 14, v7
    s_lshl_b32 s43, s37, 18
    """)
    PA, X1, Q, Z, G = 16, 80, 88, 96, 104
    a.vmem(f"buffer_load_dword v{G}, v5, s[{rG}:{rG+3}], 0 offen")
    for i in range(2):
        a.vmem(f"buffer_load_dwordx4 {vr(X1+4*i)}, v1, s[{rX}:{rX+3}], s41 offen offset:{i*1024}")
    for i in range(4):
        a.vmem(f"buffer_load_dwordx2 {vr(Q+2*i,2)}, v6, s[{rQ}:{rQ+3}], s42 offen offset:{i*32}")
        a.vmem(f"buffer_load_dwordx2 {vr(Z+2*i,2)}, v7, s[{rZ}:{rZ+3}], s43 offen")
        a.e(f"s_add_u32 s43, s43, 65536")
    for sp in range(4):
        for i in range(4):
            a.vmem(f"buffer_load_dwordx4 {vr(PA+(sp*4+i)*4)}, v1, s[{rP}:{rP+3}], s40 offen offset:{i*1024}")
        a.e(f"s_add_u32 s40, s40, {128*36*1024}")
    a.e("s_waitcnt vmcnt(16)")
    a.e(f"v_sub_f32 v{G+1}, 1.0, v{G}")
    a.bf16r(G+1, G+1)
    T = 108
    GA = 124
    def unpack(d, s):
        a.e(f"v_lshlrev_b32 v{d}, 16, v{s}")
        a.e(f"v_and_b32 v{d+1}, 0xffff0000, v{s}")
        a.e(f"v_lshlrev_b32 v{d+2}, 16, v{s+1}")
        a.e(f"v_and_b32 v{d+3}, 0xffff0000, v{s+1}")
    def rnd4(d, t):
        a.e(f"v_cvt_pk_bf16_f32 v{t}, v{d}, v{d+1}")
        a.e(f"v_cvt_pk_bf16_f32 v{t+1}, v{d+2}, v{d+3}")
        unpack(d, t)
    for i in range(4):
        g = GA + i*4
        unpack(g, Q+2*i)
        unpack(T, Z+2*i)
        for r in range(4): a.e(f"v_mul_f32 v{g+r}, v{g+r}, v{T+r}")
        rnd4(g, T+4)
        for r in range(4): a.e(f"v_mul_f32 v{g+r}, v{G}, v{g+r}")
        rnd4(g, T+4)
    a.e("s_waitcnt vmcnt(0)")
    for i in range(4):
        p = PA + i*4
        for r in range(4):
            a.e(f"v_add_f32 v{p+r}, v{p+r}, v{p+16+r}")
            a.e(f"v_add_f32 v{p+32+r}, v{p+32+r}, v{p+48+r}")
        for r in range(4):
            a.e(f"v_add_f32 v{p+r}, v{p+r}, v{p+32+r}")
        rnd4(p, T+4)
        unpack(T, X1+2*i)
        for r in range(4): a.e(f"v_add_f32 v{p+r}, v{p+r}, v{T+r}")
        rnd4(p, T+4)
        for r in range(4): a.e(f"v_mul_f32 v{p+r}, v{G+1}, v{p+r}")
        rnd4(p, T+4)
        for r in range(4): a.e(f"v_add_f32 v{p+r}, v{p+r}, v{GA+i*4+r}")
        o = 140 + 2*i
        a.e(f"v_cvt_pk_bf16_f32 v{o}, v{p}, v{p+1}")
        a.e(f"v_cvt_pk_bf16_f32 v{o+1}, v{p+2}, v{p+3}")
        a.e(f"buffer_store_dwordx2 {vr(o,2)}, v6, s[{rO}:{rO+3}], s42 offen offset:{i*32}")
    a.label(done)
    a.e("s_endpgm")
    a.end(name, 148, 64)

def k1(a):
    name = "k1_kernel"
    a.launch(name, (360,1,1), 256, 77824)
    a.begin(name)
    done = "k1_done"
    a.e(f"""
    s_cmp_ge_u32 s2, 360
    s_cbranch_scc1 {done}
    s_cmp_ge_u32 s2, 288
    s_cbranch_scc1 k1_cs
    s_cmp_ge_u32 s2, 144
    s_cbranch_scc1 k1_prep
    s_mov_b32 s3, s2
    """)
    small_gemm(a, 1, done)
    a.label("k1_prep")
    a.e("s_sub_u32 s3, s2, 144")
    prep(a, done)
    a.label("k1_cs")
    a.e("s_sub_u32 s3, s2, 288")
    colsum3(a, done)
    a.label(done)
    a.e("s_endpgm")
    a.end(name, 256, 64)

def k2(a):
    name = "k2_kernel"
    a.launch(name, (288,1,1), 256, 73728)
    a.begin(name)
    done = "k2_done"
    a.e(f"""
    s_cmp_ge_u32 s2, 288
    s_cbranch_scc1 {done}
    s_cmp_ge_u32 s2, 144
    s_cbranch_scc1 k2_conv
    s_mov_b32 s3, s2
    """)
    small_gemm(a, 2, done)
    a.label("k2_conv")
    a.e("s_sub_u32 s3, s2, 144")
    conv(a, done)
    a.label(done)
    a.e("s_endpgm")
    a.end(name, 256, 64)

HEADER = """; gated_mix__ssm_conv_h3__mixer_s_mlp__prompt : generated by dev/gen.py (hand-written generator)
; kernarg: q,k,v,shift_k,ssm_k,ssm_D,B_x,w1,w2,w3,w4,gate_w,out,debug,ws (8 bytes each)"""

def build(path):
    a = K()
    k1(a); k2(a); k3(a); k4(a); k5(a)
    open(path, "w").write(a.text(HEADER))

if __name__ == "__main__":
    build(sys.argv[1] if len(sys.argv) > 1 else "gated_mix__ssm_conv_h3__mixer_s_mlp__prompt.s")
```

```python
import sys, math
from asmlib import Asm

S, D, F = 2048, 576, 4608
OFF_HS, OFF_X1, OFF_UR, OFF_Z4 = 0x0, 0x240000, 0x480000, 0x900000
OFF_ST, OFF_G, OFF_CS3 = 0xB40000, 0xB80000, 0xB90000
OFF_H2, OFF_PART = 0xC00000, 0x1E00000
SZ_ACT = S * D * 2
KA = dict(q=0, k=8, v=16, shk=24, ssmk=32, ssmD=40, w1=56, w2=64, w3=72, w4=80, gw=88, out=96, dbg=104, ws=112)
import struct
def f2u(x): return struct.unpack("<I", struct.pack("<f", x))[0]
GK = 2.0 * 0.7978845608028654 * 1.4426950408889634

class K(Asm):
    def __init__(self):
        super().__init__()
        self.vm = []
        self.lg = []
    def reset(self):
        self.vm = []; self.lg = []
    prof = False
    def pstart(self):
        self.nst = 0
        if self.prof:
            self.e("s_memrealtime s[64:65]")
            self.e("s_memtime s[66:67]")
            self.e("v_lshrrev_b32 v1, 6, v0")
            self.e("s_nop 1")
            self.e("v_readfirstlane_b32 s101, v1")
            self.e("s_mov_b32 s100, s2")
            for i in range(68, 98): self.e(f"s_mov_b32 s{i}, 0")
    def stamp(self, i):
        if self.prof:
            assert i < 14
            self.e(f"s_memtime s[{68+2*i}:{69+2*i}]")
    def pend(self, kidx):
        if not self.prof: return
        self.e("s_mov_b64 exec, -1")
        self.e("s_waitcnt vmcnt(0) lgkmcnt(0)")
        self.e("s_memtime s[96:97]")
        self.e("s_memrealtime s[98:99]")
        self.e("s_load_dwordx2 s[4:5], s[0:1], 112")
        self.e("s_waitcnt lgkmcnt(0)")
        self.srd_off(8, 4, 0x4000000 + kidx*0x100000, 0x100000)
        self.e("s_lshl_b32 s12, s100, 4")
        self.e("s_add_u32 s12, s12, s101")
        self.e("s_lshl_b32 s12, s12, 7")
        self.e("v_mov_b32 v1, 0")
        self.e("s_mov_b64 exec, 1")
        for i in range(18):
            self.e(f"v_mov_b32 v2, s{64+2*i}")
            self.e(f"buffer_store_dword v2, v1, s[8:11], s12 offen offset:{4*i}")
            self.e("s_nop 1")
        self.e("s_getreg_b32 s13, hwreg(HW_REG_XCC_ID)")
        self.e(f"v_mov_b32 v2, s13")
        self.e(f"buffer_store_dword v2, v1, s[8:11], s12 offen offset:{4*18}")
        self.e("s_getreg_b32 s13, hwreg(HW_REG_HW_ID)")
        self.e(f"v_mov_b32 v3, s13")
        self.e(f"buffer_store_dword v3, v1, s[8:11], s12 offen offset:{4*19}")
    def vmem(self, s, tag=None):
        self.e(s); self.vm.append(tag)
    def lds(self, s, tag=None):
        self.e(s); self.lg.append(tag)
    def wait_vm(self, tag):
        idx = max(i for i, t in enumerate(self.vm) if t == tag)
        n = len(self.vm) - 1 - idx
        assert n <= 63
        self.e(f"s_waitcnt vmcnt({n})")
        self.vm = self.vm[idx+1:]
    def wait_vm_if(self, tag):
        if tag in self.vm: self.wait_vm(tag)
    def wait_lg(self, tag):
        idx = max(i for i, t in enumerate(self.lg) if t == tag)
        n = len(self.lg) - 1 - idx
        if n > 15: n = 15; idx = len(self.lg) - 1 - 15
        self.e(f"s_waitcnt lgkmcnt({n})")
        self.lg = self.lg[idx+1:]
    def wait_lg_if(self, tag):
        if tag in self.lg: self.wait_lg(tag)
    def wait_all(self):
        self.e("s_waitcnt vmcnt(0) lgkmcnt(0)"); self.reset()
    def wait_lg0(self):
        self.e("s_waitcnt lgkmcnt(0)"); self.lg = []
    def wait_vm0(self):
        self.e("s_waitcnt vmcnt(0)"); self.vm = []
    def ldarg(self, sreg, name):
        self.e(f"s_load_dwordx2 s[{sreg}:{sreg+1}], s[0:1], {KA[name]}")
    def srd_off(self, d, base, off, nbytes):
        self.e(f"s_add_u32 s{d}, s{base}, {off}")
        self.e(f"s_addc_u32 s{d+1}, s{base+1}, 0")
        self.e(f"s_and_b32 s{d+1}, s{d+1}, 0xffff")
        self.e(f"s_mov_b32 s{d+2}, {nbytes}")
        self.e(f"s_mov_b32 s{d+3}, 0x20000")
    def mfma(self, acc, a, b, c=None):
        cs = f"{acc}" if c is None else c
        self.e(f"v_mfma_f32_16x16x32_bf16 {acc}, {a}, {b}, {cs}")
    def bf16r(self, d, s):
        self.e(f"v_cvt_pk_bf16_f32 v{d}, v{s}, v{s}")
        self.e(f"v_lshlrev_b32 v{d}, 16, v{d}")
    def xsum4(self, v, t):
        self.e(f"v_mov_b32 v{t}, v{v}")
        self.e("s_nop 1")
        self.e(f"v_permlane32_swap_b32 v{v}, v{t}")
        self.e("s_nop 1")
        self.e(f"v_add_f32 v{v}, v{v}, v{t}")
        self.e(f"v_mov_b32 v{t}, v{v}")
        self.e("s_nop 1")
        self.e(f"v_permlane16_swap_b32 v{v}, v{t}")
        self.e("s_nop 1")
        self.e(f"v_add_f32 v{v}, v{v}, v{t}")
    def ln_consts(self, vsum, vsq, negm, c1, c2, sd, t):
        self.e(f"v_mul_f32 v{vsum}, {hex(f2u(1.0/576))}, v{vsum}")
        self.e(f"v_mul_f32 v{vsq}, {hex(f2u(1.0/576))}, v{vsq}")
        self.e(f"v_fma_f32 v{vsq}, -v{vsum}, v{vsum}, v{vsq}")
        self.e(f"v_max_f32 v{vsq}, 0, v{vsq}")
        self.bf16r(negm, vsum)
        self.e(f"v_xor_b32 v{negm}, 0x80000000, v{negm}")
        self.bf16r(vsq, vsq)
        self.e(f"v_add_f32 v{vsq}, {hex(f2u(1e-5))}, v{vsq}")
        self.bf16r(vsq, vsq)
        self.e(f"v_sqrt_f32 v{vsq}, v{vsq}")
        self.e("s_nop 0")
        self.bf16r(sd, vsq)
        self.e(f"v_rcp_f32 v{t}, v{sd}")
        self.e("s_nop 0")
        self.e(f"v_mul_f32 v{c1}, {hex(f2u(-GK))}, v{t}")
        self.e(f"v_mul_f32 v{c2}, v{t}, v{t}")
        self.e(f"v_mul_f32 v{c2}, v{c2}, v{c1}")
        self.e(f"v_mul_f32 v{c2}, {hex(f2u(0.044715))}, v{c2}")
    def gelu_seq(self, a, t, c1, c2, sd):
        return [f"v_mul_f32 v{t}, v{a}, v{a}",
                f"v_fma_f32 v{t}, v{t}, v{c2}, v{c1}",
                f"v_mul_f32 v{t}, v{a}, v{t}",
                f"v_exp_f32 v{t}, v{t}",
                f"v_fma_f32 v{t}, v{t}, v{sd}, v{sd}",
                f"v_rcp_f32 v{t}, v{t}",
                f"v_mul_f32 v{t}, v{a}, v{t}"]

def interleave(seqs):
    out = []
    n = max(len(s) for s in seqs)
    for i in range(n):
        for s in seqs:
            if i < len(s): out.append(s[i])
    return out
def vr(b, n=4): return f"v[{b}:{b+n-1}]"

def small_gemm(a, which, done):
    a.reset()
    sW, sX, sWS, sGW, sQ = 4, 6, 8, 10, 12
    rW, rA, rO, rQ, rS = 16, 20, 24, 28, 32
    sTM, sTN, sWV = 36, 37, 38
    a.ldarg(sW, "w1" if which == 1 else "w2")
    a.ldarg(sQ, "q")
    a.ldarg(sWS, "ws")
    if which == 1: a.ldarg(sGW, "gw")
    a.e(f"""
    s_and_b32 s40, s3, 7
    s_lshr_b32 s41, s3, 3
    s_cmp_ge_u32 s41, 9
    s_cselect_b32 s42, 1, 0
    s_lshl_b32 s{sTM}, s40, 1
    s_add_u32 s{sTM}, s{sTM}, s42
    s_mul_i32 s42, s42, 9
    s_sub_u32 s{sTN}, s41, s42
    v_lshrrev_b32 v1, 6, v0
    v_and_b32 v0, 63, v0
    v_readfirstlane_b32 s{sWV}, v1
    v_and_b32 v2, 15, v0
    v_lshrrev_b32 v3, 4, v0
    """)
    vXA, vWD, vTR, vSTA = 4, 5, 6, 10
    XF = 16
    ACC = 160
    ST = 192
    CS = 200
    WF = 216
    SF = 248
    SQ = 12
    a.e("s_waitcnt lgkmcnt(0)")
    a.srd(rW, sW, D*D*2)
    a.srd(rQ, sQ, SZ_ACT)
    if which == 1:
        a.srd_off(rO, sWS, OFF_HS, SZ_ACT)
        a.srd_off(rS, sWS, OFF_G, S*4)
        a.srd(rA, sGW, D*2)
    else:
        a.srd_off(rA, sWS, OFF_HS, SZ_ACT)
        a.srd_off(rO, sWS, OFF_X1, SZ_ACT)
        a.srd_off(rS, sWS, OFF_ST, 9*S*8)
    a.e(f"""
    s_lshl_b32 s43, s{sTM}, 7
    s_lshl_b32 s44, s{sWV}, 5
    s_add_u32 s43, s43, s44
    """)
    if which == 1:
        a.e(f"s_lshl_b32 s45, s{sWV}, 10")
        a.e(f"v_lshl_add_u32 v14, v0, 4, s45")
        a.vmem(f"buffer_load_dwordx4 {vr(WF)}, v14, s[{rA}:{rA+3}], 0 offen", "gw")
        a.e(f"v_add_u32 v{vXA}, s43, v2")
        a.e(f"v_mul_u32_u24 v{vXA}, 1152, v{vXA}")
        a.e(f"v_lshl_add_u32 v{vXA}, v3, 4, v{vXA}")
        a.e(f"s_mov_b32 s46, {16*1152}")
    else:
        a.e(f"s_lshr_b32 s45, s43, 4")
        a.e(f"s_mul_i32 s45, s45, 18432")
        a.e(f"v_lshl_add_u32 v{vXA}, v0, 4, s45")
    a.e(f"""
    v_lshrrev_b32 v14, 3, v0
    s_lshl_b32 s45, s{sWV}, 3
    v_add_u32 v14, s45, v14
    v_and_b32 v15, 6, v14
    v_and_b32 v{vWD}, 7, v0
    v_xor_b32 v{vWD}, v{vWD}, v15
    v_lshlrev_b32 v{vWD}, 4, v{vWD}
    """)
    if which == 1:
        a.e(f"""
        v_and_b32 v15, 12, v14
        v_lshlrev_b32 v15, 1, v15
        v_and_b32 v11, 3, v14
        v_add_u32 v15, v15, v11
        v_lshrrev_b32 v11, 4, v14
        v_lshl_add_u32 v14, v11, 2, v15
        """)
    a.e(f"""
    v_mul_u32_u24 v14, 1152, v14
    v_add_u32 v{vWD}, v{vWD}, v14
    s_lshl_b32 s45, s{sTN}, 7
    v_add_u32 v{vWD}, s45, v{vWD}
    s_lshl_b32 s47, s{sWV}, 10
    s_mov_b32 s48, 0
    s_mov_b32 s49, 0
    """)
    for ks in range(18):
        a.e(f"s_add_u32 m0, s47, {ks*4096}")
        if which == 2:
            a.e(f"s_add_u32 s50, s49, 18432")
        else:
            a.e("s_nop 0")
        a.vmem(f"buffer_load_dwordx4 v{vWD}, s[{rW}:{rW+3}], s48 offen lds", f"k{ks}")
        a.e(f"s_add_u32 s48, s48, {32*1152}")
        if which == 1:
            a.vmem(f"buffer_load_dwordx4 {vr(XF+ks*4)}, v{vXA}, s[{rQ}:{rQ+3}], 0 offen offset:{ks*64}", f"k{ks}")
            a.vmem(f"buffer_load_dwordx4 {vr(XF+72+ks*4)}, v{vXA}, s[{rQ}:{rQ+3}], s46 offen offset:{ks*64}", f"k{ks}")
        else:
            a.vmem(f"buffer_load_dwordx4 {vr(XF+ks*4)}, v{vXA}, s[{rA}:{rA+3}], s49 offen", f"k{ks}")
            a.vmem(f"buffer_load_dwordx4 {vr(XF+72+ks*4)}, v{vXA}, s[{rA}:{rA+3}], s50 offen", f"k{ks}")
            a.e(f"s_add_u32 s49, s49, 1024")
    a.e(f"""
    v_lshrrev_b32 v14, 2, v0
    v_lshlrev_b32 v14, 7, v14
    v_and_b32 v15, 3, v0
    v_lshl_add_u32 v14, v15, 3, v14
    v_bfe_u32 v15, v0, 3, 2
    """)
    if which == 1:
        a.e(f"v_xor_b32 v15, s{sWV}, v15")
    for i in range(4):
        a.e(f"v_xor_b32 v11, {i}, v15")
        a.e(f"v_lshl_add_u32 v{vTR+i}, v11, 5, v14")
    LST = 73728
    if which == 1:
        a.e(f"""
        v_and_b32 v11, 3, v0
        v_mov_b32 v{vSTA}, {LST+2304}
        v_mov_b32 v14, {LST+1152}
        v_cmp_eq_u32 vcc, 0, v11
        s_nop 1
        v_cndmask_b32 v{vSTA}, v{vSTA}, v14, vcc
        v_mov_b32 v14, {LST}
        v_cmp_eq_u32 vcc, 1, v11
        s_nop 1
        v_cndmask_b32 v{vSTA}, v{vSTA}, v14, vcc
        v_lshl_add_u32 v{vSTA}, v3, 4, v{vSTA}
        v_mov_b32 v{SF+4}, 0x3f803f80
        v_mov_b32 v{SF+5}, 0x3f803f80
        v_mov_b32 v{SF+6}, 0x3f803f80
        v_mov_b32 v{SF+7}, 0x3f803f80
        v_mov_b32 v{SF}, 0
        v_mov_b32 v{SF+1}, 0
        v_mov_b32 v{SF+2}, 0
        v_mov_b32 v{SF+3}, 0
        v_mov_b32 v{SQ}, 0
        v_mov_b32 v{SQ+1}, 0
        """)
        a.e(f"s_lshl_b32 s45, s{sWV}, 10")
        a.e(f"v_lshl_add_u32 v14, v0, 4, s45")
        a.e(f"v_cmp_gt_u32 vcc, 1152, v14")
        a.e(f"v_add_u32 v14, {LST}, v14")
        a.wait_vm("gw")
        a.e("s_and_saveexec_b64 s[52:53], vcc")
        a.e(f"ds_write_b128 v14, {vr(WF)}")
        a.e(f"ds_write_b128 v14, {vr(SF+4)} offset:1152")
        a.e(f"ds_write_b128 v14, {vr(SF)} offset:2304")
        a.e("s_mov_b64 exec, s[52:53]")
        a.e("s_waitcnt lgkmcnt(0)")
    else:
        a.e(f"v_add_u32 v14, s43, v2")
        a.e(f"v_mul_u32_u24 v14, 1152, v14")
        a.e(f"v_lshl_add_u32 v14, v3, 3, v14")
        a.e(f"s_lshl_b32 s45, s{sTN}, 7")
        a.e(f"s_add_u32 s46, s45, {16*1152}")
        for tt in range(2):
            for i in range(4):
                a.vmem(f"buffer_load_dwordx2 {vr(192+(tt*4+i)*2, 2)}, v14, s[{rQ}:{rQ+3}], s{45+tt} offen offset:{i*32}", "xres")
    a.stamp(0)
    groups = [[0], [1, 2], [3, 4, 5], [6, 7, 8], [9, 10, 11], [12, 13, 14], [15, 16, 17]]
    def wread(ks):
        buf = WF + (ks & 1) * 16
        off = ks * 4096
        if ks == 16:
            for i in range(4): a.e(f"v_add_u32 v{vTR+i}, 0x10000, v{vTR+i}")
        if ks >= 16: off -= 65536
        for i in range(4):
            a.lds(f"ds_read_b64_tr_b16 {vr(buf+i*4, 2)}, v{vTR+i} offset:{off}", f"w{ks}")
            a.lds(f"ds_read_b64_tr_b16 {vr(buf+i*4+2, 2)}, v{vTR+i} offset:{off+2048}", f"w{ks}")
    for gi, g in enumerate(groups):
        a.wait_vm(f"k{g[-1]}")
        a.e("s_barrier")
        a.stamp(1+gi)
        wread(g[0])
        for j, ks in enumerate(g):
            if which == 1:
                a.lds(f"ds_read_b128 {vr(SF)}, v{vSTA} offset:{ks*64}", f"w{ks}")
            if j + 1 < len(g):
                a.wait_lg(f"w{ks}")
                wread(g[j+1])
            else:
                a.wait_lg(f"w{ks}")
            buf = WF + (ks & 1) * 16
            for i in range(4):
                for tt in range(2):
                    acc = vr(ACC + tt*16 + i*4)
                    a.mfma(acc, vr(buf+i*4), vr(XF+tt*72+ks*4), "0" if ks == 0 else None)
            if which == 1:
                a.mfma(vr(CS), vr(buf), vr(SF+4), "0" if ks == 0 else None)
                for tt in range(2):
                    a.mfma(vr(ST+tt*4), vr(SF), vr(XF+tt*72+ks*4), "0" if ks == 0 else None)
                for tt in range(2):
                    for r in range(4):
                        x = XF+tt*72+ks*4+r
                        a.e(f"v_dot2c_f32_bf16 v{SQ+tt}, v{x}, v{x}")
    a.e("s_nop 7")
    a.e("s_nop 1")
    a.stamp(8)
    if which == 1:
        a.e(f"s_lshl_b32 s45, s{sWV}, 6")
        a.e(f"v_lshl_add_u32 v14, v3, 4, s45")
        a.e(f"v_add_u32 v14, {LST+3456}, v14")
        a.e(f"v_cmp_eq_u32 vcc, 0, v2")
        a.e("s_and_saveexec_b64 s[52:53], vcc")
        a.e(f"ds_write_b128 v14, {vr(CS)}")
        a.e("s_mov_b64 exec, s[52:53]")
        a.e("s_waitcnt lgkmcnt(0)")
        a.e("s_barrier")
        for i in range(4):
            a.e(f"s_xor_b32 s45, s{sWV}, {i}")
            a.e(f"s_lshl_b32 s45, s45, 6")
            a.e(f"v_lshl_add_u32 v14, v3, 4, s45")
            a.e(f"v_add_u32 v14, {LST+3456}, v14")
            a.e(f"ds_read_b128 {vr(CS+i*4)}, v14")
        C = 16
        for tt in range(2):
            a.xsum4(SQ+tt, 14)
            a.ln_consts(ST+tt*4, SQ+tt, C+tt*4, C+tt*4+1, C+tt*4+2, C+tt*4+3, 14)
        lab = a.newlabel("nog")
        a.e(f"s_cmp_lg_u32 s{sTN}, 0")
        a.e(f"s_cbranch_scc1 {lab}")
        for tt in range(2):
            g = 24 + tt
            a.bf16r(g, ST+tt*4+1)
            a.e(f"v_mul_f32 v{g}, {hex(f2u(-1.4426950408889634))}, v{g}")
            a.e(f"v_exp_f32 v{g}, v{g}")
            a.e("s_nop 0")
            a.e(f"v_add_f32 v{g}, 1.0, v{g}")
            a.e(f"v_rcp_f32 v{g}, v{g}")
            a.e("s_nop 0")
            a.bf16r(g, g)
        a.e(f"v_add_u32 v14, s43, v2")
        a.e(f"v_lshlrev_b32 v14, 2, v14")
        a.e(f"v_cmp_eq_u32 vcc, 0, v3")
        a.e("s_and_saveexec_b64 s[52:53], vcc")
        a.e(f"buffer_store_dword v24, v14, s[{rS}:{rS+3}], 0 offen")
        a.e(f"buffer_store_dword v25, v14, s[{rS}:{rS+3}], 0 offen offset:64")
        a.e("s_mov_b64 exec, s[52:53]")
        a.label(lab)
        a.e("s_waitcnt lgkmcnt(0)")
        T = 32
        for i in range(4):
            a.e(f"""
            s_xor_b32 s45, s{sWV}, {i}
            s_lshl_b32 s46, s{sTN}, 2
            s_add_u32 s45, s45, s46
            s_mul_i32 s46, s45, 57
            s_lshr_b32 s46, s46, 9
            s_lshr_b32 s47, s46, 1
            s_add_u32 s47, s47, 1
            s_sub_u32 s48, 0, s47
            s_bitcmp1_b32 s46, 0
            s_cselect_b32 s47, s48, s47
            s_add_u32 s47, s47, s43
            s_lshr_b32 s48, s45, 1
            s_lshl_b32 s48, s48, 10
            s_and_b32 s49, s45, 1
            s_lshl_b32 s49, s49, 3
            s_add_u32 s48, s48, s49
            """)
            seqs = []
            for tt in range(2):
                for r in range(4):
                    acc = ACC + tt*16 + i*4 + r
                    seqs.append([f"v_fma_f32 v{acc}, v{C+tt*4}, v{CS+i*4+r}, v{acc}"] +
                                a.gelu_seq(acc, T+tt*4+r, C+tt*4+1, C+tt*4+2, C+tt*4+3))
            for x in interleave(seqs): a.e(x)
            for tt in range(2):
                P = 64 + (i*2+tt)*2
                a.e(f"v_cvt_pk_bf16_f32 v{P}, v{T+tt*4}, v{T+tt*4+1}")
                a.e(f"v_cvt_pk_bf16_f32 v{P+1}, v{T+tt*4+2}, v{T+tt*4+3}")
                ad = 96 + i*2 + tt
                a.e(f"v_add_u32 v{ad}, s47, v2")
                if tt: a.e(f"v_add_u32 v{ad}, 16, v{ad}")
                a.e(f"v_cmp_gt_u32 vcc, {S}, v{ad}")
                a.e(f"v_and_b32 v{ad}, {S-1}, v{ad}")
                a.e(f"v_lshrrev_b32 v14, 4, v{ad}")
                a.e(f"v_mul_u32_u24 v14, 18432, v14")
                a.e(f"v_cndmask_b32 v{P}, 0, v{P}, vcc")
                a.e(f"v_cndmask_b32 v{P+1}, 0, v{P+1}, vcc")
                a.e(f"v_and_b32 v{ad}, 15, v{ad}")
                a.e(f"v_lshl_add_u32 v{ad}, v3, 4, v{ad}")
                a.e(f"v_lshl_add_u32 v{ad}, v{ad}, 4, v14")
                a.e(f"buffer_store_dwordx2 {vr(P,2)}, v{ad}, s[{rO}:{rO+3}], s48 offen")
    else:
        a.wait_vm0()
        T = 16
        a.e(f"s_lshr_b32 s45, s43, 4")
        a.e(f"s_mul_i32 s45, s45, 18432")
        a.e(f"s_lshl_b32 s46, s{sTN}, 11")
        a.e(f"s_add_u32 s45, s45, s46")
        a.e(f"s_add_u32 s46, s45, 18432")
        a.e(f"v_lshlrev_b32 v15, 4, v0")
        for tt in range(2):
            sm, sq = 12, 13
            for i in range(4):
                acc = ACC + tt*16 + i*4
                xr = 192 + (tt*4+i)*2
                t = T + i*8
                P = 64 + tt*8 + i*2
                a.e(f"v_cvt_pk_bf16_f32 v{t}, v{acc}, v{acc+1}")
                a.e(f"v_cvt_pk_bf16_f32 v{t+1}, v{acc+2}, v{acc+3}")
                a.e(f"v_lshlrev_b32 v{acc}, 16, v{t}")
                a.e(f"v_and_b32 v{acc+1}, 0xffff0000, v{t}")
                a.e(f"v_lshlrev_b32 v{acc+2}, 16, v{t+1}")
                a.e(f"v_and_b32 v{acc+3}, 0xffff0000, v{t+1}")
                a.e(f"v_lshlrev_b32 v{t+2}, 16, v{xr}")
                a.e(f"v_and_b32 v{t+3}, 0xffff0000, v{xr}")
                a.e(f"v_lshlrev_b32 v{t+4}, 16, v{xr+1}")
                a.e(f"v_and_b32 v{t+5}, 0xffff0000, v{xr+1}")
                for r in range(4):
                    a.e(f"v_add_f32 v{acc+r}, v{acc+r}, v{t+2+r}")
                a.e(f"v_cvt_pk_bf16_f32 v{P}, v{acc}, v{acc+1}")
                a.e(f"v_cvt_pk_bf16_f32 v{P+1}, v{acc+2}, v{acc+3}")
                a.e(f"v_lshlrev_b32 v{acc}, 16, v{P}")
                a.e(f"v_and_b32 v{acc+1}, 0xffff0000, v{P}")
                a.e(f"v_lshlrev_b32 v{acc+2}, 16, v{P+1}")
                a.e(f"v_and_b32 v{acc+3}, 0xffff0000, v{P+1}")
                for r in range(4):
                    if i == 0 and r == 0:
                        a.e(f"v_mov_b32 v{sm}, v{acc}")
                        a.e(f"v_mul_f32 v{sq}, v{acc}, v{acc}")
                    else:
                        a.e(f"v_add_f32 v{sm}, v{sm}, v{acc+r}")
                        a.e(f"v_fma_f32 v{sq}, v{acc+r}, v{acc+r}, v{sq}")
            P = 64 + tt*8
            a.e(f"buffer_store_dwordx4 {vr(P)}, v15, s[{rO}:{rO+3}], s{45+tt} offen")
            a.e(f"buffer_store_dwordx4 {vr(P+4)}, v15, s[{rO}:{rO+3}], s{45+tt} offen offset:1024")
            a.xsum4(sm, 14)
            a.xsum4(sq, 14)
            a.e(f"v_add_u32 v14, s43, v2")
            a.e(f"v_lshlrev_b32 v14, 3, v14")
            a.e(f"s_lshl_b32 s47, s{sTN}, 14")
            a.e(f"v_mov_b32 v{80+tt*2}, v{sm}")
            a.e(f"v_mov_b32 v{81+tt*2}, v{sq}")
            a.e(f"v_cmp_eq_u32 vcc, 0, v3")
            a.e("s_and_saveexec_b64 s[52:53], vcc")
            a.e(f"buffer_store_dwordx2 {vr(80+tt*2,2)}, v14, s[{rS}:{rS+3}], s47 offen offset:{tt*128}")
            a.e("s_mov_b64 exec, s[52:53]")
    a.e(f"s_branch {done}")

def prep(a, done):
    a.reset()
    rK, rV, rSH, rU = 16, 20, 24, 28
    a.ldarg(4, "k"); a.ldarg(6, "v"); a.ldarg(8, "shk"); a.ldarg(10, "ws")
    a.e(f"""
    v_lshrrev_b32 v1, 6, v0
    v_and_b32 v0, 63, v0
    v_readfirstlane_b32 s38, v1
    v_and_b32 v2, 15, v0
    v_lshrrev_b32 v3, 4, v0
    s_lshl_b32 s36, s3, 2
    s_add_u32 s36, s36, s38
    s_mul_i32 s37, s36, 7282
    s_lshr_b32 s37, s37, 16
    s_mul_i32 s39, s37, 9
    s_sub_u32 s39, s36, s39
    """)
    a.e("s_waitcnt lgkmcnt(0)")
    a.srd(rK, 4, SZ_ACT); a.srd(rV, 6, SZ_ACT); a.srd(rSH, 8, D*8)
    a.srd_off(rU, 10, OFF_UR, D*8192)
    a.e(f"""
    s_lshl_b32 s40, s37, 5
    v_lshl_add_u32 v4, v3, 3, s40
    s_lshl_b32 s41, s39, 6
    v_lshl_add_u32 v5, v2, 2, s41
    v_mul_u32_u24 v6, 1152, v4
    v_lshl_add_u32 v7, v5, 1, v6
    v_subrev_u32 v6, 4608, v7
    v_add_u32 v8, 4608, v7
    v_lshlrev_b32 v9, 3, v5
    """)
    KR, VR, WR = 16, 40, 60
    a.vmem(f"buffer_load_dwordx4 {vr(WR)}, v9, s[{rSH}:{rSH+3}], 0 offen")
    a.vmem(f"buffer_load_dwordx4 {vr(WR+4)}, v9, s[{rSH}:{rSH+3}], 0 offen offset:16")
    for r in range(12):
        a.vmem(f"buffer_load_dwordx2 {vr(KR+2*r,2)}, v{6+r//4}, s[{rK}:{rK+3}], 0 offen offset:{(r%4)*1152}")
    for r in range(9):
        rr = r + 3
        a.vmem(f"buffer_load_dwordx2 {vr(VR+2*r,2)}, v{6+rr//4}, s[{rV}:{rV+3}], 0 offen offset:{(rr%4)*1152}")
    a.e(f"""
    v_lshlrev_b32 v10, 13, v5
    v_sub_u32 v11, 2040, v4
    v_lshl_add_u32 v10, v11, 1, v10
    s_mov_b32 s42, 0
    """)
    a.wait_vm0()
    KF, WFl, U, VF, P = 72, 84, 88, 100, 112
    for ch in range(4):
        un = (lambda d, s: f"v_lshlrev_b32 v{d}, 16, v{s}") if ch % 2 == 0 else (lambda d, s: f"v_and_b32 v{d}, 0xffff0000, v{s}")
        for r in range(12): a.e(un(KF+r, KR+2*r+ch//2))
        for r in range(9): a.e(un(VF+r, VR+2*r+ch//2))
        a.e(f"v_lshlrev_b32 v{WFl}, 16, v{WR+2*ch}")
        a.e(f"v_and_b32 v{WFl+1}, 0xffff0000, v{WR+2*ch}")
        a.e(f"v_lshlrev_b32 v{WFl+2}, 16, v{WR+2*ch+1}")
        a.e(f"v_and_b32 v{WFl+3}, 0xffff0000, v{WR+2*ch+1}")
        for e in range(9): a.e(f"v_mul_f32 v{U+e}, v{KF+e}, v{WFl+3}")
        for j in (2, 1, 0):
            for e in range(9): a.e(f"v_fma_f32 v{U+e}, v{KF+e+3-j}, v{WFl+j}, v{U+e}")
        for e in range(9): a.e(f"v_mul_f32 v{U+e}, v{U+e}, v{VF+e}")
        PP = P + ch*8
        for m in range(4):
            a.e(f"v_cvt_pk_bf16_f32 v{PP+m}, v{U+8-2*m}, v{U+7-2*m}")
            a.e(f"v_cvt_pk_bf16_f32 v{PP+4+m}, v{U+7-2*m}, v{U+6-2*m}")
        a.e(f"buffer_store_dwordx4 {vr(PP)}, v10, s[{rU}:{rU+3}], s42 offen")
        a.e(f"s_add_u32 s42, s42, 4096")
        a.e(f"buffer_store_dwordx4 {vr(PP+4)}, v10, s[{rU}:{rU+3}], s42 offen")
        a.e(f"s_add_u32 s42, s42, 4096")
    a.e(f"s_branch {done}")

def colsum3(a, done):
    a.reset()
    rW, rC = 16, 20
    a.ldarg(4, "w3"); a.ldarg(10, "ws")
    a.e(f"""
    v_lshrrev_b32 v1, 3, v0
    v_and_b32 v2, 7, v0
    v_mul_u32_u24 v3, 9216, v1
    v_lshl_add_u32 v3, v2, 4, v3
    s_lshl_b32 s36, s3, 7
    s_waitcnt lgkmcnt(0)
    """)
    a.srd(rW, 4, D*F*2)
    a.srd_off(rC, 10, OFF_CS3, F*4)
    for i in range(18):
        a.vmem(f"buffer_load_dwordx4 {vr(16+4*i)}, v3, s[{rW}:{rW+3}], s36 offen", i)
        a.e(f"s_add_u32 s36, s36, {32*9216}")
    for i in range(18):
        a.wait_vm(i)
        for r in range(4):
            x = 16+4*i+r
            if i == 0:
                a.e(f"v_lshlrev_b32 v{8+2*r}, 16, v{x}")
                a.e(f"v_and_b32 v{9+2*r}, 0xffff0000, v{x}")
            else:
                a.e(f"v_lshlrev_b32 v4, 16, v{x}")
                a.e(f"v_and_b32 v5, 0xffff0000, v{x}")
                a.e(f"v_add_f32 v{8+2*r}, v{8+2*r}, v4")
                a.e(f"v_add_f32 v{9+2*r}, v{9+2*r}, v5")
    a.e(f"""
    v_lshlrev_b32 v4, 5, v0
    ds_write_b128 v4, v[8:11]
    ds_write_b128 v4, v[12:15] offset:16
    s_waitcnt lgkmcnt(0)
    s_barrier
    v_cmp_gt_u32 vcc, 64, v0
    s_and_saveexec_b64 s[52:53], vcc
    s_cbranch_execz {done}
    v_lshlrev_b32 v4, 2, v0
    """)
    for half in range(2):
        for r in range(16):
            a.e(f"ds_read_b32 v{16+r}, v4 offset:{(half*16+r)*256}")
            if r == 7: a.e("s_waitcnt lgkmcnt(0)")
        a.e("s_waitcnt lgkmcnt(0)")
        for r in range(16):
            if half == 0 and r == 0: a.e("v_mov_b32 v8, v16")
            else: a.e(f"v_add_f32 v8, v8, v{16+r}")
    a.e(f"s_lshl_b32 s36, s3, 8")
    a.e(f"buffer_store_dword v8, v4, s[{rC}:{rC+3}], s36 offen")
    a.e(f"s_branch {done}")

def conv(a, done):
    a.reset()
    rU, rH, rZ = 16, 20, 24
    RS = 13120
    a.ldarg(4, "ssmk"); a.ldarg(6, "ssmD"); a.ldarg(10, "ws")
    a.e(f"""
    v_lshrrev_b32 v1, 6, v0
    v_and_b32 v0, 63, v0
    v_readfirstlane_b32 s38, v1
    v_and_b32 v2, 15, v0
    v_lshrrev_b32 v3, 4, v0
    s_lshl_b32 s36, s3, 2
    s_add_u32 s36, s36, s38
    s_mul_i32 s39, s38, {RS}
    s_lshl_b32 s40, s3, 3
    s_waitcnt lgkmcnt(0)
    s_load_dwordx2 s[44:45], s[6:7], s40
    """)
    a.srd(rH, 4, D*S*2)
    a.srd_off(rU, 10, OFF_UR, D*8192)
    a.srd_off(rZ, 10, OFF_Z4, SZ_ACT)
    a.e(f"""
    v_lshlrev_b32 v4, 4, v0
    s_lshl_b32 s41, s36, 13
    s_lshl_b32 s42, s36, 12
    s_mov_b32 m0, s39
    s_add_u32 s43, s41, 4096
    """)
    for i in range(4):
        a.vmem(f"buffer_load_dwordx4 v4, s[{rU}:{rU+3}], s41 offen offset:{i*1024} lds")
    a.e(f"s_add_u32 m0, s39, 4160")
    a.e("s_nop 0")
    for i in range(4):
        a.vmem(f"buffer_load_dwordx4 v4, s[{rU}:{rU+3}], s43 offen offset:{i*1024} lds")
    a.e(f"s_add_u32 m0, s39, {8320+512}")
    a.e("s_nop 0")
    for i in range(4):
        a.vmem(f"buffer_load_dwordx4 v4, s[{rH}:{rH+3}], s42 offen offset:{i*1024} lds")
    a.e(f"""
    v_mov_b32 v8, 0
    v_mov_b32 v9, 0
    v_mov_b32 v10, 0
    v_mov_b32 v11, 0
    v_add_u32 v5, s39, v4
    v_cmp_gt_u32 vcc, 36, v0
    s_and_saveexec_b64 s[52:53], vcc
    ds_write_b128 v5, v[8:11] offset:8256
    v_cmp_gt_u32 vcc, 4, v0
    s_and_b64 exec, exec, vcc
    ds_write_b128 v5, v[8:11] offset:4096
    s_mov_b64 exec, s[52:53]
    """)
    a.e(f"""
    v_or_b32 v5, 1, v2
    v_sub_u32 v5, 15, v5
    v_lshl_add_u32 v5, v3, 3, v5
    v_lshlrev_b32 v5, 1, v5
    v_and_b32 v6, 1, v2
    v_xor_b32 v6, 1, v6
    v_mul_u32_u24 v6, 4160, v6
    v_add3_u32 v12, v5, v6, s39
    v_add_u32 v13, 1024, v12
    v_add_u32 v14, 2048, v12
    v_add_u32 v15, 3072, v12
    v_lshlrev_b32 v5, 5, v2
    v_lshl_add_u32 v5, v3, 4, v5
    v_add_u32 v7, s39, v5
    v_add_u32 v7, {8320+32}, v7
    """)
    a.stamp(0)
    a.e("s_waitcnt vmcnt(0) lgkmcnt(0)"); a.reset()
    a.stamp(1)
    ACC = 16; FB = 48
    def loads(rho):
        buf = FB + (rho & 1) * 64
        out = []
        for x in range(8):
            p = 8*x + rho
            boff = 64*(63-p)
            base = 12 + boff // 1024
            o = (boff % 1024) // 4
            out.append((f"ds_read2_b32 {vr(buf+x*4,2)}, v{base} offset0:{o} offset1:{o+1}", f"r{rho}"))
            out.append((f"ds_read2_b32 {vr(buf+x*4+2,2)}, v{base} offset0:{o+2} offset1:{o+3}", f"r{rho}"))
            n = 8*x - rho
            out.append((f"ds_read_b128 {vr(buf+32+x*4)}, v7 offset:{64*(n+7)}", f"r{rho}"))
        return out
    for (s, t) in loads(0):
        a.lds(s, t)
        if len(a.lg) >= 12: a.wait_lg0()
    for rho in range(8):
        a.wait_lg0()
        buf = FB + (rho & 1) * 64
        nxt = loads(rho+1) if rho < 7 else []
        k = 0; cnt = 0
        for c in range(8):
            for x in range(c+1):
                first = (rho == 0 and x == 0)
                a.mfma(vr(ACC+c*4), vr(buf+x*4), vr(buf+32+(c-x)*4), "0" if first else None)
                cnt += 1
                if k < len(nxt) and cnt <= 30:
                    a.lds(*nxt[k]); k += 1
                    if k in (12,):
                        pass
        assert k == len(nxt)
    a.stamp(2)
    a.e(f"""
    v_lshlrev_b32 v5, 5, v2
    v_lshl_add_u32 v5, v3, 3, v5
    v_sub_u32 v6, 504, v5
    v_add_u32 v6, s39, v6
    v_add_u32 v5, s39, v5
    s_lshr_b32 s46, s38, 1
    s_cmp_eq_u32 s46, 0
    s_cselect_b32 s44, s44, s45
    s_bitcmp1_b32 s38, 0
    s_cselect_b32 s46, 0, 16
    s_lshl_b32 s44, s44, s46
    s_and_b32 s44, s44, 0xffff0000
    """)
    U = 48
    for c in range(8):
        a.e(f"ds_read_b64 {vr(U+2*c,2)}, v6 offset:{512*(7-c)}")
    a.e("s_waitcnt lgkmcnt(0)")
    a.e("s_nop 7")
    for c in range(8):
        acc = ACC + c*4; t = 64 + c*8
        a.e(f"v_and_b32 v{t}, 0xffff0000, v{U+2*c+1}")
        a.e(f"v_lshlrev_b32 v{t+1}, 16, v{U+2*c+1}")
        a.e(f"v_and_b32 v{t+2}, 0xffff0000, v{U+2*c}")
        a.e(f"v_lshlrev_b32 v{t+3}, 16, v{U+2*c}")
        for r in range(4): a.e(f"v_mul_f32 v{t+r}, s44, v{t+r}")
        a.e(f"v_cvt_pk_bf16_f32 v{t+4}, v{t}, v{t+1}")
        a.e(f"v_cvt_pk_bf16_f32 v{t+5}, v{t+2}, v{t+3}")
        a.e(f"v_cvt_pk_bf16_f32 v{t+6}, v{acc}, v{acc+1}")
        a.e(f"v_cvt_pk_bf16_f32 v{t+7}, v{acc+2}, v{acc+3}")
        a.e(f"v_lshlrev_b32 v{t}, 16, v{t+4}")
        a.e(f"v_and_b32 v{t+1}, 0xffff0000, v{t+4}")
        a.e(f"v_lshlrev_b32 v{t+2}, 16, v{t+5}")
        a.e(f"v_and_b32 v{t+3}, 0xffff0000, v{t+5}")
        a.e(f"v_lshlrev_b32 v{acc}, 16, v{t+6}")
        a.e(f"v_and_b32 v{acc+1}, 0xffff0000, v{t+6}")
        a.e(f"v_lshlrev_b32 v{acc+2}, 16, v{t+7}")
        a.e(f"v_and_b32 v{acc+3}, 0xffff0000, v{t+7}")
        for r in range(4): a.e(f"v_add_f32 v{t+r}, v{t+r}, v{acc+r}")
        a.e(f"v_cvt_pk_bf16_f32 v{t+4}, v{t}, v{t+1}")
        a.e(f"v_cvt_pk_bf16_f32 v{t+5}, v{t+2}, v{t+3}")
        a.e(f"ds_write_b64 v5, {vr(t+4,2)} offset:{8320+512*c}")
    a.e("s_waitcnt lgkmcnt(0)")
    a.e("s_barrier")
    a.e(f"""
    v_bfe_u32 v5, v0, 2, 2
    v_mul_u32_u24 v5, {RS}, v5
    v_lshl_add_u32 v5, v3, 5, v5
    v_and_b32 v6, 3, v0
    v_lshl_add_u32 v5, v6, 3, v5
    s_lshl_b32 s46, s38, 10
    v_add_u32 v5, s46, v5
    v_lshlrev_b32 v6, 3, v0
    s_lshl_b32 s47, s3, 14
    s_lshl_b32 s46, s38, 12
    s_add_u32 s47, s47, s46
    """)
    for j in range(8):
        a.e(f"ds_read_b64_tr_b16 {vr(16+2*j,2)}, v5 offset:{8320+128*j}")
    a.e("s_waitcnt lgkmcnt(0)")
    for j in range(8):
        a.e(f"buffer_store_dwordx2 {vr(16+2*j,2)}, v6, s[{rZ}:{rZ+3}], s47 offen offset:{512*j}")
    a.e(f"s_branch {done}")

def k3(a):
    name = "k3_kernel"
    a.launch(name, (256,1,1), 512, 156672)
    a.begin(name)
    a.reset()
    done = "k3_done"
    rW, rX, rH, rS, rC = 16, 20, 24, 28, 32
    a.e(f"s_cmp_ge_u32 s2, 256")
    a.e(f"s_cbranch_scc1 {done}_x")
    a.pstart()
    a.ldarg(4, "w3"); a.ldarg(10, "ws")
    a.e(f"""
    s_and_b32 s40, s2, 7
    s_lshr_b32 s41, s2, 3
    s_and_b32 s36, s40, 1
    s_lshl_b32 s36, s36, 2
    s_and_b32 s42, s41, 3
    s_add_u32 s36, s36, s42
    s_lshr_b32 s37, s40, 1
    s_lshl_b32 s37, s37, 3
    s_lshr_b32 s42, s41, 2
    s_add_u32 s37, s37, s42
    v_lshrrev_b32 v1, 6, v0
    v_mov_b32 v4, v0
    v_readfirstlane_b32 s38, v1
    v_and_b32 v0, 63, v0
    v_and_b32 v2, 15, v0
    v_lshrrev_b32 v3, 4, v0
    """)
    a.e(f"""
    v_mul_u32_u24 v5, 3641, v4
    v_lshrrev_b32 v5, 16, v5
    v_mul_u32_u24 v6, 18, v5
    v_sub_u32 v6, v4, v6
    v_mul_u32_u24 v5, 9216, v5
    v_lshl_add_u32 v5, v6, 4, v5
    s_mul_i32 s42, s37, 288
    v_add_u32 v5, s42, v5
    s_lshl_b32 s43, s36, 4
    s_lshl_b32 s44, s38, 1
    s_add_u32 s43, s43, s44
    s_mul_i32 s45, s43, 18432
    v_lshl_add_u32 v7, v0, 4, s45
    s_lshl_b32 s47, s38, 10
    s_waitcnt lgkmcnt(0)
    """)
    a.srd(rW, 4, D*F*2)
    a.srd_off(rX, 10, OFF_X1, SZ_ACT)
    a.srd_off(rH, 10, OFF_H2, S*F*2)
    a.srd_off(rS, 10, OFF_ST, 9*S*8)
    a.srd_off(rC, 10, OFF_CS3, F*4)
    XF, ACC, WF = 16, 160, 232
    def adv():
        a.e(f"""
        v_add_u32 v6, 8, v6
        v_add_u32 v5, {28*9216+128}, v5
        v_cmp_le_u32 vcc, 18, v6
        v_subrev_u32 v8, 18, v6
        v_add_u32 v9, {9216-288}, v5
        v_cndmask_b32 v6, v6, v8, vcc
        v_cndmask_b32 v5, v5, v9, vcc
        """)
    a.e("s_mov_b32 s49, 0")
    a.e("s_mov_b32 s50, 18432")
    m = 0
    for ks in range(18):
        need = (9*ks + 8) // 8
        while m <= min(need, 18):
            a.e(f"s_add_u32 m0, s47, {m*8192}")
            a.e("s_nop 0")
            a.vmem(f"buffer_load_dwordx4 v5, s[{rW}:{rW+3}], 0 offen lds", f"k{ks}")
            adv()
            m += 1
        a.vmem(f"buffer_load_dwordx4 {vr(XF+ks*8)}, v7, s[{rX}:{rX+3}], s49 offen", f"k{ks}")
        a.vmem(f"buffer_load_dwordx4 {vr(XF+ks*8+4)}, v7, s[{rX}:{rX+3}], s50 offen", f"k{ks}")
        a.e("s_add_u32 s49, s49, 1024")
        a.e("s_add_u32 s50, s50, 1024")
    assert m == 19
    a.e(f"""
    v_lshrrev_b32 v10, 2, v0
    v_mul_u32_u24 v10, 288, v10
    v_and_b32 v11, 3, v0
    v_lshl_add_u32 v10, v11, 3, v10
    v_add_u32 v11, {7*9216}, v10
    v_add_u32 v12, {14*9216}, v10
    """)
    a.stamp(0)
    groups = [[0], [1], [2, 3], [4, 5, 6], [7, 8, 9, 10], [11, 12, 13, 14, 15], [16, 17]]
    seq = []
    fi = 0
    def wread(ks, t, slot):
        sl = ks if ks < 17 else 0
        base = 10 + sl // 7
        off = (sl % 7) * 9216 + t * 32
        a.lds(f"ds_read_b64_tr_b16 {vr(WF+slot*4,2)}, v{base} offset:{off}", (ks, t))
        a.lds(f"ds_read_b64_tr_b16 {vr(WF+slot*4+2,2)}, v{base} offset:{off+16*288}", (ks, t))
    for gi, g in enumerate(groups):
        if g[0] == 16:
            a.wait_vm0()
        else:
            a.wait_vm(f"k{g[-1]}")
        a.e("s_barrier")
        a.stamp(1+gi)
        if gi == 2:
            a.e(f"s_sub_u32 s51, s47, 1024")
            a.e(f"s_cmp_eq_u32 s38, 0")
            a.e(f"s_cselect_b32 m0, {152*1024}, s51")
            a.e("s_nop 0")
            a.vmem(f"buffer_load_dwordx4 v5, s[{rW}:{rW+3}], 0 offen lds", "late")
            adv()
            lab = a.newlabel("k3s")
            a.e(f"s_cmp_ge_u32 s38, 2")
            a.e(f"s_cbranch_scc1 {lab}")
            a.e(f"s_add_u32 m0, s47, {7*1024}")
            a.e("s_nop 0")
            a.e(f"buffer_load_dwordx4 v5, s[{rW}:{rW+3}], 0 offen lds")
            a.label(lab)
        items = [(ks, t) for ks in g for t in range(9)]
        PD = 5
        for j in range(min(PD, len(items))):
            wread(items[j][0], items[j][1], (fi + j) % 6)
        for j, (ks, t) in enumerate(items):
            a.wait_lg((ks, t))
            slot = (fi + j) % 6
            for tt in range(2):
                a.mfma(vr(ACC+(t*2+tt)*4), vr(WF+slot*4), vr(XF+ks*8+tt*4), "0" if ks == 0 else None)
            if j + PD < len(items):
                wread(items[j+PD][0], items[j+PD][1], (fi + j + PD) % 6)
        fi += len(items)
        if g[-1] == 6:
            a.e(f"s_lshl_b32 s45, s43, 4")
            a.e(f"v_add_u32 v13, s45, v2")
            a.e(f"v_lshlrev_b32 v13, 3, v13")
            a.e("s_mov_b32 s46, 0")
            for n in range(9):
                for tt in range(2):
                    a.vmem(f"buffer_load_dwordx2 {vr(16+(tt*9+n)*2,2)}, v13, s[{rS}:{rS+3}], s46 offen offset:{tt*128}", "st")
                a.e(f"s_add_u32 s46, s46, 16384")
        if g[-1] == 10:
            a.e(f"s_mul_i32 s46, s37, 576")
            a.e(f"v_lshlrev_b32 v13, 4, v3")
            for t in range(9):
                a.vmem(f"buffer_load_dwordx4 {vr(52+t*4)}, v13, s[{rC}:{rC+3}], s46 offen offset:{t*64}", "cs")
    a.stamp(8)
    C = 88
    for tt in range(2):
        b = 16 + tt*18
        for n in range(1, 9):
            a.e(f"v_add_f32 v{b}, v{b}, v{b+2*n}")
            a.e(f"v_add_f32 v{b+1}, v{b+1}, v{b+2*n+1}")
        a.ln_consts(b, b+1, C+tt*4, C+tt*4+1, C+tt*4+2, C+tt*4+3, 14)
    a.e(f"""
    s_mul_i32 s45, s43, 147456
    s_lshr_b32 s46, s37, 3
    s_mul_i32 s46, s46, {36*1024}
    s_add_u32 s45, s45, s46
    s_and_b32 s46, s37, 7
    s_lshl_b32 s48, s46, 12
    s_add_u32 s48, s48, s45
    s_add_u32 s49, s48, 147456
    s_lshr_b32 s50, s46, 1
    s_add_u32 s50, s50, 32
    s_lshl_b32 s50, s50, 10
    s_and_b32 s46, s46, 1
    s_lshl_b32 s46, s46, 3
    s_add_u32 s50, s50, s46
    s_add_u32 s50, s50, s45
    s_add_u32 s51, s50, 147456
    v_lshlrev_b32 v13, 4, v0
    """)
    a.stamp(9)
    T = 96; P = 112
    for t in range(9):
        seqs = []
        for tt in range(2):
            for r in range(4):
                acc = ACC + (t*2+tt)*4 + r
                seqs.append([f"v_fma_f32 v{acc}, v{C+tt*4}, v{52+t*4+r}, v{acc}"] +
                            a.gelu_seq(acc, T+tt*4+r, C+tt*4+1, C+tt*4+2, C+tt*4+3))
        for x in interleave(seqs): a.e(x)
        for tt in range(2):
            pp = P + ((t >> 1) & 1)*8 + tt*4 + (t & 1)*2
            a.e(f"v_cvt_pk_bf16_f32 v{pp}, v{T+tt*4}, v{T+tt*4+1}")
            a.e(f"v_cvt_pk_bf16_f32 v{pp+1}, v{T+tt*4+2}, v{T+tt*4+3}")
        for tt in range(2):
            pb = P + ((t >> 1) & 1)*8 + tt*4
            if t & 1:
                a.e(f"buffer_store_dwordx4 {vr(pb)}, v13, s[{rH}:{rH+3}], s{48+tt} offen offset:{(t>>1)*1024}")
            elif t == 8:
                a.e(f"buffer_store_dwordx2 {vr(pb,2)}, v13, s[{rH}:{rH+3}], s{50+tt} offen")
    a.label(done)
    a.pend(int(name[1]))
    a.label(done + "_x")
    a.e("s_endpgm")
    a.end(name, 256, 102)

def k4(a):
    name = "k4_kernel"
    a.launch(name, (256,1,1), 256, 147456)
    a.begin(name)
    a.reset()
    done = "k4_done"
    rW, rH, rP = 16, 20, 24
    a.e(f"s_cmp_ge_u32 s2, 256")
    a.e(f"s_cbranch_scc1 {done}_x")
    a.pstart()
    a.ldarg(4, "w4"); a.ldarg(10, "ws")
    a.e(f"""
    s_and_b32 s40, s2, 7
    s_lshr_b32 s41, s2, 3
    s_lshr_b32 s39, s40, 1
    s_and_b32 s36, s40, 1
    s_lshl_b32 s36, s36, 3
    s_lshr_b32 s42, s41, 2
    s_add_u32 s36, s36, s42
    s_and_b32 s37, s41, 3
    v_lshrrev_b32 v1, 6, v0
    v_and_b32 v0, 63, v0
    v_readfirstlane_b32 s38, v1
    """)
    VO, VL = 8, 17
    for i in range(9):
        a.e(f"""
        v_add_u32 v1, {64*i}, v0
        v_mul_u32_u24 v2, 3641, v1
        v_lshrrev_b32 v2, 16, v2
        v_mul_u32_u24 v3, 18, v2
        v_sub_u32 v3, v1, v3
        v_mul_u32_u24 v1, 1152, v2
        v_lshl_add_u32 v{VO+i}, v3, 4, v1
        v_lshrrev_b32 v2, 4, v2
        v_mul_u32_u24 v2, {128*1152}, v2
        v_add_u32 v{VL+i}, v{VO+i}, v2
        """)
    a.e(f"""
    s_mul_i32 s44, s39, {1152*1152}
    s_mul_i32 s45, s37, 288
    s_add_u32 s44, s44, s45
    s_mul_i32 s45, s38, {32*1152}
    s_add_u32 s46, s44, s45
    s_mul_i32 s45, s38, {288*1152}
    s_add_u32 s47, s44, s45
    s_add_u32 s47, s47, {128*1152}
    s_mul_i32 s48, s38, 9216
    s_lshl_b32 s43, s36, 3
    s_lshl_b32 s45, s38, 1
    s_add_u32 s43, s43, s45
    s_mul_i32 s49, s43, 147456
    s_mul_i32 s45, s39, {36*1024}
    s_add_u32 s49, s49, s45
    s_add_u32 s50, s49, 147456
    v_lshlrev_b32 v1, 4, v0
    v_lshrrev_b32 v4, 2, v0
    v_mul_u32_u24 v4, 288, v4
    v_and_b32 v2, 3, v0
    v_lshl_add_u32 v4, v2, 3, v4
    v_add_u32 v5, {36864}, v4
    v_add_u32 v6, {2*36864}, v4
    v_add_u32 v7, {3*36864}, v4
    s_waitcnt lgkmcnt(0)
    """)
    a.srd(rW, 4, F*D*2)
    a.srd_off(rH, 10, OFF_H2, S*F*2)
    a.srd_off(rP, 10, OFF_PART, 4*S*D*4)
    XF, WF = 28, 124
    NWF = 8
    ar = lambda b: f"a[{b}:{b+3}]"
    def dma(s, i):
        slot = s % 4
        a.e(f"s_add_u32 m0, s48, {slot*36864 + i*1024}")
        a.e("s_nop 0")
        if s < 8:
            a.vmem(f"buffer_load_dwordx4 v{VO+i}, s[{rW}:{rW+3}], s46 offen lds", f"w{s}")
            if i == 8: a.e(f"s_add_u32 s46, s46, {144*1152}")
        else:
            a.vmem(f"buffer_load_dwordx4 v{VL+i}, s[{rW}:{rW+3}], s47 offen lds", f"w{s}")
    def xld(s, j, tt):
        b = XF + (s % 3)*32 + j*8 + tt*4
        a.vmem(f"buffer_load_dwordx4 {vr(b)}, v1, s[{rH}:{rH+3}], s{49+tt} offen offset:{j*1024}", f"x{s}")
        if j == 3: a.e(f"s_add_u32 s{49+tt}, s{49+tt}, 4096")
    for s in range(4):
        for i in range(9): dma(s, i)
        if s < 3:
            for j in range(4):
                for tt in range(2): xld(s, j, tt)
    items = [(s, j, t) for s in range(9) for j in range(4) for t in range(9)]
    def wread(n):
        s, j, t = items[n]
        base = 4 + s % 4
        off = j*9216 + t*32
        r = WF + (n % NWF)*4
        a.lds(f"ds_read_b64_tr_b16 {vr(r,2)}, v{base} offset:{off}", n)
        a.lds(f"ds_read_b64_tr_b16 {vr(r+2,2)}, v{base} offset:{off+16*288}", n)
    PD = 7
    a.stamp(0)
    a.wait_vm("w0")
    a.e("s_barrier")
    a.stamp(1)
    for n in range(PD): wread(n)
    for n, (s, j, t) in enumerate(items):
        if j == 0 and t == 0:
            a.wait_vm_if(f"x{s}")
        a.wait_lg(n)
        r = WF + (n % NWF)*4
        for tt in range(2):
            a.mfma(ar((t*2+tt)*4), vr(r), vr(XF+(s%3)*32+j*8+tt*4), "0" if (s == 0 and j == 0) else None)
        nn = n + PD
        if nn < len(items):
            if items[nn][1] == 0 and items[nn][2] == 0:
                a.wait_vm_if(f"w{s+1}")
                a.e("s_barrier")
                a.stamp(2+s)
            wread(nn)
        idx = j*9 + t
        if s >= 2 and s + 2 <= 8 and idx < 27 and idx % 3 == 0:
            dma(s+2, idx // 3)
        if s >= 1 and s + 2 <= 8 and idx < 24 and idx % 3 == 1:
            q = idx // 3
            xld(s+2, q >> 1, q & 1)
    a.e("s_nop 7")
    a.e("s_nop 1")
    a.stamp(10)
    a.e(f"""
    s_lshl_b32 s44, s39, 7
    s_add_u32 s44, s44, s43
    s_mul_i32 s44, s44, 36
    s_mul_i32 s45, s37, 9
    s_add_u32 s44, s44, s45
    s_lshl_b32 s44, s44, 10
    s_add_u32 s45, s44, {36*1024}
    """)
    for t in range(9):
        for tt in range(2):
            a.e(f"buffer_store_dwordx4 {ar((t*2+tt)*4)}, v1, s[{rP}:{rP+3}], s{44+tt} offen offset:{(t%4)*1024}")
        if t % 4 == 3:
            a.e("s_add_u32 s44, s44, 4096")
            a.e("s_add_u32 s45, s45, 4096")
    a.label(done)
    a.pend(int(name[1]))
    a.label(done + "_x")
    a.e("s_endpgm")
    a.end(name, 160+72, 102, accum=160)

def k5(a):
    name = "k5_kernel"
    a.launch(name, (288,1,1), 256, 0)
    a.begin(name)
    a.reset()
    done = "k5_done"
    rP, rX, rQ, rZ, rG, rO = 16, 20, 24, 28, 32, 44
    a.e(f"s_cmp_ge_u32 s2, 288")
    a.e(f"s_cbranch_scc1 {done}_x")
    a.pstart()
    a.ldarg(4, "q"); a.ldarg(6, "out"); a.ldarg(10, "ws")
    a.e(f"""
    s_mul_i32 s36, s2, 7282
    s_lshr_b32 s36, s36, 16
    s_mul_i32 s37, s36, 9
    s_sub_u32 s37, s2, s37
    v_lshrrev_b32 v1, 6, v0
    v_and_b32 v0, 63, v0
    v_readfirstlane_b32 s38, v1
    v_and_b32 v2, 15, v0
    v_lshrrev_b32 v3, 4, v0
    s_lshl_b32 s39, s36, 2
    s_add_u32 s39, s39, s38
    v_lshlrev_b32 v1, 4, v0
    s_waitcnt lgkmcnt(0)
    """)
    a.srd_off(rP, 10, OFF_PART, 4*S*D*4)
    a.srd_off(rX, 10, OFF_X1, SZ_ACT)
    a.srd_off(rZ, 10, OFF_Z4, SZ_ACT)
    a.srd_off(rG, 10, OFF_G, S*4)
    a.srd(rQ, 4, SZ_ACT)
    a.srd(rO, 6, SZ_ACT)
    a.e(f"""
    s_mul_i32 s40, s39, 36
    s_lshl_b32 s41, s37, 2
    s_add_u32 s40, s40, s41
    s_lshl_b32 s40, s40, 10
    s_mul_i32 s41, s39, 18432
    s_lshl_b32 s42, s37, 11
    s_add_u32 s41, s41, s42
    s_lshl_b32 s42, s39, 4
    v_add_u32 v4, s42, v2
    v_lshlrev_b32 v5, 2, v4
    v_mul_u32_u24 v6, 1152, v4
    v_lshl_add_u32 v6, v3, 3, v6
    s_lshl_b32 s42, s37, 7
    v_lshlrev_b32 v7, 3, v4
    v_lshl_add_u32 v7, v3, 14, v7
    s_lshl_b32 s43, s37, 18
    """)
    PA, X1, Q, Z, G = 16, 80, 88, 96, 104
    a.vmem(f"buffer_load_dword v{G}, v5, s[{rG}:{rG+3}], 0 offen")
    for i in range(2):
        a.vmem(f"buffer_load_dwordx4 {vr(X1+4*i)}, v1, s[{rX}:{rX+3}], s41 offen offset:{i*1024}")
    for i in range(4):
        a.vmem(f"buffer_load_dwordx2 {vr(Q+2*i,2)}, v6, s[{rQ}:{rQ+3}], s42 offen offset:{i*32}")
        a.vmem(f"buffer_load_dwordx2 {vr(Z+2*i,2)}, v7, s[{rZ}:{rZ+3}], s43 offen")
        a.e(f"s_add_u32 s43, s43, 65536")
    for sp in range(4):
        for i in range(4):
            a.vmem(f"buffer_load_dwordx4 {vr(PA+(sp*4+i)*4)}, v1, s[{rP}:{rP+3}], s40 offen offset:{i*1024}")
        a.e(f"s_add_u32 s40, s40, {128*36*1024}")
    a.e("s_waitcnt vmcnt(16)")
    a.e(f"v_sub_f32 v{G+1}, 1.0, v{G}")
    a.bf16r(G+1, G+1)
    T = 108
    GA = 124
    def unpack(d, s):
        a.e(f"v_lshlrev_b32 v{d}, 16, v{s}")
        a.e(f"v_and_b32 v{d+1}, 0xffff0000, v{s}")
        a.e(f"v_lshlrev_b32 v{d+2}, 16, v{s+1}")
        a.e(f"v_and_b32 v{d+3}, 0xffff0000, v{s+1}")
    def rnd4(d, t):
        a.e(f"v_cvt_pk_bf16_f32 v{t}, v{d}, v{d+1}")
        a.e(f"v_cvt_pk_bf16_f32 v{t+1}, v{d+2}, v{d+3}")
        unpack(d, t)
    for i in range(4):
        g = GA + i*4
        unpack(g, Q+2*i)
        unpack(T, Z+2*i)
        for r in range(4): a.e(f"v_mul_f32 v{g+r}, v{g+r}, v{T+r}")
        rnd4(g, T+4)
        for r in range(4): a.e(f"v_mul_f32 v{g+r}, v{G}, v{g+r}")
        rnd4(g, T+4)
    a.e("s_waitcnt vmcnt(0)")
    for i in range(4):
        p = PA + i*4
        for r in range(4):
            a.e(f"v_add_f32 v{p+r}, v{p+r}, v{p+16+r}")
            a.e(f"v_add_f32 v{p+32+r}, v{p+32+r}, v{p+48+r}")
        for r in range(4):
            a.e(f"v_add_f32 v{p+r}, v{p+r}, v{p+32+r}")
        rnd4(p, T+4)
        unpack(T, X1+2*i)
        for r in range(4): a.e(f"v_add_f32 v{p+r}, v{p+r}, v{T+r}")
        rnd4(p, T+4)
        for r in range(4): a.e(f"v_mul_f32 v{p+r}, v{G+1}, v{p+r}")
        rnd4(p, T+4)
        for r in range(4): a.e(f"v_add_f32 v{p+r}, v{p+r}, v{GA+i*4+r}")
        o = 140 + 2*i
        a.e(f"v_cvt_pk_bf16_f32 v{o}, v{p}, v{p+1}")
        a.e(f"v_cvt_pk_bf16_f32 v{o+1}, v{p+2}, v{p+3}")
        a.e(f"buffer_store_dwordx2 {vr(o,2)}, v6, s[{rO}:{rO+3}], s42 offen offset:{i*32}")
    a.label(done)
    a.pend(int(name[1]))
    a.label(done + "_x")
    a.e("s_endpgm")
    a.end(name, 148, 102)

def k1(a):
    name = "k1_kernel"
    a.launch(name, (360,1,1), 256, 77824)
    a.begin(name)
    done = "k1_done"
    a.e(f"""
    s_cmp_ge_u32 s2, 360
    s_cbranch_scc1 {done}_x
    """)
    a.pstart()
    a.e(f"""
    s_cmp_ge_u32 s2, 288
    s_cbranch_scc1 k1_cs
    s_cmp_ge_u32 s2, 144
    s_cbranch_scc1 k1_prep
    s_mov_b32 s3, s2
    """)
    small_gemm(a, 1, done)
    a.label("k1_prep")
    a.e("s_sub_u32 s3, s2, 144")
    prep(a, done)
    a.label("k1_cs")
    a.e("s_sub_u32 s3, s2, 288")
    colsum3(a, done)
    a.label(done)
    a.pend(int(name[1]))
    a.label(done + "_x")
    a.e("s_endpgm")
    a.end(name, 256, 102)

def k2(a):
    name = "k2_kernel"
    a.launch(name, (288,1,1), 256, 73728)
    a.begin(name)
    done = "k2_done"
    a.e(f"""
    s_cmp_ge_u32 s2, 288
    s_cbranch_scc1 {done}_x
    """)
    a.pstart()
    a.e(f"""
    s_cmp_ge_u32 s2, 144
    s_cbranch_scc1 k2_conv
    s_mov_b32 s3, s2
    """)
    small_gemm(a, 2, done)
    a.label("k2_conv")
    a.e("s_sub_u32 s3, s2, 144")
    conv(a, done)
    a.label(done)
    a.pend(int(name[1]))
    a.label(done + "_x")
    a.e("s_endpgm")
    a.end(name, 256, 102)

HEADER = """; gated_mix__ssm_conv_h3__mixer_s_mlp__prompt : generated by dev/gen.py (hand-written generator)
; kernarg: q,k,v,shift_k,ssm_k,ssm_D,B_x,w1,w2,w3,w4,gate_w,out,debug,ws (8 bytes each)"""

def build(path, prof=False):
    a = K()
    a.prof = prof
    k1(a); k2(a); k3(a); k4(a); k5(a)
    open(path, "w").write(a.text(HEADER))

if __name__ == "__main__":
    build("gated_mix__ssm_conv_h3__mixer_s_mlp__prompt.s")
    build("prof.s", prof=True)
```

```python
from gen import *

OFF_FLAG = 0xBA0000
RING = 73728
SLOT = 12288
NSLOT = 7
L_CS = RING + NSLOT*SLOT
L_CONST = L_CS + 3072

def k34(a, nt_w="", nogelu=False, nored=False, mapB=True, xtile0=False, LA=6, trace=False):
    name = "k3_kernel"
    a.launch(name, (256,1,1), 1024, L_CONST + 1024)
    a.begin(name)
    a.reset()
    done = "k3_done"
    a.e(f"s_cmp_ge_u32 s2, 256")
    a.e(f"s_cbranch_scc1 {done}_x")
    a.pstart()
    rW3, rW4, rX, rS, rP, rF, rQ, rZ, rG, rO = 16, 20, 24, 28, 32, 36, 40, 44, 48, 52
    sSP, sTL, sG, sI, sBASE, sRET, sBUD = 56, 57, 58, 59, 60, 61, 3
    a.ldarg(4, "w3"); a.ldarg(6, "w4"); a.ldarg(8, "q"); a.ldarg(10, "ws"); a.ldarg(12, "out")
    if mapB:
        a.e(f"""
        s_and_b32 s14, s2, 3
        s_lshl_b32 s14, s14, 1
        s_bfe_u32 s15, s2, 0x10003
        s_add_u32 s{sSP}, s14, s15
        s_bfe_u32 s14, s2, 0x10002
        s_lshl_b32 s14, s14, 4
        s_lshr_b32 s15, s2, 4
        s_add_u32 s{sTL}, s14, s15
        """)
    else:
        a.e(f"""
        s_and_b32 s{sSP}, s2, 7
        s_lshr_b32 s{sTL}, s2, 3
        """)
    if xtile0: a.e(f"s_mov_b32 s{sTL}, 0")
    a.e(f"""
    v_lshrrev_b32 v1, 6, v0
    v_and_b32 v0, 63, v0
    v_readfirstlane_b32 s14, v1
    s_mov_b32 s{sBUD}, 0x4000
    s_lshr_b32 s{sG}, s14, 2
    s_and_b32 s{sI}, s14, 3
    v_and_b32 v9, 15, v0
    v_lshrrev_b32 v10, 4, v0
    v_lshlrev_b32 v7, 4, v0
    s_cmp_eq_u32 s{sG}, 3
    s_cbranch_scc1 k3_loader
    """)
    def late_srds():
        a.srd_off(rP, 10, OFF_PART, 32*3*6*4*8*1024)
        a.srd_off(rF, 10, OFF_FLAG, 12288)
        a.srd(rQ, 8, SZ_ACT)
        a.srd_off(rZ, 10, OFF_Z4, SZ_ACT)
        a.srd_off(rG, 10, OFF_G, S*4)
        a.srd(rO, 12, SZ_ACT)
    FB = [16, 44]; ACC = 72
    VA = [120, 121, 122, 123, 124, 125, 126]
    a.e(f"""
    v_add_u32 v8, 0x10000, v7
    v_lshrrev_b32 v5, 2, v0
    v_mul_u32_u24 v5, 384, v5
    v_and_b32 v4, 3, v0
    v_lshl_add_u32 v5, v4, 3, v5
    v_add_u32 v5, {RING}, v5
    v_bfe_u32 v4, v0, 3, 2
    v_xor_b32 v4, s{sI}, v4
    v_lshl_add_u32 v1, v4, 5, v5
    s_mov_b32 s{sRET}, 0
    s_waitcnt lgkmcnt(0)
    """)
    a.srd_off(rX, 10, OFF_X1, SZ_ACT)
    a.srd_off(rS, 10, OFF_ST, 9*S*8)
    late_srds()
    T = [0]
    def bar(n=1):
        for _ in range(n): a.e("s_barrier")
        T[0] += n
    def upto(t):
        assert t >= T[0], (t, T[0])
        bar(t - T[0])
    def set_va(base):
        for j in range(7):
            a.e(f"v_add_u32 v{VA[j]}, {((base + j) % NSLOT)*SLOT}, v1")
    a.e(f"s_cmp_eq_u32 s{sG}, 1")
    a.e(f"s_cbranch_scc1 k3_g1")
    a.e(f"s_cmp_eq_u32 s{sG}, 0")
    a.e(f"s_cbranch_scc1 k3_g0")
    T[0] = -2
    a.reset()
    ST = 72
    a.e(f"""
    s_lshl_b32 s14, s{sTL}, 2
    s_add_u32 s14, s14, s{sI}
    s_lshl_b32 s14, s14, 4
    v_add_u32 v13, s14, v9
    v_lshlrev_b32 v13, 3, v13
    v_lshl_add_u32 v13, v10, 14, v13
    s_mov_b32 s14, 0x10000
    s_mov_b32 s15, 0x20000
    """)
    set_va(36)
    upto(1)
    a.vmem(f"buffer_load_dwordx2 {vr(ST,2)}, v13, s[{rS}:{rS+3}], 0 offen", "st"); bar()
    a.vmem(f"buffer_load_dwordx2 {vr(ST+2,2)}, v13, s[{rS}:{rS+3}], s14 offen", "st"); bar()
    a.vmem(f"buffer_load_dwordx2 {vr(ST+4,2)}, v13, s[{rS}:{rS+3}], s15 offen", "st")
    upto(10)
    a.wait_vm("st")
    for n in (1, 2):
        a.e(f"v_add_f32 v{ST}, v{ST}, v{ST+2*n}")
        a.e(f"v_add_f32 v{ST+1}, v{ST+1}, v{ST+2*n+1}")
    a.xsum4(ST, 14); a.xsum4(ST+1, 14)
    bar()
    a.ln_consts(ST, ST+1, 80, 81, 82, 83, 14)
    a.e(f"s_lshl_b32 s14, s{sI}, 8")
    a.e(f"s_add_u32 s14, s14, {L_CONST}")
    a.e(f"v_lshl_add_u32 v13, v9, 4, s14")
    bar()
    a.e("s_mov_b64 exec, 0xffff")
    a.e(f"ds_write_b128 v13, v[80:83]")
    a.e("s_mov_b64 exec, -1")
    bar(2)
    a.e("s_waitcnt lgkmcnt(0)")
    upto(35)
    a.e("s_branch k3_body")
    a.label("k3_g1")
    T[0] = -2
    set_va(18)
    upto(17)
    a.e("s_branch k3_body")
    a.label("k3_g0")
    set_va(0)
    a.e("s_barrier")
    a.label("k3_body")
    a.reset()
    def reads(k):
        fb = FB[k & 1]
        out = []
        va = VA[k % 7]
        for tt in range(4):
            off = k*4096 + tt*1024
            base = 7 if off < 65536 else 8
            out.append((f"ds_read_b128 {vr(fb+tt*4)}, v{base} offset:{off & 65535}", (k, "x")))
        for j in range(3):
            out.append((f"ds_read_b64_tr_b16 {vr(fb+16+j*4,2)}, v{va} offset:{128*j}", (k, j)))
            out.append((f"ds_read_b64_tr_b16 {vr(fb+16+j*4+2,2)}, v{va} offset:{128*j+6144}", (k, j)))
        return out
    a.e("s_setprio 2")
    for (s, t) in reads(0): a.lds(s, t)
    a.e("s_barrier")
    for k in range(18):
        fb = FB[k & 1]
        rd = reads(k+1) if k < 17 else []
        ri = 0
        for m in range(12):
            j, tt = m // 4, m % 4
            if tt == 0: a.wait_lg_if((k, j))
            a.mfma(vr(ACC+(j*4+tt)*4), vr(fb+16+j*4), vr(fb+tt*4), "0" if k == 0 else None)
            if ri < len(rd):
                a.lds(*rd[ri]); ri += 1
        a.e("s_barrier")
    a.e("s_setprio 0")
    a.e(f"s_cmp_eq_u32 s{sRET}, 1")
    a.e(f"s_cbranch_scc1 k3_red")
    CO, CSR, TMP = 16, 32, 44
    a.e(f"""
    s_mul_i32 s14, s{sG}, 12
    s_add_u32 s14, s14, s{sI}
    s_lshl_b32 s62, s14, 6
    s_add_u32 s62, s62, {L_CS}
    v_lshl_add_u32 v4, v10, 4, s62
    v_lshlrev_b32 v3, 4, v9
    v_add_u32 v3, {L_CONST}, v3
    """)
    for tt in range(4): a.e(f"ds_read_b128 {vr(CO+tt*4)}, v3 offset:{tt*256}")
    for jj in range(3): a.e(f"ds_read_b128 {vr(CSR+jj*4)}, v4 offset:{jj*256}")
    a.e(f"""
    s_mul_i32 s14, s{sG}, 6
    s_add_u32 s15, s14, s{sI}
    s_lshl_b32 s15, s15, 12
    v_add_u32 v5, s15, v7
    s_lshr_b32 s15, s{sI}, 1
    s_add_u32 s15, s15, s14
    s_add_u32 s15, s15, 4
    s_lshl_b32 s15, s15, 12
    s_and_b32 s14, s{sI}, 1
    s_lshl_b32 s14, s14, 3
    s_add_u32 s15, s15, s14
    v_add_u32 v6, s15, v7
    s_mov_b32 s{sRET}, 1
    s_cmp_eq_u32 s{sG}, 1
    s_cbranch_scc1 k3_ge1
    s_cmp_eq_u32 s{sG}, 2
    s_cbranch_scc1 k3_ge2
    """)
    def gelu_ins(jjs):
        out = []
        for jj in jjs:
            for half in range(2):
                seqs = []
                for r in range(8):
                    tt = half*2 + r // 4
                    x, t = ACC + jj*16 + half*8 + r, TMP + r
                    c = CO + tt*4
                    seqs.append([f"v_fma_f32 v{x}, v{c}, v{CSR+jj*4+r%4}, v{x}"] + a.gelu_seq(x, t, c+1, c+2, c+3))
                ins = interleave(seqs)
                if nogelu: ins = ins[:8]
                out += [(x, 2 if ("exp" in x or "rcp" in x) else 1) for x in ins]
                for q in range(2):
                    b = ACC + half*8 + q*4 + (0, 2, 32)[jj]; t = TMP + q*4
                    out.append((f"v_cvt_pk_bf16_f32 v{b}, v{t}, v{t+1}", 1))
                    out.append((f"v_cvt_pk_bf16_f32 v{b+1}, v{t+2}, v{t+3}", 1))
        return out
    def paced(ins, nticks):
        tot = sum(c for _, c in ins); acc_c = 0; tk = 0
        for (x, c) in ins:
            a.e(x); acc_c += c
            if tk < nticks and acc_c >= tot*(tk+1)/nticks - 1e-9:
                tk += 1
                if tk == nticks: a.e("s_setprio 3")
                bar()
        assert tk == nticks
    def hw01():
        for tt in range(4): a.e(f"ds_write_b128 v5, {vr(ACC+tt*4)} offset:{tt*1024}")
    def hw2():
        for tt in range(4): a.e(f"ds_write_b64 v6, {vr(ACC+32+tt*4,2)} offset:{tt*1024}")
    def fin(g, tend):
        a.e("s_setprio 0")
        set_va(54 + 18*g)
        a.e("s_waitcnt lgkmcnt(0)")
        upto(tend)
        a.e("s_branch k3_body")
    def gstart(t):
        T[0] = t
        bar()
        a.e("s_waitcnt lgkmcnt(0)")
    gstart(18)
    paced(gelu_ins([0, 1, 2]), 18)
    upto(42)
    hw01(); hw2(); fin(0, 53)
    a.label("k3_ge1")
    gstart(36)
    paced(gelu_ins([0, 1, 2]), 17)
    hw01(); hw2(); fin(1, 71)
    a.label("k3_ge2")
    gstart(54)
    paced(gelu_ins([0, 1]), 9)
    hw01()
    a.e("s_setprio 0")
    gi = gelu_ins([2])
    gi = gi[:8] + [("s_waitcnt lgkmcnt(0)", 0)] + gi[8:]
    paced(gi, 4)
    hw2(); fin(2, 89)
    P = [True]
    def pb(n=1):
        if P[0]: bar(n)
    def produce(drain):
        a.reset()
        a.e(f"""
        s_mul_i32 s14, s{sTL}, 3
        s_add_u32 s14, s14, s{sG}
        s_mul_i32 s15, s14, 24
        s_add_u32 s15, s15, s{sI}
        s_lshl_b32 s15, s15, 3
        s_add_u32 s15, s15, s{sSP}
        s_lshl_b32 s15, s15, 10
        s_lshl_b32 s14, s14, 2
        s_add_u32 s14, s14, s{sI}
        s_lshl_b32 s14, s14, 3
        s_add_u32 s14, s14, s{sSP}
        s_lshl_b32 s63, s14, 2
        v_mov_b32 v6, 0
        v_mov_b32 v15, 1
        """)
        for c in range(6):
            jj, h = c >> 1, c & 1
            q = 16 + c*4
            for e in range(2):
                b = ACC + (jj*4 + 2*h + e)*4
                a.e(f"v_cvt_pk_bf16_f32 v{q+2*e}, v{b}, v{b+1}")
                a.e(f"v_cvt_pk_bf16_f32 v{q+2*e+1}, v{b+2}, v{b+3}")
        a.e("s_setprio 3")
        pb()
        for c in range(6):
            q = 16 + c*4
            a.vmem(f"buffer_store_dwordx4 {vr(q)}, v7, s[{rP}:{rP+3}], s15 offen sc1", "pst")
            a.e("s_add_u32 s15, s15, 32768")
        a.e("s_setprio 0")
        a.stamp(1)
        pb(drain)
        a.wait_vm("pst")
        a.e("s_mov_b64 exec, 1")
        a.vmem(f"buffer_store_dword v15, v6, s[{rF}:{rF+3}], s63 offen sc1", "fl")
        a.e("s_mov_b64 exec, -1")
        a.stamp(2)
    X1, Q, Z, GG, OM, TT, GA, SUM, PA = 72, 76, 80, 84, 86, 88, 96, 104, 16
    def unpack(d, s):
        a.e(f"v_lshlrev_b32 v{d}, 16, v{s}")
        a.e(f"v_and_b32 v{d+1}, 0xffff0000, v{s}")
        a.e(f"v_lshlrev_b32 v{d+2}, 16, v{s+1}")
        a.e(f"v_and_b32 v{d+3}, 0xffff0000, v{s+1}")
    def rnd4(d, t):
        a.e(f"v_cvt_pk_bf16_f32 v{t}, v{d}, v{d+1}")
        a.e(f"v_cvt_pk_bf16_f32 v{t+1}, v{d+2}, v{d+3}")
        unpack(d, t)
    def cons_prep(j):
        a.reset()
        a.e(f"""
        s_sub_u32 s5, s{sSP}, {2*j}
        s_and_b32 s5, s5, 7
        s_cmp_ge_u32 s5, 6
        s_cbranch_scc1 {done}_x
        s_lshr_b32 s4, s5, 1
        s_lshl_b32 s4, s4, 2
        s_add_u32 s4, s4, s{sI}
        s_add_u32 s4, s4, {12*j}
        s_and_b32 s6, s5, 1
        s_lshl_b32 s7, s{sTL}, 2
        s_lshl_b32 s6, s6, 1
        s_add_u32 s7, s7, s6
        s_mul_i32 s8, s7, 18432
        s_lshr_b32 s9, s4, 1
        s_lshl_b32 s9, s9, 10
        s_add_u32 s8, s8, s9
        s_and_b32 s9, s4, 1
        s_lshl_b32 s9, s9, 3
        s_add_u32 s8, s8, s9
        s_add_u32 s9, s8, 18432
        s_lshl_b32 s7, s7, 4
        v_add_u32 v1, s7, v9
        v_lshlrev_b32 v2, 2, v1
        v_mul_u32_u24 v3, 1152, v1
        v_lshl_add_u32 v3, v10, 3, v3
        s_lshl_b32 s10, s4, 5
        s_add_u32 s11, s10, {16*1152}
        v_lshlrev_b32 v4, 3, v1
        v_lshl_add_u32 v4, v10, 14, v4
        s_lshl_b32 s12, s4, 16
        """)
        pb()
        a.e(f"""
        s_mul_i32 s14, s{sTL}, 3
        s_add_u32 s14, s14, {j}
        s_lshl_b32 s13, s14, 2
        s_add_u32 s13, s13, s{sI}
        s_lshl_b32 s13, s13, 5
        s_mul_i32 s15, s14, 6
        s_add_u32 s15, s15, s5
        s_lshl_b32 s15, s15, 2
        s_add_u32 s15, s15, s{sI}
        s_lshl_b32 s15, s15, 13
        s_add_u32 s14, s15, 4096
        v_and_b32 v5, 7, v0
        v_lshlrev_b32 v5, 2, v5
        """)
        for e in range(2):
            a.vmem(f"buffer_load_dwordx2 {vr(X1+2*e,2)}, v7, s[{rX}:{rX+3}], s{8+e} offen", "aux")
            a.vmem(f"buffer_load_dwordx2 {vr(Q+2*e,2)}, v3, s[{rQ}:{rQ+3}], s{10+e} offen", "aux")
            a.vmem(f"buffer_load_dwordx2 {vr(Z+2*e,2)}, v4, s[{rZ}:{rZ+3}], s12 offen offset:{e*128}", "aux")
            a.vmem(f"buffer_load_dword v{GG+e}, v2, s[{rG}:{rG+3}], 0 offen offset:{e*64}", "aux")
    def cons_ga():
        a.wait_vm("aux")
        for e in range(2):
            g = GA + e*4
            a.e(f"v_sub_f32 v{OM+e}, 1.0, v{GG+e}")
            a.bf16r(OM+e, OM+e)
            unpack(g, Q+2*e)
            unpack(TT, Z+2*e)
            for r in range(4): a.e(f"v_mul_f32 v{g+r}, v{g+r}, v{TT+r}")
            rnd4(g, TT+4)
            for r in range(4): a.e(f"v_mul_f32 v{g+r}, v{GG+e}, v{g+r}")
            rnd4(g, TT+4)
            pb()
    def poll_issue():
        a.e(f"buffer_load_dword v14, v5, s[{rF}:{rF+3}], s13 offen sc1")
    def cons_main(stop_pacing_at=None):
        lab = a.newlabel("poll")
        a.stamp(8)
        a.label(lab)
        a.e("s_waitcnt vmcnt(0)")
        a.e("v_cmp_ne_u32 vcc, 1, v14")
        a.e(f"s_cbranch_vccz {lab}_ok")
        a.e(f"s_sub_u32 s{sBUD}, s{sBUD}, 1")
        a.e(f"s_cbranch_scc1 {lab}_ok")
        poll_issue()
        a.e(f"s_branch {lab}")
        a.label(f"{lab}_ok")
        a.stamp(9)
        a.reset()
        for p in range(8):
            a.vmem(f"buffer_load_dwordx4 {vr(PA+4*p)}, v7, s[{rP}:{rP+3}], s{15 if p < 4 else 14} offen offset:{(p%4)*1024} sc1", p)
        if stop_pacing_at is not None:
            upto(stop_pacing_at); P[0] = False
        for p in range(8):
            a.wait_vm(p)
            for k in range(4):
                x = PA + 4*p + k
                if p == 0:
                    a.e(f"v_lshlrev_b32 v{SUM+2*k}, 16, v{x}")
                    a.e(f"v_and_b32 v{SUM+2*k+1}, 0xffff0000, v{x}")
                else:
                    a.e(f"v_lshlrev_b32 v{TT+2*k}, 16, v{x}")
                    a.e(f"v_and_b32 v{TT+2*k+1}, 0xffff0000, v{x}")
            if p:
                for k in range(8): a.e(f"v_add_f32 v{SUM+k}, v{SUM+k}, v{TT+k}")
        a.stamp(10)
        for e in range(2):
            p = SUM + 4*e
            rnd4(p, TT+4)
            unpack(TT, X1+2*e)
            for r in range(4): a.e(f"v_add_f32 v{p+r}, v{p+r}, v{TT+r}")
            rnd4(p, TT+4)
            for r in range(4): a.e(f"v_mul_f32 v{p+r}, v{OM+e}, v{p+r}")
            rnd4(p, TT+4)
            for r in range(4): a.e(f"v_add_f32 v{p+r}, v{p+r}, v{GA+e*4+r}")
            o = 112 + 2*e
            a.e(f"v_cvt_pk_bf16_f32 v{o}, v{p}, v{p+1}")
            a.e(f"v_cvt_pk_bf16_f32 v{o+1}, v{p+2}, v{p+3}")
            a.e(f"buffer_store_dwordx2 {vr(o,2)}, v3, s[{rO}:{rO+3}], s{10+e} offen")
        a.e(f"s_branch {done}")
    if a.prof:
        pass
    a.label("k3_red")
    a.stamp(0)
    if nored: a.e(f"s_branch {done}_x")
    a.e(f"s_cmp_eq_u32 s{sG}, 2")
    a.e(f"s_cbranch_scc1 k3_red_2")
    T[0] = 0; P[0] = True
    produce(8)
    a.e(f"s_cmp_eq_u32 s{sG}, 1")
    a.e(f"s_cbranch_scc1 k3_red_1")
    tsave = T[0]
    upto(16)
    cons_prep(0)
    poll_issue(); a.vm.append("pl")
    upto(24)
    cons_ga()
    cons_main(36)
    a.label("k3_red_1")
    T[0] = tsave; P[0] = True
    upto(12)
    cons_prep(1)
    upto(18); P[0] = False
    poll_issue(); a.vm.append("pl")
    cons_ga()
    cons_main()
    a.label("k3_red_2")
    P[0] = False
    produce(0)
    a.e(f"s_branch {done}")
    a.label("k3_loader")
    a.reset()
    for e in range(3):
        a.e(f"""
        v_add_u32 v12, {64*e}, v0
        v_mul_u32_u24 v13, 2731, v12
        v_lshrrev_b32 v13, 16, v13
        v_mul_u32_u24 v14, 24, v13
        v_sub_u32 v14, v12, v14
        v_and_b32 v11, 6, v13
        v_xor_b32 v14, v14, v11
        v_lshlrev_b32 v14, 4, v14
        v_subrev_u32 v14, {1024*e}, v14
        v_mul_u32_u24 v11, 9216, v13
        v_add_u32 v{16+e}, v14, v11
        v_mul_u32_u24 v11, 1152, v13
        v_add_u32 v{20+e}, v14, v11
        """)
    a.e("s_waitcnt lgkmcnt(0)")
    a.srd(rW3, 4, D*F*2)
    a.srd_off(rX, 10, OFF_X1, SZ_ACT)
    a.srd(rW4, 6, F*D*2)
    a.srd_off(rS, 10, OFF_CS3, F*4)
    a.e(f"""
    s_mul_i32 s4, s{sSP}, 1152
    s_mul_i32 s6, s{sI}, {8*9216}
    s_add_u32 s4, s4, s6
    s_mul_i32 s5, s{sSP}, {576*1152}
    s_mul_i32 s6, s{sI}, {8*1152}
    s_add_u32 s5, s5, s6
    s_mul_i32 s6, s{sI}, 3072
    s_add_u32 s6, s6, {RING}
    s_lshl_b32 s14, s{sTL}, 2
    s_add_u32 s14, s14, s{sI}
    s_mul_i32 s62, s14, 18432
    s_lshl_b32 s63, s{sI}, 10
    s_lshr_b32 s14, s{sI}, 1
    s_mul_i32 s14, s14, {48*1152}
    s_add_u32 s60, s5, s14
    s_setprio 1
    """)
    def issue(u):
        ph, ks = u // 18, u % 18
        which, th = ph // 3, ph % 3
        pitch = 9216 if which == 0 else 1152
        rW = (rW3, rW4)[which]
        if u < 18:
            a.e(f"s_add_u32 m0, s63, {u*4096}")
            a.e(f"s_add_u32 s7, s62, {u*1024}")
            a.vmem(f"buffer_load_dwordx4 v7, s[{rX}:{rX+3}], s7 offen lds", u)
        a.e(f"s_add_u32 m0, s6, {(u % NSLOT)*SLOT}")
        if which == 1 and ks % 6 < 4:
            a.e(f"s_add_u32 s7, s60, {((ks//6)*192 + (ks%6)*16)*1152 + th*384}")
        else:
            a.e(f"s_add_u32 s7, s{4+which}, {ks*32*pitch + th*384}")
        for e in range(3):
            a.vmem(f"buffer_load_dwordx4 v{16+4*which+e}, s[{rW}:{rW+3}], s7 offen offset:{e*1024} {nt_w} lds", u)
        if u == 12:
            a.e(f"s_min_u32 s14, s{sI}, 2")
            a.e(f"s_lshl_b32 s14, s14, 10")
            a.e(f"s_add_u32 m0, s14, {L_CS}")
            a.e(f"s_mul_i32 s15, s{sSP}, 2304")
            a.e(f"s_add_u32 s15, s15, s14")
            a.vmem(f"buffer_load_dwordx4 v7, s[{rS}:{rS+3}], s15 offen lds", u)
    for u in range(LA): issue(u)
    a.wait_vm(0)
    a.e("s_barrier")
    marks = [-1, 17, 35, 53, 71, 89, 101]
    for u in range(-1, 106):
        if u >= 0 and u + LA < 108: issue(u + LA)
        if u == 102 and not nored: late_srds()
        if trace and u >= 0:
            a.e("s_waitcnt lgkmcnt(0)")
            a.e(f"v_writelane_b32 v{100 + u//64}, s92, {u % 64}")
        a.wait_vm(u+2)
        a.e("s_barrier")
        if trace: a.e("s_memtime s[92:93]")
        if u in marks: a.stamp(marks.index(u))
    a.e("s_setprio 0")
    if trace:
        a.srd_off(16, 10, 0x5000000, 0x100000)
        a.e("s_lshl_b32 s14, s100, 2")
        a.e(f"s_add_u32 s14, s14, s{sI}")
        a.e("s_lshl_b32 s14, s14, 9")
        a.e("v_lshlrev_b32 v12, 2, v0")
        a.e("buffer_store_dword v100, v12, s[16:19], s14 offen")
        a.e("buffer_store_dword v101, v12, s[16:19], s14 offen offset:256")
    if nored: a.e(f"s_branch {done}")
    a.e("s_barrier"); a.e("s_barrier")
    P[0] = False
    cons_prep(2)
    cons_ga()
    poll_issue()
    cons_main()
    a.label(done)
    a.pend(3)
    a.label(done + "_x")
    a.e("s_endpgm")
    a.end(name, 128, 102)
```

```python
import sys
from gen import *
import gen
from k34 import k34, OFF_FLAG

def k1(a):
    name = "k1_kernel"
    a.launch(name, (360,1,1), 256, 77824)
    a.begin(name)
    done = "k1_done"
    a.e(f"""
    s_cmp_ge_u32 s2, 360
    s_cbranch_scc1 {done}_x
    """)
    a.pstart()
    a.e(f"""
    s_cmp_ge_u32 s2, 288
    s_cbranch_scc1 k1_cs
    s_cmp_ge_u32 s2, 144
    s_cbranch_scc1 k1_prep
    s_mov_b32 s3, s2
    """)
    small_gemm(a, 1, done)
    a.label("k1_prep")
    a.e("s_sub_u32 s3, s2, 144")
    a.e(f"""
    s_cmp_ge_u32 s3, 3
    s_cbranch_scc1 k1_prep2
    s_load_dwordx2 s[10:11], s[0:1], 112
    v_mov_b32 v4, 0
    v_mov_b32 v5, 0
    v_mov_b32 v6, 0
    v_mov_b32 v7, 0
    v_lshlrev_b32 v8, 4, v0
    s_lshl_b32 s12, s3, 12
    s_waitcnt lgkmcnt(0)
    """)
    a.srd_off(16, 10, OFF_FLAG, 12288)
    a.e("buffer_store_dwordx4 v[4:7], v8, s[16:19], s12 offen")
    a.e("s_nop 1")
    a.label("k1_prep2")
    prep(a, done)
    a.label("k1_cs")
    a.e("s_sub_u32 s3, s2, 288")
    colsum3(a, done)
    a.label(done)
    a.pend(1)
    a.label(done + "_x")
    a.e("s_endpgm")
    a.end(name, 256, 102)

def build(path, prof=False, dup=False, **kw):
    a = K()
    a.prof = prof
    k1(a); gen.k2(a); k34(a, **kw)
    if dup: a.launches.append(a.launches[-1])
    roles = {1: [(0,144,0,4,"gemm1"),(144,288,0,4,"prep")], 2: [(0,144,0,4,"gemm2"),(144,288,0,4,"conv")],
             3: [(0,256,0,4,"g0"),(0,256,4,8,"g1"),(0,256,8,12,"g2"),(0,256,12,16,"ld")]}
    open(path, "w").write(a.text(HEADER + ("\n; roles " + repr(roles) if prof else "")))

if __name__ == "__main__":
    build("gated_mix__ssm_conv_h3__mixer_s_mlp__prompt.s")
    build("prof.s", prof=True)
    kw = dict(prof=True, nored=True, dup=True, xtile0=True, mapB=False)
    build("pa.s", trace=True, **kw)
    build("pb.s", prof=True, dup=True, trace=True)
    build("pc.s", prof=True, trace=True)
```

```python
import sys
from gen import *
import gen
from k34 import k34, OFF_FLAG

def k1(a):
    name = "k1_kernel"
    a.launch(name, (360,1,1), 256, 77824)
    a.begin(name)
    done = "k1_done"
    a.e(f"""
    s_cmp_ge_u32 s2, 360
    s_cbranch_scc1 {done}_x
    """)
    a.pstart()
    a.e(f"""
    s_cmp_ge_u32 s2, 288
    s_cbranch_scc1 k1_cs
    s_cmp_ge_u32 s2, 144
    s_cbranch_scc1 k1_prep
    s_mov_b32 s3, s2
    """)
    small_gemm(a, 1, done)
    a.label("k1_prep")
    a.e("s_sub_u32 s3, s2, 144")
    a.e(f"""
    s_cmp_ge_u32 s3, 3
    s_cbranch_scc1 k1_prep2
    s_load_dwordx2 s[10:11], s[0:1], 112
    v_mov_b32 v4, 0
    v_mov_b32 v5, 0
    v_mov_b32 v6, 0
    v_mov_b32 v7, 0
    v_lshlrev_b32 v8, 4, v0
    s_lshl_b32 s12, s3, 12
    s_waitcnt lgkmcnt(0)
    """)
    a.srd_off(16, 10, OFF_FLAG, 12288)
    a.e("buffer_store_dwordx4 v[4:7], v8, s[16:19], s12 offen")
    a.e("s_nop 1")
    a.label("k1_prep2")
    prep(a, done)
    a.label("k1_cs")
    a.e("s_sub_u32 s3, s2, 288")
    colsum3(a, done)
    a.label(done)
    a.pend(1)
    a.label(done + "_x")
    a.e("s_endpgm")
    a.end(name, 256, 102)

def build(path, prof=False, dup=False, nops=0, pre=None, **kw):
    a = K()
    a.prof = prof
    k1(a); gen.k2(a); k34(a, **kw)
    if dup: a.launches.append(a.launches[-1])
    if nops:
        for _ in range(nops): a.launch("nop_kernel", (256,1,1), 256, 0)
        a.begin("nop_kernel"); a.e("s_endpgm"); a.end("nop_kernel", 8, 16)
    if pre: a.launches = [a.launches[i] for i in pre]
    roles = {1: [(0,144,0,4,"gemm1"),(144,288,0,4,"prep")], 2: [(0,144,0,4,"gemm2"),(144,288,0,4,"conv")],
             3: [(0,256,0,4,"g0"),(0,256,4,8,"g1"),(0,256,8,12,"g2"),(0,256,12,16,"ld")]}
    open(path, "w").write(a.text(HEADER + ("\n; roles " + repr(roles) if prof else "")))

if __name__ == "__main__":
    build("gated_mix__ssm_conv_h3__mixer_s_mlp__prompt.s")
    build("prof.s", prof=True)
    kw = dict(prof=True, nored=True, dup=True, xtile0=True, mapB=False)
    build("pa.s", trace=True, **kw)
    build("pb.s", prof=True, dup=True, trace=True)
    build("pc.s", prof=True, trace=True)
    build("v_nop1.s", nops=1)
    build("v_nop4.s", nops=4)
    build("v_2x.s", pre=[0,1,2,0,1,2])
    build("v_k1x2.s", pre=[0,0,1,2])
    build("v_k2x2.s", pre=[0,1,1,2])
```

```python
from gen import *
from k34 import OFF_FLAG

URP = 4096

def tile_decode(a, sTM, sTN):
    a.e(f"""
    s_and_b32 s40, s3, 7
    s_lshr_b32 s41, s3, 3
    s_cmp_ge_u32 s41, 9
    s_cselect_b32 s42, 1, 0
    s_lshl_b32 s{sTM}, s40, 1
    s_add_u32 s{sTM}, s{sTM}, s42
    s_mul_i32 s42, s42, 9
    s_sub_u32 s{sTN}, s41, s42
    """)

def gemm1(a, done, ntx="", ntw=""):
    a.reset()
    rW, rA, rO, rQ, rS = 16, 20, 24, 28, 32
    sTM, sTN, sWV, sTG, sNH = 36, 37, 38, 39, 35
    NX = 5
    LX = 73728; LST = LX + NX*16384
    LCS = LST + 3456; LCO = 159744
    a.ldarg(4, "w1"); a.ldarg(12, "q"); a.ldarg(8, "ws"); a.ldarg(10, "gw")
    tile_decode(a, sTM, sTN)
    a.e(f"""
    v_lshrrev_b32 v1, 6, v0
    v_lshlrev_b32 v14, 4, v0
    v_readfirstlane_b32 s{sWV}, v1
    v_and_b32 v0, 63, v0
    v_and_b32 v2, 15, v0
    v_lshrrev_b32 v3, 4, v0
    s_lshr_b32 s{sTG}, s{sWV}, 1
    s_and_b32 s55, s{sWV}, 1
    """)
    sNH = 55
    a.e(f"""
    v_lshrrev_b32 v10, 3, v0
    v_and_b32 v11, 7, v0
    v_lshrrev_b32 v12, 1, v10
    v_xor_b32 v13, v11, v12
    v_mul_u32_u24 v4, 1152, v10
    v_lshl_add_u32 v4, v13, 4, v4
    v_xor_b32 v13, 4, v13
    v_mul_u32_u24 v5, 1152, v10
    v_lshl_add_u32 v5, v13, 4, v5
    v_add_u32 v5, {8*1152 - 1024}, v5
    s_and_b32 s44, s{sWV}, 3
    s_lshl_b32 s44, s44, 3
    v_add_u32 v10, s44, v10
    v_and_b32 v12, 6, v10
    v_xor_b32 v13, v11, v12
    v_and_b32 v12, 12, v10
    v_lshlrev_b32 v12, 1, v12
    v_and_b32 v11, 3, v10
    v_add_u32 v12, v12, v11
    v_lshrrev_b32 v11, 4, v10
    v_lshl_add_u32 v12, v11, 2, v12
    v_mul_u32_u24 v6, 1152, v12
    v_lshl_add_u32 v6, v13, 4, v6
    s_lshl_b32 s43, s{sTM}, 7
    s_lshl_b32 s44, s{sWV}, 4
    s_add_u32 s44, s44, s43
    s_mul_i32 s46, s44, 1152
    s_lshr_b32 s44, s{sWV}, 2
    s_mul_i32 s47, s44, {32*1152}
    s_lshl_b32 s44, s{sTN}, 7
    s_add_u32 s47, s47, s44
    s_lshl_b32 s48, s{sWV}, 11
    s_add_u32 s48, s48, {LX}
    s_lshl_b32 s49, s{sWV}, 10
    s_waitcnt lgkmcnt(0)
    """)
    a.srd(rQ, 12, SZ_ACT)
    a.srd(rW, 4, D*D*2)
    a.srd(rA, 10, D*2)
    def xdma(p):
        a.e(f"s_add_u32 m0, s48, {(p % NX)*16384}")
        a.e(f"s_add_u32 s50, s46, {p*128}")
        a.vmem(f"buffer_load_dwordx4 v4, s[{rQ}:{rQ+3}], s50 offen {ntx} lds", p)
        a.vmem(f"buffer_load_dwordx4 v5, s[{rQ}:{rQ+3}], s50 offen offset:1024 {ntx} lds", p)
    def wdma(p, tag=None):
        a.e(f"s_add_u32 m0, s49, {p*8192}")
        a.e(f"s_add_u32 s50, s47, {p*64*1152}")
        a.vmem(f"buffer_load_dwordx4 v6, s[{rW}:{rW+3}], s50 offen {ntw} lds", p if tag is None else tag)
    FBs = [32, 72]
    ACC, ST, CS, ONE, SQ = 112, 128, 132, 136, 140
    a.vmem(f"buffer_load_dwordx4 {vr(ACC)}, v14, s[{rA}:{rA+3}], 0 offen", "gw")
    for p in range(3):
        wdma(p); xdma(p)
    a.srd_off(rO, 8, OFF_HS, SZ_ACT)
    a.srd_off(rS, 8, OFF_G, S*4)
    a.e(f"""
    v_lshrrev_b32 v10, 2, v0
    v_lshlrev_b32 v10, 7, v10
    v_and_b32 v11, 3, v0
    v_lshl_add_u32 v10, v11, 3, v10
    v_bfe_u32 v11, v0, 3, 2
    s_lshl_b32 s44, s{sNH}, 1
    s_and_b32 s45, s{sTG}, 1
    s_add_u32 s54, s44, s45
    v_xor_b32 v11, s54, v11
    v_lshl_add_u32 v16, v11, 5, v10
    v_xor_b32 v11, 1, v11
    v_lshl_add_u32 v17, v11, 5, v10
    v_add_u32 v18, 0x8000, v16
    v_add_u32 v19, 0x8000, v17
    v_lshrrev_b32 v11, 1, v2
    v_xor_b32 v11, v3, v11
    v_lshlrev_b32 v10, 7, v2
    v_lshl_add_u32 v20, v11, 4, v10
    v_xor_b32 v21, 64, v20
    s_lshl_b32 s44, s{sTG}, 12
    s_lshl_b32 s45, s{sNH}, 11
    s_add_u32 s44, s44, {LX}
    s_add_u32 s51, s44, s45
    s_xor_b32 s45, s45, 2048
    s_add_u32 s52, s44, s45
    v_add_u32 v22, s52, v20
    v_add_u32 v23, s52, v21
    v_add_u32 v20, s51, v20
    v_add_u32 v21, s51, v21
    """)
    for k in range(4): a.e(f"v_add_u32 v{24+k}, 0x10000, v{20+k}")
    a.e(f"""
    v_and_b32 v11, 3, v0
    v_mov_b32 v28, {LST+2304}
    v_mov_b32 v10, {LST+1152}
    v_cmp_eq_u32 vcc, 0, v11
    v_mov_b32 v{ONE}, 0x3f803f80
    v_mov_b32 v{ONE+1}, 0x3f803f80
    v_cndmask_b32 v28, v28, v10, vcc
    v_mov_b32 v10, {LST}
    v_cmp_eq_u32 vcc, 1, v11
    v_mov_b32 v{ONE+2}, 0x3f803f80
    v_mov_b32 v{ONE+3}, 0x3f803f80
    v_cndmask_b32 v28, v28, v10, vcc
    v_lshl_add_u32 v28, v3, 4, v28
    v_mov_b32 v{ST}, 0
    v_mov_b32 v{ST+1}, 0
    v_mov_b32 v{ST+2}, 0
    v_mov_b32 v{ST+3}, 0
    v_mov_b32 v{SQ}, 0
    v_cmp_gt_u32 vcc, 1152, v14
    v_add_u32 v14, {LST}, v14
    """)
    a.wait_vm("gw")
    a.e("s_and_saveexec_b64 s[56:57], vcc")
    a.e(f"ds_write_b128 v14, {vr(ACC)}")
    a.e(f"ds_write_b128 v14, {vr(ONE)} offset:1152")
    a.e(f"ds_write_b128 v14, {vr(ST)} offset:2304")
    a.e("s_mov_b64 exec, s[56:57]")
    for p in range(3, NX):
        wdma(p); xdma(p)
    a.e("s_waitcnt lgkmcnt(0)")
    a.stamp(0)
    def reads(p):
        fb = FBs[p & 1]; out = []
        for h in range(2):
            sl = p % NX
            for tt in range(2):
                b = (20 if sl < 4 else 24) + tt*2 + h
                out.append((f"ds_read_b128 {vr(fb+16+h*8+tt*4)}, v{b} offset:{(sl & 3)*16384}", (p, h)))
            off = p*8192 + h*4096
            wb = 16 if off < 0x8000 else 18
            if off >= 0x8000: off -= 0x8000
            for j in range(2):
                out.append((f"ds_read_b64_tr_b16 {vr(fb+h*8+j*4,2)}, v{wb+j} offset:{off}", (p, h)))
                out.append((f"ds_read_b64_tr_b16 {vr(fb+h*8+j*4+2,2)}, v{wb+j} offset:{off+2048}", (p, h)))
            out.append((f"ds_read_b128 {vr(fb+32+h*4)}, v28 offset:{(2*p+h)*64}", (p, h)))
        return out
    a.wait_vm(0)
    a.e("s_barrier")
    for (s, t) in reads(0): a.lds(s, t)
    for p in range(9):
        if p < 8:
            a.wait_vm(p+1)
            a.e("s_barrier")
            a.stamp(1+p)
        dm = []
        if p >= 1 and p - 1 + NX < 9: dm.append(("x", p - 1 + NX))
        if p + NX < 9: dm.append(("w", p + NX))
        rd = reads(p+1) if p < 8 else []
        fb = FBs[p & 1]
        ops = []
        for h in range(2):
            first = (p == 0 and h == 0)
            mm = []
            for j in range(2):
                for tt in range(2):
                    mm.append((vr(ACC+(j*2+tt)*4), vr(fb+h*8+j*4), vr(fb+16+h*8+tt*4)))
            mm.append((vr(CS), vr(fb+h*8), vr(ONE)))
            mm.append((vr(ST), vr(fb+32+h*4), vr(fb+16+h*8)))
            for n, m in enumerate(mm):
                if n == 0: a.wait_lg_if((p, h))
                a.mfma(m[0], m[1], m[2], "0" if first else None)
                if n < 4: a.e(f"v_dot2c_f32_bf16 v{SQ}, v{fb+16+h*8+n}, v{fb+16+h*8+n}")
                for _ in range(2 if h == 0 and n < 2 else 1):
                    if rd: a.lds(*rd.pop(0))
                if n == 2 and dm:
                    k, q = dm.pop(0)
                    xdma(q) if k == "x" else wdma(q)
        assert not rd and not dm
    a.stamp(9)
    C = 32
    a.e("s_nop 7")
    a.xsum4(SQ, 10)
    a.e(f"v_mov_b32 v29, v{ST+1}")
    a.ln_consts(ST, SQ, C, C+1, C+2, C+3, 10)
    a.e(f"""
    s_lshl_b32 s44, s{sWV}, 8
    s_add_u32 s44, s44, {LCO}
    v_lshl_add_u32 v10, v2, 4, s44
    s_lshl_b32 s45, s54, 6
    s_add_u32 s45, s45, {LCS}
    v_lshl_add_u32 v11, v3, 4, s45
    s_mov_b64 exec, 0xffff
    ds_write_b128 v10, {vr(C)}
    s_mov_b64 exec, -1
    v_cmp_eq_u32 vcc, 0, v2
    v_xor_b32 v12, 256, v10
    v_xor_b32 v13, 64, v11
    s_and_saveexec_b64 s[56:57], vcc
    ds_write_b128 v11, {vr(CS)}
    s_mov_b64 exec, s[56:57]
    s_waitcnt lgkmcnt(0)
    s_barrier
    ds_read_b128 {vr(C+4)}, v12
    ds_read_b128 {vr(ONE)}, v13
    """)
    assert LCO % 512 == 0 and LCS % 128 == 0
    lab = a.newlabel("nog")
    a.e(f"s_cmp_lg_u32 s{sTN}, 0")
    a.e(f"s_cbranch_scc1 {lab}")
    a.bf16r(29, 29)
    a.e(f"v_mul_f32 v29, {hex(f2u(-1.4426950408889634))}, v29")
    a.e(f"v_exp_f32 v29, v29")
    a.e("s_nop 0")
    a.e(f"v_add_f32 v29, 1.0, v29")
    a.e(f"v_rcp_f32 v29, v29")
    a.e("s_nop 0")
    a.bf16r(29, 29)
    a.e(f"s_lshl_b32 s44, s{sWV}, 4")
    a.e(f"s_add_u32 s44, s44, s43")
    a.e(f"v_add_lshl_u32 v10, s44, v2, 2")
    a.e("s_mov_b64 exec, 0xffff")
    a.e(f"buffer_store_dword v29, v10, s[{rS}:{rS+3}], 0 offen")
    a.e("s_mov_b64 exec, -1")
    a.label(lab)
    T = 48
    CSR = [CS, ONE]
    for j in range(2):
        a.e(f"""
        s_xor_b32 s45, s54, {j}
        s_lshl_b32 s46, s{sTN}, 2
        s_add_u32 s45, s45, s46
        s_mul_i32 s46, s45, 57
        s_lshr_b32 s46, s46, 9
        s_lshr_b32 s47, s46, 1
        s_add_u32 s47, s47, 1
        s_sub_u32 s48, 0, s47
        s_bitcmp1_b32 s46, 0
        s_cselect_b32 s47, s48, s47
        s_add_u32 s47, s47, s43
        s_lshl_b32 s48, s{sWV}, 4
        s_add_u32 s50, s47, s48
        s_xor_b32 s48, s48, 16
        s_add_u32 s51, s47, s48
        s_lshr_b32 s48, s45, 1
        s_lshl_b32 s48, s48, 10
        s_and_b32 s49, s45, 1
        s_lshl_b32 s49, s49, 3
        s_add_u32 s48, s48, s49
        """)
        if j == 0: a.e("s_waitcnt lgkmcnt(0)")
        seqs = []
        for tt in range(2):
            for r in range(4):
                acc = ACC + (j*2+tt)*4 + r
                seqs.append([f"v_fma_f32 v{acc}, v{C+tt*4}, v{CSR[j]+r}, v{acc}"] +
                            a.gelu_seq(acc, T+tt*4+r, C+tt*4+1, C+tt*4+2, C+tt*4+3))
        for x in interleave(seqs): a.e(x)
        for tt in range(2):
            P = 64 + (j*2+tt)*2
            ad = 72 + j*2 + tt
            a.e(f"v_cvt_pk_bf16_f32 v{P}, v{T+tt*4}, v{T+tt*4+1}")
            a.e(f"v_cvt_pk_bf16_f32 v{P+1}, v{T+tt*4+2}, v{T+tt*4+3}")
            a.e(f"v_add_u32 v{ad}, s{50+tt}, v2")
            a.e(f"v_cmp_gt_u32 vcc, {S}, v{ad}")
            a.e(f"v_and_b32 v{ad}, {S-1}, v{ad}")
            a.e(f"v_lshrrev_b32 v10, 4, v{ad}")
            a.e(f"v_mul_u32_u24 v10, 18432, v10")
            a.e(f"v_cndmask_b32 v{P}, 0, v{P}, vcc")
            a.e(f"v_cndmask_b32 v{P+1}, 0, v{P+1}, vcc")
            a.e(f"v_and_b32 v{ad}, 15, v{ad}")
            a.e(f"v_lshl_add_u32 v{ad}, v3, 4, v{ad}")
            a.e(f"v_lshl_add_u32 v{ad}, v{ad}, 4, v10")
            a.e(f"buffer_store_dwordx2 {vr(P,2)}, v{ad}, s[{rO}:{rO+3}], s48 offen")
    a.e(f"s_branch {done}")
    return LCO + 2048

def prep8(a, done, nt=""):
    a.reset()
    rK, rV, rSH, rU = 16, 20, 24, 28
    a.ldarg(4, "k"); a.ldarg(6, "v"); a.ldarg(8, "shk"); a.ldarg(10, "ws")
    a.e(f"""
    v_lshrrev_b32 v1, 6, v0
    v_and_b32 v0, 63, v0
    v_readfirstlane_b32 s38, v1
    v_and_b32 v2, 15, v0
    v_lshrrev_b32 v3, 4, v0
    s_mul_i32 s37, s3, 7282
    s_lshr_b32 s37, s37, 16
    s_mul_i32 s39, s37, 9
    s_sub_u32 s39, s3, s39
    s_lshl_b32 s37, s37, 3
    s_add_u32 s37, s37, s38
    s_lshl_b32 s40, s37, 5
    v_lshl_add_u32 v4, v3, 3, s40
    s_lshl_b32 s41, s39, 6
    v_lshl_add_u32 v5, v2, 2, s41
    v_mul_u32_u24 v6, 1152, v4
    v_lshl_add_u32 v7, v5, 1, v6
    v_subrev_u32 v6, 4608, v7
    v_add_u32 v8, 4608, v7
    v_lshlrev_b32 v9, 3, v5
    s_waitcnt lgkmcnt(0)
    """)
    a.srd(rK, 4, SZ_ACT); a.srd(rV, 6, SZ_ACT); a.srd(rSH, 8, D*8)
    a.srd_off(rU, 10, OFF_UR, D*URP)
    KR, VR, WR = 16, 40, 60
    for r in range(1, 12):
        a.vmem(f"buffer_load_dwordx2 {vr(KR+2*r,2)}, v{6+r//4}, s[{rK}:{rK+3}], 0 offen offset:{(r%4)*1152} {nt if r >= 9 or True else ''}")
    for r in range(8):
        rr = r + 4
        a.vmem(f"buffer_load_dwordx2 {vr(VR+2*r,2)}, v{6+rr//4}, s[{rV}:{rV+3}], 0 offen offset:{(rr%4)*1152} {nt}")
    a.vmem(f"buffer_load_dwordx4 {vr(WR)}, v9, s[{rSH}:{rSH+3}], 0 offen")
    a.vmem(f"buffer_load_dwordx4 {vr(WR+4)}, v9, s[{rSH}:{rSH+3}], 0 offen offset:16")
    a.e(f"""
    v_mul_u32_u24 v10, {URP}, v5
    v_sub_u32 v11, 2040, v4
    v_lshl_add_u32 v10, v11, 1, v10
    s_mov_b32 s42, 0
    """)
    a.wait_vm0()
    KF, WFl, U, VF, P = 72, 84, 88, 100, 112
    for ch in range(4):
        un = (lambda d, s: f"v_lshlrev_b32 v{d}, 16, v{s}") if ch % 2 == 0 else (lambda d, s: f"v_and_b32 v{d}, 0xffff0000, v{s}")
        for r in range(1, 12): a.e(un(KF+r, KR+2*r+ch//2))
        for r in range(8): a.e(un(VF+r, VR+2*r+ch//2))
        a.e(f"v_lshlrev_b32 v{WFl}, 16, v{WR+2*ch}")
        a.e(f"v_and_b32 v{WFl+1}, 0xffff0000, v{WR+2*ch}")
        a.e(f"v_lshlrev_b32 v{WFl+2}, 16, v{WR+2*ch+1}")
        a.e(f"v_and_b32 v{WFl+3}, 0xffff0000, v{WR+2*ch+1}")
        for e in range(8): a.e(f"v_mul_f32 v{U+e}, v{KF+e+1}, v{WFl+3}")
        for j in (2, 1, 0):
            for e in range(8): a.e(f"v_fma_f32 v{U+e}, v{KF+e+4-j}, v{WFl+j}, v{U+e}")
        for e in range(8): a.e(f"v_mul_f32 v{U+e}, v{U+e}, v{VF+e}")
        PP = P + ch*4
        for m in range(4):
            a.e(f"v_cvt_pk_bf16_f32 v{PP+m}, v{U+7-2*m}, v{U+6-2*m}")
        a.e(f"buffer_store_dwordx4 {vr(PP)}, v10, s[{rU}:{rU+3}], s42 offen")
        a.e(f"s_add_u32 s42, s42, {URP}")
    a.e(f"s_branch {done}")

def colsum8(a, done):
    a.reset()
    rW, rC = 16, 20
    a.ldarg(4, "w3"); a.ldarg(10, "ws")
    a.e(f"""
    v_lshrrev_b32 v1, 4, v0
    v_and_b32 v2, 15, v0
    v_mul_u32_u24 v3, 9216, v1
    v_lshl_add_u32 v3, v2, 4, v3
    s_lshl_b32 s36, s3, 8
    s_waitcnt lgkmcnt(0)
    """)
    a.srd(rW, 4, D*F*2)
    a.srd_off(rC, 10, OFF_CS3, F*4)
    for i in range(18):
        a.vmem(f"buffer_load_dwordx4 {vr(16+4*i)}, v3, s[{rW}:{rW+3}], s36 offen", i)
        a.e(f"s_add_u32 s36, s36, {32*9216}")
    a.srd_off(24, 10, OFF_FLAG, 12288)
    a.e(f"""
    v_mov_b32 v88, 0
    v_mov_b32 v89, 0
    v_mov_b32 v90, 0
    v_mov_b32 v91, 0
    v_lshlrev_b32 v92, 4, v0
    s_lshl_b32 s37, s3, 13
    """)
    a.vmem("buffer_store_dwordx4 v[88:91], v92, s[24:27], s37 offen", "z")
    for i in range(18):
        a.wait_vm(i)
        for r in range(4):
            x = 16+4*i+r
            if i == 0:
                a.e(f"v_lshlrev_b32 v{8+2*r}, 16, v{x}")
                a.e(f"v_and_b32 v{9+2*r}, 0xffff0000, v{x}")
            else:
                a.e(f"v_lshlrev_b32 v4, 16, v{x}")
                a.e(f"v_and_b32 v5, 0xffff0000, v{x}")
                a.e(f"v_add_f32 v{8+2*r}, v{8+2*r}, v4")
                a.e(f"v_add_f32 v{9+2*r}, v{9+2*r}, v5")
    a.e(f"""
    v_lshlrev_b32 v4, 5, v0
    ds_write_b128 v4, v[8:11]
    ds_write_b128 v4, v[12:15] offset:16
    s_waitcnt lgkmcnt(0)
    s_barrier
    v_cmp_gt_u32 vcc, 128, v0
    s_and_saveexec_b64 s[52:53], vcc
    s_cbranch_execz {done}
    v_lshlrev_b32 v4, 2, v0
    """)
    for q in range(4):
        for r in range(8):
            a.e(f"ds_read_b32 v{16+q*8+r}, v4 offset:{(q*8+r)*512}")
        a.e("s_waitcnt lgkmcnt(0)")
    for r in range(1, 32): a.e(f"v_add_f32 v16, v16, v{16+r}")
    a.e(f"s_lshl_b32 s36, s3, 9")
    a.e(f"buffer_store_dword v16, v4, s[{rC}:{rC+3}], s36 offen")
    a.e(f"s_branch {done}")

def k1(a, ntx="", ntw="", ntkv=""):
    name = "k1_kernel"
    a.begin(name)
    done = "k1_done"
    a.e(f"""
    s_cmp_ge_u32 s2, 252
    s_cbranch_scc1 {done}_x
    """)
    a.pstart()
    a.e(f"""
    s_cmp_ge_u32 s2, 216
    s_cbranch_scc1 k1_cs
    s_cmp_ge_u32 s2, 144
    s_cbranch_scc1 k1_prep
    s_mov_b32 s3, s2
    """)
    lds = gemm1(a, done, ntx, ntw)
    a.launch(name, (252,1,1), 512, lds)
    a.label("k1_prep")
    a.e("s_sub_u32 s3, s2, 144")
    prep8(a, done, ntkv)
    a.label("k1_cs")
    a.e("s_sub_u32 s3, s2, 216")
    colsum8(a, done)
    a.label(done)
    a.pend(1)
    a.label(done + "_x")
    a.e("s_endpgm")
    a.end(name, 144, 102)


def gemm2(a, done, LA=6):
    a.reset()
    rW, rA, rO, rQ, rS = 16, 20, 24, 28, 32
    sTM, sTN, sWV = 36, 37, 38
    a.ldarg(4, "w2"); a.ldarg(12, "q"); a.ldarg(8, "ws")
    tile_decode(a, sTM, sTN)
    a.e(f"""
    v_lshrrev_b32 v1, 6, v0
    v_and_b32 v0, 63, v0
    v_readfirstlane_b32 s{sWV}, v1
    v_and_b32 v2, 15, v0
    v_lshrrev_b32 v3, 4, v0
    v_lshlrev_b32 v4, 4, v0
    v_lshrrev_b32 v10, 3, v0
    v_and_b32 v11, 7, v0
    v_and_b32 v12, 6, v10
    v_xor_b32 v12, v11, v12
    v_mul_u32_u24 v13, 1152, v10
    v_lshl_add_u32 v5, v12, 4, v13
    s_lshl_b32 s43, s{sTM}, 7
    s_lshl_b32 s44, s{sWV}, 5
    s_add_u32 s43, s43, s44
    s_lshr_b32 s45, s43, 4
    s_mul_i32 s49, s45, 18432
    s_add_u32 s50, s49, 18432
    s_mul_i32 s48, s{sWV}, {8*1152}
    s_lshl_b32 s45, s{sTN}, 7
    s_add_u32 s48, s48, s45
    s_lshl_b32 s47, s{sWV}, 10
    s_waitcnt lgkmcnt(0)
    """)
    a.srd(rW, 4, D*D*2)
    a.srd_off(rA, 8, OFF_HS, SZ_ACT)
    XF, ACC, WF = 16, 160, 192
    def issue(ks):
        out = []
        out.append((f"s_add_u32 m0, s47, {ks*4096}\ns_add_u32 s51, s48, {ks*32*1152}\nbuffer_load_dwordx4 v5, s[{rW}:{rW+3}], s51 offen lds", ks))
        pre = "s_add_u32 s49, s49, 4096\ns_add_u32 s50, s50, 4096\n" if ks and ks % 4 == 0 else ""
        out.append((pre + f"buffer_load_dwordx4 {vr(XF+ks*8)}, v4, s[{rA}:{rA+3}], s49 offen offset:{(ks%4)*1024}", ks))
        out.append((f"buffer_load_dwordx4 {vr(XF+ks*8+4)}, v4, s[{rA}:{rA+3}], s50 offen offset:{(ks%4)*1024}", ks))
        return out
    for ks in range(LA):
        for x in issue(ks): a.vmem(*x)
    a.srd(rQ, 12, SZ_ACT)
    a.srd_off(rO, 8, OFF_X1, SZ_ACT)
    a.srd_off(rS, 8, OFF_ST, 9*S*8)
    vTR = 6
    a.e(f"""
    v_lshrrev_b32 v14, 2, v0
    v_lshlrev_b32 v14, 7, v14
    v_and_b32 v15, 3, v0
    v_lshl_add_u32 v14, v15, 3, v14
    v_bfe_u32 v15, v0, 3, 2
    """)
    for i in range(4):
        a.e(f"v_xor_b32 v12, {i}, v15")
        a.e(f"v_lshl_add_u32 v{vTR+i}, v12, 5, v14")
        a.e(f"v_add_u32 v{224+i}, 0x8000, v{vTR+i}")
    a.e(f"""
    v_xor_b32 v12, v11, v10
    v_lshl_add_u32 v228, v12, 4, v13
    s_mul_i32 s52, s43, 1152
    s_add_u32 s52, s52, s45
    s_lshl_b32 s53, s{sWV}, 12
    """)
    def xres():
        out = []
        for g in range(4):
            out.append((f"s_add_u32 m0, s53, {g*1024}\ns_add_u32 s51, s52, {g*8*1152}\nbuffer_load_dwordx4 v228, s[{rQ}:{rQ+3}], s51 offen lds", "xr"))
        return out
    def reads(ks):
        buf = WF + (ks & 1)*16
        off = ks*4096; b = vTR
        if off >= 0x8000: off -= 0x8000; b = 224
        out = []
        for i in range(4):
            out.append((f"ds_read_b64_tr_b16 {vr(buf+i*4,2)}, v{b+i} offset:{off}", (ks, i)))
            out.append((f"ds_read_b64_tr_b16 {vr(buf+i*4+2,2)}, v{b+i} offset:{off+2048}", (ks, i)))
        return out
    a.stamp(0)
    a.wait_vm(0)
    a.e("s_barrier")
    for x in reads(0): a.lds(*x)
    for ks in range(18):
        if ks < 17:
            a.wait_vm(ks+1)
            a.e("s_barrier")
        if ks % 3 == 0: a.stamp(1 + ks//3)
        vm = issue(ks+LA) if ks + LA < 18 else []
        if ks + LA == 18: vm = xres()
        rd = reads(ks+1) if ks < 17 else []
        buf = WF + (ks & 1)*16
        for i in range(4):
            if i % 2 == 0: a.wait_lg_if((ks, i+1))
            for tt in range(2):
                a.mfma(vr(ACC+tt*16+i*4), vr(buf+i*4), vr(XF+ks*8+tt*4), "0" if ks == 0 else None)
                if rd: a.lds(*rd.pop(0))
            if vm: a.vmem(*vm.pop(0))
        assert not vm and not rd
    a.stamp(8)
    a.wait_vm0()
    a.e(f"""
    v_lshrrev_b32 v12, 1, v3
    v_and_b32 v13, 7, v2
    v_xor_b32 v12, v12, v13
    v_lshlrev_b32 v13, 7, v2
    v_lshl_add_u32 v13, v12, 4, v13
    v_and_b32 v12, 1, v3
    v_lshl_add_u32 v13, v12, 3, v13
    v_add_u32 v13, s53, v13
    """)
    XR = 192
    for i in range(4):
        a.e(f"v_xor_b32 v{6+i}, {32*i}, v13")
    for tt in range(2):
        for i in range(4):
            a.e(f"ds_read_b64 {vr(XR+(tt*4+i)*2,2)}, v{6+i} offset:{tt*2048}")
    a.e(f"""
    s_lshr_b32 s45, s43, 4
    s_mul_i32 s45, s45, 18432
    s_lshl_b32 s46, s{sTN}, 11
    s_add_u32 s45, s45, s46
    s_add_u32 s46, s45, 18432
    v_add_u32 v14, s43, v2
    v_lshlrev_b32 v15, 3, v14
    s_lshl_b32 s47, s{sTN}, 14
    """)
    T = 16
    for tt in range(2):
        for i in range(4):
            acc = ACC + tt*16 + i*4; t = T + (tt*4+i)*2
            a.e(f"v_cvt_pk_bf16_f32 v{t}, v{acc}, v{acc+1}")
            a.e(f"v_cvt_pk_bf16_f32 v{t+1}, v{acc+2}, v{acc+3}")
    for tt in range(2):
        for i in range(4):
            acc = ACC + tt*16 + i*4; t = T + (tt*4+i)*2
            a.e(f"v_lshlrev_b32 v{acc}, 16, v{t}")
            a.e(f"v_and_b32 v{acc+1}, 0xffff0000, v{t}")
            a.e(f"v_lshlrev_b32 v{acc+2}, 16, v{t+1}")
            a.e(f"v_and_b32 v{acc+3}, 0xffff0000, v{t+1}")
    a.e("s_waitcnt lgkmcnt(0)")
    a.e("v_mov_b32 v100, 0x3f803f80")
    for tt in range(2):
        for i in range(4):
            acc = ACC + tt*16 + i*4; xr = XR + (tt*4+i)*2; t = 32 + i*4; P = 64 + tt*8 + i*2
            a.e(f"v_lshlrev_b32 v{t}, 16, v{xr}")
            a.e(f"v_and_b32 v{t+1}, 0xffff0000, v{xr}")
            a.e(f"v_lshlrev_b32 v{t+2}, 16, v{xr+1}")
            a.e(f"v_and_b32 v{t+3}, 0xffff0000, v{xr+1}")
            for r in range(4): a.e(f"v_add_f32 v{acc+r}, v{acc+r}, v{t+r}")
            a.e(f"v_cvt_pk_bf16_f32 v{P}, v{acc}, v{acc+1}")
            a.e(f"v_cvt_pk_bf16_f32 v{P+1}, v{acc+2}, v{acc+3}")
        P = 64 + tt*8
        a.e(f"buffer_store_dwordx4 {vr(P)}, v4, s[{rO}:{rO+3}], s{45+tt} offen")
        a.e(f"buffer_store_dwordx4 {vr(P+4)}, v4, s[{rO}:{rO+3}], s{45+tt} offen offset:1024")
    for tt in range(2):
        a.e(f"v_mov_b32 v{80+tt*2}, 0")
        a.e(f"v_mov_b32 v{81+tt*2}, 0")
    for k in range(8):
        for tt in range(2):
            P = 64 + tt*8 + k
            a.e(f"v_dot2c_f32_bf16 v{80+tt*2}, v{P}, v100")
            a.e(f"v_dot2c_f32_bf16 v{81+tt*2}, v{P}, v{P}")
    a.e("s_nop 2")
    for sw in ("32", "16"):
        for k in range(4): a.e(f"v_mov_b32 v{84+k}, v{80+k}")
        a.e("s_nop 0")
        for k in range(4): a.e(f"v_permlane{sw}_swap_b32 v{80+k}, v{84+k}")
        a.e("s_nop 0")
        for k in range(4): a.e(f"v_add_f32 v{80+k}, v{80+k}, v{84+k}")
    a.e("s_mov_b64 exec, 0xffff")
    for tt in range(2):
        a.e(f"buffer_store_dwordx2 {vr(80+tt*2,2)}, v15, s[{rS}:{rS+3}], s47 offen offset:{tt*128}")
    a.e("s_mov_b64 exec, -1")
    a.e(f"s_branch {done}")

def conv2(a, done, nt=""):
    a.reset()
    rU, rH, rZ = 16, 20, 24
    RS = 13120
    a.ldarg(4, "ssmk"); a.ldarg(6, "ssmD"); a.ldarg(10, "ws")
    a.e(f"""
    v_lshrrev_b32 v1, 6, v0
    v_and_b32 v0, 63, v0
    v_readfirstlane_b32 s38, v1
    v_and_b32 v2, 15, v0
    v_lshrrev_b32 v3, 4, v0
    s_lshl_b32 s36, s3, 2
    s_add_u32 s36, s36, s38
    s_mul_i32 s39, s38, {RS}
    s_lshl_b32 s40, s3, 3
    v_lshlrev_b32 v4, 4, v0
    s_mul_i32 s41, s36, {URP}
    s_lshl_b32 s42, s36, 12
    s_add_u32 s43, s41, 2
    s_waitcnt lgkmcnt(0)
    s_load_dwordx2 s[44:45], s[6:7], s40
    """)
    a.srd(rH, 4, D*S*2)
    a.srd_off(rU, 10, OFF_UR, D*URP + 16)
    a.e(f"s_add_u32 m0, s39, {8320+512}")
    a.e("s_nop 0")
    for i in range(4):
        a.vmem(f"buffer_load_dwordx4 v4, s[{rH}:{rH+3}], s42 offen offset:{i*1024} {nt} lds")
    a.e("s_mov_b32 m0, s39")
    a.e("s_nop 0")
    for i in range(4):
        a.vmem(f"buffer_load_dwordx4 v4, s[{rU}:{rU+3}], s41 offen offset:{i*1024} lds")
    a.e(f"s_add_u32 m0, s39, 4160")
    a.e("s_nop 0")
    for i in range(4):
        a.vmem(f"buffer_load_dwordx4 v4, s[{rU}:{rU+3}], s43 offen offset:{i*1024} lds")
    a.srd_off(rZ, 10, OFF_Z4, SZ_ACT)
    a.e(f"""
    v_mov_b32 v8, 0
    v_mov_b32 v9, 0
    v_mov_b32 v10, 0
    v_mov_b32 v11, 0
    v_add_u32 v5, s39, v4
    s_mov_b32 exec_hi, 0xf
    ds_write_b128 v5, v[8:11] offset:8256
    s_mov_b64 exec, 0xf
    ds_write_b128 v5, v[8:11] offset:4096
    s_mov_b64 exec, -1
    v_or_b32 v5, 1, v2
    v_sub_u32 v5, 15, v5
    v_lshl_add_u32 v5, v3, 3, v5
    v_lshlrev_b32 v5, 1, v5
    v_and_b32 v6, 1, v2
    v_xor_b32 v6, 1, v6
    v_mul_u32_u24 v6, 4160, v6
    v_add3_u32 v12, v5, v6, s39
    v_add_u32 v13, 1024, v12
    v_add_u32 v14, 2048, v12
    v_add_u32 v15, 3072, v12
    v_lshlrev_b32 v5, 5, v2
    v_lshl_add_u32 v5, v3, 4, v5
    v_add_u32 v7, s39, v5
    v_add_u32 v7, {8320+32}, v7
    v_mov_b32 v5, s39
    """)
    a.stamp(0)
    a.e("s_waitcnt vmcnt(0) lgkmcnt(0)"); a.reset()
    a.e("s_mov_b64 exec, 1")
    a.e(f"ds_write_b16 v5, v8 offset:{4160+4094}")
    a.e("s_mov_b64 exec, -1")
    a.stamp(1)
    ACC = 16; FB = 48
    def loads(rho):
        buf = FB + (rho & 1) * 64
        out = []
        for x in range(8):
            p = 8*x + rho
            boff = 64*(63-p)
            base = 12 + boff // 1024
            o = (boff % 1024) // 4
            out.append((f"ds_read2_b32 {vr(buf+x*4,2)}, v{base} offset0:{o} offset1:{o+1}", (rho, x)))
            out.append((f"ds_read2_b32 {vr(buf+x*4+2,2)}, v{base} offset0:{o+2} offset1:{o+3}", (rho, x)))
            n = 8*x - rho
            out.append((f"ds_read_b128 {vr(buf+32+x*4)}, v7 offset:{64*(n+7)}", (rho, x)))
        return out
    q = loads(0)
    for _ in range(12): a.lds(*q.pop(0))
    for rho in range(8):
        buf = FB + (rho & 1) * 64
        if rho < 7: q += loads(rho+1)
        for c in range(8):
            while any(t == (rho, c) for _, t in q): a.lds(*q.pop(0))
            a.wait_lg_if((rho, c))
            for x in range(c+1):
                first = (rho == 0 and x == 0)
                a.mfma(vr(ACC+c*4), vr(buf+x*4), vr(buf+32+(c-x)*4), "0" if first else None)
                if q and len(a.lg) < 14: a.lds(*q.pop(0))
                elif q and len(a.lg) >= 14 and (x % 2 == 1):
                    a.e("s_waitcnt lgkmcnt(8)"); a.lg = a.lg[-8:]
                    a.lds(*q.pop(0))
    assert not q
    a.stamp(2)
    a.e(f"""
    v_lshlrev_b32 v5, 5, v2
    v_lshl_add_u32 v5, v3, 3, v5
    v_sub_u32 v6, 504, v5
    v_add_u32 v6, s39, v6
    v_add_u32 v5, s39, v5
    s_lshr_b32 s46, s38, 1
    s_cmp_eq_u32 s46, 0
    s_cselect_b32 s44, s44, s45
    s_bitcmp1_b32 s38, 0
    s_cselect_b32 s46, 0, 16
    s_lshl_b32 s44, s44, s46
    s_and_b32 s44, s44, 0xffff0000
    """)
    U = 48
    for c in range(8):
        a.e(f"ds_read_b64 {vr(U+2*c,2)}, v6 offset:{512*(7-c)}")
    a.e("s_waitcnt lgkmcnt(0)")
    for c in range(8):
        acc = ACC + c*4; t = 64 + c*4
        a.e(f"v_and_b32 v{t}, 0xffff0000, v{U+2*c+1}")
        a.e(f"v_lshlrev_b32 v{t+1}, 16, v{U+2*c+1}")
        a.e(f"v_and_b32 v{t+2}, 0xffff0000, v{U+2*c}")
        a.e(f"v_lshlrev_b32 v{t+3}, 16, v{U+2*c}")
        for r in range(4): a.e(f"v_fma_f32 v{t+r}, v{t+r}, s44, v{acc+r}")
        a.e(f"v_cvt_pk_bf16_f32 v{t}, v{t}, v{t+1}")
        a.e(f"v_cvt_pk_bf16_f32 v{t+1}, v{t+2}, v{t+3}")
        a.e(f"ds_write_b64 v5, {vr(t,2)} offset:{8320+512*c}")
    a.e(f"""
    v_bfe_u32 v5, v0, 2, 2
    v_mul_u32_u24 v5, {RS}, v5
    v_lshl_add_u32 v5, v3, 5, v5
    v_and_b32 v6, 3, v0
    v_lshl_add_u32 v5, v6, 3, v5
    s_lshl_b32 s46, s38, 10
    v_add_u32 v5, s46, v5
    v_lshlrev_b32 v6, 3, v0
    s_lshl_b32 s47, s3, 14
    s_lshl_b32 s46, s38, 12
    s_add_u32 s47, s47, s46
    s_waitcnt lgkmcnt(0)
    s_barrier
    """)
    a.reset()
    for j in range(8):
        a.lds(f"ds_read_b64_tr_b16 {vr(16+2*j,2)}, v5 offset:{8320+128*j}", j)
    for j in range(8):
        a.wait_lg(j)
        a.e(f"buffer_store_dwordx2 {vr(16+2*j,2)}, v6, s[{rZ}:{rZ+3}], s47 offen offset:{512*j}")
    a.e(f"s_branch {done}")

def k2(a, nth=""):
    name = "k2_kernel"
    a.launch(name, (288,1,1), 256, 73728)
    a.begin(name)
    done = "k2_done"
    a.e(f"""
    s_cmp_ge_u32 s2, 288
    s_cbranch_scc1 {done}_x
    """)
    a.pstart()
    a.e(f"""
    s_cmp_lt_u32 s2, 144
    s_cbranch_scc1 k2_conv
    s_sub_u32 s3, s2, 144
    """)
    gemm2(a, done)
    a.label("k2_conv")
    a.e("s_mov_b32 s3, s2")
    conv2(a, done, nth)
    a.label(done)
    a.pend(2)
    a.label(done + "_x")
    a.e("s_endpgm")
    a.end(name, 232, 102)
```

```python
from gen import *

OFF_FLAG = 0xBA0000
RING = 73728
SLOT = 12288
NSLOT = 7
L_CS = RING + NSLOT*SLOT
L_CONST = L_CS + 3072

def k34(a, nt_w="", nogelu=False, nored=False, mapB=True, xtile0=False, LA=6, trace=False, spf=1, st0=2, st1=1, dr0=6, dr1=6, p0=22, l0=30, bo=4, hv=0, ldp=1):
    name = "k3_kernel"
    a.launch(name, (256,1,1), 1024, L_CONST + 1024)
    a.begin(name)
    a.reset()
    done = "k3_done"
    a.e(f"s_cmp_ge_u32 s2, 256")
    a.e(f"s_cbranch_scc1 {done}_x")
    a.pstart()
    rW3, rW4, rX, rS, rP, rF, rQ, rZ, rG, rO = 16, 20, 24, 28, 32, 36, 40, 44, 48, 52
    sSP, sTL, sG, sI, sBASE, sRET, sBUD = 56, 57, 58, 59, 60, 61, 3
    a.ldarg(4, "w3"); a.ldarg(6, "w4"); a.ldarg(8, "q"); a.ldarg(10, "ws"); a.ldarg(12, "out")
    if mapB:
        a.e(f"""
        s_and_b32 s14, s2, 3
        s_lshl_b32 s14, s14, 1
        s_bfe_u32 s15, s2, 0x10003
        s_add_u32 s{sSP}, s14, s15
        s_bfe_u32 s14, s2, 0x10002
        s_lshl_b32 s14, s14, 4
        s_lshr_b32 s15, s2, 4
        s_add_u32 s{sTL}, s14, s15
        """)
    else:
        a.e(f"""
        s_and_b32 s{sSP}, s2, 7
        s_lshr_b32 s{sTL}, s2, 3
        """)
    if xtile0: a.e(f"s_mov_b32 s{sTL}, 0")
    a.e(f"""
    v_lshrrev_b32 v1, 6, v0
    v_and_b32 v0, 63, v0
    v_readfirstlane_b32 s14, v1
    s_mov_b32 s{sBUD}, 0x4000
    s_lshr_b32 s{sG}, s14, 2
    s_and_b32 s{sI}, s14, 3
    v_and_b32 v9, 15, v0
    v_lshrrev_b32 v10, 4, v0
    v_lshlrev_b32 v7, 4, v0
    s_cmp_eq_u32 s{sG}, 3
    s_cbranch_scc1 k3_loader
    """)
    def late_srds():
        a.srd_off(rP, 10, OFF_PART, 32*3*6*4*8*1024)
        a.srd_off(rF, 10, OFF_FLAG, 12288)
        a.srd(rQ, 8, SZ_ACT)
        a.srd_off(rZ, 10, OFF_Z4, SZ_ACT)
        a.srd_off(rG, 10, OFF_G, S*4)
        a.srd(rO, 12, SZ_ACT)
    FB = [16, 44]; ACC = 72
    VA = [120, 121, 122, 123, 124, 125, 126]
    a.e(f"""
    v_add_u32 v8, 0x10000, v7
    v_lshrrev_b32 v5, 2, v0
    v_mul_u32_u24 v5, 384, v5
    v_and_b32 v4, 3, v0
    v_lshl_add_u32 v5, v4, 3, v5
    v_add_u32 v5, {RING}, v5
    v_bfe_u32 v4, v0, 3, 2
    v_xor_b32 v4, s{sI}, v4
    v_lshl_add_u32 v1, v4, 5, v5
    s_mov_b32 s{sRET}, 0
    s_waitcnt lgkmcnt(0)
    """)
    a.srd_off(rX, 10, OFF_X1, SZ_ACT)
    a.srd_off(rS, 10, OFF_ST, 9*S*8)
    late_srds()
    T = [0]
    def bar(n=1):
        for _ in range(n): a.e("s_barrier")
        T[0] += n
    def upto(t):
        assert t >= T[0], (t, T[0])
        bar(t - T[0])
    def set_va(base):
        for j in range(7):
            a.e(f"v_add_u32 v{VA[j]}, {((base + j) % NSLOT)*SLOT}, v1")
    a.e(f"s_cmp_eq_u32 s{sG}, 1")
    a.e(f"s_cbranch_scc1 k3_g1")
    a.e(f"s_cmp_eq_u32 s{sG}, 0")
    a.e(f"s_cbranch_scc1 k3_g0")
    T[0] = -2
    a.reset()
    ST = 72
    a.e(f"""
    s_lshl_b32 s14, s{sTL}, 2
    s_add_u32 s14, s14, s{sI}
    s_lshl_b32 s14, s14, 4
    v_add_u32 v13, s14, v9
    v_lshlrev_b32 v13, 3, v13
    v_lshl_add_u32 v13, v10, 14, v13
    s_mov_b32 s14, 0x10000
    s_mov_b32 s15, 0x20000
    """)
    set_va(36)
    upto(1)
    a.vmem(f"buffer_load_dwordx2 {vr(ST,2)}, v13, s[{rS}:{rS+3}], 0 offen", "st"); bar()
    a.vmem(f"buffer_load_dwordx2 {vr(ST+2,2)}, v13, s[{rS}:{rS+3}], s14 offen", "st"); bar()
    a.vmem(f"buffer_load_dwordx2 {vr(ST+4,2)}, v13, s[{rS}:{rS+3}], s15 offen", "st")
    upto(10)
    a.wait_vm("st")
    for n in (1, 2):
        a.e(f"v_add_f32 v{ST}, v{ST}, v{ST+2*n}")
        a.e(f"v_add_f32 v{ST+1}, v{ST+1}, v{ST+2*n+1}")
    a.xsum4(ST, 14); a.xsum4(ST+1, 14)
    bar()
    a.ln_consts(ST, ST+1, 80, 81, 82, 83, 14)
    a.e(f"s_lshl_b32 s14, s{sI}, 8")
    a.e(f"s_add_u32 s14, s14, {L_CONST}")
    a.e(f"v_lshl_add_u32 v13, v9, 4, s14")
    bar()
    a.e("s_mov_b64 exec, 0xffff")
    a.e(f"ds_write_b128 v13, v[80:83]")
    a.e("s_mov_b64 exec, -1")
    bar(2)
    a.e("s_waitcnt lgkmcnt(0)")
    upto(35)
    a.e("s_branch k3_body")
    a.label("k3_g1")
    T[0] = -2
    set_va(18)
    upto(17)
    a.e("s_branch k3_body")
    a.label("k3_g0")
    set_va(0)
    a.e("s_barrier")
    a.label("k3_body")
    a.reset()
    def reads(k):
        fb = FB[k & 1]
        out = []
        va = VA[k % 7]
        for tt in range(4):
            off = k*4096 + tt*1024
            base = 7 if off < 65536 else 8
            out.append((f"ds_read_b128 {vr(fb+tt*4)}, v{base} offset:{off & 65535}", (k, "x")))
        for j in range(3):
            out.append((f"ds_read_b64_tr_b16 {vr(fb+16+j*4,2)}, v{va} offset:{128*j}", (k, j)))
            out.append((f"ds_read_b64_tr_b16 {vr(fb+16+j*4+2,2)}, v{va} offset:{128*j+6144}", (k, j)))
        return out
    a.e("s_setprio 2")
    for (s, t) in reads(0): a.lds(s, t)
    a.e("s_barrier")
    for k in range(18):
        fb = FB[k & 1]
        rd = reads(k+1) if k < 17 else []
        ri = 0
        for m in range(12):
            j, tt = m // 4, m % 4
            if tt == 0: a.wait_lg_if((k, j))
            a.mfma(vr(ACC+(j*4+tt)*4), vr(fb+16+j*4), vr(fb+tt*4), "0" if k == 0 else None)
            if ri < len(rd):
                a.lds(*rd[ri]); ri += 1
        a.e("s_barrier")
    a.e("s_setprio 0")
    a.e(f"s_cmp_eq_u32 s{sRET}, 1")
    a.e(f"s_cbranch_scc1 k3_red")
    CO, CSR, TMP = 16, 32, 44
    a.e(f"""
    s_mul_i32 s14, s{sG}, 12
    s_add_u32 s14, s14, s{sI}
    s_lshl_b32 s62, s14, 6
    s_add_u32 s62, s62, {L_CS}
    v_lshl_add_u32 v4, v10, 4, s62
    v_lshlrev_b32 v3, 4, v9
    v_add_u32 v3, {L_CONST}, v3
    """)
    for tt in range(4): a.e(f"ds_read_b128 {vr(CO+tt*4)}, v3 offset:{tt*256}")
    for jj in range(3): a.e(f"ds_read_b128 {vr(CSR+jj*4)}, v4 offset:{jj*256}")
    a.e(f"""
    s_mul_i32 s14, s{sG}, 6
    s_add_u32 s15, s14, s{sI}
    s_lshl_b32 s15, s15, 12
    v_add_u32 v5, s15, v7
    s_lshr_b32 s15, s{sI}, 1
    s_add_u32 s15, s15, s14
    s_add_u32 s15, s15, 4
    s_lshl_b32 s15, s15, 12
    s_and_b32 s14, s{sI}, 1
    s_lshl_b32 s14, s14, 3
    s_add_u32 s15, s15, s14
    v_add_u32 v6, s15, v7
    s_mov_b32 s{sRET}, 1
    s_cmp_eq_u32 s{sG}, 1
    s_cbranch_scc1 k3_ge1
    s_cmp_eq_u32 s{sG}, 2
    s_cbranch_scc1 k3_ge2
    """)
    def gelu_ins(jjs):
        out = []
        for jj in jjs:
            for half in range(2):
                seqs = []
                for r in range(8):
                    tt = half*2 + r // 4
                    x, t = ACC + jj*16 + half*8 + r, TMP + r
                    c = CO + tt*4
                    seqs.append([f"v_fma_f32 v{x}, v{c}, v{CSR+jj*4+r%4}, v{x}"] + a.gelu_seq(x, t, c+1, c+2, c+3))
                ins = interleave(seqs)
                if nogelu: ins = ins[:8]
                out += [(x, 2 if ("exp" in x or "rcp" in x) else 1) for x in ins]
                for q in range(2):
                    b = ACC + half*8 + q*4 + (0, 2, 32)[jj]; t = TMP + q*4
                    out.append((f"v_cvt_pk_bf16_f32 v{b}, v{t}, v{t+1}", 1))
                    out.append((f"v_cvt_pk_bf16_f32 v{b+1}, v{t+2}, v{t+3}", 1))
        return out
    def paced(ins, nticks):
        tot = sum(c for _, c in ins); acc_c = 0; tk = 0
        for (x, c) in ins:
            a.e(x); acc_c += c
            if tk < nticks and acc_c >= tot*(tk+1)/nticks - 1e-9:
                tk += 1
                if tk == nticks: a.e("s_setprio 3")
                bar()
        assert tk == nticks
    def hw01():
        for tt in range(4): a.e(f"ds_write_b128 v5, {vr(ACC+tt*4)} offset:{tt*1024}")
    def hw2():
        for tt in range(4): a.e(f"ds_write_b64 v6, {vr(ACC+32+tt*4,2)} offset:{tt*1024}")
    def fin(g, tend):
        if hv >= 1 and g < 2:
            bar()
        a.e("s_setprio 0")
        set_va(54 + 18*g)
        a.e("s_waitcnt lgkmcnt(0)")
        upto(tend)
        a.e("s_branch k3_body")
    def hwall():
        if hv == 2:
            hw01(); bar(); hw2()
        elif hv == 3:
            for tt in range(4):
                a.e(f"ds_write_b128 v5, {vr(ACC+tt*4)} offset:{tt*1024}")
                if tt == 1: bar()
            bar(); hw2()
        elif hv == 4:
            hw01()
        else:
            hw01(); hw2()
    def gstart(t):
        T[0] = t
        bar()
        a.e("s_waitcnt lgkmcnt(0)")
    gstart(18)
    paced(gelu_ins([0, 1, 2]), 18)
    upto(42)
    hwall(); fin(0, 53)
    a.label("k3_ge1")
    gstart(36)
    paced(gelu_ins([0, 1, 2]), 17)
    hwall(); fin(1, 71)
    a.label("k3_ge2")
    gstart(54)
    paced(gelu_ins([0, 1]), 9)
    hw01()
    a.e("s_setprio 0")
    gi = gelu_ins([2])
    gi = gi[:8] + [("s_waitcnt lgkmcnt(0)", 0)] + gi[8:]
    paced(gi, 4)
    hw2(); fin(2, 89)
    P = [True]
    def pb(n=1):
        if P[0]: bar(n)
    def produce(stpace, drain):
        a.reset()
        a.e(f"""
        s_mul_i32 s14, s{sTL}, 3
        s_add_u32 s14, s14, s{sG}
        s_mul_i32 s15, s14, 24
        s_add_u32 s15, s15, s{sI}
        s_lshl_b32 s15, s15, 3
        s_add_u32 s15, s15, s{sSP}
        s_lshl_b32 s15, s15, 10
        s_lshl_b32 s14, s14, 2
        s_add_u32 s14, s14, s{sI}
        s_lshl_b32 s14, s14, 3
        s_add_u32 s14, s14, s{sSP}
        s_lshl_b32 s63, s14, 2
        s_setprio 3
        """)
        def cv(c):
            jj, h = c >> 1, c & 1
            q = 16 + c*4
            for e in range(2):
                b = ACC + (jj*4 + 2*h + e)*4
                a.e(f"v_cvt_pk_bf16_f32 v{q+2*e}, v{b}, v{b+1}")
                a.e(f"v_cvt_pk_bf16_f32 v{q+2*e+1}, v{b+2}, v{b+3}")
        cv(0)
        for c in range(6):
            q = 16 + c*4
            if c < 5: cv(c+1)
            else: a.e("s_nop 1")
            a.e(f"v_permlane16_swap_b32 v{q}, v{q+2}")
            a.e(f"v_permlane16_swap_b32 v{q+1}, v{q+3}")
            pb(1 if c == 0 else stpace)
            a.vmem(f"buffer_store_dwordx4 {vr(q)}, v7, s[{rP}:{rP+3}], s15 offen sc1", "pst")
            a.e("s_add_u32 s15, s15, 32768")
        a.e("v_mov_b32 v6, 0")
        a.e("v_mov_b32 v15, 1")
        a.stamp(1)
        pb(drain)
        a.wait_vm("pst")
        a.e("s_mov_b64 exec, 1")
        a.vmem(f"buffer_store_dword v15, v6, s[{rF}:{rF+3}], s63 offen sc1", "fl")
        a.e("s_mov_b64 exec, -1")
        a.e("s_setprio 0")
        a.stamp(2)
    X1, Q, Z, GG, OM, TT, GA, SUM, PA = 72, 76, 80, 84, 85, 88, 96, 104, 24
    def unpack(d, s, n=2):
        for k in range(n):
            a.e(f"v_lshlrev_b32 v{d+2*k}, 16, v{s+k}")
            a.e(f"v_and_b32 v{d+2*k+1}, 0xffff0000, v{s+k}")
    def rnd8(d, t):
        for k in range(4): a.e(f"v_cvt_pk_bf16_f32 v{t+k}, v{d+2*k}, v{d+2*k+1}")
        unpack(d, t, 4)
    def cons_test(j, skip):
        a.e(f"""
        s_sub_u32 s61, s{sSP}, {2*j}
        s_and_b32 s61, s61, 7
        s_cmp_ge_u32 s61, 6
        s_cbranch_scc1 {skip}
        """)
    def cons_prep(j):
        a.e(f"""
        s_lshr_b32 s4, s61, 1
        s_lshl_b32 s4, s4, 2
        s_add_u32 s4, s4, s{sI}
        s_add_u32 s4, s4, {12*j}
        s_and_b32 s6, s61, 1
        s_lshl_b32 s7, s{sTL}, 2
        s_lshl_b32 s6, s6, 1
        s_add_u32 s7, s7, s6
        s_mul_i32 s8, s7, 18432
        s_lshr_b32 s9, s4, 1
        s_lshl_b32 s9, s9, 10
        s_add_u32 s8, s8, s9
        s_and_b32 s9, s4, 1
        s_lshl_b32 s9, s9, 3
        s_add_u32 s8, s8, s9
        s_lshl_b32 s7, s7, 4
        v_and_b32 v1, 31, v0
        v_add_u32 v1, s7, v1
        v_lshrrev_b32 v5, 5, v0
        v_lshlrev_b32 v2, 2, v1
        v_mul_u32_u24 v3, 1152, v1
        v_lshl_add_u32 v3, v5, 4, v3
        s_lshl_b32 s10, s4, 5
        v_lshlrev_b32 v4, 3, v1
        v_lshl_add_u32 v4, v5, 15, v4
        s_lshl_b32 s12, s4, 16
        s_add_u32 s11, s12, 16384
        v_and_b32 v11, 1, v10
        v_mul_u32_u24 v11, 18432, v11
        v_lshl_add_u32 v11, v5, 9, v11
        v_lshl_add_u32 v11, v9, 4, v11
        """)
        pb()
        cons_addr2(j)
    def cons_aux():
        a.vmem(f"buffer_load_dwordx4 {vr(Q)}, v3, s[{rQ}:{rQ+3}], s10 offen", "aux")
        a.vmem(f"buffer_load_dwordx2 {vr(Z,2)}, v4, s[{rZ}:{rZ+3}], s12 offen", "aux")
        a.vmem(f"buffer_load_dwordx2 {vr(Z+2,2)}, v4, s[{rZ}:{rZ+3}], s11 offen", "aux")
        a.vmem(f"buffer_load_dword v{GG}, v2, s[{rG}:{rG+3}], 0 offen", "aux")
        a.vmem(f"buffer_load_dwordx2 {vr(X1,2)}, v11, s[{rX}:{rX+3}], s8 offen", "aux")
        a.vmem(f"buffer_load_dwordx2 {vr(X1+2,2)}, v11, s[{rX}:{rX+3}], s8 offen offset:256", "aux")
    def cons_addr2(j):
        a.e(f"""
        s_mul_i32 s14, s{sTL}, 3
        s_add_u32 s14, s14, {j}
        s_lshl_b32 s13, s14, 2
        s_add_u32 s13, s13, s{sI}
        s_lshl_b32 s13, s13, 5
        s_mul_i32 s15, s14, 6
        s_add_u32 s15, s15, s61
        s_lshl_b32 s15, s15, 2
        s_add_u32 s15, s15, s{sI}
        s_lshl_b32 s15, s15, 13
        s_add_u32 s14, s15, 4096
        v_and_b32 v5, 7, v0
        v_lshlrev_b32 v5, 2, v5
        """)
    def cons_ga():
        a.wait_vm("aux")
        a.e(f"v_sub_f32 v{OM}, 1.0, v{GG}")
        a.bf16r(OM, OM)
        unpack(GA, Q, 4)
        unpack(TT, Z, 4)
        for r in range(8): a.e(f"v_mul_f32 v{GA+r}, v{GA+r}, v{TT+r}")
        pb()
        rnd8(GA, TT)
        for r in range(8): a.e(f"v_mul_f32 v{GA+r}, v{GG}, v{GA+r}")
        rnd8(GA, TT)
        pb()
    def poll_issue():
        a.vmem(f"buffer_load_dword v14, v5, s[{rF}:{rF+3}], s13 offen sc1", "pl")
    def cons_loads(backoff):
        lab = a.newlabel("poll")
        a.stamp(8)
        a.label(lab)
        a.e("s_waitcnt vmcnt(0)")
        a.e("v_cmp_ne_u32 vcc, 1, v14")
        a.e(f"s_cbranch_vccz {lab}_ok")
        a.e(f"s_sub_u32 s{sBUD}, s{sBUD}, 1")
        a.e(f"s_cbranch_scc1 {lab}_ok")
        if backoff: a.e(f"s_sleep {backoff}")
        poll_issue()
        a.e(f"s_branch {lab}")
        a.label(f"{lab}_ok")
        a.stamp(9)
        a.reset()
        for p in range(8):
            a.vmem(f"buffer_load_dwordx4 {vr(PA+4*p)}, v7, s[{rP}:{rP+3}], s{15 if p < 4 else 14} offen offset:{(p%4)*1024} sc1", p)
    def cons_fin():
        unpack(Q, X1, 4)
        for p in range(8):
            a.wait_vm_if(p)
            unpack(SUM if p == 0 else TT, PA + 4*p, 4)
            if p:
                for k in range(8): a.e(f"v_add_f32 v{SUM+k}, v{SUM+k}, v{TT+k}")
        a.stamp(10)
        rnd8(SUM, TT)
        for r in range(8): a.e(f"v_add_f32 v{SUM+r}, v{SUM+r}, v{Q+r}")
        rnd8(SUM, TT)
        for r in range(8): a.e(f"v_mul_f32 v{SUM+r}, v{OM}, v{SUM+r}")
        rnd8(SUM, TT)
        for r in range(8): a.e(f"v_add_f32 v{SUM+r}, v{SUM+r}, v{GA+r}")
        for k in range(4): a.e(f"v_cvt_pk_bf16_f32 v{TT+k}, v{SUM+2*k}, v{SUM+2*k+1}")
        a.e(f"buffer_store_dwordx4 {vr(TT)}, v3, s[{rO}:{rO+3}], s10 offen")
        a.e(f"s_branch {done}")
    a.label("k3_red")
    a.stamp(0)
    if nored: a.e(f"s_branch {done}_x")
    a.e(f"s_cmp_eq_u32 s{sG}, 2")
    a.e(f"s_cbranch_scc1 k3_red_2")
    a.e(f"s_cmp_eq_u32 s{sG}, 1")
    a.e(f"s_cbranch_scc1 k3_red_1")
    T[0] = 0; P[0] = True
    produce(st0, dr0)
    cons_test(0, done + "_x")
    a.reset()
    bar()
    cons_prep(0)
    upto(max(p0, T[0]))
    poll_issue()
    upto(l0)
    cons_loads(0)
    cons_aux()
    upto(36); P[0] = False
    cons_ga()
    cons_fin()
    a.label("k3_red_1")
    T[0] = 0; P[0] = True
    produce(st1, dr1)
    cons_test(1, done + "_x")
    a.reset()
    bar()
    cons_prep(1)
    upto(max(12, T[0]))
    cons_aux()
    upto(17)
    poll_issue()
    upto(18); P[0] = False
    cons_ga()
    cons_loads(bo)
    cons_fin()
    a.label("k3_red_2")
    P[0] = False
    produce(0, 0)
    a.e(f"s_branch {done}")
    a.label("k3_loader")
    a.reset()
    for e in range(3):
        a.e(f"""
        v_add_u32 v12, {64*e}, v0
        v_mul_u32_u24 v13, 2731, v12
        v_lshrrev_b32 v13, 16, v13
        v_mul_u32_u24 v14, 24, v13
        v_sub_u32 v14, v12, v14
        v_and_b32 v11, 6, v13
        v_xor_b32 v14, v14, v11
        v_lshlrev_b32 v14, 4, v14
        v_subrev_u32 v14, {1024*e}, v14
        v_mul_u32_u24 v11, 9216, v13
        v_add_u32 v{16+e}, v14, v11
        v_mul_u32_u24 v11, 1152, v13
        v_add_u32 v{20+e}, v14, v11
        """)
    a.e("s_waitcnt lgkmcnt(0)")
    a.srd(rW3, 4, D*F*2)
    a.srd_off(rX, 10, OFF_X1, SZ_ACT)
    a.srd(rW4, 6, F*D*2)
    a.srd_off(rS, 10, OFF_CS3, F*4)
    a.e(f"""
    s_mul_i32 s14, s{sSP}, {576*1152}
    s_mul_i32 s15, s{sTL}, {18*1152}
    s_add_u32 s14, s14, s15
    s_lshl_b32 s15, s{sI}, 6
    s_add_u32 s14, s14, s15
    s_add_u32 s54, s6, s14
    s_addc_u32 s55, s7, 0
    """)
    grp = sorted(range(81), key=lambda g: min(((g*256 + k*64) % 1152) // 384 for k in range(4)))
    a.e(f"""
    s_mul_i32 s4, s{sSP}, 1152
    s_mul_i32 s6, s{sI}, {8*9216}
    s_add_u32 s4, s4, s6
    s_mul_i32 s5, s{sSP}, {576*1152}
    s_mul_i32 s6, s{sI}, {8*1152}
    s_add_u32 s5, s5, s6
    s_mul_i32 s6, s{sI}, 3072
    s_add_u32 s6, s6, {RING}
    s_lshl_b32 s14, s{sTL}, 2
    s_add_u32 s14, s14, s{sI}
    s_mul_i32 s62, s14, 18432
    s_lshl_b32 s63, s{sI}, 10
    s_lshr_b32 s14, s{sI}, 1
    s_mul_i32 s14, s14, {48*1152}
    s_add_u32 s60, s5, s14
    s_setprio {ldp}
    """)
    def issue(u):
        ph, ks = u // 18, u % 18
        which, th = ph // 3, ph % 3
        pitch = 9216 if which == 0 else 1152
        rW = (rW3, rW4)[which]
        if u < 18:
            a.e(f"s_add_u32 m0, s63, {u*4096}")
            a.e(f"s_add_u32 s7, s62, {u*1024}")
            a.vmem(f"buffer_load_dwordx4 v7, s[{rX}:{rX+3}], s7 offen lds", u)
        a.e(f"s_add_u32 m0, s6, {(u % NSLOT)*SLOT}")
        if which == 1 and ks % 6 < 4:
            a.e(f"s_add_u32 s7, s60, {((ks//6)*192 + (ks%6)*16)*1152 + th*384}")
        else:
            a.e(f"s_add_u32 s7, s{4+which}, {ks*32*pitch + th*384}")
        for e in range(3):
            a.vmem(f"buffer_load_dwordx4 v{16+4*which+e}, s[{rW}:{rW+3}], s7 offen offset:{e*1024} {nt_w} lds", u)
            if u >= LA and e < spf and grp:
                a.e(f"s_load_dword s2, s[54:55], {grp.pop(0)*256}")
        if u == 12:
            a.e(f"s_min_u32 s14, s{sI}, 2")
            a.e(f"s_lshl_b32 s14, s14, 10")
            a.e(f"s_add_u32 m0, s14, {L_CS}")
            a.e(f"s_mul_i32 s15, s{sSP}, 2304")
            a.e(f"s_add_u32 s15, s15, s14")
            a.vmem(f"buffer_load_dwordx4 v7, s[{rS}:{rS+3}], s15 offen lds", u)
    for u in range(LA): issue(u)
    a.wait_vm(0)
    a.e("s_barrier")
    marks = [-1, 17, 35, 53, 71, 89, 101]
    def ltick(u):
        if trace and u >= 0:
            a.e("s_waitcnt lgkmcnt(0)")
            a.e(f"v_writelane_b32 v{60 + u//64}, s92, {u % 64}")
        if u + 2 < 108: a.wait_vm(u+2)
        a.e("s_barrier")
        if trace: a.e("s_memtime s[92:93]")
        if u in marks: a.stamp(marks.index(u))
    last = 108 - LA
    for u in range(-1, last):
        if u >= 0: issue(u + LA)
        ltick(u)
    def tdump():
        if trace:
            a.e("s_load_dwordx2 s[16:17], s[0:1], 112")
            a.e("s_waitcnt lgkmcnt(0)")
            a.srd_off(20, 16, 0x5000000, 0x100000)
            a.e("s_lshl_b32 s16, s100, 2")
            a.e(f"s_add_u32 s16, s16, s{sI}")
            a.e("s_lshl_b32 s16, s16, 9")
            a.e("v_lshlrev_b32 v12, 2, v0")
            a.e("buffer_store_dword v60, v12, s[20:23], s16 offen")
            a.e("buffer_store_dword v61, v12, s[20:23], s16 offen offset:256")
    save = list(a.vm)
    if not nored:
        cons_test(2, "k3_lnc")
        P[0] = False
        late_srds()
        ltick(last)
        cons_prep(2)
        cons_aux()
        for u in range(last+1, 108): ltick(u)
        a.e("s_setprio 0")
        tdump()
        cons_ga()
        poll_issue()
        cons_loads(bo)
        cons_fin()
    a.label("k3_lnc")
    a.vm = save
    for u in range(last, 106): ltick(u)
    tdump()
    a.e(f"s_branch {done if nored else done + '_x'}")
    a.label(done)
    a.pend(3)
    a.label(done + "_x")
    a.e("s_endpgm")
    a.end(name, 128, 102)
```

```python
import sys
from gen import *
import k12
from k34 import k34

def build(path, prof=False, dup=False, pre=None, k1={}, k2={}, **kw):
    a = K()
    a.prof = prof
    k12.k1(a, **k1); k12.k2(a, **k2); k34(a, **kw)
    if dup: a.launches.append(a.launches[-1])
    if pre: a.launches = [a.launches[i] for i in pre]
    roles = {1: [(0,144,0,8,"gemm1"),(144,216,0,8,"prep"),(216,252,0,8,"colsum")], 2: [(144,288,0,4,"gemm2"),(0,144,0,4,"conv")],
             3: [(0,256,0,4,"g0"),(0,256,4,8,"g1"),(0,256,8,12,"g2"),(0,256,12,16,"ld")]}
    open(path, "w").write(a.text(HEADER + ("\n; roles " + repr(roles) if prof else "")))

if __name__ == "__main__":
    base = dict(k1=dict(ntkv="nt"), k2=dict(nth="nt"))
    build("gated_mix__ssm_conv_h3__mixer_s_mlp__prompt.s", **base)
    build("prof.s", prof=True, **base)
    kw = dict(prof=True, trace=True, spf=0, dup=True, nored=True, **base)
    build("pa.s", hv=1, **kw)
    build("pb.s", hv=2, **kw)
    build("pc.s", hv=3, **kw)
    build("pd.s", hv=4, **kw)
    build("pe.s", hv=1, ldp=0, **kw)
```

```python
import sys, math
from asmlib import Asm

S, D, F = 2048, 576, 4608
OFF_HS, OFF_X1, OFF_UR, OFF_Z4 = 0x0, 0x240000, 0x480000, 0x900000
OFF_ST, OFF_G, OFF_CS3 = 0xB40000, 0xB80000, 0xB90000
OFF_H2, OFF_PART = 0xC00000, 0xC00000
SZ_ACT = S * D * 2
KA = dict(q=0, k=8, v=16, shk=24, ssmk=32, ssmD=40, w1=56, w2=64, w3=72, w4=80, gw=88, out=96, dbg=104, ws=112)
import struct
def f2u(x): return struct.unpack("<I", struct.pack("<f", x))[0]
GK = 2.0 * 0.7978845608028654 * 1.4426950408889634

class K(Asm):
    def __init__(self):
        super().__init__()
        self.vm = []
        self.lg = []
    def reset(self):
        self.vm = []; self.lg = []
    prof = False
    def pstart(self):
        self.nst = 0
        if self.prof:
            self.e("s_memrealtime s[64:65]")
            self.e("s_memtime s[66:67]")
            self.e("v_lshrrev_b32 v1, 6, v0")
            self.e("s_nop 1")
            self.e("v_readfirstlane_b32 s101, v1")
            self.e("s_mov_b32 s100, s2")
            for i in range(68, 98): self.e(f"s_mov_b32 s{i}, 0")
    def stamp(self, i):
        if self.prof:
            assert i < 14
            self.e(f"s_memtime s[{68+2*i}:{69+2*i}]")
    def pend(self, kidx):
        if not self.prof: return
        self.e("s_mov_b64 exec, -1")
        self.e("s_waitcnt vmcnt(0) lgkmcnt(0)")
        self.e("s_memtime s[96:97]")
        self.e("s_memrealtime s[98:99]")
        self.e("s_load_dwordx2 s[4:5], s[0:1], 112")
        self.e("s_waitcnt lgkmcnt(0)")
        self.srd_off(8, 4, 0x4000000 + kidx*0x100000, 0x100000)
        self.e("s_lshl_b32 s12, s100, 4")
        self.e("s_add_u32 s12, s12, s101")
        self.e("s_lshl_b32 s12, s12, 7")
        self.e("v_mov_b32 v1, 0")
        self.e("s_mov_b64 exec, 1")
        for i in range(18):
            self.e(f"v_mov_b32 v2, s{64+2*i}")
            self.e(f"buffer_store_dword v2, v1, s[8:11], s12 offen offset:{4*i}")
            self.e("s_nop 1")
        self.e("s_getreg_b32 s13, hwreg(HW_REG_XCC_ID)")
        self.e(f"v_mov_b32 v2, s13")
        self.e(f"buffer_store_dword v2, v1, s[8:11], s12 offen offset:{4*18}")
        self.e("s_getreg_b32 s13, hwreg(HW_REG_HW_ID)")
        self.e(f"v_mov_b32 v3, s13")
        self.e(f"buffer_store_dword v3, v1, s[8:11], s12 offen offset:{4*19}")
    def vmem(self, s, tag=None):
        self.e(s); self.vm.append(tag)
    def lds(self, s, tag=None):
        self.e(s); self.lg.append(tag)
    def wait_vm(self, tag):
        idx = max(i for i, t in enumerate(self.vm) if t == tag)
        n = len(self.vm) - 1 - idx
        assert n <= 63
        self.e(f"s_waitcnt vmcnt({n})")
        self.vm = self.vm[idx+1:]
    def wait_vm_if(self, tag):
        if tag in self.vm: self.wait_vm(tag)
    def wait_lg(self, tag):
        idx = max(i for i, t in enumerate(self.lg) if t == tag)
        n = len(self.lg) - 1 - idx
        if n > 15: n = 15; idx = len(self.lg) - 1 - 15
        self.e(f"s_waitcnt lgkmcnt({n})")
        self.lg = self.lg[idx+1:]
    def wait_lg_if(self, tag):
        if tag in self.lg: self.wait_lg(tag)
    def wait_all(self):
        self.e("s_waitcnt vmcnt(0) lgkmcnt(0)"); self.reset()
    def wait_lg0(self):
        self.e("s_waitcnt lgkmcnt(0)"); self.lg = []
    def wait_vm0(self):
        self.e("s_waitcnt vmcnt(0)"); self.vm = []
    def ldarg(self, sreg, name):
        self.e(f"s_load_dwordx2 s[{sreg}:{sreg+1}], s[0:1], {KA[name]}")
    def srd_off(self, d, base, off, nbytes):
        off += getattr(self, "wsbase", 0)
        self.e(f"s_add_u32 s{d}, s{base}, {off}")
        self.e(f"s_addc_u32 s{d+1}, s{base+1}, 0")
        self.e(f"s_and_b32 s{d+1}, s{d+1}, 0xffff")
        self.e(f"s_mov_b32 s{d+2}, {nbytes}")
        self.e(f"s_mov_b32 s{d+3}, 0x20000")
    def code_pf(self, label, sidx, per, sa, sd, maxidx):
        l = self.newlabel("cpf")
        self.e(f"s_getpc_b64 s[{sa}:{sa+1}]")
        self.label(l)
        self.e(f"s_add_u32 s{sa}, s{sa}, {label}-{l}")
        self.e(f"s_addc_u32 s{sa+1}, s{sa+1}, 0")
        self.e(f"s_min_u32 s{sd}, s{sidx}, {maxidx}")
        self.e(f"s_mul_i32 s{sd}, s{sd}, {per*64}")
        self.e(f"s_add_u32 s{sa}, s{sa}, s{sd}")
        self.e(f"s_addc_u32 s{sa+1}, s{sa+1}, 0")
        for i in range(per):
            self.e(f"s_load_dword s{sd}, s[{sa}:{sa+1}], {i*64}")
    def mfma(self, acc, a, b, c=None):
        cs = f"{acc}" if c is None else c
        self.e(f"v_mfma_f32_16x16x32_bf16 {acc}, {a}, {b}, {cs}")
    def bf16r(self, d, s):
        self.e(f"v_cvt_pk_bf16_f32 v{d}, v{s}, v{s}")
        self.e(f"v_lshlrev_b32 v{d}, 16, v{d}")
    def xsum4(self, v, t):
        self.e(f"v_mov_b32 v{t}, v{v}")
        self.e("s_nop 1")
        self.e(f"v_permlane32_swap_b32 v{v}, v{t}")
        self.e("s_nop 1")
        self.e(f"v_add_f32 v{v}, v{v}, v{t}")
        self.e(f"v_mov_b32 v{t}, v{v}")
        self.e("s_nop 1")
        self.e(f"v_permlane16_swap_b32 v{v}, v{t}")
        self.e("s_nop 1")
        self.e(f"v_add_f32 v{v}, v{v}, v{t}")
    def ln_consts(self, vsum, vsq, negm, c1, c2, sd, t):
        self.e(f"v_mul_f32 v{vsum}, {hex(f2u(1.0/576))}, v{vsum}")
        self.e(f"v_mul_f32 v{vsq}, {hex(f2u(1.0/576))}, v{vsq}")
        self.e(f"v_fma_f32 v{vsq}, -v{vsum}, v{vsum}, v{vsq}")
        self.e(f"v_max_f32 v{vsq}, 0, v{vsq}")
        self.bf16r(negm, vsum)
        self.e(f"v_xor_b32 v{negm}, 0x80000000, v{negm}")
        self.bf16r(vsq, vsq)
        self.e(f"v_add_f32 v{vsq}, {hex(f2u(1e-5))}, v{vsq}")
        self.bf16r(vsq, vsq)
        self.e(f"v_sqrt_f32 v{vsq}, v{vsq}")
        self.e("s_nop 0")
        self.bf16r(sd, vsq)
        self.e(f"v_rcp_f32 v{t}, v{sd}")
        self.e("s_nop 0")
        self.e(f"v_mul_f32 v{c1}, {hex(f2u(-GK))}, v{t}")
        self.e(f"v_mul_f32 v{c2}, v{t}, v{t}")
        self.e(f"v_mul_f32 v{c2}, v{c2}, v{c1}")
        self.e(f"v_mul_f32 v{c2}, {hex(f2u(0.044715))}, v{c2}")
    def gelu_seq(self, a, t, c1, c2, sd):
        return [f"v_mul_f32 v{t}, v{a}, v{a}",
                f"v_fma_f32 v{t}, v{t}, v{c2}, v{c1}",
                f"v_mul_f32 v{t}, v{a}, v{t}",
                f"v_exp_f32 v{t}, v{t}",
                f"v_fma_f32 v{t}, v{t}, v{sd}, v{sd}",
                f"v_rcp_f32 v{t}, v{t}",
                f"v_mul_f32 v{t}, v{a}, v{t}"]

def interleave(seqs):
    out = []
    n = max(len(s) for s in seqs)
    for i in range(n):
        for s in seqs:
            if i < len(s): out.append(s[i])
    return out
def vr(b, n=4): return f"v[{b}:{b+n-1}]"

def small_gemm(a, which, done):
    a.reset()
    sW, sX, sWS, sGW, sQ = 4, 6, 8, 10, 12
    rW, rA, rO, rQ, rS = 16, 20, 24, 28, 32
    sTM, sTN, sWV = 36, 37, 38
    a.ldarg(sW, "w1" if which == 1 else "w2")
    a.ldarg(sQ, "q")
    a.ldarg(sWS, "ws")
    if which == 1: a.ldarg(sGW, "gw")
    a.e(f"""
    s_and_b32 s40, s3, 7
    s_lshr_b32 s41, s3, 3
    s_cmp_ge_u32 s41, 9
    s_cselect_b32 s42, 1, 0
    s_lshl_b32 s{sTM}, s40, 1
    s_add_u32 s{sTM}, s{sTM}, s42
    s_mul_i32 s42, s42, 9
    s_sub_u32 s{sTN}, s41, s42
    v_lshrrev_b32 v1, 6, v0
    v_and_b32 v0, 63, v0
    v_readfirstlane_b32 s{sWV}, v1
    v_and_b32 v2, 15, v0
    v_lshrrev_b32 v3, 4, v0
    """)
    vXA, vWD, vTR, vSTA = 4, 5, 6, 10
    XF = 16
    ACC = 160
    ST = 192
    CS = 200
    WF = 216
    SF = 248
    SQ = 12
    a.e("s_waitcnt lgkmcnt(0)")
    a.srd(rW, sW, D*D*2)
    a.srd(rQ, sQ, SZ_ACT)
    if which == 1:
        a.srd_off(rO, sWS, OFF_HS, SZ_ACT)
        a.srd_off(rS, sWS, OFF_G, S*4)
        a.srd(rA, sGW, D*2)
    else:
        a.srd_off(rA, sWS, OFF_HS, SZ_ACT)
        a.srd_off(rO, sWS, OFF_X1, SZ_ACT)
        a.srd_off(rS, sWS, OFF_ST, 9*S*8)
    a.e(f"""
    s_lshl_b32 s43, s{sTM}, 7
    s_lshl_b32 s44, s{sWV}, 5
    s_add_u32 s43, s43, s44
    """)
    if which == 1:
        a.e(f"s_lshl_b32 s45, s{sWV}, 10")
        a.e(f"v_lshl_add_u32 v14, v0, 4, s45")
        a.vmem(f"buffer_load_dwordx4 {vr(WF)}, v14, s[{rA}:{rA+3}], 0 offen", "gw")
        a.e(f"v_add_u32 v{vXA}, s43, v2")
        a.e(f"v_mul_u32_u24 v{vXA}, 1152, v{vXA}")
        a.e(f"v_lshl_add_u32 v{vXA}, v3, 4, v{vXA}")
        a.e(f"s_mov_b32 s46, {16*1152}")
    else:
        a.e(f"s_lshr_b32 s45, s43, 4")
        a.e(f"s_mul_i32 s45, s45, 18432")
        a.e(f"v_lshl_add_u32 v{vXA}, v0, 4, s45")
    a.e(f"""
    v_lshrrev_b32 v14, 3, v0
    s_lshl_b32 s45, s{sWV}, 3
    v_add_u32 v14, s45, v14
    v_and_b32 v15, 6, v14
    v_and_b32 v{vWD}, 7, v0
    v_xor_b32 v{vWD}, v{vWD}, v15
    v_lshlrev_b32 v{vWD}, 4, v{vWD}
    """)
    if which == 1:
        a.e(f"""
        v_and_b32 v15, 12, v14
        v_lshlrev_b32 v15, 1, v15
        v_and_b32 v11, 3, v14
        v_add_u32 v15, v15, v11
        v_lshrrev_b32 v11, 4, v14
        v_lshl_add_u32 v14, v11, 2, v15
        """)
    a.e(f"""
    v_mul_u32_u24 v14, 1152, v14
    v_add_u32 v{vWD}, v{vWD}, v14
    s_lshl_b32 s45, s{sTN}, 7
    v_add_u32 v{vWD}, s45, v{vWD}
    s_lshl_b32 s47, s{sWV}, 10
    s_mov_b32 s48, 0
    s_mov_b32 s49, 0
    """)
    for ks in range(18):
        a.e(f"s_add_u32 m0, s47, {ks*4096}")
        if which == 2:
            a.e(f"s_add_u32 s50, s49, 18432")
        else:
            a.e("s_nop 0")
        a.vmem(f"buffer_load_dwordx4 v{vWD}, s[{rW}:{rW+3}], s48 offen lds", f"k{ks}")
        a.e(f"s_add_u32 s48, s48, {32*1152}")
        if which == 1:
            a.vmem(f"buffer_load_dwordx4 {vr(XF+ks*4)}, v{vXA}, s[{rQ}:{rQ+3}], 0 offen offset:{ks*64}", f"k{ks}")
            a.vmem(f"buffer_load_dwordx4 {vr(XF+72+ks*4)}, v{vXA}, s[{rQ}:{rQ+3}], s46 offen offset:{ks*64}", f"k{ks}")
        else:
            a.vmem(f"buffer_load_dwordx4 {vr(XF+ks*4)}, v{vXA}, s[{rA}:{rA+3}], s49 offen", f"k{ks}")
            a.vmem(f"buffer_load_dwordx4 {vr(XF+72+ks*4)}, v{vXA}, s[{rA}:{rA+3}], s50 offen", f"k{ks}")
            a.e(f"s_add_u32 s49, s49, 1024")
    a.e(f"""
    v_lshrrev_b32 v14, 2, v0
    v_lshlrev_b32 v14, 7, v14
    v_and_b32 v15, 3, v0
    v_lshl_add_u32 v14, v15, 3, v14
    v_bfe_u32 v15, v0, 3, 2
    """)
    if which == 1:
        a.e(f"v_xor_b32 v15, s{sWV}, v15")
    for i in range(4):
        a.e(f"v_xor_b32 v11, {i}, v15")
        a.e(f"v_lshl_add_u32 v{vTR+i}, v11, 5, v14")
    LST = 73728
    if which == 1:
        a.e(f"""
        v_and_b32 v11, 3, v0
        v_mov_b32 v{vSTA}, {LST+2304}
        v_mov_b32 v14, {LST+1152}
        v_cmp_eq_u32 vcc, 0, v11
        s_nop 1
        v_cndmask_b32 v{vSTA}, v{vSTA}, v14, vcc
        v_mov_b32 v14, {LST}
        v_cmp_eq_u32 vcc, 1, v11
        s_nop 1
        v_cndmask_b32 v{vSTA}, v{vSTA}, v14, vcc
        v_lshl_add_u32 v{vSTA}, v3, 4, v{vSTA}
        v_mov_b32 v{SF+4}, 0x3f803f80
        v_mov_b32 v{SF+5}, 0x3f803f80
        v_mov_b32 v{SF+6}, 0x3f803f80
        v_mov_b32 v{SF+7}, 0x3f803f80
        v_mov_b32 v{SF}, 0
        v_mov_b32 v{SF+1}, 0
        v_mov_b32 v{SF+2}, 0
        v_mov_b32 v{SF+3}, 0
        v_mov_b32 v{SQ}, 0
        v_mov_b32 v{SQ+1}, 0
        """)
        a.e(f"s_lshl_b32 s45, s{sWV}, 10")
        a.e(f"v_lshl_add_u32 v14, v0, 4, s45")
        a.e(f"v_cmp_gt_u32 vcc, 1152, v14")
        a.e(f"v_add_u32 v14, {LST}, v14")
        a.wait_vm("gw")
        a.e("s_and_saveexec_b64 s[52:53], vcc")
        a.e(f"ds_write_b128 v14, {vr(WF)}")
        a.e(f"ds_write_b128 v14, {vr(SF+4)} offset:1152")
        a.e(f"ds_write_b128 v14, {vr(SF)} offset:2304")
        a.e("s_mov_b64 exec, s[52:53]")
        a.e("s_waitcnt lgkmcnt(0)")
    else:
        a.e(f"v_add_u32 v14, s43, v2")
        a.e(f"v_mul_u32_u24 v14, 1152, v14")
        a.e(f"v_lshl_add_u32 v14, v3, 3, v14")
        a.e(f"s_lshl_b32 s45, s{sTN}, 7")
        a.e(f"s_add_u32 s46, s45, {16*1152}")
        for tt in range(2):
            for i in range(4):
                a.vmem(f"buffer_load_dwordx2 {vr(192+(tt*4+i)*2, 2)}, v14, s[{rQ}:{rQ+3}], s{45+tt} offen offset:{i*32}", "xres")
    a.stamp(0)
    groups = [[0], [1, 2], [3, 4, 5], [6, 7, 8], [9, 10, 11], [12, 13, 14], [15, 16, 17]]
    def wread(ks):
        buf = WF + (ks & 1) * 16
        off = ks * 4096
        if ks == 16:
            for i in range(4): a.e(f"v_add_u32 v{vTR+i}, 0x10000, v{vTR+i}")
        if ks >= 16: off -= 65536
        for i in range(4):
            a.lds(f"ds_read_b64_tr_b16 {vr(buf+i*4, 2)}, v{vTR+i} offset:{off}", f"w{ks}")
            a.lds(f"ds_read_b64_tr_b16 {vr(buf+i*4+2, 2)}, v{vTR+i} offset:{off+2048}", f"w{ks}")
    for gi, g in enumerate(groups):
        a.wait_vm(f"k{g[-1]}")
        a.e("s_barrier")
        a.stamp(1+gi)
        wread(g[0])
        for j, ks in enumerate(g):
            if which == 1:
                a.lds(f"ds_read_b128 {vr(SF)}, v{vSTA} offset:{ks*64}", f"w{ks}")
            if j + 1 < len(g):
                a.wait_lg(f"w{ks}")
                wread(g[j+1])
            else:
                a.wait_lg(f"w{ks}")
            buf = WF + (ks & 1) * 16
            for i in range(4):
                for tt in range(2):
                    acc = vr(ACC + tt*16 + i*4)
                    a.mfma(acc, vr(buf+i*4), vr(XF+tt*72+ks*4), "0" if ks == 0 else None)
            if which == 1:
                a.mfma(vr(CS), vr(buf), vr(SF+4), "0" if ks == 0 else None)
                for tt in range(2):
                    a.mfma(vr(ST+tt*4), vr(SF), vr(XF+tt*72+ks*4), "0" if ks == 0 else None)
                for tt in range(2):
                    for r in range(4):
                        x = XF+tt*72+ks*4+r
                        a.e(f"v_dot2c_f32_bf16 v{SQ+tt}, v{x}, v{x}")
    a.e("s_nop 7")
    a.e("s_nop 1")
    a.stamp(8)
    if which == 1:
        a.e(f"s_lshl_b32 s45, s{sWV}, 6")
        a.e(f"v_lshl_add_u32 v14, v3, 4, s45")
        a.e(f"v_add_u32 v14, {LST+3456}, v14")
        a.e(f"v_cmp_eq_u32 vcc, 0, v2")
        a.e("s_and_saveexec_b64 s[52:53], vcc")
        a.e(f"ds_write_b128 v14, {vr(CS)}")
        a.e("s_mov_b64 exec, s[52:53]")
        a.e("s_waitcnt lgkmcnt(0)")
        a.e("s_barrier")
        for i in range(4):
            a.e(f"s_xor_b32 s45, s{sWV}, {i}")
            a.e(f"s_lshl_b32 s45, s45, 6")
            a.e(f"v_lshl_add_u32 v14, v3, 4, s45")
            a.e(f"v_add_u32 v14, {LST+3456}, v14")
            a.e(f"ds_read_b128 {vr(CS+i*4)}, v14")
        C = 16
        for tt in range(2):
            a.xsum4(SQ+tt, 14)
            a.ln_consts(ST+tt*4, SQ+tt, C+tt*4, C+tt*4+1, C+tt*4+2, C+tt*4+3, 14)
        lab = a.newlabel("nog")
        a.e(f"s_cmp_lg_u32 s{sTN}, 0")
        a.e(f"s_cbranch_scc1 {lab}")
        for tt in range(2):
            g = 24 + tt
            a.bf16r(g, ST+tt*4+1)
            a.e(f"v_mul_f32 v{g}, {hex(f2u(-1.4426950408889634))}, v{g}")
            a.e(f"v_exp_f32 v{g}, v{g}")
            a.e("s_nop 0")
            a.e(f"v_add_f32 v{g}, 1.0, v{g}")
            a.e(f"v_rcp_f32 v{g}, v{g}")
            a.e("s_nop 0")
            a.bf16r(g, g)
        a.e(f"v_add_u32 v14, s43, v2")
        a.e(f"v_lshlrev_b32 v14, 2, v14")
        a.e(f"v_cmp_eq_u32 vcc, 0, v3")
        a.e("s_and_saveexec_b64 s[52:53], vcc")
        a.e(f"buffer_store_dword v24, v14, s[{rS}:{rS+3}], 0 offen")
        a.e(f"buffer_store_dword v25, v14, s[{rS}:{rS+3}], 0 offen offset:64")
        a.e("s_mov_b64 exec, s[52:53]")
        a.label(lab)
        a.e("s_waitcnt lgkmcnt(0)")
        T = 32
        for i in range(4):
            a.e(f"""
            s_xor_b32 s45, s{sWV}, {i}
            s_lshl_b32 s46, s{sTN}, 2
            s_add_u32 s45, s45, s46
            s_mul_i32 s46, s45, 57
            s_lshr_b32 s46, s46, 9
            s_lshr_b32 s47, s46, 1
            s_add_u32 s47, s47, 1
            s_sub_u32 s48, 0, s47
            s_bitcmp1_b32 s46, 0
            s_cselect_b32 s47, s48, s47
            s_add_u32 s47, s47, s43
            s_lshr_b32 s48, s45, 1
            s_lshl_b32 s48, s48, 10
            s_and_b32 s49, s45, 1
            s_lshl_b32 s49, s49, 3
            s_add_u32 s48, s48, s49
            """)
            seqs = []
            for tt in range(2):
                for r in range(4):
                    acc = ACC + tt*16 + i*4 + r
                    seqs.append([f"v_fma_f32 v{acc}, v{C+tt*4}, v{CS+i*4+r}, v{acc}"] +
                                a.gelu_seq(acc, T+tt*4+r, C+tt*4+1, C+tt*4+2, C+tt*4+3))
            for x in interleave(seqs): a.e(x)
            for tt in range(2):
                P = 64 + (i*2+tt)*2
                a.e(f"v_cvt_pk_bf16_f32 v{P}, v{T+tt*4}, v{T+tt*4+1}")
                a.e(f"v_cvt_pk_bf16_f32 v{P+1}, v{T+tt*4+2}, v{T+tt*4+3}")
                ad = 96 + i*2 + tt
                a.e(f"v_add_u32 v{ad}, s47, v2")
                if tt: a.e(f"v_add_u32 v{ad}, 16, v{ad}")
                a.e(f"v_cmp_gt_u32 vcc, {S}, v{ad}")
                a.e(f"v_and_b32 v{ad}, {S-1}, v{ad}")
                a.e(f"v_lshrrev_b32 v14, 4, v{ad}")
                a.e(f"v_mul_u32_u24 v14, 18432, v14")
                a.e(f"v_cndmask_b32 v{P}, 0, v{P}, vcc")
                a.e(f"v_cndmask_b32 v{P+1}, 0, v{P+1}, vcc")
                a.e(f"v_and_b32 v{ad}, 15, v{ad}")
                a.e(f"v_lshl_add_u32 v{ad}, v3, 4, v{ad}")
                a.e(f"v_lshl_add_u32 v{ad}, v{ad}, 4, v14")
                a.e(f"buffer_store_dwordx2 {vr(P,2)}, v{ad}, s[{rO}:{rO+3}], s48 offen")
    else:
        a.wait_vm0()
        T = 16
        a.e(f"s_lshr_b32 s45, s43, 4")
        a.e(f"s_mul_i32 s45, s45, 18432")
        a.e(f"s_lshl_b32 s46, s{sTN}, 11")
        a.e(f"s_add_u32 s45, s45, s46")
        a.e(f"s_add_u32 s46, s45, 18432")
        a.e(f"v_lshlrev_b32 v15, 4, v0")
        for tt in range(2):
            sm, sq = 12, 13
            for i in range(4):
                acc = ACC + tt*16 + i*4
                xr = 192 + (tt*4+i)*2
                t = T + i*8
                P = 64 + tt*8 + i*2
                a.e(f"v_cvt_pk_bf16_f32 v{t}, v{acc}, v{acc+1}")
                a.e(f"v_cvt_pk_bf16_f32 v{t+1}, v{acc+2}, v{acc+3}")
                a.e(f"v_lshlrev_b32 v{acc}, 16, v{t}")
                a.e(f"v_and_b32 v{acc+1}, 0xffff0000, v{t}")
                a.e(f"v_lshlrev_b32 v{acc+2}, 16, v{t+1}")
                a.e(f"v_and_b32 v{acc+3}, 0xffff0000, v{t+1}")
                a.e(f"v_lshlrev_b32 v{t+2}, 16, v{xr}")
                a.e(f"v_and_b32 v{t+3}, 0xffff0000, v{xr}")
                a.e(f"v_lshlrev_b32 v{t+4}, 16, v{xr+1}")
                a.e(f"v_and_b32 v{t+5}, 0xffff0000, v{xr+1}")
                for r in range(4):
                    a.e(f"v_add_f32 v{acc+r}, v{acc+r}, v{t+2+r}")
                a.e(f"v_cvt_pk_bf16_f32 v{P}, v{acc}, v{acc+1}")
                a.e(f"v_cvt_pk_bf16_f32 v{P+1}, v{acc+2}, v{acc+3}")
                a.e(f"v_lshlrev_b32 v{acc}, 16, v{P}")
                a.e(f"v_and_b32 v{acc+1}, 0xffff0000, v{P}")
                a.e(f"v_lshlrev_b32 v{acc+2}, 16, v{P+1}")
                a.e(f"v_and_b32 v{acc+3}, 0xffff0000, v{P+1}")
                for r in range(4):
                    if i == 0 and r == 0:
                        a.e(f"v_mov_b32 v{sm}, v{acc}")
                        a.e(f"v_mul_f32 v{sq}, v{acc}, v{acc}")
                    else:
                        a.e(f"v_add_f32 v{sm}, v{sm}, v{acc+r}")
                        a.e(f"v_fma_f32 v{sq}, v{acc+r}, v{acc+r}, v{sq}")
            P = 64 + tt*8
            a.e(f"buffer_store_dwordx4 {vr(P)}, v15, s[{rO}:{rO+3}], s{45+tt} offen")
            a.e(f"buffer_store_dwordx4 {vr(P+4)}, v15, s[{rO}:{rO+3}], s{45+tt} offen offset:1024")
            a.xsum4(sm, 14)
            a.xsum4(sq, 14)
            a.e(f"v_add_u32 v14, s43, v2")
            a.e(f"v_lshlrev_b32 v14, 3, v14")
            a.e(f"s_lshl_b32 s47, s{sTN}, 14")
            a.e(f"v_mov_b32 v{80+tt*2}, v{sm}")
            a.e(f"v_mov_b32 v{81+tt*2}, v{sq}")
            a.e(f"v_cmp_eq_u32 vcc, 0, v3")
            a.e("s_and_saveexec_b64 s[52:53], vcc")
            a.e(f"buffer_store_dwordx2 {vr(80+tt*2,2)}, v14, s[{rS}:{rS+3}], s47 offen offset:{tt*128}")
            a.e("s_mov_b64 exec, s[52:53]")
    a.e(f"s_branch {done}")

def prep(a, done):
    a.reset()
    rK, rV, rSH, rU = 16, 20, 24, 28
    a.ldarg(4, "k"); a.ldarg(6, "v"); a.ldarg(8, "shk"); a.ldarg(10, "ws")
    a.e(f"""
    v_lshrrev_b32 v1, 6, v0
    v_and_b32 v0, 63, v0
    v_readfirstlane_b32 s38, v1
    v_and_b32 v2, 15, v0
    v_lshrrev_b32 v3, 4, v0
    s_lshl_b32 s36, s3, 2
    s_add_u32 s36, s36, s38
    s_mul_i32 s37, s36, 7282
    s_lshr_b32 s37, s37, 16
    s_mul_i32 s39, s37, 9
    s_sub_u32 s39, s36, s39
    """)
    a.e("s_waitcnt lgkmcnt(0)")
    a.srd(rK, 4, SZ_ACT); a.srd(rV, 6, SZ_ACT); a.srd(rSH, 8, D*8)
    a.srd_off(rU, 10, OFF_UR, D*8192)
    a.e(f"""
    s_lshl_b32 s40, s37, 5
    v_lshl_add_u32 v4, v3, 3, s40
    s_lshl_b32 s41, s39, 6
    v_lshl_add_u32 v5, v2, 2, s41
    v_mul_u32_u24 v6, 1152, v4
    v_lshl_add_u32 v7, v5, 1, v6
    v_subrev_u32 v6, 4608, v7
    v_add_u32 v8, 4608, v7
    v_lshlrev_b32 v9, 3, v5
    """)
    KR, VR, WR = 16, 40, 60
    a.vmem(f"buffer_load_dwordx4 {vr(WR)}, v9, s[{rSH}:{rSH+3}], 0 offen")
    a.vmem(f"buffer_load_dwordx4 {vr(WR+4)}, v9, s[{rSH}:{rSH+3}], 0 offen offset:16")
    for r in range(12):
        a.vmem(f"buffer_load_dwordx2 {vr(KR+2*r,2)}, v{6+r//4}, s[{rK}:{rK+3}], 0 offen offset:{(r%4)*1152}")
    for r in range(9):
        rr = r + 3
        a.vmem(f"buffer_load_dwordx2 {vr(VR+2*r,2)}, v{6+rr//4}, s[{rV}:{rV+3}], 0 offen offset:{(rr%4)*1152}")
    a.e(f"""
    v_lshlrev_b32 v10, 13, v5
    v_sub_u32 v11, 2040, v4
    v_lshl_add_u32 v10, v11, 1, v10
    s_mov_b32 s42, 0
    """)
    a.wait_vm0()
    KF, WFl, U, VF, P = 72, 84, 88, 100, 112
    for ch in range(4):
        un = (lambda d, s: f"v_lshlrev_b32 v{d}, 16, v{s}") if ch % 2 == 0 else (lambda d, s: f"v_and_b32 v{d}, 0xffff0000, v{s}")
        for r in range(12): a.e(un(KF+r, KR+2*r+ch//2))
        for r in range(9): a.e(un(VF+r, VR+2*r+ch//2))
        a.e(f"v_lshlrev_b32 v{WFl}, 16, v{WR+2*ch}")
        a.e(f"v_and_b32 v{WFl+1}, 0xffff0000, v{WR+2*ch}")
        a.e(f"v_lshlrev_b32 v{WFl+2}, 16, v{WR+2*ch+1}")
        a.e(f"v_and_b32 v{WFl+3}, 0xffff0000, v{WR+2*ch+1}")
        for e in range(9): a.e(f"v_mul_f32 v{U+e}, v{KF+e}, v{WFl+3}")
        for j in (2, 1, 0):
            for e in range(9): a.e(f"v_fma_f32 v{U+e}, v{KF+e+3-j}, v{WFl+j}, v{U+e}")
        for e in range(9): a.e(f"v_mul_f32 v{U+e}, v{U+e}, v{VF+e}")
        PP = P + ch*8
        for m in range(4):
            a.e(f"v_cvt_pk_bf16_f32 v{PP+m}, v{U+8-2*m}, v{U+7-2*m}")
            a.e(f"v_cvt_pk_bf16_f32 v{PP+4+m}, v{U+7-2*m}, v{U+6-2*m}")
        a.e(f"buffer_store_dwordx4 {vr(PP)}, v10, s[{rU}:{rU+3}], s42 offen")
        a.e(f"s_add_u32 s42, s42, 4096")
        a.e(f"buffer_store_dwordx4 {vr(PP+4)}, v10, s[{rU}:{rU+3}], s42 offen")
        a.e(f"s_add_u32 s42, s42, 4096")
    a.e(f"s_branch {done}")

def colsum3(a, done):
    a.reset()
    rW, rC = 16, 20
    a.ldarg(4, "w3"); a.ldarg(10, "ws")
    a.e(f"""
    v_lshrrev_b32 v1, 3, v0
    v_and_b32 v2, 7, v0
    v_mul_u32_u24 v3, 9216, v1
    v_lshl_add_u32 v3, v2, 4, v3
    s_lshl_b32 s36, s3, 7
    s_waitcnt lgkmcnt(0)
    """)
    a.srd(rW, 4, D*F*2)
    a.srd_off(rC, 10, OFF_CS3, F*4)
    for i in range(18):
        a.vmem(f"buffer_load_dwordx4 {vr(16+4*i)}, v3, s[{rW}:{rW+3}], s36 offen", i)
        a.e(f"s_add_u32 s36, s36, {32*9216}")
    for i in range(18):
        a.wait_vm(i)
        for r in range(4):
            x = 16+4*i+r
            if i == 0:
                a.e(f"v_lshlrev_b32 v{8+2*r}, 16, v{x}")
                a.e(f"v_and_b32 v{9+2*r}, 0xffff0000, v{x}")
            else:
                a.e(f"v_lshlrev_b32 v4, 16, v{x}")
                a.e(f"v_and_b32 v5, 0xffff0000, v{x}")
                a.e(f"v_add_f32 v{8+2*r}, v{8+2*r}, v4")
                a.e(f"v_add_f32 v{9+2*r}, v{9+2*r}, v5")
    a.e(f"""
    v_lshlrev_b32 v4, 5, v0
    ds_write_b128 v4, v[8:11]
    ds_write_b128 v4, v[12:15] offset:16
    s_waitcnt lgkmcnt(0)
    s_barrier
    v_cmp_gt_u32 vcc, 64, v0
    s_and_saveexec_b64 s[52:53], vcc
    s_cbranch_execz {done}
    v_lshlrev_b32 v4, 2, v0
    """)
    for half in range(2):
        for r in range(16):
            a.e(f"ds_read_b32 v{16+r}, v4 offset:{(half*16+r)*256}")
            if r == 7: a.e("s_waitcnt lgkmcnt(0)")
        a.e("s_waitcnt lgkmcnt(0)")
        for r in range(16):
            if half == 0 and r == 0: a.e("v_mov_b32 v8, v16")
            else: a.e(f"v_add_f32 v8, v8, v{16+r}")
    a.e(f"s_lshl_b32 s36, s3, 8")
    a.e(f"buffer_store_dword v8, v4, s[{rC}:{rC+3}], s36 offen")
    a.e(f"s_branch {done}")

def conv(a, done):
    a.reset()
    rU, rH, rZ = 16, 20, 24
    RS = 13120
    a.ldarg(4, "ssmk"); a.ldarg(6, "ssmD"); a.ldarg(10, "ws")
    a.e(f"""
    v_lshrrev_b32 v1, 6, v0
    v_and_b32 v0, 63, v0
    v_readfirstlane_b32 s38, v1
    v_and_b32 v2, 15, v0
    v_lshrrev_b32 v3, 4, v0
    s_lshl_b32 s36, s3, 2
    s_add_u32 s36, s36, s38
    s_mul_i32 s39, s38, {RS}
    s_lshl_b32 s40, s3, 3
    s_waitcnt lgkmcnt(0)
    s_load_dwordx2 s[44:45], s[6:7], s40
    """)
    a.srd(rH, 4, D*S*2)
    a.srd_off(rU, 10, OFF_UR, D*8192)
    a.srd_off(rZ, 10, OFF_Z4, SZ_ACT)
    a.e(f"""
    v_lshlrev_b32 v4, 4, v0
    s_lshl_b32 s41, s36, 13
    s_lshl_b32 s42, s36, 12
    s_mov_b32 m0, s39
    s_add_u32 s43, s41, 4096
    """)
    for i in range(4):
        a.vmem(f"buffer_load_dwordx4 v4, s[{rU}:{rU+3}], s41 offen offset:{i*1024} lds")
    a.e(f"s_add_u32 m0, s39, 4160")
    a.e("s_nop 0")
    for i in range(4):
        a.vmem(f"buffer_load_dwordx4 v4, s[{rU}:{rU+3}], s43 offen offset:{i*1024} lds")
    a.e(f"s_add_u32 m0, s39, {8320+512}")
    a.e("s_nop 0")
    for i in range(4):
        a.vmem(f"buffer_load_dwordx4 v4, s[{rH}:{rH+3}], s42 offen offset:{i*1024} lds")
    a.e(f"""
    v_mov_b32 v8, 0
    v_mov_b32 v9, 0
    v_mov_b32 v10, 0
    v_mov_b32 v11, 0
    v_add_u32 v5, s39, v4
    v_cmp_gt_u32 vcc, 36, v0
    s_and_saveexec_b64 s[52:53], vcc
    ds_write_b128 v5, v[8:11] offset:8256
    v_cmp_gt_u32 vcc, 4, v0
    s_and_b64 exec, exec, vcc
    ds_write_b128 v5, v[8:11] offset:4096
    s_mov_b64 exec, s[52:53]
    """)
    a.e(f"""
    v_or_b32 v5, 1, v2
    v_sub_u32 v5, 15, v5
    v_lshl_add_u32 v5, v3, 3, v5
    v_lshlrev_b32 v5, 1, v5
    v_and_b32 v6, 1, v2
    v_xor_b32 v6, 1, v6
    v_mul_u32_u24 v6, 4160, v6
    v_add3_u32 v12, v5, v6, s39
    v_add_u32 v13, 1024, v12
    v_add_u32 v14, 2048, v12
    v_add_u32 v15, 3072, v12
    v_lshlrev_b32 v5, 5, v2
    v_lshl_add_u32 v5, v3, 4, v5
    v_add_u32 v7, s39, v5
    v_add_u32 v7, {8320+32}, v7
    """)
    a.stamp(0)
    a.e("s_waitcnt vmcnt(0) lgkmcnt(0)"); a.reset()
    a.stamp(1)
    ACC = 16; FB = 48
    def loads(rho):
        buf = FB + (rho & 1) * 64
        out = []
        for x in range(8):
            p = 8*x + rho
            boff = 64*(63-p)
            base = 12 + boff // 1024
            o = (boff % 1024) // 4
            out.append((f"ds_read2_b32 {vr(buf+x*4,2)}, v{base} offset0:{o} offset1:{o+1}", f"r{rho}"))
            out.append((f"ds_read2_b32 {vr(buf+x*4+2,2)}, v{base} offset0:{o+2} offset1:{o+3}", f"r{rho}"))
            n = 8*x - rho
            out.append((f"ds_read_b128 {vr(buf+32+x*4)}, v7 offset:{64*(n+7)}", f"r{rho}"))
        return out
    for (s, t) in loads(0):
        a.lds(s, t)
        if len(a.lg) >= 12: a.wait_lg0()
    for rho in range(8):
        a.wait_lg0()
        buf = FB + (rho & 1) * 64
        nxt = loads(rho+1) if rho < 7 else []
        k = 0; cnt = 0
        for c in range(8):
            for x in range(c+1):
                first = (rho == 0 and x == 0)
                a.mfma(vr(ACC+c*4), vr(buf+x*4), vr(buf+32+(c-x)*4), "0" if first else None)
                cnt += 1
                if k < len(nxt) and cnt <= 30:
                    a.lds(*nxt[k]); k += 1
                    if k in (12,):
                        pass
        assert k == len(nxt)
    a.stamp(2)
    a.e(f"""
    v_lshlrev_b32 v5, 5, v2
    v_lshl_add_u32 v5, v3, 3, v5
    v_sub_u32 v6, 504, v5
    v_add_u32 v6, s39, v6
    v_add_u32 v5, s39, v5
    s_lshr_b32 s46, s38, 1
    s_cmp_eq_u32 s46, 0
    s_cselect_b32 s44, s44, s45
    s_bitcmp1_b32 s38, 0
    s_cselect_b32 s46, 0, 16
    s_lshl_b32 s44, s44, s46
    s_and_b32 s44, s44, 0xffff0000
    """)
    U = 48
    for c in range(8):
        a.e(f"ds_read_b64 {vr(U+2*c,2)}, v6 offset:{512*(7-c)}")
    a.e("s_waitcnt lgkmcnt(0)")
    a.e("s_nop 7")
    for c in range(8):
        acc = ACC + c*4; t = 64 + c*8
        a.e(f"v_and_b32 v{t}, 0xffff0000, v{U+2*c+1}")
        a.e(f"v_lshlrev_b32 v{t+1}, 16, v{U+2*c+1}")
        a.e(f"v_and_b32 v{t+2}, 0xffff0000, v{U+2*c}")
        a.e(f"v_lshlrev_b32 v{t+3}, 16, v{U+2*c}")
        for r in range(4): a.e(f"v_mul_f32 v{t+r}, s44, v{t+r}")
        a.e(f"v_cvt_pk_bf16_f32 v{t+4}, v{t}, v{t+1}")
        a.e(f"v_cvt_pk_bf16_f32 v{t+5}, v{t+2}, v{t+3}")
        a.e(f"v_cvt_pk_bf16_f32 v{t+6}, v{acc}, v{acc+1}")
        a.e(f"v_cvt_pk_bf16_f32 v{t+7}, v{acc+2}, v{acc+3}")
        a.e(f"v_lshlrev_b32 v{t}, 16, v{t+4}")
        a.e(f"v_and_b32 v{t+1}, 0xffff0000, v{t+4}")
        a.e(f"v_lshlrev_b32 v{t+2}, 16, v{t+5}")
        a.e(f"v_and_b32 v{t+3}, 0xffff0000, v{t+5}")
        a.e(f"v_lshlrev_b32 v{acc}, 16, v{t+6}")
        a.e(f"v_and_b32 v{acc+1}, 0xffff0000, v{t+6}")
        a.e(f"v_lshlrev_b32 v{acc+2}, 16, v{t+7}")
        a.e(f"v_and_b32 v{acc+3}, 0xffff0000, v{t+7}")
        for r in range(4): a.e(f"v_add_f32 v{t+r}, v{t+r}, v{acc+r}")
        a.e(f"v_cvt_pk_bf16_f32 v{t+4}, v{t}, v{t+1}")
        a.e(f"v_cvt_pk_bf16_f32 v{t+5}, v{t+2}, v{t+3}")
        a.e(f"ds_write_b64 v5, {vr(t+4,2)} offset:{8320+512*c}")
    a.e("s_waitcnt lgkmcnt(0)")
    a.e("s_barrier")
    a.e(f"""
    v_bfe_u32 v5, v0, 2, 2
    v_mul_u32_u24 v5, {RS}, v5
    v_lshl_add_u32 v5, v3, 5, v5
    v_and_b32 v6, 3, v0
    v_lshl_add_u32 v5, v6, 3, v5
    s_lshl_b32 s46, s38, 10
    v_add_u32 v5, s46, v5
    v_lshlrev_b32 v6, 3, v0
    s_lshl_b32 s47, s3, 14
    s_lshl_b32 s46, s38, 12
    s_add_u32 s47, s47, s46
    """)
    for j in range(8):
        a.e(f"ds_read_b64_tr_b16 {vr(16+2*j,2)}, v5 offset:{8320+128*j}")
    a.e("s_waitcnt lgkmcnt(0)")
    for j in range(8):
        a.e(f"buffer_store_dwordx2 {vr(16+2*j,2)}, v6, s[{rZ}:{rZ+3}], s47 offen offset:{512*j}")
    a.e(f"s_branch {done}")

def k3(a):
    name = "k3_kernel"
    a.launch(name, (256,1,1), 512, 156672)
    a.begin(name)
    a.reset()
    done = "k3_done"
    rW, rX, rH, rS, rC = 16, 20, 24, 28, 32
    a.e(f"s_cmp_ge_u32 s2, 256")
    a.e(f"s_cbranch_scc1 {done}_x")
    a.pstart()
    a.ldarg(4, "w3"); a.ldarg(10, "ws")
    a.e(f"""
    s_and_b32 s40, s2, 7
    s_lshr_b32 s41, s2, 3
    s_and_b32 s36, s40, 1
    s_lshl_b32 s36, s36, 2
    s_and_b32 s42, s41, 3
    s_add_u32 s36, s36, s42
    s_lshr_b32 s37, s40, 1
    s_lshl_b32 s37, s37, 3
    s_lshr_b32 s42, s41, 2
    s_add_u32 s37, s37, s42
    v_lshrrev_b32 v1, 6, v0
    v_mov_b32 v4, v0
    v_readfirstlane_b32 s38, v1
    v_and_b32 v0, 63, v0
    v_and_b32 v2, 15, v0
    v_lshrrev_b32 v3, 4, v0
    """)
    a.e(f"""
    v_mul_u32_u24 v5, 3641, v4
    v_lshrrev_b32 v5, 16, v5
    v_mul_u32_u24 v6, 18, v5
    v_sub_u32 v6, v4, v6
    v_mul_u32_u24 v5, 9216, v5
    v_lshl_add_u32 v5, v6, 4, v5
    s_mul_i32 s42, s37, 288
    v_add_u32 v5, s42, v5
    s_lshl_b32 s43, s36, 4
    s_lshl_b32 s44, s38, 1
    s_add_u32 s43, s43, s44
    s_mul_i32 s45, s43, 18432
    v_lshl_add_u32 v7, v0, 4, s45
    s_lshl_b32 s47, s38, 10
    s_waitcnt lgkmcnt(0)
    """)
    a.srd(rW, 4, D*F*2)
    a.srd_off(rX, 10, OFF_X1, SZ_ACT)
    a.srd_off(rH, 10, OFF_H2, S*F*2)
    a.srd_off(rS, 10, OFF_ST, 9*S*8)
    a.srd_off(rC, 10, OFF_CS3, F*4)
    XF, ACC, WF = 16, 160, 232
    def adv():
        a.e(f"""
        v_add_u32 v6, 8, v6
        v_add_u32 v5, {28*9216+128}, v5
        v_cmp_le_u32 vcc, 18, v6
        v_subrev_u32 v8, 18, v6
        v_add_u32 v9, {9216-288}, v5
        v_cndmask_b32 v6, v6, v8, vcc
        v_cndmask_b32 v5, v5, v9, vcc
        """)
    a.e("s_mov_b32 s49, 0")
    a.e("s_mov_b32 s50, 18432")
    m = 0
    for ks in range(18):
        need = (9*ks + 8) // 8
        while m <= min(need, 18):
            a.e(f"s_add_u32 m0, s47, {m*8192}")
            a.e("s_nop 0")
            a.vmem(f"buffer_load_dwordx4 v5, s[{rW}:{rW+3}], 0 offen lds", f"k{ks}")
            adv()
            m += 1
        a.vmem(f"buffer_load_dwordx4 {vr(XF+ks*8)}, v7, s[{rX}:{rX+3}], s49 offen", f"k{ks}")
        a.vmem(f"buffer_load_dwordx4 {vr(XF+ks*8+4)}, v7, s[{rX}:{rX+3}], s50 offen", f"k{ks}")
        a.e("s_add_u32 s49, s49, 1024")
        a.e("s_add_u32 s50, s50, 1024")
    assert m == 19
    a.e(f"""
    v_lshrrev_b32 v10, 2, v0
    v_mul_u32_u24 v10, 288, v10
    v_and_b32 v11, 3, v0
    v_lshl_add_u32 v10, v11, 3, v10
    v_add_u32 v11, {7*9216}, v10
    v_add_u32 v12, {14*9216}, v10
    """)
    a.stamp(0)
    groups = [[0], [1], [2, 3], [4, 5, 6], [7, 8, 9, 10], [11, 12, 13, 14, 15], [16, 17]]
    seq = []
    fi = 0
    def wread(ks, t, slot):
        sl = ks if ks < 17 else 0
        base = 10 + sl // 7
        off = (sl % 7) * 9216 + t * 32
        a.lds(f"ds_read_b64_tr_b16 {vr(WF+slot*4,2)}, v{base} offset:{off}", (ks, t))
        a.lds(f"ds_read_b64_tr_b16 {vr(WF+slot*4+2,2)}, v{base} offset:{off+16*288}", (ks, t))
    for gi, g in enumerate(groups):
        if g[0] == 16:
            a.wait_vm0()
        else:
            a.wait_vm(f"k{g[-1]}")
        a.e("s_barrier")
        a.stamp(1+gi)
        if gi == 2:
            a.e(f"s_sub_u32 s51, s47, 1024")
            a.e(f"s_cmp_eq_u32 s38, 0")
            a.e(f"s_cselect_b32 m0, {152*1024}, s51")
            a.e("s_nop 0")
            a.vmem(f"buffer_load_dwordx4 v5, s[{rW}:{rW+3}], 0 offen lds", "late")
            adv()
            lab = a.newlabel("k3s")
            a.e(f"s_cmp_ge_u32 s38, 2")
            a.e(f"s_cbranch_scc1 {lab}")
            a.e(f"s_add_u32 m0, s47, {7*1024}")
            a.e("s_nop 0")
            a.e(f"buffer_load_dwordx4 v5, s[{rW}:{rW+3}], 0 offen lds")
            a.label(lab)
        items = [(ks, t) for ks in g for t in range(9)]
        PD = 5
        for j in range(min(PD, len(items))):
            wread(items[j][0], items[j][1], (fi + j) % 6)
        for j, (ks, t) in enumerate(items):
            a.wait_lg((ks, t))
            slot = (fi + j) % 6
            for tt in range(2):
                a.mfma(vr(ACC+(t*2+tt)*4), vr(WF+slot*4), vr(XF+ks*8+tt*4), "0" if ks == 0 else None)
            if j + PD < len(items):
                wread(items[j+PD][0], items[j+PD][1], (fi + j + PD) % 6)
        fi += len(items)
        if g[-1] == 6:
            a.e(f"s_lshl_b32 s45, s43, 4")
            a.e(f"v_add_u32 v13, s45, v2")
            a.e(f"v_lshlrev_b32 v13, 3, v13")
            a.e("s_mov_b32 s46, 0")
            for n in range(9):
                for tt in range(2):
                    a.vmem(f"buffer_load_dwordx2 {vr(16+(tt*9+n)*2,2)}, v13, s[{rS}:{rS+3}], s46 offen offset:{tt*128}", "st")
                a.e(f"s_add_u32 s46, s46, 16384")
        if g[-1] == 10:
            a.e(f"s_mul_i32 s46, s37, 576")
            a.e(f"v_lshlrev_b32 v13, 4, v3")
            for t in range(9):
                a.vmem(f"buffer_load_dwordx4 {vr(52+t*4)}, v13, s[{rC}:{rC+3}], s46 offen offset:{t*64}", "cs")
    a.stamp(8)
    C = 88
    for tt in range(2):
        b = 16 + tt*18
        for n in range(1, 9):
            a.e(f"v_add_f32 v{b}, v{b}, v{b+2*n}")
            a.e(f"v_add_f32 v{b+1}, v{b+1}, v{b+2*n+1}")
        a.ln_consts(b, b+1, C+tt*4, C+tt*4+1, C+tt*4+2, C+tt*4+3, 14)
    a.e(f"""
    s_mul_i32 s45, s43, 147456
    s_lshr_b32 s46, s37, 3
    s_mul_i32 s46, s46, {36*1024}
    s_add_u32 s45, s45, s46
    s_and_b32 s46, s37, 7
    s_lshl_b32 s48, s46, 12
    s_add_u32 s48, s48, s45
    s_add_u32 s49, s48, 147456
    s_lshr_b32 s50, s46, 1
    s_add_u32 s50, s50, 32
    s_lshl_b32 s50, s50, 10
    s_and_b32 s46, s46, 1
    s_lshl_b32 s46, s46, 3
    s_add_u32 s50, s50, s46
    s_add_u32 s50, s50, s45
    s_add_u32 s51, s50, 147456
    v_lshlrev_b32 v13, 4, v0
    """)
    a.stamp(9)
    T = 96; P = 112
    for t in range(9):
        seqs = []
        for tt in range(2):
            for r in range(4):
                acc = ACC + (t*2+tt)*4 + r
                seqs.append([f"v_fma_f32 v{acc}, v{C+tt*4}, v{52+t*4+r}, v{acc}"] +
                            a.gelu_seq(acc, T+tt*4+r, C+tt*4+1, C+tt*4+2, C+tt*4+3))
        for x in interleave(seqs): a.e(x)
        for tt in range(2):
            pp = P + ((t >> 1) & 1)*8 + tt*4 + (t & 1)*2
            a.e(f"v_cvt_pk_bf16_f32 v{pp}, v{T+tt*4}, v{T+tt*4+1}")
            a.e(f"v_cvt_pk_bf16_f32 v{pp+1}, v{T+tt*4+2}, v{T+tt*4+3}")
        for tt in range(2):
            pb = P + ((t >> 1) & 1)*8 + tt*4
            if t & 1:
                a.e(f"buffer_store_dwordx4 {vr(pb)}, v13, s[{rH}:{rH+3}], s{48+tt} offen offset:{(t>>1)*1024}")
            elif t == 8:
                a.e(f"buffer_store_dwordx2 {vr(pb,2)}, v13, s[{rH}:{rH+3}], s{50+tt} offen")
    a.label(done)
    a.pend(int(name[1]))
    a.label(done + "_x")
    a.e("s_endpgm")
    a.end(name, 256, 102)

def k4(a):
    name = "k4_kernel"
    a.launch(name, (256,1,1), 256, 147456)
    a.begin(name)
    a.reset()
    done = "k4_done"
    rW, rH, rP = 16, 20, 24
    a.e(f"s_cmp_ge_u32 s2, 256")
    a.e(f"s_cbranch_scc1 {done}_x")
    a.pstart()
    a.ldarg(4, "w4"); a.ldarg(10, "ws")
    a.e(f"""
    s_and_b32 s40, s2, 7
    s_lshr_b32 s41, s2, 3
    s_lshr_b32 s39, s40, 1
    s_and_b32 s36, s40, 1
    s_lshl_b32 s36, s36, 3
    s_lshr_b32 s42, s41, 2
    s_add_u32 s36, s36, s42
    s_and_b32 s37, s41, 3
    v_lshrrev_b32 v1, 6, v0
    v_and_b32 v0, 63, v0
    v_readfirstlane_b32 s38, v1
    """)
    VO, VL = 8, 17
    for i in range(9):
        a.e(f"""
        v_add_u32 v1, {64*i}, v0
        v_mul_u32_u24 v2, 3641, v1
        v_lshrrev_b32 v2, 16, v2
        v_mul_u32_u24 v3, 18, v2
        v_sub_u32 v3, v1, v3
        v_mul_u32_u24 v1, 1152, v2
        v_lshl_add_u32 v{VO+i}, v3, 4, v1
        v_lshrrev_b32 v2, 4, v2
        v_mul_u32_u24 v2, {128*1152}, v2
        v_add_u32 v{VL+i}, v{VO+i}, v2
        """)
    a.e(f"""
    s_mul_i32 s44, s39, {1152*1152}
    s_mul_i32 s45, s37, 288
    s_add_u32 s44, s44, s45
    s_mul_i32 s45, s38, {32*1152}
    s_add_u32 s46, s44, s45
    s_mul_i32 s45, s38, {288*1152}
    s_add_u32 s47, s44, s45
    s_add_u32 s47, s47, {128*1152}
    s_mul_i32 s48, s38, 9216
    s_lshl_b32 s43, s36, 3
    s_lshl_b32 s45, s38, 1
    s_add_u32 s43, s43, s45
    s_mul_i32 s49, s43, 147456
    s_mul_i32 s45, s39, {36*1024}
    s_add_u32 s49, s49, s45
    s_add_u32 s50, s49, 147456
    v_lshlrev_b32 v1, 4, v0
    v_lshrrev_b32 v4, 2, v0
    v_mul_u32_u24 v4, 288, v4
    v_and_b32 v2, 3, v0
    v_lshl_add_u32 v4, v2, 3, v4
    v_add_u32 v5, {36864}, v4
    v_add_u32 v6, {2*36864}, v4
    v_add_u32 v7, {3*36864}, v4
    s_waitcnt lgkmcnt(0)
    """)
    a.srd(rW, 4, F*D*2)
    a.srd_off(rH, 10, OFF_H2, S*F*2)
    a.srd_off(rP, 10, OFF_PART, 4*S*D*4)
    XF, WF = 28, 124
    NWF = 8
    ar = lambda b: f"a[{b}:{b+3}]"
    def dma(s, i):
        slot = s % 4
        a.e(f"s_add_u32 m0, s48, {slot*36864 + i*1024}")
        a.e("s_nop 0")
        if s < 8:
            a.vmem(f"buffer_load_dwordx4 v{VO+i}, s[{rW}:{rW+3}], s46 offen lds", f"w{s}")
            if i == 8: a.e(f"s_add_u32 s46, s46, {144*1152}")
        else:
            a.vmem(f"buffer_load_dwordx4 v{VL+i}, s[{rW}:{rW+3}], s47 offen lds", f"w{s}")
    def xld(s, j, tt):
        b = XF + (s % 3)*32 + j*8 + tt*4
        a.vmem(f"buffer_load_dwordx4 {vr(b)}, v1, s[{rH}:{rH+3}], s{49+tt} offen offset:{j*1024}", f"x{s}")
        if j == 3: a.e(f"s_add_u32 s{49+tt}, s{49+tt}, 4096")
    for s in range(4):
        for i in range(9): dma(s, i)
        if s < 3:
            for j in range(4):
                for tt in range(2): xld(s, j, tt)
    items = [(s, j, t) for s in range(9) for j in range(4) for t in range(9)]
    def wread(n):
        s, j, t = items[n]
        base = 4 + s % 4
        off = j*9216 + t*32
        r = WF + (n % NWF)*4
        a.lds(f"ds_read_b64_tr_b16 {vr(r,2)}, v{base} offset:{off}", n)
        a.lds(f"ds_read_b64_tr_b16 {vr(r+2,2)}, v{base} offset:{off+16*288}", n)
    PD = 7
    a.stamp(0)
    a.wait_vm("w0")
    a.e("s_barrier")
    a.stamp(1)
    for n in range(PD): wread(n)
    for n, (s, j, t) in enumerate(items):
        if j == 0 and t == 0:
            a.wait_vm_if(f"x{s}")
        a.wait_lg(n)
        r = WF + (n % NWF)*4
        for tt in range(2):
            a.mfma(ar((t*2+tt)*4), vr(r), vr(XF+(s%3)*32+j*8+tt*4), "0" if (s == 0 and j == 0) else None)
        nn = n + PD
        if nn < len(items):
            if items[nn][1] == 0 and items[nn][2] == 0:
                a.wait_vm_if(f"w{s+1}")
                a.e("s_barrier")
                a.stamp(2+s)
            wread(nn)
        idx = j*9 + t
        if s >= 2 and s + 2 <= 8 and idx < 27 and idx % 3 == 0:
            dma(s+2, idx // 3)
        if s >= 1 and s + 2 <= 8 and idx < 24 and idx % 3 == 1:
            q = idx // 3
            xld(s+2, q >> 1, q & 1)
    a.e("s_nop 7")
    a.e("s_nop 1")
    a.stamp(10)
    a.e(f"""
    s_lshl_b32 s44, s39, 7
    s_add_u32 s44, s44, s43
    s_mul_i32 s44, s44, 36
    s_mul_i32 s45, s37, 9
    s_add_u32 s44, s44, s45
    s_lshl_b32 s44, s44, 10
    s_add_u32 s45, s44, {36*1024}
    """)
    for t in range(9):
        for tt in range(2):
            a.e(f"buffer_store_dwordx4 {ar((t*2+tt)*4)}, v1, s[{rP}:{rP+3}], s{44+tt} offen offset:{(t%4)*1024}")
        if t % 4 == 3:
            a.e("s_add_u32 s44, s44, 4096")
            a.e("s_add_u32 s45, s45, 4096")
    a.label(done)
    a.pend(int(name[1]))
    a.label(done + "_x")
    a.e("s_endpgm")
    a.end(name, 160+72, 102, accum=160)

def k5(a):
    name = "k5_kernel"
    a.launch(name, (288,1,1), 256, 0)
    a.begin(name)
    a.reset()
    done = "k5_done"
    rP, rX, rQ, rZ, rG, rO = 16, 20, 24, 28, 32, 44
    a.e(f"s_cmp_ge_u32 s2, 288")
    a.e(f"s_cbranch_scc1 {done}_x")
    a.pstart()
    a.ldarg(4, "q"); a.ldarg(6, "out"); a.ldarg(10, "ws")
    a.e(f"""
    s_mul_i32 s36, s2, 7282
    s_lshr_b32 s36, s36, 16
    s_mul_i32 s37, s36, 9
    s_sub_u32 s37, s2, s37
    v_lshrrev_b32 v1, 6, v0
    v_and_b32 v0, 63, v0
    v_readfirstlane_b32 s38, v1
    v_and_b32 v2, 15, v0
    v_lshrrev_b32 v3, 4, v0
    s_lshl_b32 s39, s36, 2
    s_add_u32 s39, s39, s38
    v_lshlrev_b32 v1, 4, v0
    s_waitcnt lgkmcnt(0)
    """)
    a.srd_off(rP, 10, OFF_PART, 4*S*D*4)
    a.srd_off(rX, 10, OFF_X1, SZ_ACT)
    a.srd_off(rZ, 10, OFF_Z4, SZ_ACT)
    a.srd_off(rG, 10, OFF_G, S*4)
    a.srd(rQ, 4, SZ_ACT)
    a.srd(rO, 6, SZ_ACT)
    a.e(f"""
    s_mul_i32 s40, s39, 36
    s_lshl_b32 s41, s37, 2
    s_add_u32 s40, s40, s41
    s_lshl_b32 s40, s40, 10
    s_mul_i32 s41, s39, 18432
    s_lshl_b32 s42, s37, 11
    s_add_u32 s41, s41, s42
    s_lshl_b32 s42, s39, 4
    v_add_u32 v4, s42, v2
    v_lshlrev_b32 v5, 2, v4
    v_mul_u32_u24 v6, 1152, v4
    v_lshl_add_u32 v6, v3, 3, v6
    s_lshl_b32 s42, s37, 7
    v_lshlrev_b32 v7, 3, v4
    v_lshl_add_u32 v7, v3, 14, v7
    s_lshl_b32 s43, s37, 18
    """)
    PA, X1, Q, Z, G = 16, 80, 88, 96, 104
    a.vmem(f"buffer_load_dword v{G}, v5, s[{rG}:{rG+3}], 0 offen")
    for i in range(2):
        a.vmem(f"buffer_load_dwordx4 {vr(X1+4*i)}, v1, s[{rX}:{rX+3}], s41 offen offset:{i*1024}")
    for i in range(4):
        a.vmem(f"buffer_load_dwordx2 {vr(Q+2*i,2)}, v6, s[{rQ}:{rQ+3}], s42 offen offset:{i*32}")
        a.vmem(f"buffer_load_dwordx2 {vr(Z+2*i,2)}, v7, s[{rZ}:{rZ+3}], s43 offen")
        a.e(f"s_add_u32 s43, s43, 65536")
    for sp in range(4):
        for i in range(4):
            a.vmem(f"buffer_load_dwordx4 {vr(PA+(sp*4+i)*4)}, v1, s[{rP}:{rP+3}], s40 offen offset:{i*1024}")
        a.e(f"s_add_u32 s40, s40, {128*36*1024}")
    a.e("s_waitcnt vmcnt(16)")
    a.e(f"v_sub_f32 v{G+1}, 1.0, v{G}")
    a.bf16r(G+1, G+1)
    T = 108
    GA = 124
    def unpack(d, s):
        a.e(f"v_lshlrev_b32 v{d}, 16, v{s}")
        a.e(f"v_and_b32 v{d+1}, 0xffff0000, v{s}")
        a.e(f"v_lshlrev_b32 v{d+2}, 16, v{s+1}")
        a.e(f"v_and_b32 v{d+3}, 0xffff0000, v{s+1}")
    def rnd4(d, t):
        a.e(f"v_cvt_pk_bf16_f32 v{t}, v{d}, v{d+1}")
        a.e(f"v_cvt_pk_bf16_f32 v{t+1}, v{d+2}, v{d+3}")
        unpack(d, t)
    for i in range(4):
        g = GA + i*4
        unpack(g, Q+2*i)
        unpack(T, Z+2*i)
        for r in range(4): a.e(f"v_mul_f32 v{g+r}, v{g+r}, v{T+r}")
        rnd4(g, T+4)
        for r in range(4): a.e(f"v_mul_f32 v{g+r}, v{G}, v{g+r}")
        rnd4(g, T+4)
    a.e("s_waitcnt vmcnt(0)")
    for i in range(4):
        p = PA + i*4
        for r in range(4):
            a.e(f"v_add_f32 v{p+r}, v{p+r}, v{p+16+r}")
            a.e(f"v_add_f32 v{p+32+r}, v{p+32+r}, v{p+48+r}")
        for r in range(4):
            a.e(f"v_add_f32 v{p+r}, v{p+r}, v{p+32+r}")
        rnd4(p, T+4)
        unpack(T, X1+2*i)
        for r in range(4): a.e(f"v_add_f32 v{p+r}, v{p+r}, v{T+r}")
        rnd4(p, T+4)
        for r in range(4): a.e(f"v_mul_f32 v{p+r}, v{G+1}, v{p+r}")
        rnd4(p, T+4)
        for r in range(4): a.e(f"v_add_f32 v{p+r}, v{p+r}, v{GA+i*4+r}")
        o = 140 + 2*i
        a.e(f"v_cvt_pk_bf16_f32 v{o}, v{p}, v{p+1}")
        a.e(f"v_cvt_pk_bf16_f32 v{o+1}, v{p+2}, v{p+3}")
        a.e(f"buffer_store_dwordx2 {vr(o,2)}, v6, s[{rO}:{rO+3}], s42 offen offset:{i*32}")
    a.label(done)
    a.pend(int(name[1]))
    a.label(done + "_x")
    a.e("s_endpgm")
    a.end(name, 148, 102)

def k1(a):
    name = "k1_kernel"
    a.launch(name, (360,1,1), 256, 77824)
    a.begin(name)
    done = "k1_done"
    a.e(f"""
    s_cmp_ge_u32 s2, 360
    s_cbranch_scc1 {done}_x
    """)
    a.pstart()
    a.e(f"""
    s_cmp_ge_u32 s2, 288
    s_cbranch_scc1 k1_cs
    s_cmp_ge_u32 s2, 144
    s_cbranch_scc1 k1_prep
    s_mov_b32 s3, s2
    """)
    small_gemm(a, 1, done)
    a.label("k1_prep")
    a.e("s_sub_u32 s3, s2, 144")
    prep(a, done)
    a.label("k1_cs")
    a.e("s_sub_u32 s3, s2, 288")
    colsum3(a, done)
    a.label(done)
    a.pend(int(name[1]))
    a.label(done + "_x")
    a.e("s_endpgm")
    a.end(name, 256, 102)

def k2(a):
    name = "k2_kernel"
    a.launch(name, (288,1,1), 256, 73728)
    a.begin(name)
    done = "k2_done"
    a.e(f"""
    s_cmp_ge_u32 s2, 288
    s_cbranch_scc1 {done}_x
    """)
    a.pstart()
    a.e(f"""
    s_cmp_ge_u32 s2, 144
    s_cbranch_scc1 k2_conv
    s_mov_b32 s3, s2
    """)
    small_gemm(a, 2, done)
    a.label("k2_conv")
    a.e("s_sub_u32 s3, s2, 144")
    conv(a, done)
    a.label(done)
    a.pend(int(name[1]))
    a.label(done + "_x")
    a.e("s_endpgm")
    a.end(name, 256, 102)

HEADER = """; gated_mix__ssm_conv_h3__mixer_s_mlp__prompt : generated by dev/gen.py (hand-written generator)
; kernarg: q,k,v,shift_k,ssm_k,ssm_D,B_x,w1,w2,w3,w4,gate_w,out,debug,ws (8 bytes each)"""

def build(path, prof=False):
    a = K()
    a.prof = prof
    k1(a); k2(a); k3(a); k4(a); k5(a)
    open(path, "w").write(a.text(HEADER))

if __name__ == "__main__":
    build("gated_mix__ssm_conv_h3__mixer_s_mlp__prompt.s")
    build("prof.s", prof=True)
```

```python
from gen import *
from k34 import OFF_FLAG, FL, flag_bytes
SC = dict(hs='', ur='', x1='', z='')

URP = 4096

def tile_decode(a, sTM, sTN):
    a.e(f"""
    s_and_b32 s40, s3, 7
    s_lshr_b32 s41, s3, 3
    s_cmp_ge_u32 s41, 9
    s_cselect_b32 s42, 1, 0
    s_lshl_b32 s{sTM}, s40, 1
    s_add_u32 s{sTM}, s{sTM}, s42
    s_mul_i32 s42, s42, 9
    s_sub_u32 s{sTN}, s41, s42
    """)

def gemm1(a, done, ntx="", ntw="", rot=1, NW0=5, NX0=2):
    a.reset()
    rW, rA, rO, rQ, rS = 16, 20, 24, 28, 32
    sTM, sTN, sWV, sTG, sNH = 36, 37, 38, 39, 55
    NX = 5
    LX = 73728; LST = LX + NX*16384
    LON = LST + 3072; LCS = LON + 1152; LCO = 160256
    a.ldarg(4, "w1"); a.ldarg(12, "q"); a.ldarg(8, "ws"); a.ldarg(10, "gw")
    tile_decode(a, sTM, sTN)
    a.e(f"""
    v_lshrrev_b32 v1, 6, v0
    s_lshl_b32 s43, s{sTM}, 7
    v_readfirstlane_b32 s{sWV}, v1
    v_and_b32 v0, 63, v0
    s_nop 0
    s_cmp_ge_u32 s{sWV}, 4
    s_cbranch_scc1 g1_comp
    """)
    a.e(f"""
    v_lshrrev_b32 v10, 3, v0
    v_and_b32 v11, 7, v0
    v_lshrrev_b32 v12, 1, v10
    v_xor_b32 v13, v11, v12
    v_mul_u32_u24 v4, 1152, v10
    v_xor_b32 v14, 4, v13
    v_lshl_add_u32 v5, v14, 4, v4
    v_lshl_add_u32 v4, v13, 4, v4
    v_add_u32 v5, {8*1152 - 1024}, v5
    s_and_b32 s44, s{sTM}, 1
    s_lshl_b32 s44, s44, 2
    s_add_u32 s44, s44, s{sTN}
    s_cmp_ge_u32 s44, 9
    s_cselect_b32 s45, 9, 0
    s_sub_u32 s44, s44, s45
    s_mul_i32 s44, s44, {rot}
    s_lshl_b32 s58, s44, 7
    s_mov_b32 s60, s58
    s_mul_i32 s59, s44, {64*1152}
    s_lshl_b32 s44, s{sWV}, 5
    s_add_u32 s44, s44, s43
    s_mul_i32 s46, s44, 1152
    s_lshl_b32 s48, s{sWV}, 12
    s_add_u32 s48, s48, {LX}
    s_waitcnt lgkmcnt(0)
    """)
    a.srd(rQ, 12, SZ_ACT)
    def xdma(p):
        a.e(f"s_add_u32 m0, s48, {(p % NX)*16384}")
        a.e(f"s_add_u32 s50, s46, s58")
        a.vmem(f"buffer_load_dwordx4 v4, s[{rQ}:{rQ+3}], s50 offen {ntx} lds", p)
        a.vmem(f"buffer_load_dwordx4 v5, s[{rQ}:{rQ+3}], s50 offen offset:1024 {ntx} lds", p)
        a.e(f"s_add_u32 s50, s50, {16*1152 - 2048}")
        a.vmem(f"buffer_load_dwordx4 v4, s[{rQ}:{rQ+3}], s50 offen offset:2048 {ntx} lds", p)
        a.vmem(f"buffer_load_dwordx4 v5, s[{rQ}:{rQ+3}], s50 offen offset:3072 {ntx} lds", p)
        a.e(f"s_add_u32 s58, s58, 128")
        a.e(f"s_cmp_eq_u32 s58, 1152")
        a.e(f"s_cselect_b32 s58, 0, s58")
    def wdma(p):
        a.e(f"s_add_u32 m0, s49, {p*8192}")
        a.e(f"s_add_u32 s50, s47, s59")
        a.vmem(f"buffer_load_dwordx4 v6, s[{rW}:{rW+3}], s50 offen {ntw} lds", p)
        a.vmem(f"buffer_load_dwordx4 v7, s[{rW}:{rW+3}], s50 offen offset:1024 {ntw} lds", p)
        a.e(f"s_add_u32 s59, s59, {64*1152}")
        a.e(f"s_cmp_eq_u32 s59, {576*1152}")
        a.e(f"s_cselect_b32 s59, 0, s59")
    xdma(0)
    a.stamp(11)
    a.srd(rW, 4, D*D*2)
    a.e(f"""
    v_and_b32 v12, 6, v10
    v_xor_b32 v13, v11, v12
    v_and_b32 v12, 4, v10
    v_lshlrev_b32 v12, 1, v12
    v_and_b32 v14, 3, v10
    v_add_u32 v12, v12, v14
    v_mul_u32_u24 v6, 1152, v12
    v_lshl_add_u32 v6, v13, 4, v6
    v_add_u32 v7, {16*1152 - 1024}, v6
    s_lshr_b32 s44, s{sWV}, 1
    s_mul_i32 s47, s44, {32*1152}
    s_and_b32 s44, s{sWV}, 1
    s_mul_i32 s44, s44, {4*1152}
    s_add_u32 s47, s47, s44
    s_lshl_b32 s44, s{sTN}, 7
    s_add_u32 s47, s47, s44
    s_lshl_b32 s49, s{sWV}, 11
    """)
    wdma(0)
    a.srd(rA, 10, D*2)
    a.e(f"""
    s_min_u32 s44, s{sWV}, 2
    s_lshl_b32 s44, s44, 10
    s_add_u32 m0, s44, {LST}
    v_lshl_add_u32 v15, v0, 4, s44
    v_add_u32 v13, s60, v15
    v_subrev_u32 v12, 1152, v13
    v_cmp_le_u32 vcc, 1152, v13
    s_nop 1
    v_cndmask_b32 v13, v13, v12, vcc
    v_cmp_le_u32 vcc, 1152, v15
    s_nop 1
    v_cndmask_b32 v15, v13, v15, vcc
    """)
    a.vmem(f"buffer_load_dwordx4 v15, s[{rA}:{rA+3}], 0 offen lds", 0)
    seq = [("w", p) for p in range(1, NW0)] + [("x", p) for p in range(1, NX0)]
    nx, nw = NX0, NW0
    while nx < 9 or nw < 9:
        if nx < 9 and (nw >= 9 or nx <= nw): seq.append(("x", nx)); nx += 1
        else: seq.append(("w", nw)); nw += 1
    b = 0
    AHEAD = 14
    def certify():
        nonlocal b
        a.wait_vm_if(b)
        if b == 0: a.stamp(12)
        a.e("s_barrier")
        b += 1
    issued = {("x", 0), ("w", 0)}
    for (kd, q) in seq:
        while kd == "x" and q >= NX and b < q - NX + 3: certify()
        while b < 9 and ("x", b) in issued and ("w", b) in issued and b in a.vm and len(a.vm) - 1 - max(i for i, t in enumerate(a.vm) if t == b) >= AHEAD: certify()
        xdma(q) if kd == "x" else wdma(q)
        issued.add((kd, q))
    while b < 9: certify()
    a.e(f"s_branch {done}")
    a.label("g1_comp")
    a.reset()
    FBs = [32, 72]
    ACC, ST, CS, ONE, SQ = 112, 128, 132, 136, 140
    a.e(f"""
    s_sub_u32 s{sWV}, s{sWV}, 4
    v_and_b32 v2, 15, v0
    v_lshrrev_b32 v3, 4, v0
    s_lshr_b32 s{sTG}, s{sWV}, 1
    s_and_b32 s{sNH}, s{sWV}, 1
    s_lshl_b32 s44, s{sWV}, 10
    v_lshl_add_u32 v14, v0, 4, s44
    v_mov_b32 v{ONE}, 0x3f803f80
    v_mov_b32 v{ONE+1}, 0x3f803f80
    v_mov_b32 v{ONE+2}, 0x3f803f80
    v_mov_b32 v{ONE+3}, 0x3f803f80
    v_cmp_gt_u32 vcc, 1152, v14
    v_add_u32 v14, {LON}, v14
    s_and_saveexec_b64 s[56:57], vcc
    ds_write_b128 v14, {vr(ONE)}
    s_mov_b64 exec, s[56:57]
    v_lshrrev_b32 v10, 2, v0
    v_lshlrev_b32 v10, 7, v10
    v_and_b32 v11, 3, v0
    v_lshl_add_u32 v10, v11, 3, v10
    v_bfe_u32 v11, v0, 3, 2
    s_lshl_b32 s44, s{sNH}, 1
    s_and_b32 s45, s{sTG}, 1
    s_add_u32 s54, s44, s45
    v_xor_b32 v11, s54, v11
    v_lshl_add_u32 v16, v11, 5, v10
    v_xor_b32 v11, 1, v11
    v_lshl_add_u32 v17, v11, 5, v10
    v_add_u32 v18, 0x8000, v16
    v_add_u32 v19, 0x8000, v17
    v_lshrrev_b32 v11, 1, v2
    v_xor_b32 v11, v3, v11
    v_lshlrev_b32 v10, 7, v2
    v_lshl_add_u32 v20, v11, 4, v10
    v_xor_b32 v21, 64, v20
    s_lshl_b32 s44, s{sTG}, 12
    s_lshl_b32 s45, s{sNH}, 11
    s_add_u32 s44, s44, {LX}
    s_add_u32 s51, s44, s45
    s_xor_b32 s45, s45, 2048
    s_add_u32 s52, s44, s45
    v_add_u32 v22, s52, v20
    v_add_u32 v23, s52, v21
    v_add_u32 v20, s51, v20
    v_add_u32 v21, s51, v21
    """)
    for kk in range(4): a.e(f"v_add_u32 v{24+kk}, 0x10000, v{20+kk}")
    a.e(f"""
    v_and_b32 v11, 3, v0
    v_mov_b32 v28, {LST+1280}
    v_mov_b32 v10, {LON}
    v_cmp_eq_u32 vcc, 0, v11
    s_nop 1
    v_cndmask_b32 v28, v28, v10, vcc
    v_mov_b32 v10, {LST}
    v_cmp_eq_u32 vcc, 1, v11
    s_nop 1
    v_cndmask_b32 v28, v28, v10, vcc
    v_lshl_add_u32 v28, v3, 4, v28
    """)
    MK = [8, 9, 30, 31]
    for j in range(2):
        a.e(f"""
        s_xor_b32 s45, s54, {j}
        s_lshl_b32 s46, s{sTN}, 2
        s_add_u32 s45, s45, s46
        s_mul_i32 s46, s45, 57
        s_lshr_b32 s46, s46, 9
        s_lshr_b32 s47, s46, 1
        s_add_u32 s47, s47, 1
        s_sub_u32 s44, 0, s47
        s_bitcmp1_b32 s46, 0
        s_cselect_b32 s47, s44, s47
        s_add_u32 s47, s47, s43
        s_lshl_b32 s44, s{sWV}, 4
        s_add_u32 s50, s47, s44
        s_xor_b32 s44, s44, 16
        s_add_u32 s51, s47, s44
        s_lshr_b32 s44, s45, 1
        s_lshl_b32 s44, s44, 10
        s_and_b32 s45, s45, 1
        s_lshl_b32 s45, s45, 3
        s_add_u32 s{48+j}, s44, s45
        """)
        for tt in range(2):
            ad = 4 + j*2 + tt
            a.e(f"""
            v_add_u32 v{ad}, s{50+tt}, v2
            v_cmp_gt_u32 vcc, {S}, v{ad}
            v_and_b32 v{ad}, {S-1}, v{ad}
            v_lshrrev_b32 v10, 4, v{ad}
            v_mul_u32_u24 v10, 18432, v10
            v_cndmask_b32 v{MK[j*2+tt]}, 0, -1, vcc
            v_and_b32 v{ad}, 15, v{ad}
            v_lshl_add_u32 v{ad}, v3, 4, v{ad}
            v_lshl_add_u32 v{ad}, v{ad}, 4, v10
            """)
    a.e(f"""
    s_lshl_b32 s44, s{sWV}, 8
    s_add_u32 s44, s44, {LCO}
    v_lshl_add_u32 v12, v2, 4, s44
    s_lshl_b32 s45, s54, 6
    s_add_u32 s45, s45, {LCS}
    v_lshl_add_u32 v13, v3, 4, s45
    v_lshlrev_b32 v10, 2, v3
    v_sub_u32 v10, v2, v10
    v_cmp_eq_u32 s[58:59], 0, v10
    v_cmp_eq_u32 s[60:61], 1, v10
    v_cmp_eq_u32 s[62:63], 2, v10
    v_cmp_eq_u32 s[52:53], 3, v10
    v_cmp_eq_u32 s[56:57], 0, v2
    s_waitcnt lgkmcnt(0)
    """)
    a.srd_off(rO, 8, OFF_HS, SZ_ACT)
    a.srd_off(rS, 8, OFF_G, S*4)
    a.stamp(0)
    def reads(p):
        fb = FBs[p & 1]; out = []
        for h in range(2):
            sl = p % NX
            for tt in range(2):
                bb = (20 if sl < 4 else 24) + tt*2 + h
                out.append((f"ds_read_b128 {vr(fb+16+h*8+tt*4)}, v{bb} offset:{(sl & 3)*16384}", (p, h)))
            off = p*8192 + h*4096
            wb = 16 if off < 0x8000 else 18
            if off >= 0x8000: off -= 0x8000
            for j in range(2):
                out.append((f"ds_read_b64_tr_b16 {vr(fb+h*8+j*4,2)}, v{wb+j} offset:{off}", (p, h)))
                out.append((f"ds_read_b64_tr_b16 {vr(fb+h*8+j*4+2,2)}, v{wb+j} offset:{off+2048}", (p, h)))
            out.append((f"ds_read_b128 {vr(fb+32+h*4)}, v28 offset:{(2*p+h)*64}", (p, h)))
        return out
    a.e("s_barrier")
    a.stamp(13)
    for (s, t) in reads(0): a.lds(s, t)
    for p in range(9):
        if p < 8:
            a.e("s_barrier")
            if p in (0, 4): a.stamp(1+p)
        rd = reads(p+1) if p < 8 else []
        fb = FBs[p & 1]
        for h in range(2):
            first = (p == 0 and h == 0)
            mm = []
            if p == 8 and h == 1:
                mm.append((vr(SQ), vr(fb+16+h*8), vr(fb+16+h*8)))
                mm.append((vr(ST), vr(fb+32+h*4), vr(fb+16+h*8)))
                mm.append((vr(CS), vr(fb+h*8), vr(ONE)))
            for j in range(2):
                for tt in range(2):
                    mm.append((vr(ACC+(j*2+tt)*4), vr(fb+h*8+j*4), vr(fb+16+h*8+tt*4)))
            if len(mm) == 4:
                mm.append((vr(CS), vr(fb+h*8), vr(ONE)))
                mm.append((vr(ST), vr(fb+32+h*4), vr(fb+16+h*8)))
                mm.append((vr(SQ), vr(fb+16+h*8), vr(fb+16+h*8)))
            for n, m in enumerate(mm):
                if n == 0: a.wait_lg_if((p, h))
                a.mfma(m[0], m[1], m[2], "0" if first else None)
                if rd: a.lds(*rd.pop(0))
        assert not rd
    a.stamp(9)
    C = 72
    a.e(f"""
    s_nop 3
    v_cndmask_b32 v11, 0, v{SQ}, s[58:59]
    v_cndmask_b32 v11, v11, v{SQ+1}, s[60:61]
    v_cndmask_b32 v11, v11, v{SQ+2}, s[62:63]
    v_cndmask_b32 v{SQ}, v11, v{SQ+3}, s[52:53]
    s_mov_b64 exec, s[56:57]
    ds_write_b128 v13, {vr(CS)}
    s_mov_b64 exec, -1
    """)
    a.xsum4(SQ, 10)
    a.e(f"v_mov_b32 v29, v{ST+1}")
    a.ln_consts(ST, SQ, C, C+1, C+2, C+3, 10)
    a.e(f"""
    s_mov_b64 exec, 0xffff
    ds_write_b128 v12, {vr(C)}
    s_mov_b64 exec, -1
    v_xor_b32 v12, 256, v12
    v_xor_b32 v13, 64, v13
    """)
    T = 48
    CSR = [CS, ONE]
    def quad(j, tt):
        return [[f"v_fma_f32 v{ACC+(j*2+tt)*4+r}, v{C+tt*4}, v{CSR[j]+r}, v{ACC+(j*2+tt)*4+r}"] +
                a.gelu_seq(ACC+(j*2+tt)*4+r, T+(j*2+tt)*4+r, C+tt*4+1, C+tt*4+2, C+tt*4+3) for r in range(4)]
    def stq(j, tt):
        q = j*2 + tt; P = 64 + q*2; t = T + q*4
        a.e(f"v_cvt_pk_bf16_f32 v{P}, v{t}, v{t+1}")
        a.e(f"v_cvt_pk_bf16_f32 v{P+1}, v{t+2}, v{t+3}")
        a.e(f"v_and_b32 v{P}, v{P}, v{MK[q]}")
        a.e(f"v_and_b32 v{P+1}, v{P+1}, v{MK[q]}")
        a.e(f"buffer_store_dwordx2 {vr(P,2)}, v{4+q}, s[{rO}:{rO+3}], s{48+j} offen {SC['hs']}")
    a.e("s_waitcnt lgkmcnt(0)")
    a.e("s_barrier")
    a.e(f"ds_read_b128 {vr(C+4)}, v12")
    a.e(f"ds_read_b128 {vr(ONE)}, v13")
    a.stamp(6)
    for x in interleave(quad(0, 0)): a.e(x)
    stq(0, 0)
    a.e("s_waitcnt lgkmcnt(0)")
    for x in interleave(quad(0, 1) + quad(1, 0) + quad(1, 1)): a.e(x)
    stq(0, 1); stq(1, 0); stq(1, 1)
    a.stamp(7)
    a.e(f"s_cmp_lg_u32 s{sTN}, 0")
    a.e(f"s_cbranch_scc1 {done}")
    a.bf16r(29, 29)
    a.e(f"v_mul_f32 v29, {hex(f2u(-1.4426950408889634))}, v29")
    a.e(f"v_exp_f32 v29, v29")
    a.e("s_nop 0")
    a.e(f"v_add_f32 v29, 1.0, v29")
    a.e(f"v_rcp_f32 v29, v29")
    a.e("s_nop 0")
    a.bf16r(29, 29)
    a.e(f"s_lshl_b32 s44, s{sWV}, 4")
    a.e(f"s_add_u32 s44, s44, s43")
    a.e(f"v_add_lshl_u32 v10, s44, v2, 2")
    a.e("s_mov_b64 exec, 0xffff")
    a.e(f"buffer_store_dword v29, v10, s[{rS}:{rS+3}], 0 offen")
    a.e("s_mov_b64 exec, -1")
    a.e(f"s_branch {done}")
    return LCO + 2048

def prep8(a, done, nt="", cpf=4, nxt=0):
    a.reset()
    rK, rV, rSH, rU = 16, 20, 24, 28
    a.ldarg(4, "k"); a.ldarg(6, "v"); a.ldarg(8, "shk"); a.ldarg(10, "ws")
    a.e(f"""
    v_lshrrev_b32 v1, 6, v0
    v_and_b32 v0, 63, v0
    v_readfirstlane_b32 s38, v1
    v_and_b32 v2, 15, v0
    v_lshrrev_b32 v3, 4, v0
    s_mul_i32 s37, s3, 7282
    s_lshr_b32 s37, s37, 16
    s_mul_i32 s39, s37, 9
    s_sub_u32 s39, s3, s39
    s_lshl_b32 s37, s37, 3
    s_add_u32 s37, s37, s38
    s_lshl_b32 s40, s37, 5
    v_lshl_add_u32 v4, v3, 3, s40
    s_lshl_b32 s41, s39, 6
    v_lshl_add_u32 v5, v2, 2, s41
    v_mul_u32_u24 v6, 1152, v4
    v_lshl_add_u32 v7, v5, 1, v6
    v_subrev_u32 v6, 4608, v7
    v_add_u32 v8, 4608, v7
    v_lshlrev_b32 v9, 3, v5
    s_waitcnt lgkmcnt(0)
    """)
    a.srd(rK, 4, SZ_ACT); a.srd(rV, 6, SZ_ACT); a.srd(rSH, 8, D*8)
    a.srd_off(rU, 10, OFF_UR, D*URP)
    KR, VR, WR = 16, 40, 60
    for r in range(1, 12):
        a.vmem(f"buffer_load_dwordx2 {vr(KR+2*r,2)}, v{6+r//4}, s[{rK}:{rK+3}], 0 offen offset:{(r%4)*1152} {nt if r >= 9 or True else ''}")
    for r in range(8):
        rr = r + 4
        a.vmem(f"buffer_load_dwordx2 {vr(VR+2*r,2)}, v{6+rr//4}, s[{rV}:{rV+3}], 0 offen offset:{(rr%4)*1152} {nt}")
    a.vmem(f"buffer_load_dwordx4 {vr(WR)}, v9, s[{rSH}:{rSH+3}], 0 offen")
    a.vmem(f"buffer_load_dwordx4 {vr(WR+4)}, v9, s[{rSH}:{rSH+3}], 0 offen offset:16", "own")
    if nxt:
        a.ldarg(52, "ssmk"); a.ldarg(54, "w2")
        a.e(f"""
        s_lshr_b32 s48, s3, 3
        s_lshl_b32 s48, s48, 3
        s_add_u32 s48, s48, s38
        v_lshlrev_b32 v12, 7, v0
        s_lshr_b32 s49, s48, 1
        s_lshl_b32 s49, s49, 3
        s_and_b32 s50, s3, 7
        s_add_u32 s49, s49, s50
        s_lshl_b32 s49, s49, 14
        s_and_b32 s50, s48, 1
        s_lshl_b32 s50, s50, 13
        s_add_u32 s49, s49, s50
        s_lshl_b32 s50, s48, 13
        s_add_u32 s51, s50, {72*8192}
        s_waitcnt lgkmcnt(0)
        """)
        a.srd(56, 52, D*S*2)
        a.srd(60, 54, D*D*2)
        if nxt & 1: a.vmem("buffer_load_dword v13, v12, s[56:59], s49 offen", "pf")
        if nxt & 2:
            a.vmem("buffer_load_dword v13, v12, s[60:63], s50 offen", "pf")
            a.vmem("buffer_load_dword v13, v12, s[60:63], s51 offen", "pf")
    if cpf:
        a.e("s_lshr_b32 s48, s3, 3")
        a.e("s_lshl_b32 s48, s48, 3")
        a.e("s_add_u32 s48, s48, s38")
        a.code_pf("k2_kernel", 48, cpf, 50, 49, f"(k3_kernel-k2_kernel)/{cpf*64}")
    a.e(f"""
    v_mul_u32_u24 v10, {URP}, v5
    v_sub_u32 v11, 2040, v4
    v_lshl_add_u32 v10, v11, 1, v10
    s_mov_b32 s42, 0
    """)
    a.wait_vm("own")
    KF, WFl, U, VF, P = 72, 84, 88, 100, 112
    for ch in range(4):
        un = (lambda d, s: f"v_lshlrev_b32 v{d}, 16, v{s}") if ch % 2 == 0 else (lambda d, s: f"v_and_b32 v{d}, 0xffff0000, v{s}")
        for r in range(1, 12): a.e(un(KF+r, KR+2*r+ch//2))
        for r in range(8): a.e(un(VF+r, VR+2*r+ch//2))
        a.e(f"v_lshlrev_b32 v{WFl}, 16, v{WR+2*ch}")
        a.e(f"v_and_b32 v{WFl+1}, 0xffff0000, v{WR+2*ch}")
        a.e(f"v_lshlrev_b32 v{WFl+2}, 16, v{WR+2*ch+1}")
        a.e(f"v_and_b32 v{WFl+3}, 0xffff0000, v{WR+2*ch+1}")
        for e in range(8): a.e(f"v_mul_f32 v{U+e}, v{KF+e+1}, v{WFl+3}")
        for j in (2, 1, 0):
            for e in range(8): a.e(f"v_fma_f32 v{U+e}, v{KF+e+4-j}, v{WFl+j}, v{U+e}")
        for e in range(8): a.e(f"v_mul_f32 v{U+e}, v{U+e}, v{VF+e}")
        PP = P + ch*4
        for m in range(4):
            a.e(f"v_cvt_pk_bf16_f32 v{PP+m}, v{U+7-2*m}, v{U+6-2*m}")
        a.e(f"buffer_store_dwordx4 {vr(PP)}, v10, s[{rU}:{rU+3}], s42 offen {SC['ur']}")
        a.e(f"s_add_u32 s42, s42, {URP}")
    a.e(f"s_branch {done}")

def colsum8(a, done, win=18):
    a.reset()
    rW, rC = 16, 20
    a.ldarg(4, "w3"); a.ldarg(10, "ws")
    a.e(f"""
    v_lshrrev_b32 v1, 4, v0
    v_and_b32 v2, 15, v0
    v_mul_u32_u24 v3, 9216, v1
    v_lshl_add_u32 v3, v2, 4, v3
    s_lshl_b32 s36, s3, 8
    s_waitcnt lgkmcnt(0)
    """)
    a.srd(rW, 4, D*F*2)
    a.srd_off(rC, 10, OFF_CS3, F*4)
    def cld(i):
        a.vmem(f"buffer_load_dwordx4 {vr(16+4*i)}, v3, s[{rW}:{rW+3}], s36 offen", i)
        a.e(f"s_add_u32 s36, s36, {32*9216}")
    for i in range(win): cld(i)
    a.srd_off(24, 10, OFF_FLAG, flag_bytes())
    a.e(f"""
    v_mov_b32 v88, 0
    s_lshl_b32 s37, s3, 9
    v_add_u32 v92, s37, v0
    v_and_b32 v89, 7, v92
    v_lshrrev_b32 v92, 3, v92
    v_lshlrev_b32 v92, {FL['FG']}, v92
    v_lshl_add_u32 v92, v89, {FL['FS']}, v92
    """)
    a.vmem("buffer_store_dword v88, v92, s[24:27], 0 offen", "z")
    for i in range(18):
        a.wait_vm(i)
        if i + win < 18: cld(i + win)
        for r in range(4):
            x = 16+4*i+r
            if i == 0:
                a.e(f"v_lshlrev_b32 v{8+2*r}, 16, v{x}")
                a.e(f"v_and_b32 v{9+2*r}, 0xffff0000, v{x}")
            else:
                a.e(f"v_lshlrev_b32 v4, 16, v{x}")
                a.e(f"v_and_b32 v5, 0xffff0000, v{x}")
                a.e(f"v_add_f32 v{8+2*r}, v{8+2*r}, v4")
                a.e(f"v_add_f32 v{9+2*r}, v{9+2*r}, v5")
    a.e(f"""
    v_lshlrev_b32 v4, 5, v0
    ds_write_b128 v4, v[8:11]
    ds_write_b128 v4, v[12:15] offset:16
    s_waitcnt lgkmcnt(0)
    s_barrier
    v_cmp_gt_u32 vcc, 128, v0
    s_and_saveexec_b64 s[52:53], vcc
    s_cbranch_execz {done}
    v_lshlrev_b32 v4, 2, v0
    """)
    for q in range(4):
        for r in range(8):
            a.e(f"ds_read_b32 v{16+q*8+r}, v4 offset:{(q*8+r)*512}")
        a.e("s_waitcnt lgkmcnt(0)")
    for r in range(1, 32): a.e(f"v_add_f32 v16, v16, v{16+r}")
    a.e(f"s_lshl_b32 s36, s3, 9")
    a.e(f"buffer_store_dword v16, v4, s[{rC}:{rC+3}], s36 offen")
    a.e(f"s_branch {done}")

def helper_pf(a, wname, xsrc_ws):
    a.ldarg(4, wname); a.ldarg(6, "q")
    a.e(f"""
    v_lshrrev_b32 v1, 6, v0
    v_and_b32 v2, 63, v0
    v_readfirstlane_b32 s38, v1
    v_lshlrev_b32 v2, 7, v2
    s_sub_u32 s36, s2, 144
    s_lshr_b32 s36, s36, 3
    s_lshl_b32 s36, s36, 3
    s_add_u32 s36, s36, s38
    s_and_b32 s37, s2, 7
    s_mul_i32 s37, s37, {256*1152}
    s_lshl_b32 s39, s36, 13
    s_sub_u32 s40, s36, 81
    s_add_u32 s41, s36, 23
    s_cmp_ge_u32 s36, 81
    s_cselect_b32 s40, s40, s41
    s_min_u32 s40, s40, 35
    s_lshl_b32 s40, s40, 13
    s_add_u32 s40, s40, s37
    s_waitcnt lgkmcnt(0)
    """)
    a.srd(16, 4, D*D*2)
    a.srd(20, 6, SZ_ACT)
    a.e(f"""
    buffer_load_dword v3, v2, s[16:19], s39 offen
    s_sub_u32 s41, s36, 13
    s_cmp_lt_u32 s41, 68
    s_cbranch_scc1 hpf_skip
    buffer_load_dword v4, v2, s[20:23], s40 offen
    hpf_skip:
    s_waitcnt vmcnt(0)
    """)

def tlb_touch(a, sh):
    lst = [("ws", OFF_PART + 32*3*24*8*1024), ("w2", D*D*2), ("w3", D*F*2), ("w4", D*F*2), ("ssmk", D*S*2), ("out", SZ_ACT), ("ssmD", D*2), ("k", SZ_ACT), ("v", SZ_ACT)]
    for i, (n, sz) in enumerate(lst): a.ldarg(24 + 2*i, n)
    a.e(f"v_lshlrev_b32 v5, {sh}, v0")
    a.e("s_waitcnt lgkmcnt(0)")
    for i, (n, sz) in enumerate(lst):
        a.srd(44 + 4*(i % 2), 24 + 2*i, sz)
        a.e(f"buffer_load_dword v6, v5, s[{44+4*(i%2)}:{47+4*(i%2)}], 0 offen")

def k1(a, ntx="", ntw="", ntkv="", win=18, cpf=4, hpf=True, tlb=0, nxt=0, cs=True, **kw):
    NWG = 252 if cs else 216
    name = "k1_kernel"
    a.begin(name)
    done = "k1_done"
    a.e(f"""
    s_cmp_ge_u32 s2, {NWG}
    s_cbranch_scc1 {done}_x
    """)
    a.pstart()
    a.e(f"""
    s_cmp_ge_u32 s2, 144
    s_cbranch_scc1 k1_help
    s_mov_b32 s3, s2
    """)
    lds = gemm1(a, done, ntx, ntw, **kw)
    a.launch(name, (NWG,1,1), 768, lds)
    a.label("k1_help")
    a.e("v_readfirstlane_b32 s4, v0")
    a.e("s_nop 0")
    a.e("s_cmp_ge_u32 s4, 512")
    a.e(f"s_cbranch_scc1 {done}_x")
    if tlb: tlb_touch(a, tlb)
    if hpf: helper_pf(a, "w1", False)
    a.e("s_cmp_ge_u32 s2, 216")
    a.e("s_cbranch_scc1 k1_cs")
    a.e("s_sub_u32 s3, s2, 144")
    prep8(a, done, ntkv, cpf, nxt)
    a.label("k1_cs")
    a.e("s_sub_u32 s3, s2, 216")
    colsum8(a, done, win)
    a.label(done)
    a.pend(1)
    a.label(done + "_x")
    a.e("s_endpgm")
    a.end(name, 144, 102)


def gemm2(a, done, LA=17, rot=1, NW0=9, gp=2):
    a.reset()
    rW, rA, rO, rQ, rS = 16, 20, 24, 28, 32
    sTM, sTN, sWV = 36, 37, 38
    a.ldarg(4, "w2"); a.ldarg(12, "q"); a.ldarg(8, "ws")
    tile_decode(a, sTM, sTN)
    a.e(f"""
    v_lshrrev_b32 v1, 6, v0
    v_and_b32 v0, 63, v0
    v_readfirstlane_b32 s{sWV}, v1
    v_and_b32 v2, 15, v0
    v_lshrrev_b32 v3, 4, v0
    v_lshlrev_b32 v4, 4, v0
    v_lshrrev_b32 v10, 3, v0
    v_and_b32 v11, 7, v0
    v_and_b32 v12, 6, v10
    v_xor_b32 v12, v11, v12
    v_mul_u32_u24 v13, 1152, v10
    v_lshl_add_u32 v5, v12, 4, v13
    s_lshl_b32 s43, s{sTM}, 7
    s_lshl_b32 s44, s{sWV}, 5
    s_add_u32 s43, s43, s44
    s_lshr_b32 s45, s43, 4
    s_mul_i32 s49, s45, 18432
    s_add_u32 s50, s49, 18432
    s_mul_i32 s48, s{sWV}, {8*1152}
    s_lshl_b32 s45, s{sTN}, 7
    s_add_u32 s48, s48, s45
    s_lshl_b32 s47, s{sWV}, 10
    s_waitcnt lgkmcnt(0)
    """)
    a.e(f"s_setprio {gp}")
    a.srd(rW, 4, D*D*2)
    a.srd_off(rA, 8, OFF_HS, SZ_ACT)
    XF, ACC, WF = 16, 160, 192
    a.e(f"""
    s_and_b32 s44, s{sTM}, 1
    s_lshl_b32 s44, s44, 2
    s_add_u32 s44, s44, s{sTN}
    s_cmp_ge_u32 s44, 9
    s_cselect_b32 s46, 9, 0
    s_sub_u32 s44, s44, s46
    s_mul_i32 s44, s44, {rot}
    s_lshl_b32 s58, s44, 11
    s_mul_i32 s59, s44, {64*1152}
    """)
    def wis(ks):
        return (f"s_add_u32 m0, s47, {ks*4096}\ns_add_u32 s51, s48, s59\nbuffer_load_dwordx4 v5, s[{rW}:{rW+3}], s51 offen lds\n"
                f"s_add_u32 s59, s59, {32*1152}\ns_cmp_eq_u32 s59, {576*1152}\ns_cselect_b32 s59, 0, s59", ks)
    def xis(ks):
        return [(f"s_add_u32 s51, s49, s58\nbuffer_load_dwordx4 {vr(XF+ks*8)}, v4, s[{rA}:{rA+3}], s51 offen", ks),
                (f"s_add_u32 s51, s50, s58\nbuffer_load_dwordx4 {vr(XF+ks*8+4)}, v4, s[{rA}:{rA+3}], s51 offen\n"
                 f"s_add_u32 s58, s58, 1024\ns_cmp_eq_u32 s58, 18432\ns_cselect_b32 s58, 0, s58", ks)]
    order = []
    for ks in range(2): order += xis(ks) + [wis(ks)]
    for ks in range(2, NW0): order.append(wis(ks))
    for ks in range(2, 18):
        order += xis(ks)
        if ks - 2 + NW0 < 18: order.append(wis(ks - 2 + NW0))
    for _ in range(LA): a.vmem(*order.pop(0))
    a.srd(rQ, 12, SZ_ACT)
    a.srd_off(rO, 8, OFF_X1, SZ_ACT)
    a.srd_off(rS, 8, OFF_ST, 9*S*8)
    vTR = 6
    a.e(f"""
    v_lshrrev_b32 v14, 2, v0
    v_lshlrev_b32 v14, 7, v14
    v_and_b32 v15, 3, v0
    v_lshl_add_u32 v14, v15, 3, v14
    v_bfe_u32 v15, v0, 3, 2
    """)
    for i in range(4):
        a.e(f"v_xor_b32 v12, {i}, v15")
        a.e(f"v_lshl_add_u32 v{vTR+i}, v12, 5, v14")
        a.e(f"v_add_u32 v{224+i}, 0x8000, v{vTR+i}")
    a.e(f"""
    v_xor_b32 v12, v11, v10
    v_lshl_add_u32 v228, v12, 4, v13
    s_mul_i32 s52, s43, 1152
    s_add_u32 s52, s52, s45
    s_lshl_b32 s53, s{sWV}, 12
    """)
    def xres():
        out = []
        for g in range(4):
            out.append((f"s_add_u32 m0, s53, {g*1024}\ns_add_u32 s51, s52, {g*8*1152}\nbuffer_load_dwordx4 v228, s[{rQ}:{rQ+3}], s51 offen lds", "xr"))
        return out
    def reads(ks):
        buf = WF + (ks & 1)*16
        off = ks*4096; b = vTR
        if off >= 0x8000: off -= 0x8000; b = 224
        out = []
        for i in range(4):
            out.append((f"ds_read_b64_tr_b16 {vr(buf+i*4,2)}, v{b+i} offset:{off}", (ks, i)))
            out.append((f"ds_read_b64_tr_b16 {vr(buf+i*4+2,2)}, v{b+i} offset:{off+2048}", (ks, i)))
        return out
    a.stamp(0)
    a.wait_vm(0)
    a.e("s_barrier")
    for x in reads(0): a.lds(*x)
    for ks in range(18):
        if ks < 17:
            assert all(t != ks+1 for _, t in order)
            a.wait_vm_if(ks+1)
            a.e("s_barrier")
        if ks % 9 == 0: a.stamp(1 + ks//3)
        if ks == 5: order += xres()
        vm = [order.pop(0) for _ in range(min(4, len(order)))]
        rd = reads(ks+1) if ks < 17 else []
        buf = WF + (ks & 1)*16
        for i in range(4):
            if i % 2 == 0: a.wait_lg_if((ks, i+1))
            for tt in range(2):
                a.mfma(vr(ACC+tt*16+i*4), vr(buf+i*4), vr(XF+ks*8+tt*4), "0" if ks == 0 else None)
                if rd: a.lds(*rd.pop(0))
            if vm: a.vmem(*vm.pop(0))
        assert not vm and not rd
    a.stamp(8)
    a.wait_vm0()
    a.e(f"""
    v_lshrrev_b32 v12, 1, v3
    v_and_b32 v13, 7, v2
    v_xor_b32 v12, v12, v13
    v_lshlrev_b32 v13, 7, v2
    v_lshl_add_u32 v13, v12, 4, v13
    v_and_b32 v12, 1, v3
    v_lshl_add_u32 v13, v12, 3, v13
    v_add_u32 v13, s53, v13
    """)
    XR = 192
    for i in range(4):
        a.e(f"v_xor_b32 v{6+i}, {32*i}, v13")
    for tt in range(2):
        for i in range(4):
            a.e(f"ds_read_b64 {vr(XR+(tt*4+i)*2,2)}, v{6+i} offset:{tt*2048}")
    a.e(f"""
    s_lshr_b32 s45, s43, 4
    s_mul_i32 s45, s45, 18432
    s_lshl_b32 s46, s{sTN}, 11
    s_add_u32 s45, s45, s46
    s_add_u32 s46, s45, 18432
    v_add_u32 v14, s43, v2
    v_lshlrev_b32 v15, 3, v14
    s_lshl_b32 s47, s{sTN}, 14
    """)
    T = 16
    for tt in range(2):
        for i in range(4):
            acc = ACC + tt*16 + i*4; t = T + (tt*4+i)*2
            a.e(f"v_cvt_pk_bf16_f32 v{t}, v{acc}, v{acc+1}")
            a.e(f"v_cvt_pk_bf16_f32 v{t+1}, v{acc+2}, v{acc+3}")
    for tt in range(2):
        for i in range(4):
            acc = ACC + tt*16 + i*4; t = T + (tt*4+i)*2
            a.e(f"v_lshlrev_b32 v{acc}, 16, v{t}")
            a.e(f"v_and_b32 v{acc+1}, 0xffff0000, v{t}")
            a.e(f"v_lshlrev_b32 v{acc+2}, 16, v{t+1}")
            a.e(f"v_and_b32 v{acc+3}, 0xffff0000, v{t+1}")
    a.e("s_waitcnt lgkmcnt(0)")
    a.e("v_mov_b32 v100, 0x3f803f80")
    for tt in range(2):
        for i in range(4):
            acc = ACC + tt*16 + i*4; xr = XR + (tt*4+i)*2; t = 32 + i*4; P = 64 + tt*8 + i*2
            a.e(f"v_lshlrev_b32 v{t}, 16, v{xr}")
            a.e(f"v_and_b32 v{t+1}, 0xffff0000, v{xr}")
            a.e(f"v_lshlrev_b32 v{t+2}, 16, v{xr+1}")
            a.e(f"v_and_b32 v{t+3}, 0xffff0000, v{xr+1}")
            for r in range(4): a.e(f"v_add_f32 v{acc+r}, v{acc+r}, v{t+r}")
            a.e(f"v_cvt_pk_bf16_f32 v{P}, v{acc}, v{acc+1}")
            a.e(f"v_cvt_pk_bf16_f32 v{P+1}, v{acc+2}, v{acc+3}")
        P = 64 + tt*8
        a.e(f"buffer_store_dwordx4 {vr(P)}, v4, s[{rO}:{rO+3}], s{45+tt} offen {SC['x1']}")
        a.e(f"buffer_store_dwordx4 {vr(P+4)}, v4, s[{rO}:{rO+3}], s{45+tt} offen offset:1024 {SC['x1']}")
    for tt in range(2):
        a.e(f"v_mov_b32 v{80+tt*2}, 0")
        a.e(f"v_mov_b32 v{81+tt*2}, 0")
    for k in range(8):
        for tt in range(2):
            P = 64 + tt*8 + k
            a.e(f"v_dot2c_f32_bf16 v{80+tt*2}, v{P}, v100")
            a.e(f"v_dot2c_f32_bf16 v{81+tt*2}, v{P}, v{P}")
    a.e("s_nop 2")
    for sw in ("32", "16"):
        for k in range(4): a.e(f"v_mov_b32 v{84+k}, v{80+k}")
        a.e("s_nop 0")
        for k in range(4): a.e(f"v_permlane{sw}_swap_b32 v{80+k}, v{84+k}")
        a.e("s_nop 0")
        for k in range(4): a.e(f"v_add_f32 v{80+k}, v{80+k}, v{84+k}")
    a.e("s_mov_b64 exec, 0xffff")
    for tt in range(2):
        a.e(f"buffer_store_dwordx2 {vr(80+tt*2,2)}, v15, s[{rS}:{rS+3}], s47 offen offset:{tt*128}")
    a.e("s_mov_b64 exec, -1")
    a.e(f"s_branch {done}")

def conv2(a, done, nt="", cp=0, cpf=8):
    a.reset()
    rU, rH, rZ = 16, 20, 24
    RS = 13120
    a.ldarg(4, "ssmk"); a.ldarg(6, "ssmD"); a.ldarg(10, "ws")
    a.e(f"""
    v_lshrrev_b32 v1, 6, v0
    v_and_b32 v0, 63, v0
    v_readfirstlane_b32 s38, v1
    v_and_b32 v2, 15, v0
    v_lshrrev_b32 v3, 4, v0
    s_lshl_b32 s36, s3, 2
    s_add_u32 s36, s36, s38
    s_mul_i32 s39, s38, {RS}
    s_lshl_b32 s40, s3, 3
    v_lshlrev_b32 v4, 4, v0
    s_mul_i32 s41, s36, {URP}
    s_lshl_b32 s42, s36, 12
    s_add_u32 s43, s41, 2
    s_waitcnt lgkmcnt(0)
    s_load_dwordx2 s[44:45], s[6:7], s40
    """)
    a.e("s_setprio 3")
    a.srd(rH, 4, D*S*2)
    a.srd_off(rU, 10, OFF_UR, D*URP + 16)
    a.e(f"s_add_u32 m0, s39, {8320+512}")
    a.e("s_nop 0")
    for i in range(4):
        a.vmem(f"buffer_load_dwordx4 v4, s[{rH}:{rH+3}], s42 offen offset:{i*1024} {nt} lds")
    a.e("s_mov_b32 m0, s39")
    a.e("s_nop 0")
    for i in range(4):
        a.vmem(f"buffer_load_dwordx4 v4, s[{rU}:{rU+3}], s41 offen offset:{i*1024} lds")
    a.e(f"s_add_u32 m0, s39, 4160")
    a.e("s_nop 0")
    for i in range(4):
        a.vmem(f"buffer_load_dwordx4 v4, s[{rU}:{rU+3}], s43 offen offset:{i*1024} lds")
    a.srd_off(rZ, 10, OFF_Z4, SZ_ACT)
    if cpf:
        a.e("s_lshr_b32 s48, s3, 3")
        a.e("s_lshl_b32 s48, s48, 2")
        a.e("s_add_u32 s48, s48, s38")
        a.code_pf("k3_kernel", 48, cpf, 50, 49, f"(k3_end-k3_kernel)/{cpf*64}")
    a.e(f"""
    v_mov_b32 v8, 0
    v_mov_b32 v9, 0
    v_mov_b32 v10, 0
    v_mov_b32 v11, 0
    v_add_u32 v5, s39, v4
    s_mov_b32 exec_hi, 0xf
    ds_write_b128 v5, v[8:11] offset:8256
    s_mov_b64 exec, 0xf
    ds_write_b128 v5, v[8:11] offset:4096
    s_mov_b64 exec, -1
    v_or_b32 v5, 1, v2
    v_sub_u32 v5, 15, v5
    v_lshl_add_u32 v5, v3, 3, v5
    v_lshlrev_b32 v5, 1, v5
    v_and_b32 v6, 1, v2
    v_xor_b32 v6, 1, v6
    v_mul_u32_u24 v6, 4160, v6
    v_add3_u32 v12, v5, v6, s39
    v_add_u32 v13, 1024, v12
    v_add_u32 v14, 2048, v12
    v_add_u32 v15, 3072, v12
    v_lshlrev_b32 v5, 5, v2
    v_lshl_add_u32 v5, v3, 4, v5
    v_add_u32 v7, s39, v5
    v_add_u32 v7, {8320+32}, v7
    v_mov_b32 v5, s39
    """)
    a.stamp(0)
    a.e("s_waitcnt vmcnt(0) lgkmcnt(0)"); a.reset()
    a.e("s_mov_b64 exec, 1")
    a.e(f"ds_write_b16 v5, v8 offset:{4160+4094}")
    a.e("s_mov_b64 exec, -1")
    a.e(f"s_setprio {cp}")
    a.stamp(1)
    ACC = 16; FB = 48
    def loads(rho):
        buf = FB + (rho & 1) * 64
        out = []
        for x in range(8):
            p = 8*x + rho
            boff = 64*(63-p)
            base = 12 + boff // 1024
            o = (boff % 1024) // 4
            out.append((f"ds_read2_b32 {vr(buf+x*4,2)}, v{base} offset0:{o} offset1:{o+1}", (rho, x)))
            out.append((f"ds_read2_b32 {vr(buf+x*4+2,2)}, v{base} offset0:{o+2} offset1:{o+3}", (rho, x)))
            n = 8*x - rho
            out.append((f"ds_read_b128 {vr(buf+32+x*4)}, v7 offset:{64*(n+7)}", (rho, x)))
        return out
    q = loads(0)
    for _ in range(12): a.lds(*q.pop(0))
    for rho in range(8):
        buf = FB + (rho & 1) * 64
        if rho < 7: q += loads(rho+1)
        for c in range(8):
            while any(t == (rho, c) for _, t in q): a.lds(*q.pop(0))
            a.wait_lg_if((rho, c))
            for x in range(c+1):
                first = (rho == 0 and x == 0)
                a.mfma(vr(ACC+c*4), vr(buf+x*4), vr(buf+32+(c-x)*4), "0" if first else None)
                if q and len(a.lg) < 14: a.lds(*q.pop(0))
                elif q and len(a.lg) >= 14 and (x % 2 == 1):
                    a.e("s_waitcnt lgkmcnt(8)"); a.lg = a.lg[-8:]
                    a.lds(*q.pop(0))
    assert not q
    a.stamp(2)
    a.e(f"""
    v_lshlrev_b32 v5, 5, v2
    v_lshl_add_u32 v5, v3, 3, v5
    v_sub_u32 v6, 504, v5
    v_add_u32 v6, s39, v6
    v_add_u32 v5, s39, v5
    s_lshr_b32 s46, s38, 1
    s_cmp_eq_u32 s46, 0
    s_cselect_b32 s44, s44, s45
    s_bitcmp1_b32 s38, 0
    s_cselect_b32 s46, 0, 16
    s_lshl_b32 s44, s44, s46
    s_and_b32 s44, s44, 0xffff0000
    """)
    U = 48
    for c in range(8):
        a.e(f"ds_read_b64 {vr(U+2*c,2)}, v6 offset:{512*(7-c)}")
    a.e("s_waitcnt lgkmcnt(0)")
    for c in range(8):
        acc = ACC + c*4; t = 64 + c*4
        a.e(f"v_and_b32 v{t}, 0xffff0000, v{U+2*c+1}")
        a.e(f"v_lshlrev_b32 v{t+1}, 16, v{U+2*c+1}")
        a.e(f"v_and_b32 v{t+2}, 0xffff0000, v{U+2*c}")
        a.e(f"v_lshlrev_b32 v{t+3}, 16, v{U+2*c}")
        for r in range(4): a.e(f"v_fma_f32 v{t+r}, v{t+r}, s44, v{acc+r}")
        a.e(f"v_cvt_pk_bf16_f32 v{t}, v{t}, v{t+1}")
        a.e(f"v_cvt_pk_bf16_f32 v{t+1}, v{t+2}, v{t+3}")
        a.e(f"ds_write_b64 v5, {vr(t,2)} offset:{8320+512*c}")
    a.e(f"""
    v_bfe_u32 v5, v0, 2, 2
    v_mul_u32_u24 v5, {RS}, v5
    v_lshl_add_u32 v5, v3, 5, v5
    v_and_b32 v6, 3, v0
    v_lshl_add_u32 v5, v6, 3, v5
    s_lshl_b32 s46, s38, 10
    v_add_u32 v5, s46, v5
    v_lshlrev_b32 v6, 3, v0
    s_lshl_b32 s47, s3, 14
    s_lshl_b32 s46, s38, 12
    s_add_u32 s47, s47, s46
    s_waitcnt lgkmcnt(0)
    s_barrier
    """)
    a.reset()
    for j in range(8):
        a.lds(f"ds_read_b64_tr_b16 {vr(16+2*j,2)}, v5 offset:{8320+128*j}", j)
    for j in range(8):
        a.wait_lg(j)
        a.e(f"buffer_store_dwordx2 {vr(16+2*j,2)}, v6, s[{rZ}:{rZ+3}], s47 offen offset:{512*j} {SC['z']}")
    a.e(f"s_branch {done}")

def k2(a, nth="", cp=0, cpf=8, cs=None, **kw):
    name = "k2_kernel"
    n = 360 if cs else 288
    a.launch(name, (n,1,1), 256, 73728)
    a.begin(name)
    done = "k2_done"
    a.e(f"""
    s_cmp_ge_u32 s2, {n}
    s_cbranch_scc1 {done}_x
    """)
    a.pstart()
    a.e(f"""
    s_cmp_lt_u32 s2, 144
    s_cbranch_scc1 k2_conv
    """)
    if cs:
        a.e("s_cmp_ge_u32 s2, 288")
        a.e("s_cbranch_scc1 k2_cs")
    a.e("s_sub_u32 s3, s2, 144")
    gemm2(a, done, **kw)
    if cs:
        a.label("k2_cs")
        a.e("s_sub_u32 s3, s2, 288")
        colsum4(a, done, cs)
    a.label("k2_conv")
    a.e("s_mov_b32 s3, s2")
    conv2(a, done, nth, cp, cpf)
    a.label(done)
    a.pend(2)
    a.label(done + "_x")
    a.e("s_endpgm")
    a.end(name, 232, 102)

def colsum4(a, done, win=3):
    a.reset()
    rW, rC = 16, 20
    a.ldarg(4, "w3"); a.ldarg(10, "ws")
    a.e(f"""
    v_lshrrev_b32 v1, 3, v0
    v_and_b32 v2, 7, v0
    v_mul_u32_u24 v3, 9216, v1
    v_lshl_add_u32 v3, v2, 4, v3
    s_lshl_b32 s36, s3, 7
    s_waitcnt lgkmcnt(0)
    """)
    a.srd(rW, 4, D*F*2)
    a.srd_off(rC, 10, OFF_CS3, F*4)
    def cld(i):
        a.vmem(f"buffer_load_dwordx4 {vr(16+4*i)}, v3, s[{rW}:{rW+3}], s36 offen", i)
        a.e(f"s_add_u32 s36, s36, {32*9216}")
    wl = list(win) if isinstance(win, (list, tuple)) else [win]
    n = [0]
    def fill(lim):
        while n[0] < min(lim, 18):
            cld(n[0]); n[0] += 1
    fill(wl[0])
    a.srd_off(24, 10, OFF_FLAG, flag_bytes())
    a.e(f"""
    v_mov_b32 v88, 0
    s_lshl_b32 s37, s3, 8
    v_add_u32 v92, s37, v0
    v_and_b32 v89, 7, v92
    v_lshrrev_b32 v92, 3, v92
    v_lshlrev_b32 v92, {FL['FG']}, v92
    v_lshl_add_u32 v92, v89, {FL['FS']}, v92
    """)
    a.vmem("buffer_store_dword v88, v92, s[24:27], 0 offen", "z")
    for i in range(18):
        a.wait_vm(i)
        fill(i + 1 + wl[min(i+1, len(wl)-1)])
        for r in range(4):
            x = 16+4*i+r
            if i == 0:
                a.e(f"v_lshlrev_b32 v{8+2*r}, 16, v{x}")
                a.e(f"v_and_b32 v{9+2*r}, 0xffff0000, v{x}")
            else:
                a.e(f"v_lshlrev_b32 v4, 16, v{x}")
                a.e(f"v_and_b32 v5, 0xffff0000, v{x}")
                a.e(f"v_add_f32 v{8+2*r}, v{8+2*r}, v4")
                a.e(f"v_add_f32 v{9+2*r}, v{9+2*r}, v5")
    a.e(f"""
    v_lshlrev_b32 v4, 5, v0
    ds_write_b128 v4, v[8:11]
    ds_write_b128 v4, v[12:15] offset:16
    s_waitcnt lgkmcnt(0)
    s_barrier
    v_cmp_gt_u32 vcc, 64, v0
    s_and_saveexec_b64 s[52:53], vcc
    s_cbranch_execz {done}
    v_lshlrev_b32 v4, 2, v0
    """)
    for q in range(4):
        for r in range(8):
            a.e(f"ds_read_b32 v{16+q*8+r}, v4 offset:{(q*8+r)*256}")
        a.e("s_waitcnt lgkmcnt(0)")
    for r in range(1, 32): a.e(f"v_add_f32 v16, v16, v{16+r}")
    a.e(f"s_lshl_b32 s36, s3, 8")
    a.e(f"buffer_store_dword v16, v4, s[{rC}:{rC+3}], s36 offen")
    a.e(f"s_branch {done}")


def helper2(a, done):
    a.ldarg(4, "w1"); a.ldarg(6, "q")
    a.e(f"""
    v_lshrrev_b32 v1, 6, v0
    v_and_b32 v2, 63, v0
    v_readfirstlane_b32 s38, v1
    v_lshlrev_b32 v2, 7, v2
    s_sub_u32 s36, s2, 216
    s_lshr_b32 s36, s36, 3
    s_mul_i32 s36, s36, 12
    s_add_u32 s36, s36, s38
    s_and_b32 s37, s2, 7
    s_mul_i32 s37, s37, {256*1152}
    s_lshl_b32 s39, s36, 13
    s_sub_u32 s40, s36, 24
    s_lshl_b32 s40, s40, 13
    s_add_u32 s40, s40, s37
    s_add_u32 s41, s39, {60*8192}
    s_waitcnt lgkmcnt(0)
    """)
    a.srd(16, 4, D*D*2)
    a.srd(20, 6, SZ_ACT)
    a.e(f"""
    buffer_load_dword v3, v2, s[16:19], s39 offen
    s_cmp_lt_u32 s36, 24
    s_cbranch_scc1 hp2_w
    buffer_load_dword v4, v2, s[20:23], s40 offen
    s_branch {done}
    hp2_w:
    buffer_load_dword v4, v2, s[16:19], s41 offen
    s_branch {done}
    """)

def k1b(a, ntkv="", cpf=4, help=True, **kw):
    name = "k1_kernel"
    NWG = 256 if help else 216
    a.begin(name)
    done = "k1_done"
    a.e(f"""
    s_cmp_ge_u32 s2, {NWG}
    s_cbranch_scc1 {done}_x
    """)
    a.pstart()
    a.e(f"""
    s_cmp_ge_u32 s2, 144
    s_cbranch_scc1 k1_help
    s_mov_b32 s3, s2
    """)
    lds = gemm1(a, done, **kw)
    a.launch(name, (NWG,1,1), 768, lds)
    a.label("k1_help")
    a.e("s_cmp_lt_u32 s2, 216")
    a.e("s_cbranch_scc1 k1_prep")
    helper2(a, done)
    a.label("k1_prep")
    a.e("v_readfirstlane_b32 s4, v0")
    a.e("s_nop 0")
    a.e("s_cmp_ge_u32 s4, 512")
    a.e(f"s_cbranch_scc1 {done}_x")
    a.e("s_sub_u32 s3, s2, 144")
    prep8(a, done, ntkv, cpf, 0)
    a.label(done)
    a.pend(1)
    a.label(done + "_x")
    a.e("s_endpgm")
    a.end(name, 144, 102)
```

```python
from gen import *

OFF_FLAG = 0x2000000
FL = dict(FG=5, FS=2)
def flag_bytes(): return 384 << FL['FG']
RING = 73728
SLOT = 12288
NSLOT = 7
L_CS = RING + NSLOT*SLOT
L_CONST = L_CS + 3072

def k34(a, nt_w="", nogelu=False, nored=False, mapB=True, xtile0=False, LA=6, trace=False, spf=1, st0=1, st1=0, dr0=5, dr1=5, p0=15, l0=21, bo=4, hv=1, ldp=1, cw=3, sc="sc1", free_at=12, p1=9, a2=24, spn=27, pro=6, skip=(40, 41, 52, 53, 63, 67), d2=40, lspf=0, lx2=0, g0w=42, g1n=17, ext=False, wb=False):
    name = "k3_kernel"
    a.launch(name, (256,1,1), 1024, L_CONST + 1024)
    a.begin(name)
    a.reset()
    done = "k3_done"
    a.e(f"s_cmp_ge_u32 s2, 256")
    a.e(f"s_cbranch_scc1 {done}_x")
    a.pstart()
    rW3, rW4, rX, rS, rP, rF, rQ, rZ, rG, rO = 16, 20, 24, 28, 32, 36, 40, 44, 48, 52
    sSP, sTL, sG, sI, sBASE, sRET, sBUD = 56, 57, 58, 59, 60, 61, 3
    a.ldarg(4, "w3"); a.ldarg(6, "w4"); a.ldarg(8, "q"); a.ldarg(10, "ws"); a.ldarg(12, "out")
    if mapB:
        a.e(f"""
        s_and_b32 s14, s2, 3
        s_lshl_b32 s14, s14, 1
        s_bfe_u32 s15, s2, 0x10003
        s_add_u32 s{sSP}, s14, s15
        s_bfe_u32 s14, s2, 0x10002
        s_lshl_b32 s14, s14, 4
        s_lshr_b32 s15, s2, 4
        s_add_u32 s{sTL}, s14, s15
        """)
    else:
        a.e(f"""
        s_and_b32 s{sSP}, s2, 7
        s_lshr_b32 s{sTL}, s2, 3
        """)
    if xtile0: a.e(f"s_mov_b32 s{sTL}, 0")
    a.e(f"""
    v_lshrrev_b32 v1, 6, v0
    v_and_b32 v0, 63, v0
    v_readfirstlane_b32 s14, v1
    s_mov_b32 s{sBUD}, 0x4000
    s_lshr_b32 s15, s14, 2
    s_lshl_b32 s15, s15, 1
    s_lshr_b32 s{sG}, 0x4b, s15
    s_and_b32 s{sG}, s{sG}, 3
    s_and_b32 s{sI}, s14, 3
    v_and_b32 v9, 15, v0
    v_lshrrev_b32 v10, 4, v0
    v_lshlrev_b32 v7, 4, v0
    v_mov_b32 v2, 0
    v_mov_b32 v3, 0
    v_mov_b32 v11, 0
    s_cmp_lg_u32 s{sG}, 3
    s_cbranch_scc1 k3_comp
    """)
    cut = len(a.lines)
    a.label("k3_comp")
    def late_srds():
        a.srd_off(rP, 10, OFF_PART, 32*3*6*4*8*1024)
        a.srd_off(rF, 10, OFF_FLAG, flag_bytes())
        a.srd(rQ, 8, SZ_ACT)
        a.srd_off(rZ, 10, OFF_Z4, SZ_ACT)
        a.srd_off(rG, 10, OFF_G, S*4)
        a.srd(rO, 12, SZ_ACT)
    FB = [16, 44]; ACC = 72
    VA = [120, 121, 122, 123, 124, 125, 126]
    a.e(f"""
    v_add_u32 v8, 0x10000, v7
    v_lshrrev_b32 v5, 2, v0
    v_mul_u32_u24 v5, 384, v5
    v_and_b32 v4, 3, v0
    v_lshl_add_u32 v5, v4, 3, v5
    v_add_u32 v5, {RING}, v5
    v_bfe_u32 v4, v0, 3, 2
    v_xor_b32 v4, s{sI}, v4
    v_lshl_add_u32 v1, v4, 5, v5
    s_mov_b32 s{sRET}, 0
    s_waitcnt lgkmcnt(0)
    """)
    a.srd_off(rS, 10, OFF_ST, 9*S*8)
    ST = 72
    a.e(f"""
    s_cmp_lg_u32 s{sG}, 2
    s_cbranch_scc1 k3_ns
    s_lshl_b32 s14, s{sTL}, 2
    s_add_u32 s14, s14, s{sI}
    s_lshl_b32 s14, s14, 4
    v_add_u32 v13, s14, v9
    v_lshlrev_b32 v13, 3, v13
    v_lshl_add_u32 v13, v10, 14, v13
    s_mov_b32 s14, 0x10000
    s_mov_b32 s15, 0x20000
    buffer_load_dwordx2 {vr(ST,2)}, v13, s[{rS}:{rS+3}], 0 offen
    buffer_load_dwordx2 {vr(ST+2,2)}, v13, s[{rS}:{rS+3}], s14 offen
    buffer_load_dwordx2 {vr(ST+4,2)}, v13, s[{rS}:{rS+3}], s15 offen
    k3_ns:
    """)
    a.srd_off(rX, 10, OFF_X1, SZ_ACT)
    late_srds()
    a.e(f"""
    s_mul_i32 s14, s{sSP}, {576*1152}
    s_mul_i32 s15, s{sTL}, {18*1152}
    s_add_u32 s14, s14, s15
    s_lshl_b32 s15, s{sI}, 6
    s_add_u32 s14, s14, s15
    s_add_u32 s16, s6, s14
    s_addc_u32 s17, s7, 0
    """)
    grp = sorted(range(81), key=lambda g: min(((g*256 + k*64) % 1152) // 384 for k in range(4)))
    def spf_ticks(t_end, per, lst):
        while T[0] < t_end:
            for _ in range(per):
                if lst: a.e(f"s_load_dword s2, s[16:17], {lst.pop(0)*256}")
            bar()
    T = [0]
    LIM = [10**9]
    def bar(n=1):
        n = min(n, LIM[0] - T[0])
        for _ in range(n): a.e("s_barrier")
        T[0] += n
    def upto(t):
        assert t >= T[0], (t, T[0])
        bar(t - T[0])
    def set_va(base):
        for j in range(7):
            a.e(f"v_add_u32 v{VA[j]}, {((base + j) % NSLOT)*SLOT}, v1")
    a.e(f"s_cmp_eq_u32 s{sG}, 1")
    a.e(f"s_cbranch_scc1 k3_g1")
    a.e(f"s_cmp_eq_u32 s{sG}, 0")
    a.e(f"s_cbranch_scc1 k3_g0")
    T[0] = -2
    a.reset()
    set_va(36)
    upto(cw)
    a.e("s_waitcnt vmcnt(0)")
    for n in (1, 2):
        a.e(f"v_add_f32 v{ST}, v{ST}, v{ST+2*n}")
        a.e(f"v_add_f32 v{ST+1}, v{ST+1}, v{ST+2*n+1}")
    a.xsum4(ST, 14); a.xsum4(ST+1, 14)
    bar()
    a.ln_consts(ST, ST+1, 80, 81, 82, 83, 14)
    a.e(f"s_lshl_b32 s14, s{sI}, 8")
    a.e(f"s_add_u32 s14, s14, {L_CONST}")
    a.e(f"v_lshl_add_u32 v13, v9, 4, s14")
    bar()
    a.e("s_mov_b64 exec, 0xffff")
    a.e(f"ds_write_b128 v13, v[80:83]")
    a.e("s_mov_b64 exec, -1")
    bar(2)
    a.e("s_waitcnt lgkmcnt(0)")
    l2 = grp[spn:] if spf else []
    spf_ticks(26, spf, l2)
    assert not l2, len(l2)
    upto(35)
    a.e("s_branch k3_body")
    a.label("k3_g1")
    T[0] = -2
    set_va(18)
    upto(0)
    l1 = grp[:spn] if spf else []
    spf_ticks(9, spf, l1)
    assert not l1
    upto(17)
    a.e("s_branch k3_body")
    a.label("k3_g0")
    set_va(0)
    a.e("s_barrier")
    a.label("k3_body")
    a.reset()
    def reads(k):
        fb = FB[k & 1]
        out = []
        va = VA[k % 7]
        for tt in range(4):
            off = k*4096 + tt*1024
            base = 7 if off < 65536 else 8
            out.append((f"ds_read_b128 {vr(fb+tt*4)}, v{base} offset:{off & 65535}", (k, "x")))
        for j in range(3):
            out.append((f"ds_read_b64_tr_b16 {vr(fb+16+j*4,2)}, v{va} offset:{128*j}", (k, j)))
            out.append((f"ds_read_b64_tr_b16 {vr(fb+16+j*4+2,2)}, v{va} offset:{128*j+6144}", (k, j)))
        return out
    a.e("s_setprio 2")
    for (s, t) in reads(0): a.lds(s, t)
    a.e("s_barrier")
    def tick(k, barrier=True):
        fb = FB[k & 1]
        rd = reads(k+1) if k < 17 else []
        ri = 0
        for m in range(12):
            j, tt = m // 4, m % 4
            if tt == 0: a.wait_lg_if((k, j))
            a.mfma(vr(ACC+(j*4+tt)*4), vr(fb+16+j*4), vr(fb+tt*4), "0" if k == 0 else None)
            if ri < len(rd):
                a.lds(*rd[ri]); ri += 1
            if k == free_at and m == 10 and barrier: a.e(f"s_cmp_eq_u32 s{sRET}, 2")
        if k > free_at:
            a.e(f"s_cbranch_scc1 k3_nb{k}")
        a.e("s_barrier")
        if k > free_at: a.label(f"k3_nb{k}")
    for k in range(18): tick(k)
    a.e("s_setprio 0")
    a.e(f"s_cmp_ge_u32 s{sRET}, 1")
    a.e(f"s_cbranch_scc1 k3_red")
    CO, CSR, TMP = 16, 32, 44
    a.e(f"""
    s_mul_i32 s14, s{sG}, 12
    s_add_u32 s14, s14, s{sI}
    s_lshl_b32 s62, s14, 6
    s_add_u32 s62, s62, {L_CS}
    v_lshl_add_u32 v4, v10, 4, s62
    v_lshlrev_b32 v3, 4, v9
    v_add_u32 v3, {L_CONST}, v3
    """)
    for tt in range(4): a.e(f"ds_read_b128 {vr(CO+tt*4)}, v3 offset:{tt*256}")
    for jj in range(3): a.e(f"ds_read_b128 {vr(CSR+jj*4)}, v4 offset:{jj*256}")
    a.e(f"""
    s_mul_i32 s14, s{sG}, 6
    s_add_u32 s15, s14, s{sI}
    s_lshl_b32 s15, s15, 12
    v_add_u32 v5, s15, v7
    s_lshr_b32 s15, s{sI}, 1
    s_add_u32 s15, s15, s14
    s_add_u32 s15, s15, 4
    s_lshl_b32 s15, s15, 12
    s_and_b32 s14, s{sI}, 1
    s_lshl_b32 s14, s14, 3
    s_add_u32 s15, s15, s14
    v_add_u32 v6, s15, v7
    s_mov_b32 s{sRET}, 1
    s_cmp_eq_u32 s{sG}, 1
    s_cbranch_scc1 k3_ge1
    s_cmp_eq_u32 s{sG}, 2
    s_cbranch_scc1 k3_ge2
    """)
    def gelu_ins(jjs):
        out = []
        for jj in jjs:
            for half in range(2):
                seqs = []
                for r in range(8):
                    tt = half*2 + r // 4
                    x, t = ACC + jj*16 + half*8 + r, TMP + r
                    c = CO + tt*4
                    seqs.append([f"v_fma_f32 v{x}, v{c}, v{CSR+jj*4+r%4}, v{x}"] + a.gelu_seq(x, t, c+1, c+2, c+3))
                ins = interleave(seqs)
                if nogelu: ins = ins[:8]
                out += [(x, 2 if ("exp" in x or "rcp" in x) else 1) for x in ins]
                for q in range(2):
                    b = ACC + half*8 + q*4 + (0, 2, 32)[jj]; t = TMP + q*4
                    out.append((f"v_cvt_pk_bf16_f32 v{b}, v{t}, v{t+1}", 1))
                    out.append((f"v_cvt_pk_bf16_f32 v{b+1}, v{t+2}, v{t+3}", 1))
        return out
    def paced(ins, nticks):
        tot = sum(c for _, c in ins); acc_c = 0; tk = 0
        for (x, c) in ins:
            a.e(x); acc_c += c
            if tk < nticks and acc_c >= tot*(tk+1)/nticks - 1e-9:
                tk += 1
                if tk == nticks: a.e("s_setprio 3")
                bar()
        assert tk == nticks
    def hw01():
        for tt in range(4): a.e(f"ds_write_b128 v5, {vr(ACC+tt*4)} offset:{tt*1024}")
    def hw2():
        for tt in range(4): a.e(f"ds_write_b64 v6, {vr(ACC+32+tt*4,2)} offset:{tt*1024}")
    def fin(g, tend):
        if hv >= 1 and g < 2:
            bar()
        a.e("s_setprio 0")
        set_va(54 + 18*g)
        a.e("s_waitcnt lgkmcnt(0)")
        upto(tend)
        a.e("s_branch k3_body")
    def hwall():
        if hv == 2:
            hw01(); bar(); hw2()
        elif hv == 3:
            for tt in range(4):
                a.e(f"ds_write_b128 v5, {vr(ACC+tt*4)} offset:{tt*1024}")
                if tt == 1: bar()
            bar(); hw2()
        elif hv == 4:
            hw01()
        else:
            hw01(); hw2()
    def gstart(t):
        T[0] = t
        bar()
        a.e("s_waitcnt lgkmcnt(0)")
    gstart(18)
    paced(gelu_ins([0, 1, 2]), 18)
    upto(g0w)
    hwall(); fin(0, 53)
    a.label("k3_ge1")
    gstart(36)
    paced(gelu_ins([0, 1, 2]), g1n)
    hwall(); fin(1, 71)
    a.label("k3_ge2")
    gstart(54)
    paced(gelu_ins([0, 1]), 9)
    hw01()
    a.e("s_setprio 0")
    gi = gelu_ins([2])
    gi = gi[:8] + [("s_waitcnt lgkmcnt(0)", 0)] + gi[8:]
    paced(gi, 4)
    a.e(f"s_mov_b32 s{sRET}, 2")
    hw2(); fin(2, 89)
    P = [True]
    def pb(n=1):
        if P[0]: bar(n)
    sJ = 62
    TT, SUM, PA = 88, 104, 16
    class RS_: pass
    def mk(v, sb):
        r = RS_(); r.X1, r.Q, r.Z, r.GG, r.OM, r.GA, r.VO = v; r.s = sb; return r
    SA = mk((72, 76, 80, 84, 85, 96, 3), 8)
    SB = mk((48, 52, 56, 84, 85, 0, 0), 16)
    SC = mk((60, 64, 68, 84, 85, 0, 0), 64 if not a.prof else 28)
    def unpack(d, s, n=2):
        for k in range(n):
            a.e(f"v_lshlrev_b32 v{d+2*k}, 16, v{s+k}")
            a.e(f"v_and_b32 v{d+2*k+1}, 0xffff0000, v{s+k}")
    def rnd8(d, t):
        for k in range(4): a.e(f"v_cvt_pk_bf16_f32 v{t+k}, v{d+2*k}, v{d+2*k+1}")
        unpack(d, t, 4)
    def cons_common():
        a.e(f"""
        s_mul_i32 s61, s{sSP}, 3
        s_add_u32 s61, s61, s{sI}
        s_lshr_b32 s4, s61, 3
        s_lshl_b32 s4, s4, 2
        s_and_b32 s6, s61, 3
        s_add_u32 s4, s4, s6
        s_bfe_u32 s6, s61, 0x10002
        s_lshl_b32 s7, s{sTL}, 2
        s_lshl_b32 s6, s6, 1
        s_add_u32 s7, s7, s6
        s_mul_i32 s5, s7, 18432
        s_lshl_b32 s7, s7, 4
        v_and_b32 v1, 31, v0
        v_add_u32 v1, s7, v1
        v_lshrrev_b32 v5, 5, v0
        v_lshlrev_b32 v2, 2, v1
        v_mul_u32_u24 v3, 1152, v1
        v_lshl_add_u32 v3, v5, 4, v3
        v_lshlrev_b32 v4, 3, v1
        v_lshl_add_u32 v4, v5, 15, v4
        v_and_b32 v11, 1, v10
        v_mul_u32_u24 v11, 18432, v11
        v_lshl_add_u32 v11, v5, 9, v11
        v_lshl_add_u32 v11, v9, 4, v11
        v_and_b32 v5, 7, v0
        v_lshlrev_b32 v5, {FL['FS']}, v5
        """)
    def cons_addr(j, R):
        b = R.s
        a.e(f"""
        s_add_u32 s6, s4, {12*j}
        s_lshr_b32 s7, s6, 1
        s_lshl_b32 s7, s7, 10
        s_add_u32 s{b}, s5, s7
        s_and_b32 s7, s6, 1
        s_lshl_b32 s7, s7, 3
        s_add_u32 s{b}, s{b}, s7
        s_lshl_b32 s{b+2}, s6, 5
        s_lshl_b32 s{b+4}, s6, 16
        s_add_u32 s{b+3}, s{b+4}, 16384
        s_mul_i32 s6, s{sTL}, 3
        s_add_u32 s6, s6, {j}
        s_lshl_b32 s{b+5}, s6, 2
        s_and_b32 s7, s61, 3
        s_add_u32 s{b+5}, s{b+5}, s7
        s_lshl_b32 s{b+5}, s{b+5}, {FL['FG']}
        s_mul_i32 s{b+7}, s6, 24
        s_add_u32 s{b+7}, s{b+7}, s61
        s_lshl_b32 s{b+7}, s{b+7}, 13
        s_add_u32 s{b+6}, s{b+7}, 4096
        """)
    def cons_aux(R):
        b = R.s
        a.vmem(f"buffer_load_dwordx4 {vr(R.Q)}, v3, s[{rQ}:{rQ+3}], s{b+2} offen", "aux")
        a.vmem(f"buffer_load_dwordx2 {vr(R.Z,2)}, v4, s[{rZ}:{rZ+3}], s{b+4} offen", "aux")
        a.vmem(f"buffer_load_dwordx2 {vr(R.Z+2,2)}, v4, s[{rZ}:{rZ+3}], s{b+3} offen", "aux")
        if R is SA: a.vmem(f"buffer_load_dword v{R.GG}, v2, s[{rG}:{rG+3}], 0 offen", "aux")
        a.vmem(f"buffer_load_dwordx2 {vr(R.X1,2)}, v11, s[{rX}:{rX+3}], s{b} offen", "aux")
        a.vmem(f"buffer_load_dwordx2 {vr(R.X1+2,2)}, v11, s[{rX}:{rX+3}], s{b} offen offset:256", "aux")
    def cons_ga(R, D=None):
        D = D or R
        a.e(f"v_sub_f32 v{D.OM}, 1.0, v{R.GG}")
        a.bf16r(D.OM, D.OM)
        unpack(D.GA, R.Q, 4)
        unpack(TT, R.Z, 4)
        for r in range(8): a.e(f"v_mul_f32 v{D.GA+r}, v{D.GA+r}, v{TT+r}")
        pb()
        rnd8(D.GA, TT)
        for r in range(8): a.e(f"v_mul_f32 v{D.GA+r}, v{R.GG}, v{D.GA+r}")
        pb()
        rnd8(D.GA, TT)
        unpack(D.Q, R.X1, 4)
        pb()
    def poll_issue():
        a.vmem(f"buffer_load_dword v14, v5, s[{rF}:{rF+3}], s13 offen sc1", "pl")
    def cons_loads(backoff):
        lab = a.newlabel("poll")
        a.stamp(8)
        a.label(lab)
        a.e("s_waitcnt vmcnt(0)")
        a.e("v_cmp_ne_u32 vcc, 1, v14")
        a.e(f"s_cbranch_vccz {lab}_ok")
        a.e(f"s_sub_u32 s{sBUD}, s{sBUD}, 1")
        a.e(f"s_cbranch_scc1 {lab}_ok")
        if backoff: a.e(f"s_sleep {backoff}")
        poll_issue()
        a.e(f"s_branch {lab}")
        a.label(f"{lab}_ok")
        a.stamp(9)
        a.reset()
        for p in range(8):
            a.vmem(f"buffer_load_dwordx4 {vr(PA+4*p)}, v7, s[{rP}:{rP+3}], s{15 if p < 4 else 14} offen offset:{(p%4)*1024} sc1", p)
    def cons_fin():
        R = SA
        for p in range(8):
            a.wait_vm_if(p)
            unpack(SUM if p == 0 else TT, PA + 4*p, 4)
            if p:
                for k in range(8): a.e(f"v_add_f32 v{SUM+k}, v{SUM+k}, v{TT+k}")
            if p % 2 == 1: pb()
        a.stamp(10)
        rnd8(SUM, TT)
        for r in range(8): a.e(f"v_add_f32 v{SUM+r}, v{SUM+r}, v{R.Q+r}")
        rnd8(SUM, TT)
        pb()
        for r in range(8): a.e(f"v_mul_f32 v{SUM+r}, v{R.OM}, v{SUM+r}")
        rnd8(SUM, TT)
        for r in range(8): a.e(f"v_add_f32 v{SUM+r}, v{SUM+r}, v{R.GA+r}")
        for k in range(4): a.e(f"v_cvt_pk_bf16_f32 v{112+k}, v{SUM+2*k}, v{SUM+2*k+1}")
        a.e(f"buffer_store_dwordx4 {vr(112)}, v3, s[{rO}:{rO+3}], s10 offen")
    a.label("k3_red")
    a.stamp(0)
    if nored: a.e(f"s_branch {done}_x")
    a.reset()
    a.e(f"""
    s_mul_i32 s14, s{sTL}, 3
    s_add_u32 s14, s14, s{sG}
    s_mul_i32 s15, s14, 24
    s_add_u32 s15, s15, s{sI}
    s_lshl_b32 s15, s15, 3
    s_add_u32 s15, s15, s{sSP}
    s_lshl_b32 s15, s15, 10
    s_setprio 3
    """)
    def cv(c):
        jj, h = c >> 1, c & 1
        q = 16 + c*4
        for e in range(2):
            b = ACC + (jj*4 + 2*h + e)*4
            a.e(f"v_cvt_pk_bf16_f32 v{q+2*e}, v{b}, v{b+1}")
            a.e(f"v_cvt_pk_bf16_f32 v{q+2*e+1}, v{b+2}, v{b+3}")
    cv(0)
    for c in range(6):
        q = 16 + c*4
        if c < 5: cv(c+1)
        else: a.e("s_nop 1")
        a.e(f"v_permlane16_swap_b32 v{q}, v{q+2}")
        a.e(f"v_permlane16_swap_b32 v{q+1}, v{q+3}")
        a.e(f"buffer_store_dwordx4 {vr(q)}, v7, s[{rP}:{rP+3}], s15 offen {sc}")
        a.e("s_add_u32 s15, s15, 32768")
    a.e(f"""
    s_setprio 0
    s_lshl_b32 s14, s14, 2
    s_add_u32 s14, s14, s{sI}
    s_lshl_b32 s14, s14, {FL['FG']}
    s_lshl_b32 s63, s{sSP}, {FL['FS']}
    s_add_u32 s63, s63, s14
    v_mov_b32 v6, 0
    v_mov_b32 v15, 1
    """)
    a.stamp(1)
    if ext:
        a.e(f"s_cmp_eq_u32 s{sG}, 2")
        a.e(f"s_cbranch_scc1 {done}")
        for _ in range(4): a.e("s_barrier")
        if wb:
            a.e("s_waitcnt vmcnt(0)")
            a.e("s_barrier")
            a.e(f"s_cmp_lg_u32 s{sI}, 0")
            a.e(f"s_cbranch_scc1 {done}_x")
            a.e("buffer_wbl2 sc1")
            for _ in range(free_at + 1 - 5): a.e("s_barrier")
        a.e(f"s_branch {done}_x")
    a.e(f"s_cmp_eq_u32 s{sG}, 2")
    a.e("s_cbranch_scc1 k3_flag")
    T[0] = 0
    bar()
    cons_common()
    upto(dr0)
    a.label("k3_flag")
    a.e("s_waitcnt vmcnt(0)")
    a.e("s_mov_b64 exec, 1")
    a.e(f"buffer_store_dword v15, v6, s[{rF}:{rF+3}], s63 offen sc1")
    a.e("s_mov_b64 exec, -1")
    a.stamp(2)
    a.e(f"s_cmp_eq_u32 s{sG}, 2")
    a.e(f"s_cbranch_scc1 {done}")
    a.e(f"s_cmp_eq_u32 s{sI}, 3")
    a.e(f"s_cbranch_scc1 k3_w3")
    a.e(f"s_cmp_eq_u32 s{sG}, 1")
    a.e(f"s_cbranch_scc1 k3_w3")
    tsave = T[0]
    P[0] = True; LIM[0] = 18 + free_at + 1
    a.reset()
    bar()
    cons_addr(0, SA); bar()
    upto(max(p0, T[0]))
    poll_issue()
    def nxt_aux():
        a.e("s_add_u32 s8, s8, 6144")
        a.e("s_add_u32 s10, s10, 384")
        a.e(f"s_add_u32 s11, s11, {12<<16}")
        a.e(f"s_add_u32 s12, s12, {12<<16}")
    def nxt_part():
        a.e("s_add_u32 s10, s10, 384")
        a.e(f"s_add_u32 s13, s13, {4 << FL['FG']}")
        a.e(f"s_add_u32 s14, s14, {24<<13}")
        a.e(f"s_add_u32 s15, s15, {24<<13}")
    SB.s = SC.s = 8
    cons_aux(SA); nxt_aux(); cons_aux(SB); nxt_aux(); cons_aux(SC)
    a.e("s_sub_u32 s10, s10, 768")
    upto(l0)
    cons_loads(0)
    bar()
    cons_ga(SA)
    upto(max(l0 + 6, T[0]))
    cons_fin()
    nxt_part()
    bar()
    cons_ga(SB, SA)
    upto(max(18 + p1, T[0]))
    poll_issue()
    a.e("s_mov_b32 s9, 0")
    upto(18+free_at+1); P[0] = False
    a.label("k3_tail")
    cons_loads(bo)
    cons_fin()
    a.e("s_cmp_eq_u32 s9, 1")
    a.e(f"s_cbranch_scc1 {done}")
    a.e("s_mov_b32 s9, 1")
    nxt_part()
    cons_ga(SC, SA)
    poll_issue()
    a.e("s_branch k3_tail")
    a.label("k3_w3")
    for _ in range(free_at + 1 - tsave): a.e("s_barrier")
    a.e(f"s_branch {done}_x")
    a.label("k3_loader")
    a.reset()
    for e in range(3):
        a.e(f"""
        v_add_u32 v12, {64*e}, v0
        v_mul_u32_u24 v13, 2731, v12
        v_lshrrev_b32 v13, 16, v13
        v_mul_u32_u24 v14, 24, v13
        v_sub_u32 v14, v12, v14
        v_and_b32 v11, 6, v13
        v_xor_b32 v14, v14, v11
        v_lshlrev_b32 v14, 4, v14
        v_subrev_u32 v14, {1024*e}, v14
        v_mul_u32_u24 v11, 9216, v13
        v_add_u32 v{16+e}, v14, v11
        v_mul_u32_u24 v11, 1152, v13
        v_add_u32 v{20+e}, v14, v11
        """)
    a.e("s_waitcnt lgkmcnt(0)")
    a.stamp(7)
    a.srd(rW3, 4, D*F*2)
    a.srd_off(rX, 10, OFF_X1, SZ_ACT)
    a.srd(rW4, 6, F*D*2)
    a.srd_off(rG, 10, OFF_CS3, F*4)
    a.e(f"""
    s_mul_i32 s14, s{sSP}, {576*1152}
    s_mul_i32 s15, s{sTL}, {18*1152}
    s_add_u32 s14, s14, s15
    s_lshl_b32 s15, s{sI}, 6
    s_add_u32 s14, s14, s15
    s_add_u32 s28, s6, s14
    s_addc_u32 s29, s7, 0
    """)
    lgrp = list(grp) if lspf else []
    a.e(f"""
    s_mul_i32 s4, s{sSP}, 1152
    s_mul_i32 s6, s{sI}, {8*9216}
    s_add_u32 s4, s4, s6
    s_mul_i32 s5, s{sSP}, {576*1152}
    s_mul_i32 s6, s{sI}, {8*1152}
    s_add_u32 s5, s5, s6
    s_mul_i32 s6, s{sI}, 3072
    s_add_u32 s6, s6, {RING}
    s_lshl_b32 s14, s{sTL}, 2
    s_add_u32 s14, s14, s{sI}
    s_mul_i32 s62, s14, 18432
    s_lshl_b32 s63, s{sI}, 10
    s_lshr_b32 s14, s{sI}, 1
    s_mul_i32 s14, s14, {48*1152}
    s_add_u32 s60, s5, s14
    s_setprio {ldp}
    """)
    def issue(u):
        ph, ks = u // 18, u % 18
        which, th = ph // 3, ph % 3
        pitch = 9216 if which == 0 else 1152
        rW = (rW3, rW4)[which]
        if u < 18:
            a.e(f"s_add_u32 m0, s63, {u*4096}")
            a.e(f"s_add_u32 s7, s62, {u*1024}")
            a.vmem(f"buffer_load_dwordx4 v7, s[{rX}:{rX+3}], s7 offen lds", u)
        a.e(f"s_add_u32 m0, s6, {(u % NSLOT)*SLOT}")
        if which == 1 and ks % 6 < 4:
            a.e(f"s_add_u32 s7, s60, {((ks//6)*192 + (ks%6)*16)*1152 + th*384}")
        else:
            a.e(f"s_add_u32 s7, s{4+which}, {ks*32*pitch + th*384}")
        for e in range(3):
            a.vmem(f"buffer_load_dwordx4 v{16+4*which+e}, s[{rW}:{rW+3}], s7 offen offset:{e*1024} {nt_w} lds", u)
            if u >= lspf and (e == 0 or (e == 1 and 18 <= u < 18 + lx2)) and lgrp:
                a.e(f"s_load_dword s2, s[28:29], {lgrp.pop(0)*256}")
        if u == 2:
            a.e(f"s_min_u32 s14, s{sI}, 2")
            a.e(f"s_lshl_b32 s14, s14, 10")
            a.e(f"s_add_u32 m0, s14, {L_CS}")
            a.e(f"s_mul_i32 s15, s{sSP}, 2304")
            a.e(f"s_add_u32 s15, s15, s14")
            a.vmem(f"buffer_load_dwordx4 v7, s[{rG}:{rG+3}], s15 offen lds", u)
    nxt = [0]
    def issue_upto(lim, cnt):
        while cnt > 0 and nxt[0] < min(lim, 108):
            issue(nxt[0]); nxt[0] += 1; cnt -= 1
    issue_upto(pro, pro)
    a.stamp(8)
    a.wait_vm(0)
    a.stamp(9)
    a.e("s_barrier")
    a.stamp(10)
    marks = [-1, 17, 35, 53, 71, 89, 101]
    def ltick(u):
        if trace and u >= 0:
            a.e("s_waitcnt lgkmcnt(0)")
            a.e(f"v_writelane_b32 v{60 + u//64}, s92, {u % 64}")
        if u + 2 < 108: a.wait_vm(u+2)
        a.e("s_barrier")
        if trace: a.e("s_memtime s[92:93]")
        if u in marks: a.stamp(marks.index(u))
    last = 108 - LA
    for u in range(-1, last):
        if u not in skip: issue_upto(u + LA + 1, 2)
        ltick(u)
    def tdump():
        if trace:
            a.e("s_load_dwordx2 s[16:17], s[0:1], 112")
            a.e("s_waitcnt lgkmcnt(0)")
            a.srd_off(20, 16, 0x5000000, 0x100000)
            a.e("s_lshl_b32 s16, s100, 2")
            a.e(f"s_add_u32 s16, s16, s{sI}")
            a.e("s_lshl_b32 s16, s16, 9")
            a.e("v_lshlrev_b32 v12, 2, v0")
            a.e("buffer_store_dword v60, v12, s[20:23], s16 offen")
            a.e("buffer_store_dword v61, v12, s[20:23], s16 offen offset:256")
    lastbar = 90 + free_at
    assert lastbar >= last - 1
    for u in range(last, lastbar + 1):
        if u == lastbar: a.wait_vm0()
        if u < lastbar: ltick(u)
        else: a.e("s_barrier")
    a.e("s_setprio 0")
    tdump()
    a.e(f"s_branch {done}")
    i0 = a.lines.index("k3_loader:")
    blk = a.lines[i0:]
    a.lines = a.lines[:cut] + blk + a.lines[cut:i0]
    a.label(done)
    a.pend(3)
    a.label(done + "_x")
    a.e("s_endpgm")
    a.label("k3_end")
    for _ in range(40): a.e("s_nop 0\n" * 16)
    a.e("s_endpgm")
    a.end(name, 128, 102)


def k5(a):
    name = "k5_kernel"
    a.launch(name, (576,1,1), 256, 0)
    a.begin(name)
    a.reset()
    done = "k5_done"
    a.e(f"s_cmp_ge_u32 s2, 576")
    a.e(f"s_cbranch_scc1 {done}_x")
    a.pstart()
    rX, rP, rQ, rZ, rG, rO = 24, 32, 40, 44, 48, 52
    a.ldarg(8, "q"); a.ldarg(10, "ws"); a.ldarg(12, "out")
    a.e(f"""
    v_lshrrev_b32 v1, 6, v0
    v_and_b32 v0, 63, v0
    v_readfirstlane_b32 s59, v1
    s_mul_i32 s57, s2, 3641
    s_lshr_b32 s57, s57, 16
    s_mul_i32 s14, s57, 18
    s_sub_u32 s14, s2, s14
    s_lshr_b32 s4, s14, 1
    s_lshl_b32 s4, s4, 2
    s_add_u32 s6, s4, s59
    s_and_b32 s5, s14, 1
    s_lshl_b32 s7, s57, 2
    s_lshl_b32 s5, s5, 1
    s_add_u32 s7, s7, s5
    s_mul_i32 s5, s7, 18432
    s_lshl_b32 s7, s7, 4
    v_and_b32 v9, 15, v0
    v_lshrrev_b32 v10, 4, v0
    v_lshlrev_b32 v7, 4, v0
    v_and_b32 v1, 31, v0
    v_add_u32 v1, s7, v1
    v_lshrrev_b32 v5, 5, v0
    v_lshlrev_b32 v2, 2, v1
    v_mul_u32_u24 v3, 1152, v1
    v_lshl_add_u32 v3, v5, 4, v3
    v_lshlrev_b32 v4, 3, v1
    v_lshl_add_u32 v4, v5, 15, v4
    v_and_b32 v11, 1, v10
    v_mul_u32_u24 v11, 18432, v11
    v_lshl_add_u32 v11, v5, 9, v11
    v_lshl_add_u32 v11, v9, 4, v11
    s_lshr_b32 s7, s6, 1
    s_lshl_b32 s7, s7, 10
    s_add_u32 s16, s5, s7
    s_and_b32 s7, s6, 1
    s_lshl_b32 s7, s7, 3
    s_add_u32 s16, s16, s7
    s_lshl_b32 s18, s6, 5
    s_lshl_b32 s20, s6, 16
    s_add_u32 s19, s20, 16384
    s_lshl_b32 s23, s2, 2
    s_add_u32 s23, s23, s59
    s_lshl_b32 s23, s23, 13
    s_add_u32 s22, s23, 4096
    s_waitcnt lgkmcnt(0)
    """)
    a.srd_off(rP, 10, OFF_PART, 32*3*6*4*8*1024)
    X1, Q, Z, GG, OM, GA, TT, SUM, PA = 72, 76, 80, 84, 85, 96, 88, 104, 16
    for p in range(8):
        a.vmem(f"buffer_load_dwordx4 {vr(PA+4*p)}, v7, s[{rP}:{rP+3}], s{23 if p < 4 else 22} offen offset:{(p%4)*1024}", p)
    a.srd(rQ, 8, SZ_ACT)
    a.srd_off(rZ, 10, OFF_Z4, SZ_ACT)
    a.srd_off(rG, 10, OFF_G, S*4)
    a.srd_off(rX, 10, OFF_X1, SZ_ACT)
    a.srd(rO, 12, SZ_ACT)
    a.vmem(f"buffer_load_dwordx4 {vr(Q)}, v3, s[{rQ}:{rQ+3}], s18 offen", "aux")
    a.vmem(f"buffer_load_dwordx2 {vr(Z,2)}, v4, s[{rZ}:{rZ+3}], s20 offen", "aux")
    a.vmem(f"buffer_load_dwordx2 {vr(Z+2,2)}, v4, s[{rZ}:{rZ+3}], s19 offen", "aux")
    a.vmem(f"buffer_load_dword v{GG}, v2, s[{rG}:{rG+3}], 0 offen", "aux")
    a.vmem(f"buffer_load_dwordx2 {vr(X1,2)}, v11, s[{rX}:{rX+3}], s16 offen", "aux")
    a.vmem(f"buffer_load_dwordx2 {vr(X1+2,2)}, v11, s[{rX}:{rX+3}], s16 offen offset:256", "aux")
    def unpack(d, s, n=2):
        for k in range(n):
            a.e(f"v_lshlrev_b32 v{d+2*k}, 16, v{s+k}")
            a.e(f"v_and_b32 v{d+2*k+1}, 0xffff0000, v{s+k}")
    def rnd8(d, t):
        for k in range(4): a.e(f"v_cvt_pk_bf16_f32 v{t+k}, v{d+2*k}, v{d+2*k+1}")
        unpack(d, t, 4)
    for p in range(8):
        a.wait_vm(p)
        unpack(SUM if p == 0 else TT, PA + 4*p, 4)
        if p:
            for k in range(8): a.e(f"v_add_f32 v{SUM+k}, v{SUM+k}, v{TT+k}")
    rnd8(SUM, TT)
    a.wait_vm0()
    a.e(f"v_sub_f32 v{OM}, 1.0, v{GG}")
    a.bf16r(OM, OM)
    unpack(GA, Q, 4)
    unpack(TT, Z, 4)
    for r in range(8): a.e(f"v_mul_f32 v{GA+r}, v{GA+r}, v{TT+r}")
    rnd8(GA, TT)
    for r in range(8): a.e(f"v_mul_f32 v{GA+r}, v{GG}, v{GA+r}")
    rnd8(GA, TT)
    unpack(Q, X1, 4)
    for r in range(8): a.e(f"v_add_f32 v{SUM+r}, v{SUM+r}, v{Q+r}")
    rnd8(SUM, TT)
    for r in range(8): a.e(f"v_mul_f32 v{SUM+r}, v{OM}, v{SUM+r}")
    rnd8(SUM, TT)
    for r in range(8): a.e(f"v_add_f32 v{SUM+r}, v{SUM+r}, v{GA+r}")
    for k in range(4): a.e(f"v_cvt_pk_bf16_f32 v{112+k}, v{SUM+2*k}, v{SUM+2*k+1}")
    a.e(f"buffer_store_dwordx4 {vr(112)}, v3, s[{rO}:{rO+3}], s18 offen")
    a.label(done)
    a.pend(5)
    a.label(done + "_x")
    a.e("s_endpgm")
    a.end(name, 116, 102)
```

```python
import sys
from gen import *
import k12
from k34 import k34, k5

def build(path, prof=False, dup=False, pre=None, k1={}, k2={}, wsbase=0, scs={}, fl=(5, 2), **kw):
    k12.FL.update(FG=fl[0], FS=fl[1])
    k12.SC.update(dict(hs='', ur='', x1='', z='')); k12.SC.update(scs)
    a = K()
    a.wsbase = wsbase
    a.prof = prof
    (k12.k1b if k2.get('cs') else k12.k1)(a, **k1); k12.k2(a, **k2); k34(a, **kw)
    if kw.get('ext'): k5(a)
    if dup: a.launches.append(a.launches[-1])
    if pre: a.launches = [a.launches[i] for i in pre]
    roles = {1: [(0,144,0,4,"g1ld"),(0,144,4,12,"gemm1"),(144,216,0,8,"prep"),(216,256,0,8,"help")], 2: [(144,288,0,4,"gemm2"),(0,144,0,4,"conv"),(288,360,0,4,"colsum")],
             3: [(0,256,8,12,"g0"),(0,256,12,16,"g1"),(0,256,4,8,"g2"),(0,256,0,4,"ld")]}
    open(path, "w").write(a.text(HEADER + ("\n; roles " + repr(roles) if prof else "")))

BASE = dict(k1=dict(ntkv="nt", NW0=2, NX0=2, rot=1), k2=dict(nth="nt", cs=4), mapB=True, spf=0, lspf=6, g0w=51, g1n=15,
            skip=(49, 50, 63, 67), dr0=7, p0=10, l0=14, p1=11)
if __name__ == "__main__":
    base = dict(BASE)
    build("gated_mix__ssm_conv_h3__mixer_s_mlp__prompt.s", **base)
    build("prof.s", prof=True, **base)
```

```python
import sys, math
from asmlib import Asm

S, D, F = 2048, 576, 4608
OFF_HS, OFF_X1, OFF_UR, OFF_Z4 = 0x0, 0x240000, 0x480000, 0x900000
OFF_ST, OFF_G, OFF_CS3 = 0x700000, 0xB80000, 0xB90000
OFF_H2, OFF_PART = 0xC00000, 0xC00000
SZ_ACT = S * D * 2
KA = dict(q=0, k=8, v=16, shk=24, ssmk=32, ssmD=40, w1=56, w2=64, w3=72, w4=80, gw=88, out=96, dbg=104, ws=112)
import struct
def f2u(x): return struct.unpack("<I", struct.pack("<f", x))[0]
GK = 2.0 * 0.7978845608028654 * 1.4426950408889634

class K(Asm):
    def __init__(self):
        super().__init__()
        self.vm = []
        self.lg = []
    def reset(self):
        self.vm = []; self.lg = []
    prof = False
    rt = False
    def pstart(self):
        self.nst = 0
        if self.prof:
            self.e("s_memrealtime s[64:65]")
            self.e(f"{'s_memrealtime' if self.rt else 's_memtime'} s[66:67]")
            self.e("v_lshrrev_b32 v1, 6, v0")
            self.e("s_nop 1")
            self.e("v_readfirstlane_b32 s101, v1")
            self.e("s_mov_b32 s100, s2")
            for i in range(68, 98): self.e(f"s_mov_b32 s{i}, 0")
    def stamp(self, i):
        if self.prof:
            assert i < 14
            self.e(f"{'s_memrealtime' if self.rt else 's_memtime'} s[{68+2*i}:{69+2*i}]")
    def pend(self, kidx):
        if not self.prof: return
        self.e("s_mov_b64 exec, -1")
        self.e("s_waitcnt vmcnt(0) lgkmcnt(0)")
        self.e(f"{'s_memrealtime' if self.rt else 's_memtime'} s[96:97]")
        self.e("s_memrealtime s[98:99]")
        self.e("s_load_dwordx2 s[4:5], s[0:1], 112")
        self.e("s_waitcnt lgkmcnt(0)")
        self.srd_off(8, 4, 0x4000000 + kidx*0x100000, 0x100000)
        self.e("s_lshl_b32 s12, s100, 4")
        self.e("s_add_u32 s12, s12, s101")
        self.e("s_lshl_b32 s12, s12, 7")
        self.e("v_mov_b32 v1, 0")
        self.e("s_mov_b64 exec, 1")
        for i in range(18):
            self.e(f"v_mov_b32 v2, s{64+2*i}")
            self.e(f"buffer_store_dword v2, v1, s[8:11], s12 offen offset:{4*i}")
            self.e("s_nop 1")
        self.e("s_getreg_b32 s13, hwreg(HW_REG_XCC_ID)")
        self.e(f"v_mov_b32 v2, s13")
        self.e(f"buffer_store_dword v2, v1, s[8:11], s12 offen offset:{4*18}")
        self.e("s_getreg_b32 s13, hwreg(HW_REG_HW_ID)")
        self.e(f"v_mov_b32 v3, s13")
        self.e(f"buffer_store_dword v3, v1, s[8:11], s12 offen offset:{4*19}")
    def vmem(self, s, tag=None):
        self.e(s); self.vm.append(tag)
    def lds(self, s, tag=None):
        self.e(s); self.lg.append(tag)
    def wait_vm(self, tag):
        idx = max(i for i, t in enumerate(self.vm) if t == tag)
        n = len(self.vm) - 1 - idx
        assert n <= 63
        self.e(f"s_waitcnt vmcnt({n})")
        self.vm = self.vm[idx+1:]
    def wait_vm_if(self, tag):
        if tag in self.vm: self.wait_vm(tag)
    def wait_lg(self, tag):
        idx = max(i for i, t in enumerate(self.lg) if t == tag)
        n = len(self.lg) - 1 - idx
        if n > 15: n = 15; idx = len(self.lg) - 1 - 15
        self.e(f"s_waitcnt lgkmcnt({n})")
        self.lg = self.lg[idx+1:]
    def wait_lg_if(self, tag):
        if tag in self.lg: self.wait_lg(tag)
    def wait_all(self):
        self.e("s_waitcnt vmcnt(0) lgkmcnt(0)"); self.reset()
    def wait_lg0(self):
        self.e("s_waitcnt lgkmcnt(0)"); self.lg = []
    def wait_vm0(self):
        self.e("s_waitcnt vmcnt(0)"); self.vm = []
    def ldarg(self, sreg, name):
        self.e(f"s_load_dwordx2 s[{sreg}:{sreg+1}], s[0:1], {KA[name]}")
    def srd_off(self, d, base, off, nbytes):
        off += getattr(self, "wsbase", 0)
        self.e(f"s_add_u32 s{d}, s{base}, {off}")
        self.e(f"s_addc_u32 s{d+1}, s{base+1}, 0")
        self.e(f"s_and_b32 s{d+1}, s{d+1}, 0xffff")
        self.e(f"s_mov_b32 s{d+2}, {nbytes}")
        self.e(f"s_mov_b32 s{d+3}, 0x20000")
    def code_pf(self, label, sidx, per, sa, sd, maxidx):
        l = self.newlabel("cpf")
        self.e(f"s_getpc_b64 s[{sa}:{sa+1}]")
        self.label(l)
        self.e(f"s_add_u32 s{sa}, s{sa}, {label}-{l}")
        self.e(f"s_addc_u32 s{sa+1}, s{sa+1}, 0")
        self.e(f"s_min_u32 s{sd}, s{sidx}, {maxidx}")
        self.e(f"s_mul_i32 s{sd}, s{sd}, {per*64}")
        self.e(f"s_add_u32 s{sa}, s{sa}, s{sd}")
        self.e(f"s_addc_u32 s{sa+1}, s{sa+1}, 0")
        for i in range(per):
            self.e(f"s_load_dword s{sd}, s[{sa}:{sa+1}], {i*64}")
    def mfma(self, acc, a, b, c=None):
        cs = f"{acc}" if c is None else c
        self.e(f"v_mfma_f32_16x16x32_bf16 {acc}, {a}, {b}, {cs}")
    def bf16r(self, d, s):
        self.e(f"v_cvt_pk_bf16_f32 v{d}, v{s}, v{s}")
        self.e(f"v_lshlrev_b32 v{d}, 16, v{d}")
    def xsum4(self, v, t):
        self.e(f"v_mov_b32 v{t}, v{v}")
        self.e("s_nop 1")
        self.e(f"v_permlane32_swap_b32 v{v}, v{t}")
        self.e("s_nop 1")
        self.e(f"v_add_f32 v{v}, v{v}, v{t}")
        self.e(f"v_mov_b32 v{t}, v{v}")
        self.e("s_nop 1")
        self.e(f"v_permlane16_swap_b32 v{v}, v{t}")
        self.e("s_nop 1")
        self.e(f"v_add_f32 v{v}, v{v}, v{t}")
    def ln_consts(self, vsum, vsq, negm, c1, c2, sd, t):
        self.e(f"v_mul_f32 v{vsum}, {hex(f2u(1.0/576))}, v{vsum}")
        self.e(f"v_mul_f32 v{vsq}, {hex(f2u(1.0/576))}, v{vsq}")
        self.e(f"v_fma_f32 v{vsq}, -v{vsum}, v{vsum}, v{vsq}")
        self.e(f"v_max_f32 v{vsq}, 0, v{vsq}")
        self.bf16r(negm, vsum)
        self.e(f"v_xor_b32 v{negm}, 0x80000000, v{negm}")
        self.bf16r(vsq, vsq)
        self.e(f"v_add_f32 v{vsq}, {hex(f2u(1e-5))}, v{vsq}")
        self.bf16r(vsq, vsq)
        self.e(f"v_sqrt_f32 v{vsq}, v{vsq}")
        self.e("s_nop 0")
        self.bf16r(sd, vsq)
        self.e(f"v_rcp_f32 v{t}, v{sd}")
        self.e("s_nop 0")
        self.e(f"v_mul_f32 v{c1}, {hex(f2u(-GK))}, v{t}")
        self.e(f"v_mul_f32 v{c2}, v{t}, v{t}")
        self.e(f"v_mul_f32 v{c2}, v{c2}, v{c1}")
        self.e(f"v_mul_f32 v{c2}, {hex(f2u(0.044715))}, v{c2}")
    def gelu_seq(self, a, t, c1, c2, sd):
        return [f"v_mul_f32 v{t}, v{a}, v{a}",
                f"v_fma_f32 v{t}, v{t}, v{c2}, v{c1}",
                f"v_mul_f32 v{t}, v{a}, v{t}",
                f"v_exp_f32 v{t}, v{t}",
                f"v_fma_f32 v{t}, v{t}, v{sd}, v{sd}",
                f"v_rcp_f32 v{t}, v{t}",
                f"v_mul_f32 v{t}, v{a}, v{t}"]

def interleave(seqs):
    out = []
    n = max(len(s) for s in seqs)
    for i in range(n):
        for s in seqs:
            if i < len(s): out.append(s[i])
    return out
def vr(b, n=4): return f"v[{b}:{b+n-1}]"

def small_gemm(a, which, done):
    a.reset()
    sW, sX, sWS, sGW, sQ = 4, 6, 8, 10, 12
    rW, rA, rO, rQ, rS = 16, 20, 24, 28, 32
    sTM, sTN, sWV = 36, 37, 38
    a.ldarg(sW, "w1" if which == 1 else "w2")
    a.ldarg(sQ, "q")
    a.ldarg(sWS, "ws")
    if which == 1: a.ldarg(sGW, "gw")
    a.e(f"""
    s_and_b32 s40, s3, 7
    s_lshr_b32 s41, s3, 3
    s_cmp_ge_u32 s41, 9
    s_cselect_b32 s42, 1, 0
    s_lshl_b32 s{sTM}, s40, 1
    s_add_u32 s{sTM}, s{sTM}, s42
    s_mul_i32 s42, s42, 9
    s_sub_u32 s{sTN}, s41, s42
    v_lshrrev_b32 v1, 6, v0
    v_and_b32 v0, 63, v0
    v_readfirstlane_b32 s{sWV}, v1
    v_and_b32 v2, 15, v0
    v_lshrrev_b32 v3, 4, v0
    """)
    vXA, vWD, vTR, vSTA = 4, 5, 6, 10
    XF = 16
    ACC = 160
    ST = 192
    CS = 200
    WF = 216
    SF = 248
    SQ = 12
    a.e("s_waitcnt lgkmcnt(0)")
    a.srd(rW, sW, D*D*2)
    a.srd(rQ, sQ, SZ_ACT)
    if which == 1:
        a.srd_off(rO, sWS, OFF_HS, SZ_ACT)
        a.srd_off(rS, sWS, OFF_G, S*4)
        a.srd(rA, sGW, D*2)
    else:
        a.srd_off(rA, sWS, OFF_HS, SZ_ACT)
        a.srd_off(rO, sWS, OFF_X1, SZ_ACT)
        a.srd_off(rS, sWS, OFF_ST, 9*S*8)
    a.e(f"""
    s_lshl_b32 s43, s{sTM}, 7
    s_lshl_b32 s44, s{sWV}, 5
    s_add_u32 s43, s43, s44
    """)
    if which == 1:
        a.e(f"s_lshl_b32 s45, s{sWV}, 10")
        a.e(f"v_lshl_add_u32 v14, v0, 4, s45")
        a.vmem(f"buffer_load_dwordx4 {vr(WF)}, v14, s[{rA}:{rA+3}], 0 offen", "gw")
        a.e(f"v_add_u32 v{vXA}, s43, v2")
        a.e(f"v_mul_u32_u24 v{vXA}, 1152, v{vXA}")
        a.e(f"v_lshl_add_u32 v{vXA}, v3, 4, v{vXA}")
        a.e(f"s_mov_b32 s46, {16*1152}")
    else:
        a.e(f"s_lshr_b32 s45, s43, 4")
        a.e(f"s_mul_i32 s45, s45, 18432")
        a.e(f"v_lshl_add_u32 v{vXA}, v0, 4, s45")
    a.e(f"""
    v_lshrrev_b32 v14, 3, v0
    s_lshl_b32 s45, s{sWV}, 3
    v_add_u32 v14, s45, v14
    v_and_b32 v15, 6, v14
    v_and_b32 v{vWD}, 7, v0
    v_xor_b32 v{vWD}, v{vWD}, v15
    v_lshlrev_b32 v{vWD}, 4, v{vWD}
    """)
    if which == 1:
        a.e(f"""
        v_and_b32 v15, 12, v14
        v_lshlrev_b32 v15, 1, v15
        v_and_b32 v11, 3, v14
        v_add_u32 v15, v15, v11
        v_lshrrev_b32 v11, 4, v14
        v_lshl_add_u32 v14, v11, 2, v15
        """)
    a.e(f"""
    v_mul_u32_u24 v14, 1152, v14
    v_add_u32 v{vWD}, v{vWD}, v14
    s_lshl_b32 s45, s{sTN}, 7
    v_add_u32 v{vWD}, s45, v{vWD}
    s_lshl_b32 s47, s{sWV}, 10
    s_mov_b32 s48, 0
    s_mov_b32 s49, 0
    """)
    for ks in range(18):
        a.e(f"s_add_u32 m0, s47, {ks*4096}")
        if which == 2:
            a.e(f"s_add_u32 s50, s49, 18432")
        else:
            a.e("s_nop 0")
        a.vmem(f"buffer_load_dwordx4 v{vWD}, s[{rW}:{rW+3}], s48 offen lds", f"k{ks}")
        a.e(f"s_add_u32 s48, s48, {32*1152}")
        if which == 1:
            a.vmem(f"buffer_load_dwordx4 {vr(XF+ks*4)}, v{vXA}, s[{rQ}:{rQ+3}], 0 offen offset:{ks*64}", f"k{ks}")
            a.vmem(f"buffer_load_dwordx4 {vr(XF+72+ks*4)}, v{vXA}, s[{rQ}:{rQ+3}], s46 offen offset:{ks*64}", f"k{ks}")
        else:
            a.vmem(f"buffer_load_dwordx4 {vr(XF+ks*4)}, v{vXA}, s[{rA}:{rA+3}], s49 offen", f"k{ks}")
            a.vmem(f"buffer_load_dwordx4 {vr(XF+72+ks*4)}, v{vXA}, s[{rA}:{rA+3}], s50 offen", f"k{ks}")
            a.e(f"s_add_u32 s49, s49, 1024")
    a.e(f"""
    v_lshrrev_b32 v14, 2, v0
    v_lshlrev_b32 v14, 7, v14
    v_and_b32 v15, 3, v0
    v_lshl_add_u32 v14, v15, 3, v14
    v_bfe_u32 v15, v0, 3, 2
    """)
    if which == 1:
        a.e(f"v_xor_b32 v15, s{sWV}, v15")
    for i in range(4):
        a.e(f"v_xor_b32 v11, {i}, v15")
        a.e(f"v_lshl_add_u32 v{vTR+i}, v11, 5, v14")
    LST = 73728
    if which == 1:
        a.e(f"""
        v_and_b32 v11, 3, v0
        v_mov_b32 v{vSTA}, {LST+2304}
        v_mov_b32 v14, {LST+1152}
        v_cmp_eq_u32 vcc, 0, v11
        s_nop 1
        v_cndmask_b32 v{vSTA}, v{vSTA}, v14, vcc
        v_mov_b32 v14, {LST}
        v_cmp_eq_u32 vcc, 1, v11
        s_nop 1
        v_cndmask_b32 v{vSTA}, v{vSTA}, v14, vcc
        v_lshl_add_u32 v{vSTA}, v3, 4, v{vSTA}
        v_mov_b32 v{SF+4}, 0x3f803f80
        v_mov_b32 v{SF+5}, 0x3f803f80
        v_mov_b32 v{SF+6}, 0x3f803f80
        v_mov_b32 v{SF+7}, 0x3f803f80
        v_mov_b32 v{SF}, 0
        v_mov_b32 v{SF+1}, 0
        v_mov_b32 v{SF+2}, 0
        v_mov_b32 v{SF+3}, 0
        v_mov_b32 v{SQ}, 0
        v_mov_b32 v{SQ+1}, 0
        """)
        a.e(f"s_lshl_b32 s45, s{sWV}, 10")
        a.e(f"v_lshl_add_u32 v14, v0, 4, s45")
        a.e(f"v_cmp_gt_u32 vcc, 1152, v14")
        a.e(f"v_add_u32 v14, {LST}, v14")
        a.wait_vm("gw")
        a.e("s_and_saveexec_b64 s[52:53], vcc")
        a.e(f"ds_write_b128 v14, {vr(WF)}")
        a.e(f"ds_write_b128 v14, {vr(SF+4)} offset:1152")
        a.e(f"ds_write_b128 v14, {vr(SF)} offset:2304")
        a.e("s_mov_b64 exec, s[52:53]")
        a.e("s_waitcnt lgkmcnt(0)")
    else:
        a.e(f"v_add_u32 v14, s43, v2")
        a.e(f"v_mul_u32_u24 v14, 1152, v14")
        a.e(f"v_lshl_add_u32 v14, v3, 3, v14")
        a.e(f"s_lshl_b32 s45, s{sTN}, 7")
        a.e(f"s_add_u32 s46, s45, {16*1152}")
        for tt in range(2):
            for i in range(4):
                a.vmem(f"buffer_load_dwordx2 {vr(192+(tt*4+i)*2, 2)}, v14, s[{rQ}:{rQ+3}], s{45+tt} offen offset:{i*32}", "xres")
    a.stamp(0)
    groups = [[0], [1, 2], [3, 4, 5], [6, 7, 8], [9, 10, 11], [12, 13, 14], [15, 16, 17]]
    def wread(ks):
        buf = WF + (ks & 1) * 16
        off = ks * 4096
        if ks == 16:
            for i in range(4): a.e(f"v_add_u32 v{vTR+i}, 0x10000, v{vTR+i}")
        if ks >= 16: off -= 65536
        for i in range(4):
            a.lds(f"ds_read_b64_tr_b16 {vr(buf+i*4, 2)}, v{vTR+i} offset:{off}", f"w{ks}")
            a.lds(f"ds_read_b64_tr_b16 {vr(buf+i*4+2, 2)}, v{vTR+i} offset:{off+2048}", f"w{ks}")
    for gi, g in enumerate(groups):
        a.wait_vm(f"k{g[-1]}")
        a.e("s_barrier")
        a.stamp(1+gi)
        wread(g[0])
        for j, ks in enumerate(g):
            if which == 1:
                a.lds(f"ds_read_b128 {vr(SF)}, v{vSTA} offset:{ks*64}", f"w{ks}")
            if j + 1 < len(g):
                a.wait_lg(f"w{ks}")
                wread(g[j+1])
            else:
                a.wait_lg(f"w{ks}")
            buf = WF + (ks & 1) * 16
            for i in range(4):
                for tt in range(2):
                    acc = vr(ACC + tt*16 + i*4)
                    a.mfma(acc, vr(buf+i*4), vr(XF+tt*72+ks*4), "0" if ks == 0 else None)
            if which == 1:
                a.mfma(vr(CS), vr(buf), vr(SF+4), "0" if ks == 0 else None)
                for tt in range(2):
                    a.mfma(vr(ST+tt*4), vr(SF), vr(XF+tt*72+ks*4), "0" if ks == 0 else None)
                for tt in range(2):
                    for r in range(4):
                        x = XF+tt*72+ks*4+r
                        a.e(f"v_dot2c_f32_bf16 v{SQ+tt}, v{x}, v{x}")
    a.e("s_nop 7")
    a.e("s_nop 1")
    a.stamp(8)
    if which == 1:
        a.e(f"s_lshl_b32 s45, s{sWV}, 6")
        a.e(f"v_lshl_add_u32 v14, v3, 4, s45")
        a.e(f"v_add_u32 v14, {LST+3456}, v14")
        a.e(f"v_cmp_eq_u32 vcc, 0, v2")
        a.e("s_and_saveexec_b64 s[52:53], vcc")
        a.e(f"ds_write_b128 v14, {vr(CS)}")
        a.e("s_mov_b64 exec, s[52:53]")
        a.e("s_waitcnt lgkmcnt(0)")
        a.e("s_barrier")
        for i in range(4):
            a.e(f"s_xor_b32 s45, s{sWV}, {i}")
            a.e(f"s_lshl_b32 s45, s45, 6")
            a.e(f"v_lshl_add_u32 v14, v3, 4, s45")
            a.e(f"v_add_u32 v14, {LST+3456}, v14")
            a.e(f"ds_read_b128 {vr(CS+i*4)}, v14")
        C = 16
        for tt in range(2):
            a.xsum4(SQ+tt, 14)
            a.ln_consts(ST+tt*4, SQ+tt, C+tt*4, C+tt*4+1, C+tt*4+2, C+tt*4+3, 14)
        lab = a.newlabel("nog")
        a.e(f"s_cmp_lg_u32 s{sTN}, 0")
        a.e(f"s_cbranch_scc1 {lab}")
        for tt in range(2):
            g = 24 + tt
            a.bf16r(g, ST+tt*4+1)
            a.e(f"v_mul_f32 v{g}, {hex(f2u(-1.4426950408889634))}, v{g}")
            a.e(f"v_exp_f32 v{g}, v{g}")
            a.e("s_nop 0")
            a.e(f"v_add_f32 v{g}, 1.0, v{g}")
            a.e(f"v_rcp_f32 v{g}, v{g}")
            a.e("s_nop 0")
            a.bf16r(g, g)
        a.e(f"v_add_u32 v14, s43, v2")
        a.e(f"v_lshlrev_b32 v14, 2, v14")
        a.e(f"v_cmp_eq_u32 vcc, 0, v3")
        a.e("s_and_saveexec_b64 s[52:53], vcc")
        a.e(f"buffer_store_dword v24, v14, s[{rS}:{rS+3}], 0 offen")
        a.e(f"buffer_store_dword v25, v14, s[{rS}:{rS+3}], 0 offen offset:64")
        a.e("s_mov_b64 exec, s[52:53]")
        a.label(lab)
        a.e("s_waitcnt lgkmcnt(0)")
        T = 32
        for i in range(4):
            a.e(f"""
            s_xor_b32 s45, s{sWV}, {i}
            s_lshl_b32 s46, s{sTN}, 2
            s_add_u32 s45, s45, s46
            s_mul_i32 s46, s45, 57
            s_lshr_b32 s46, s46, 9
            s_lshr_b32 s47, s46, 1
            s_add_u32 s47, s47, 1
            s_sub_u32 s48, 0, s47
            s_bitcmp1_b32 s46, 0
            s_cselect_b32 s47, s48, s47
            s_add_u32 s47, s47, s43
            s_lshr_b32 s48, s45, 1
            s_lshl_b32 s48, s48, 10
            s_and_b32 s49, s45, 1
            s_lshl_b32 s49, s49, 3
            s_add_u32 s48, s48, s49
            """)
            seqs = []
            for tt in range(2):
                for r in range(4):
                    acc = ACC + tt*16 + i*4 + r
                    seqs.append([f"v_fma_f32 v{acc}, v{C+tt*4}, v{CS+i*4+r}, v{acc}"] +
                                a.gelu_seq(acc, T+tt*4+r, C+tt*4+1, C+tt*4+2, C+tt*4+3))
            for x in interleave(seqs): a.e(x)
            for tt in range(2):
                P = 64 + (i*2+tt)*2
                a.e(f"v_cvt_pk_bf16_f32 v{P}, v{T+tt*4}, v{T+tt*4+1}")
                a.e(f"v_cvt_pk_bf16_f32 v{P+1}, v{T+tt*4+2}, v{T+tt*4+3}")
                ad = 96 + i*2 + tt
                a.e(f"v_add_u32 v{ad}, s47, v2")
                if tt: a.e(f"v_add_u32 v{ad}, 16, v{ad}")
                a.e(f"v_cmp_gt_u32 vcc, {S}, v{ad}")
                a.e(f"v_and_b32 v{ad}, {S-1}, v{ad}")
                a.e(f"v_lshrrev_b32 v14, 4, v{ad}")
                a.e(f"v_mul_u32_u24 v14, 18432, v14")
                a.e(f"v_cndmask_b32 v{P}, 0, v{P}, vcc")
                a.e(f"v_cndmask_b32 v{P+1}, 0, v{P+1}, vcc")
                a.e(f"v_and_b32 v{ad}, 15, v{ad}")
                a.e(f"v_lshl_add_u32 v{ad}, v3, 4, v{ad}")
                a.e(f"v_lshl_add_u32 v{ad}, v{ad}, 4, v14")
                a.e(f"buffer_store_dwordx2 {vr(P,2)}, v{ad}, s[{rO}:{rO+3}], s48 offen")
    else:
        a.wait_vm0()
        T = 16
        a.e(f"s_lshr_b32 s45, s43, 4")
        a.e(f"s_mul_i32 s45, s45, 18432")
        a.e(f"s_lshl_b32 s46, s{sTN}, 11")
        a.e(f"s_add_u32 s45, s45, s46")
        a.e(f"s_add_u32 s46, s45, 18432")
        a.e(f"v_lshlrev_b32 v15, 4, v0")
        for tt in range(2):
            sm, sq = 12, 13
            for i in range(4):
                acc = ACC + tt*16 + i*4
                xr = 192 + (tt*4+i)*2
                t = T + i*8
                P = 64 + tt*8 + i*2
                a.e(f"v_cvt_pk_bf16_f32 v{t}, v{acc}, v{acc+1}")
                a.e(f"v_cvt_pk_bf16_f32 v{t+1}, v{acc+2}, v{acc+3}")
                a.e(f"v_lshlrev_b32 v{acc}, 16, v{t}")
                a.e(f"v_and_b32 v{acc+1}, 0xffff0000, v{t}")
                a.e(f"v_lshlrev_b32 v{acc+2}, 16, v{t+1}")
                a.e(f"v_and_b32 v{acc+3}, 0xffff0000, v{t+1}")
                a.e(f"v_lshlrev_b32 v{t+2}, 16, v{xr}")
                a.e(f"v_and_b32 v{t+3}, 0xffff0000, v{xr}")
                a.e(f"v_lshlrev_b32 v{t+4}, 16, v{xr+1}")
                a.e(f"v_and_b32 v{t+5}, 0xffff0000, v{xr+1}")
                for r in range(4):
                    a.e(f"v_add_f32 v{acc+r}, v{acc+r}, v{t+2+r}")
                a.e(f"v_cvt_pk_bf16_f32 v{P}, v{acc}, v{acc+1}")
                a.e(f"v_cvt_pk_bf16_f32 v{P+1}, v{acc+2}, v{acc+3}")
                a.e(f"v_lshlrev_b32 v{acc}, 16, v{P}")
                a.e(f"v_and_b32 v{acc+1}, 0xffff0000, v{P}")
                a.e(f"v_lshlrev_b32 v{acc+2}, 16, v{P+1}")
                a.e(f"v_and_b32 v{acc+3}, 0xffff0000, v{P+1}")
                for r in range(4):
                    if i == 0 and r == 0:
                        a.e(f"v_mov_b32 v{sm}, v{acc}")
                        a.e(f"v_mul_f32 v{sq}, v{acc}, v{acc}")
                    else:
                        a.e(f"v_add_f32 v{sm}, v{sm}, v{acc+r}")
                        a.e(f"v_fma_f32 v{sq}, v{acc+r}, v{acc+r}, v{sq}")
            P = 64 + tt*8
            a.e(f"buffer_store_dwordx4 {vr(P)}, v15, s[{rO}:{rO+3}], s{45+tt} offen")
            a.e(f"buffer_store_dwordx4 {vr(P+4)}, v15, s[{rO}:{rO+3}], s{45+tt} offen offset:1024")
            a.xsum4(sm, 14)
            a.xsum4(sq, 14)
            a.e(f"v_add_u32 v14, s43, v2")
            a.e(f"v_lshlrev_b32 v14, 3, v14")
            a.e(f"s_lshl_b32 s47, s{sTN}, 14")
            a.e(f"v_mov_b32 v{80+tt*2}, v{sm}")
            a.e(f"v_mov_b32 v{81+tt*2}, v{sq}")
            a.e(f"v_cmp_eq_u32 vcc, 0, v3")
            a.e("s_and_saveexec_b64 s[52:53], vcc")
            a.e(f"buffer_store_dwordx2 {vr(80+tt*2,2)}, v14, s[{rS}:{rS+3}], s47 offen offset:{tt*128}")
            a.e("s_mov_b64 exec, s[52:53]")
    a.e(f"s_branch {done}")

def prep(a, done):
    a.reset()
    rK, rV, rSH, rU = 16, 20, 24, 28
    a.ldarg(4, "k"); a.ldarg(6, "v"); a.ldarg(8, "shk"); a.ldarg(10, "ws")
    a.e(f"""
    v_lshrrev_b32 v1, 6, v0
    v_and_b32 v0, 63, v0
    v_readfirstlane_b32 s38, v1
    v_and_b32 v2, 15, v0
    v_lshrrev_b32 v3, 4, v0
    s_lshl_b32 s36, s3, 2
    s_add_u32 s36, s36, s38
    s_mul_i32 s37, s36, 7282
    s_lshr_b32 s37, s37, 16
    s_mul_i32 s39, s37, 9
    s_sub_u32 s39, s36, s39
    """)
    a.e("s_waitcnt lgkmcnt(0)")
    a.srd(rK, 4, SZ_ACT); a.srd(rV, 6, SZ_ACT); a.srd(rSH, 8, D*8)
    a.srd_off(rU, 10, OFF_UR, D*8192)
    a.e(f"""
    s_lshl_b32 s40, s37, 5
    v_lshl_add_u32 v4, v3, 3, s40
    s_lshl_b32 s41, s39, 6
    v_lshl_add_u32 v5, v2, 2, s41
    v_mul_u32_u24 v6, 1152, v4
    v_lshl_add_u32 v7, v5, 1, v6
    v_subrev_u32 v6, 4608, v7
    v_add_u32 v8, 4608, v7
    v_lshlrev_b32 v9, 3, v5
    """)
    KR, VR, WR = 16, 40, 60
    a.vmem(f"buffer_load_dwordx4 {vr(WR)}, v9, s[{rSH}:{rSH+3}], 0 offen")
    a.vmem(f"buffer_load_dwordx4 {vr(WR+4)}, v9, s[{rSH}:{rSH+3}], 0 offen offset:16")
    for r in range(12):
        a.vmem(f"buffer_load_dwordx2 {vr(KR+2*r,2)}, v{6+r//4}, s[{rK}:{rK+3}], 0 offen offset:{(r%4)*1152}")
    for r in range(9):
        rr = r + 3
        a.vmem(f"buffer_load_dwordx2 {vr(VR+2*r,2)}, v{6+rr//4}, s[{rV}:{rV+3}], 0 offen offset:{(rr%4)*1152}")
    a.e(f"""
    v_lshlrev_b32 v10, 13, v5
    v_sub_u32 v11, 2040, v4
    v_lshl_add_u32 v10, v11, 1, v10
    s_mov_b32 s42, 0
    """)
    a.wait_vm0()
    KF, WFl, U, VF, P = 72, 84, 88, 100, 112
    for ch in range(4):
        un = (lambda d, s: f"v_lshlrev_b32 v{d}, 16, v{s}") if ch % 2 == 0 else (lambda d, s: f"v_and_b32 v{d}, 0xffff0000, v{s}")
        for r in range(12): a.e(un(KF+r, KR+2*r+ch//2))
        for r in range(9): a.e(un(VF+r, VR+2*r+ch//2))
        a.e(f"v_lshlrev_b32 v{WFl}, 16, v{WR+2*ch}")
        a.e(f"v_and_b32 v{WFl+1}, 0xffff0000, v{WR+2*ch}")
        a.e(f"v_lshlrev_b32 v{WFl+2}, 16, v{WR+2*ch+1}")
        a.e(f"v_and_b32 v{WFl+3}, 0xffff0000, v{WR+2*ch+1}")
        for e in range(9): a.e(f"v_mul_f32 v{U+e}, v{KF+e}, v{WFl+3}")
        for j in (2, 1, 0):
            for e in range(9): a.e(f"v_fma_f32 v{U+e}, v{KF+e+3-j}, v{WFl+j}, v{U+e}")
        for e in range(9): a.e(f"v_mul_f32 v{U+e}, v{U+e}, v{VF+e}")
        PP = P + ch*8
        for m in range(4):
            a.e(f"v_cvt_pk_bf16_f32 v{PP+m}, v{U+8-2*m}, v{U+7-2*m}")
            a.e(f"v_cvt_pk_bf16_f32 v{PP+4+m}, v{U+7-2*m}, v{U+6-2*m}")
        a.e(f"buffer_store_dwordx4 {vr(PP)}, v10, s[{rU}:{rU+3}], s42 offen")
        a.e(f"s_add_u32 s42, s42, 4096")
        a.e(f"buffer_store_dwordx4 {vr(PP+4)}, v10, s[{rU}:{rU+3}], s42 offen")
        a.e(f"s_add_u32 s42, s42, 4096")
    a.e(f"s_branch {done}")

def colsum3(a, done):
    a.reset()
    rW, rC = 16, 20
    a.ldarg(4, "w3"); a.ldarg(10, "ws")
    a.e(f"""
    v_lshrrev_b32 v1, 3, v0
    v_and_b32 v2, 7, v0
    v_mul_u32_u24 v3, 9216, v1
    v_lshl_add_u32 v3, v2, 4, v3
    s_lshl_b32 s36, s3, 7
    s_waitcnt lgkmcnt(0)
    """)
    a.srd(rW, 4, D*F*2)
    a.srd_off(rC, 10, OFF_CS3, F*4)
    for i in range(18):
        a.vmem(f"buffer_load_dwordx4 {vr(16+4*i)}, v3, s[{rW}:{rW+3}], s36 offen", i)
        a.e(f"s_add_u32 s36, s36, {32*9216}")
    for i in range(18):
        a.wait_vm(i)
        for r in range(4):
            x = 16+4*i+r
            if i == 0:
                a.e(f"v_lshlrev_b32 v{8+2*r}, 16, v{x}")
                a.e(f"v_and_b32 v{9+2*r}, 0xffff0000, v{x}")
            else:
                a.e(f"v_lshlrev_b32 v4, 16, v{x}")
                a.e(f"v_and_b32 v5, 0xffff0000, v{x}")
                a.e(f"v_add_f32 v{8+2*r}, v{8+2*r}, v4")
                a.e(f"v_add_f32 v{9+2*r}, v{9+2*r}, v5")
    a.e(f"""
    v_lshlrev_b32 v4, 5, v0
    ds_write_b128 v4, v[8:11]
    ds_write_b128 v4, v[12:15] offset:16
    s_waitcnt lgkmcnt(0)
    s_barrier
    v_cmp_gt_u32 vcc, 64, v0
    s_and_saveexec_b64 s[52:53], vcc
    s_cbranch_execz {done}
    v_lshlrev_b32 v4, 2, v0
    """)
    for half in range(2):
        for r in range(16):
            a.e(f"ds_read_b32 v{16+r}, v4 offset:{(half*16+r)*256}")
            if r == 7: a.e("s_waitcnt lgkmcnt(0)")
        a.e("s_waitcnt lgkmcnt(0)")
        for r in range(16):
            if half == 0 and r == 0: a.e("v_mov_b32 v8, v16")
            else: a.e(f"v_add_f32 v8, v8, v{16+r}")
    a.e(f"s_lshl_b32 s36, s3, 8")
    a.e(f"buffer_store_dword v8, v4, s[{rC}:{rC+3}], s36 offen")
    a.e(f"s_branch {done}")

def conv(a, done):
    a.reset()
    rU, rH, rZ = 16, 20, 24
    RS = 13120
    a.ldarg(4, "ssmk"); a.ldarg(6, "ssmD"); a.ldarg(10, "ws")
    a.e(f"""
    v_lshrrev_b32 v1, 6, v0
    v_and_b32 v0, 63, v0
    v_readfirstlane_b32 s38, v1
    v_and_b32 v2, 15, v0
    v_lshrrev_b32 v3, 4, v0
    s_lshl_b32 s36, s3, 2
    s_add_u32 s36, s36, s38
    s_mul_i32 s39, s38, {RS}
    s_lshl_b32 s40, s3, 3
    s_waitcnt lgkmcnt(0)
    s_load_dwordx2 s[44:45], s[6:7], s40
    """)
    a.srd(rH, 4, D*S*2)
    a.srd_off(rU, 10, OFF_UR, D*8192)
    a.srd_off(rZ, 10, OFF_Z4, SZ_ACT)
    a.e(f"""
    v_lshlrev_b32 v4, 4, v0
    s_lshl_b32 s41, s36, 13
    s_lshl_b32 s42, s36, 12
    s_mov_b32 m0, s39
    s_add_u32 s43, s41, 4096
    """)
    for i in range(4):
        a.vmem(f"buffer_load_dwordx4 v4, s[{rU}:{rU+3}], s41 offen offset:{i*1024} lds")
    a.e(f"s_add_u32 m0, s39, 4160")
    a.e("s_nop 0")
    for i in range(4):
        a.vmem(f"buffer_load_dwordx4 v4, s[{rU}:{rU+3}], s43 offen offset:{i*1024} lds")
    a.e(f"s_add_u32 m0, s39, {8320+512}")
    a.e("s_nop 0")
    for i in range(4):
        a.vmem(f"buffer_load_dwordx4 v4, s[{rH}:{rH+3}], s42 offen offset:{i*1024} lds")
    a.e(f"""
    v_mov_b32 v8, 0
    v_mov_b32 v9, 0
    v_mov_b32 v10, 0
    v_mov_b32 v11, 0
    v_add_u32 v5, s39, v4
    v_cmp_gt_u32 vcc, 36, v0
    s_and_saveexec_b64 s[52:53], vcc
    ds_write_b128 v5, v[8:11] offset:8256
    v_cmp_gt_u32 vcc, 4, v0
    s_and_b64 exec, exec, vcc
    ds_write_b128 v5, v[8:11] offset:4096
    s_mov_b64 exec, s[52:53]
    """)
    a.e(f"""
    v_or_b32 v5, 1, v2
    v_sub_u32 v5, 15, v5
    v_lshl_add_u32 v5, v3, 3, v5
    v_lshlrev_b32 v5, 1, v5
    v_and_b32 v6, 1, v2
    v_xor_b32 v6, 1, v6
    v_mul_u32_u24 v6, 4160, v6
    v_add3_u32 v12, v5, v6, s39
    v_add_u32 v13, 1024, v12
    v_add_u32 v14, 2048, v12
    v_add_u32 v15, 3072, v12
    v_lshlrev_b32 v5, 5, v2
    v_lshl_add_u32 v5, v3, 4, v5
    v_add_u32 v7, s39, v5
    v_add_u32 v7, {8320+32}, v7
    """)
    a.stamp(0)
    a.e("s_waitcnt vmcnt(0) lgkmcnt(0)"); a.reset()
    a.stamp(1)
    ACC = 16; FB = 48
    def loads(rho):
        buf = FB + (rho & 1) * 64
        out = []
        for x in range(8):
            p = 8*x + rho
            boff = 64*(63-p)
            base = 12 + boff // 1024
            o = (boff % 1024) // 4
            out.append((f"ds_read2_b32 {vr(buf+x*4,2)}, v{base} offset0:{o} offset1:{o+1}", f"r{rho}"))
            out.append((f"ds_read2_b32 {vr(buf+x*4+2,2)}, v{base} offset0:{o+2} offset1:{o+3}", f"r{rho}"))
            n = 8*x - rho
            out.append((f"ds_read_b128 {vr(buf+32+x*4)}, v7 offset:{64*(n+7)}", f"r{rho}"))
        return out
    for (s, t) in loads(0):
        a.lds(s, t)
        if len(a.lg) >= 12: a.wait_lg0()
    for rho in range(8):
        a.wait_lg0()
        buf = FB + (rho & 1) * 64
        nxt = loads(rho+1) if rho < 7 else []
        k = 0; cnt = 0
        for c in range(8):
            for x in range(c+1):
                first = (rho == 0 and x == 0)
                a.mfma(vr(ACC+c*4), vr(buf+x*4), vr(buf+32+(c-x)*4), "0" if first else None)
                cnt += 1
                if k < len(nxt) and cnt <= 30:
                    a.lds(*nxt[k]); k += 1
                    if k in (12,):
                        pass
        assert k == len(nxt)
    a.stamp(2)
    a.e(f"""
    v_lshlrev_b32 v5, 5, v2
    v_lshl_add_u32 v5, v3, 3, v5
    v_sub_u32 v6, 504, v5
    v_add_u32 v6, s39, v6
    v_add_u32 v5, s39, v5
    s_lshr_b32 s46, s38, 1
    s_cmp_eq_u32 s46, 0
    s_cselect_b32 s44, s44, s45
    s_bitcmp1_b32 s38, 0
    s_cselect_b32 s46, 0, 16
    s_lshl_b32 s44, s44, s46
    s_and_b32 s44, s44, 0xffff0000
    """)
    U = 48
    for c in range(8):
        a.e(f"ds_read_b64 {vr(U+2*c,2)}, v6 offset:{512*(7-c)}")
    a.e("s_waitcnt lgkmcnt(0)")
    a.e("s_nop 7")
    for c in range(8):
        acc = ACC + c*4; t = 64 + c*8
        a.e(f"v_and_b32 v{t}, 0xffff0000, v{U+2*c+1}")
        a.e(f"v_lshlrev_b32 v{t+1}, 16, v{U+2*c+1}")
        a.e(f"v_and_b32 v{t+2}, 0xffff0000, v{U+2*c}")
        a.e(f"v_lshlrev_b32 v{t+3}, 16, v{U+2*c}")
        for r in range(4): a.e(f"v_mul_f32 v{t+r}, s44, v{t+r}")
        a.e(f"v_cvt_pk_bf16_f32 v{t+4}, v{t}, v{t+1}")
        a.e(f"v_cvt_pk_bf16_f32 v{t+5}, v{t+2}, v{t+3}")
        a.e(f"v_cvt_pk_bf16_f32 v{t+6}, v{acc}, v{acc+1}")
        a.e(f"v_cvt_pk_bf16_f32 v{t+7}, v{acc+2}, v{acc+3}")
        a.e(f"v_lshlrev_b32 v{t}, 16, v{t+4}")
        a.e(f"v_and_b32 v{t+1}, 0xffff0000, v{t+4}")
        a.e(f"v_lshlrev_b32 v{t+2}, 16, v{t+5}")
        a.e(f"v_and_b32 v{t+3}, 0xffff0000, v{t+5}")
        a.e(f"v_lshlrev_b32 v{acc}, 16, v{t+6}")
        a.e(f"v_and_b32 v{acc+1}, 0xffff0000, v{t+6}")
        a.e(f"v_lshlrev_b32 v{acc+2}, 16, v{t+7}")
        a.e(f"v_and_b32 v{acc+3}, 0xffff0000, v{t+7}")
        for r in range(4): a.e(f"v_add_f32 v{t+r}, v{t+r}, v{acc+r}")
        a.e(f"v_cvt_pk_bf16_f32 v{t+4}, v{t}, v{t+1}")
        a.e(f"v_cvt_pk_bf16_f32 v{t+5}, v{t+2}, v{t+3}")
        a.e(f"ds_write_b64 v5, {vr(t+4,2)} offset:{8320+512*c}")
    a.e("s_waitcnt lgkmcnt(0)")
    a.e("s_barrier")
    a.e(f"""
    v_bfe_u32 v5, v0, 2, 2
    v_mul_u32_u24 v5, {RS}, v5
    v_lshl_add_u32 v5, v3, 5, v5
    v_and_b32 v6, 3, v0
    v_lshl_add_u32 v5, v6, 3, v5
    s_lshl_b32 s46, s38, 10
    v_add_u32 v5, s46, v5
    v_lshlrev_b32 v6, 3, v0
    s_lshl_b32 s47, s3, 14
    s_lshl_b32 s46, s38, 12
    s_add_u32 s47, s47, s46
    """)
    for j in range(8):
        a.e(f"ds_read_b64_tr_b16 {vr(16+2*j,2)}, v5 offset:{8320+128*j}")
    a.e("s_waitcnt lgkmcnt(0)")
    for j in range(8):
        a.e(f"buffer_store_dwordx2 {vr(16+2*j,2)}, v6, s[{rZ}:{rZ+3}], s47 offen offset:{512*j}")
    a.e(f"s_branch {done}")

def k3(a):
    name = "k3_kernel"
    a.launch(name, (256,1,1), 512, 156672)
    a.begin(name)
    a.reset()
    done = "k3_done"
    rW, rX, rH, rS, rC = 16, 20, 24, 28, 32
    a.e(f"s_cmp_ge_u32 s2, 256")
    a.e(f"s_cbranch_scc1 {done}_x")
    a.pstart()
    a.ldarg(4, "w3"); a.ldarg(10, "ws")
    a.e(f"""
    s_and_b32 s40, s2, 7
    s_lshr_b32 s41, s2, 3
    s_and_b32 s36, s40, 1
    s_lshl_b32 s36, s36, 2
    s_and_b32 s42, s41, 3
    s_add_u32 s36, s36, s42
    s_lshr_b32 s37, s40, 1
    s_lshl_b32 s37, s37, 3
    s_lshr_b32 s42, s41, 2
    s_add_u32 s37, s37, s42
    v_lshrrev_b32 v1, 6, v0
    v_mov_b32 v4, v0
    v_readfirstlane_b32 s38, v1
    v_and_b32 v0, 63, v0
    v_and_b32 v2, 15, v0
    v_lshrrev_b32 v3, 4, v0
    """)
    a.e(f"""
    v_mul_u32_u24 v5, 3641, v4
    v_lshrrev_b32 v5, 16, v5
    v_mul_u32_u24 v6, 18, v5
    v_sub_u32 v6, v4, v6
    v_mul_u32_u24 v5, 9216, v5
    v_lshl_add_u32 v5, v6, 4, v5
    s_mul_i32 s42, s37, 288
    v_add_u32 v5, s42, v5
    s_lshl_b32 s43, s36, 4
    s_lshl_b32 s44, s38, 1
    s_add_u32 s43, s43, s44
    s_mul_i32 s45, s43, 18432
    v_lshl_add_u32 v7, v0, 4, s45
    s_lshl_b32 s47, s38, 10
    s_waitcnt lgkmcnt(0)
    """)
    a.srd(rW, 4, D*F*2)
    a.srd_off(rX, 10, OFF_X1, SZ_ACT)
    a.srd_off(rH, 10, OFF_H2, S*F*2)
    a.srd_off(rS, 10, OFF_ST, 9*S*8)
    a.srd_off(rC, 10, OFF_CS3, F*4)
    XF, ACC, WF = 16, 160, 232
    def adv():
        a.e(f"""
        v_add_u32 v6, 8, v6
        v_add_u32 v5, {28*9216+128}, v5
        v_cmp_le_u32 vcc, 18, v6
        v_subrev_u32 v8, 18, v6
        v_add_u32 v9, {9216-288}, v5
        v_cndmask_b32 v6, v6, v8, vcc
        v_cndmask_b32 v5, v5, v9, vcc
        """)
    a.e("s_mov_b32 s49, 0")
    a.e("s_mov_b32 s50, 18432")
    m = 0
    for ks in range(18):
        need = (9*ks + 8) // 8
        while m <= min(need, 18):
            a.e(f"s_add_u32 m0, s47, {m*8192}")
            a.e("s_nop 0")
            a.vmem(f"buffer_load_dwordx4 v5, s[{rW}:{rW+3}], 0 offen lds", f"k{ks}")
            adv()
            m += 1
        a.vmem(f"buffer_load_dwordx4 {vr(XF+ks*8)}, v7, s[{rX}:{rX+3}], s49 offen", f"k{ks}")
        a.vmem(f"buffer_load_dwordx4 {vr(XF+ks*8+4)}, v7, s[{rX}:{rX+3}], s50 offen", f"k{ks}")
        a.e("s_add_u32 s49, s49, 1024")
        a.e("s_add_u32 s50, s50, 1024")
    assert m == 19
    a.e(f"""
    v_lshrrev_b32 v10, 2, v0
    v_mul_u32_u24 v10, 288, v10
    v_and_b32 v11, 3, v0
    v_lshl_add_u32 v10, v11, 3, v10
    v_add_u32 v11, {7*9216}, v10
    v_add_u32 v12, {14*9216}, v10
    """)
    a.stamp(0)
    groups = [[0], [1], [2, 3], [4, 5, 6], [7, 8, 9, 10], [11, 12, 13, 14, 15], [16, 17]]
    seq = []
    fi = 0
    def wread(ks, t, slot):
        sl = ks if ks < 17 else 0
        base = 10 + sl // 7
        off = (sl % 7) * 9216 + t * 32
        a.lds(f"ds_read_b64_tr_b16 {vr(WF+slot*4,2)}, v{base} offset:{off}", (ks, t))
        a.lds(f"ds_read_b64_tr_b16 {vr(WF+slot*4+2,2)}, v{base} offset:{off+16*288}", (ks, t))
    for gi, g in enumerate(groups):
        if g[0] == 16:
            a.wait_vm0()
        else:
            a.wait_vm(f"k{g[-1]}")
        a.e("s_barrier")
        a.stamp(1+gi)
        if gi == 2:
            a.e(f"s_sub_u32 s51, s47, 1024")
            a.e(f"s_cmp_eq_u32 s38, 0")
            a.e(f"s_cselect_b32 m0, {152*1024}, s51")
            a.e("s_nop 0")
            a.vmem(f"buffer_load_dwordx4 v5, s[{rW}:{rW+3}], 0 offen lds", "late")
            adv()
            lab = a.newlabel("k3s")
            a.e(f"s_cmp_ge_u32 s38, 2")
            a.e(f"s_cbranch_scc1 {lab}")
            a.e(f"s_add_u32 m0, s47, {7*1024}")
            a.e("s_nop 0")
            a.e(f"buffer_load_dwordx4 v5, s[{rW}:{rW+3}], 0 offen lds")
            a.label(lab)
        items = [(ks, t) for ks in g for t in range(9)]
        PD = 5
        for j in range(min(PD, len(items))):
            wread(items[j][0], items[j][1], (fi + j) % 6)
        for j, (ks, t) in enumerate(items):
            a.wait_lg((ks, t))
            slot = (fi + j) % 6
            for tt in range(2):
                a.mfma(vr(ACC+(t*2+tt)*4), vr(WF+slot*4), vr(XF+ks*8+tt*4), "0" if ks == 0 else None)
            if j + PD < len(items):
                wread(items[j+PD][0], items[j+PD][1], (fi + j + PD) % 6)
        fi += len(items)
        if g[-1] == 6:
            a.e(f"s_lshl_b32 s45, s43, 4")
            a.e(f"v_add_u32 v13, s45, v2")
            a.e(f"v_lshlrev_b32 v13, 3, v13")
            a.e("s_mov_b32 s46, 0")
            for n in range(9):
                for tt in range(2):
                    a.vmem(f"buffer_load_dwordx2 {vr(16+(tt*9+n)*2,2)}, v13, s[{rS}:{rS+3}], s46 offen offset:{tt*128}", "st")
                a.e(f"s_add_u32 s46, s46, 16384")
        if g[-1] == 10:
            a.e(f"s_mul_i32 s46, s37, 576")
            a.e(f"v_lshlrev_b32 v13, 4, v3")
            for t in range(9):
                a.vmem(f"buffer_load_dwordx4 {vr(52+t*4)}, v13, s[{rC}:{rC+3}], s46 offen offset:{t*64}", "cs")
    a.stamp(8)
    C = 88
    for tt in range(2):
        b = 16 + tt*18
        for n in range(1, 9):
            a.e(f"v_add_f32 v{b}, v{b}, v{b+2*n}")
            a.e(f"v_add_f32 v{b+1}, v{b+1}, v{b+2*n+1}")
        a.ln_consts(b, b+1, C+tt*4, C+tt*4+1, C+tt*4+2, C+tt*4+3, 14)
    a.e(f"""
    s_mul_i32 s45, s43, 147456
    s_lshr_b32 s46, s37, 3
    s_mul_i32 s46, s46, {36*1024}
    s_add_u32 s45, s45, s46
    s_and_b32 s46, s37, 7
    s_lshl_b32 s48, s46, 12
    s_add_u32 s48, s48, s45
    s_add_u32 s49, s48, 147456
    s_lshr_b32 s50, s46, 1
    s_add_u32 s50, s50, 32
    s_lshl_b32 s50, s50, 10
    s_and_b32 s46, s46, 1
    s_lshl_b32 s46, s46, 3
    s_add_u32 s50, s50, s46
    s_add_u32 s50, s50, s45
    s_add_u32 s51, s50, 147456
    v_lshlrev_b32 v13, 4, v0
    """)
    a.stamp(9)
    T = 96; P = 112
    for t in range(9):
        seqs = []
        for tt in range(2):
            for r in range(4):
                acc = ACC + (t*2+tt)*4 + r
                seqs.append([f"v_fma_f32 v{acc}, v{C+tt*4}, v{52+t*4+r}, v{acc}"] +
                            a.gelu_seq(acc, T+tt*4+r, C+tt*4+1, C+tt*4+2, C+tt*4+3))
        for x in interleave(seqs): a.e(x)
        for tt in range(2):
            pp = P + ((t >> 1) & 1)*8 + tt*4 + (t & 1)*2
            a.e(f"v_cvt_pk_bf16_f32 v{pp}, v{T+tt*4}, v{T+tt*4+1}")
            a.e(f"v_cvt_pk_bf16_f32 v{pp+1}, v{T+tt*4+2}, v{T+tt*4+3}")
        for tt in range(2):
            pb = P + ((t >> 1) & 1)*8 + tt*4
            if t & 1:
                a.e(f"buffer_store_dwordx4 {vr(pb)}, v13, s[{rH}:{rH+3}], s{48+tt} offen offset:{(t>>1)*1024}")
            elif t == 8:
                a.e(f"buffer_store_dwordx2 {vr(pb,2)}, v13, s[{rH}:{rH+3}], s{50+tt} offen")
    a.label(done)
    a.pend(int(name[1]))
    a.label(done + "_x")
    a.e("s_endpgm")
    a.end(name, 256, 102)

def k4(a):
    name = "k4_kernel"
    a.launch(name, (256,1,1), 256, 147456)
    a.begin(name)
    a.reset()
    done = "k4_done"
    rW, rH, rP = 16, 20, 24
    a.e(f"s_cmp_ge_u32 s2, 256")
    a.e(f"s_cbranch_scc1 {done}_x")
    a.pstart()
    a.ldarg(4, "w4"); a.ldarg(10, "ws")
    a.e(f"""
    s_and_b32 s40, s2, 7
    s_lshr_b32 s41, s2, 3
    s_lshr_b32 s39, s40, 1
    s_and_b32 s36, s40, 1
    s_lshl_b32 s36, s36, 3
    s_lshr_b32 s42, s41, 2
    s_add_u32 s36, s36, s42
    s_and_b32 s37, s41, 3
    v_lshrrev_b32 v1, 6, v0
    v_and_b32 v0, 63, v0
    v_readfirstlane_b32 s38, v1
    """)
    VO, VL = 8, 17
    for i in range(9):
        a.e(f"""
        v_add_u32 v1, {64*i}, v0
        v_mul_u32_u24 v2, 3641, v1
        v_lshrrev_b32 v2, 16, v2
        v_mul_u32_u24 v3, 18, v2
        v_sub_u32 v3, v1, v3
        v_mul_u32_u24 v1, 1152, v2
        v_lshl_add_u32 v{VO+i}, v3, 4, v1
        v_lshrrev_b32 v2, 4, v2
        v_mul_u32_u24 v2, {128*1152}, v2
        v_add_u32 v{VL+i}, v{VO+i}, v2
        """)
    a.e(f"""
    s_mul_i32 s44, s39, {1152*1152}
    s_mul_i32 s45, s37, 288
    s_add_u32 s44, s44, s45
    s_mul_i32 s45, s38, {32*1152}
    s_add_u32 s46, s44, s45
    s_mul_i32 s45, s38, {288*1152}
    s_add_u32 s47, s44, s45
    s_add_u32 s47, s47, {128*1152}
    s_mul_i32 s48, s38, 9216
    s_lshl_b32 s43, s36, 3
    s_lshl_b32 s45, s38, 1
    s_add_u32 s43, s43, s45
    s_mul_i32 s49, s43, 147456
    s_mul_i32 s45, s39, {36*1024}
    s_add_u32 s49, s49, s45
    s_add_u32 s50, s49, 147456
    v_lshlrev_b32 v1, 4, v0
    v_lshrrev_b32 v4, 2, v0
    v_mul_u32_u24 v4, 288, v4
    v_and_b32 v2, 3, v0
    v_lshl_add_u32 v4, v2, 3, v4
    v_add_u32 v5, {36864}, v4
    v_add_u32 v6, {2*36864}, v4
    v_add_u32 v7, {3*36864}, v4
    s_waitcnt lgkmcnt(0)
    """)
    a.srd(rW, 4, F*D*2)
    a.srd_off(rH, 10, OFF_H2, S*F*2)
    a.srd_off(rP, 10, OFF_PART, 4*S*D*4)
    XF, WF = 28, 124
    NWF = 8
    ar = lambda b: f"a[{b}:{b+3}]"
    def dma(s, i):
        slot = s % 4
        a.e(f"s_add_u32 m0, s48, {slot*36864 + i*1024}")
        a.e("s_nop 0")
        if s < 8:
            a.vmem(f"buffer_load_dwordx4 v{VO+i}, s[{rW}:{rW+3}], s46 offen lds", f"w{s}")
            if i == 8: a.e(f"s_add_u32 s46, s46, {144*1152}")
        else:
            a.vmem(f"buffer_load_dwordx4 v{VL+i}, s[{rW}:{rW+3}], s47 offen lds", f"w{s}")
    def xld(s, j, tt):
        b = XF + (s % 3)*32 + j*8 + tt*4
        a.vmem(f"buffer_load_dwordx4 {vr(b)}, v1, s[{rH}:{rH+3}], s{49+tt} offen offset:{j*1024}", f"x{s}")
        if j == 3: a.e(f"s_add_u32 s{49+tt}, s{49+tt}, 4096")
    for s in range(4):
        for i in range(9): dma(s, i)
        if s < 3:
            for j in range(4):
                for tt in range(2): xld(s, j, tt)
    items = [(s, j, t) for s in range(9) for j in range(4) for t in range(9)]
    def wread(n):
        s, j, t = items[n]
        base = 4 + s % 4
        off = j*9216 + t*32
        r = WF + (n % NWF)*4
        a.lds(f"ds_read_b64_tr_b16 {vr(r,2)}, v{base} offset:{off}", n)
        a.lds(f"ds_read_b64_tr_b16 {vr(r+2,2)}, v{base} offset:{off+16*288}", n)
    PD = 7
    a.stamp(0)
    a.wait_vm("w0")
    a.e("s_barrier")
    a.stamp(1)
    for n in range(PD): wread(n)
    for n, (s, j, t) in enumerate(items):
        if j == 0 and t == 0:
            a.wait_vm_if(f"x{s}")
        a.wait_lg(n)
        r = WF + (n % NWF)*4
        for tt in range(2):
            a.mfma(ar((t*2+tt)*4), vr(r), vr(XF+(s%3)*32+j*8+tt*4), "0" if (s == 0 and j == 0) else None)
        nn = n + PD
        if nn < len(items):
            if items[nn][1] == 0 and items[nn][2] == 0:
                a.wait_vm_if(f"w{s+1}")
                a.e("s_barrier")
                a.stamp(2+s)
            wread(nn)
        idx = j*9 + t
        if s >= 2 and s + 2 <= 8 and idx < 27 and idx % 3 == 0:
            dma(s+2, idx // 3)
        if s >= 1 and s + 2 <= 8 and idx < 24 and idx % 3 == 1:
            q = idx // 3
            xld(s+2, q >> 1, q & 1)
    a.e("s_nop 7")
    a.e("s_nop 1")
    a.stamp(10)
    a.e(f"""
    s_lshl_b32 s44, s39, 7
    s_add_u32 s44, s44, s43
    s_mul_i32 s44, s44, 36
    s_mul_i32 s45, s37, 9
    s_add_u32 s44, s44, s45
    s_lshl_b32 s44, s44, 10
    s_add_u32 s45, s44, {36*1024}
    """)
    for t in range(9):
        for tt in range(2):
            a.e(f"buffer_store_dwordx4 {ar((t*2+tt)*4)}, v1, s[{rP}:{rP+3}], s{44+tt} offen offset:{(t%4)*1024}")
        if t % 4 == 3:
            a.e("s_add_u32 s44, s44, 4096")
            a.e("s_add_u32 s45, s45, 4096")
    a.label(done)
    a.pend(int(name[1]))
    a.label(done + "_x")
    a.e("s_endpgm")
    a.end(name, 160+72, 102, accum=160)

def k5(a):
    name = "k5_kernel"
    a.launch(name, (288,1,1), 256, 0)
    a.begin(name)
    a.reset()
    done = "k5_done"
    rP, rX, rQ, rZ, rG, rO = 16, 20, 24, 28, 32, 44
    a.e(f"s_cmp_ge_u32 s2, 288")
    a.e(f"s_cbranch_scc1 {done}_x")
    a.pstart()
    a.ldarg(4, "q"); a.ldarg(6, "out"); a.ldarg(10, "ws")
    a.e(f"""
    s_mul_i32 s36, s2, 7282
    s_lshr_b32 s36, s36, 16
    s_mul_i32 s37, s36, 9
    s_sub_u32 s37, s2, s37
    v_lshrrev_b32 v1, 6, v0
    v_and_b32 v0, 63, v0
    v_readfirstlane_b32 s38, v1
    v_and_b32 v2, 15, v0
    v_lshrrev_b32 v3, 4, v0
    s_lshl_b32 s39, s36, 2
    s_add_u32 s39, s39, s38
    v_lshlrev_b32 v1, 4, v0
    s_waitcnt lgkmcnt(0)
    """)
    a.srd_off(rP, 10, OFF_PART, 4*S*D*4)
    a.srd_off(rX, 10, OFF_X1, SZ_ACT)
    a.srd_off(rZ, 10, OFF_Z4, SZ_ACT)
    a.srd_off(rG, 10, OFF_G, S*4)
    a.srd(rQ, 4, SZ_ACT)
    a.srd(rO, 6, SZ_ACT)
    a.e(f"""
    s_mul_i32 s40, s39, 36
    s_lshl_b32 s41, s37, 2
    s_add_u32 s40, s40, s41
    s_lshl_b32 s40, s40, 10
    s_mul_i32 s41, s39, 18432
    s_lshl_b32 s42, s37, 11
    s_add_u32 s41, s41, s42
    s_lshl_b32 s42, s39, 4
    v_add_u32 v4, s42, v2
    v_lshlrev_b32 v5, 2, v4
    v_mul_u32_u24 v6, 1152, v4
    v_lshl_add_u32 v6, v3, 3, v6
    s_lshl_b32 s42, s37, 7
    v_lshlrev_b32 v7, 3, v4
    v_lshl_add_u32 v7, v3, 14, v7
    s_lshl_b32 s43, s37, 18
    """)
    PA, X1, Q, Z, G = 16, 80, 88, 96, 104
    a.vmem(f"buffer_load_dword v{G}, v5, s[{rG}:{rG+3}], 0 offen")
    for i in range(2):
        a.vmem(f"buffer_load_dwordx4 {vr(X1+4*i)}, v1, s[{rX}:{rX+3}], s41 offen offset:{i*1024}")
    for i in range(4):
        a.vmem(f"buffer_load_dwordx2 {vr(Q+2*i,2)}, v6, s[{rQ}:{rQ+3}], s42 offen offset:{i*32}")
        a.vmem(f"buffer_load_dwordx2 {vr(Z+2*i,2)}, v7, s[{rZ}:{rZ+3}], s43 offen")
        a.e(f"s_add_u32 s43, s43, 65536")
    for sp in range(4):
        for i in range(4):
            a.vmem(f"buffer_load_dwordx4 {vr(PA+(sp*4+i)*4)}, v1, s[{rP}:{rP+3}], s40 offen offset:{i*1024}")
        a.e(f"s_add_u32 s40, s40, {128*36*1024}")
    a.e("s_waitcnt vmcnt(16)")
    a.e(f"v_sub_f32 v{G+1}, 1.0, v{G}")
    a.bf16r(G+1, G+1)
    T = 108
    GA = 124
    def unpack(d, s):
        a.e(f"v_lshlrev_b32 v{d}, 16, v{s}")
        a.e(f"v_and_b32 v{d+1}, 0xffff0000, v{s}")
        a.e(f"v_lshlrev_b32 v{d+2}, 16, v{s+1}")
        a.e(f"v_and_b32 v{d+3}, 0xffff0000, v{s+1}")
    def rnd4(d, t):
        a.e(f"v_cvt_pk_bf16_f32 v{t}, v{d}, v{d+1}")
        a.e(f"v_cvt_pk_bf16_f32 v{t+1}, v{d+2}, v{d+3}")
        unpack(d, t)
    for i in range(4):
        g = GA + i*4
        unpack(g, Q+2*i)
        unpack(T, Z+2*i)
        for r in range(4): a.e(f"v_mul_f32 v{g+r}, v{g+r}, v{T+r}")
        rnd4(g, T+4)
        for r in range(4): a.e(f"v_mul_f32 v{g+r}, v{G}, v{g+r}")
        rnd4(g, T+4)
    a.e("s_waitcnt vmcnt(0)")
    for i in range(4):
        p = PA + i*4
        for r in range(4):
            a.e(f"v_add_f32 v{p+r}, v{p+r}, v{p+16+r}")
            a.e(f"v_add_f32 v{p+32+r}, v{p+32+r}, v{p+48+r}")
        for r in range(4):
            a.e(f"v_add_f32 v{p+r}, v{p+r}, v{p+32+r}")
        rnd4(p, T+4)
        unpack(T, X1+2*i)
        for r in range(4): a.e(f"v_add_f32 v{p+r}, v{p+r}, v{T+r}")
        rnd4(p, T+4)
        for r in range(4): a.e(f"v_mul_f32 v{p+r}, v{G+1}, v{p+r}")
        rnd4(p, T+4)
        for r in range(4): a.e(f"v_add_f32 v{p+r}, v{p+r}, v{GA+i*4+r}")
        o = 140 + 2*i
        a.e(f"v_cvt_pk_bf16_f32 v{o}, v{p}, v{p+1}")
        a.e(f"v_cvt_pk_bf16_f32 v{o+1}, v{p+2}, v{p+3}")
        a.e(f"buffer_store_dwordx2 {vr(o,2)}, v6, s[{rO}:{rO+3}], s42 offen offset:{i*32}")
    a.label(done)
    a.pend(int(name[1]))
    a.label(done + "_x")
    a.e("s_endpgm")
    a.end(name, 148, 102)

def k1(a):
    name = "k1_kernel"
    a.launch(name, (360,1,1), 256, 77824)
    a.begin(name)
    done = "k1_done"
    a.e(f"""
    s_cmp_ge_u32 s2, 360
    s_cbranch_scc1 {done}_x
    """)
    a.pstart()
    a.e(f"""
    s_cmp_ge_u32 s2, 288
    s_cbranch_scc1 k1_cs
    s_cmp_ge_u32 s2, 144
    s_cbranch_scc1 k1_prep
    s_mov_b32 s3, s2
    """)
    small_gemm(a, 1, done)
    a.label("k1_prep")
    a.e("s_sub_u32 s3, s2, 144")
    prep(a, done)
    a.label("k1_cs")
    a.e("s_sub_u32 s3, s2, 288")
    colsum3(a, done)
    a.label(done)
    a.pend(int(name[1]))
    a.label(done + "_x")
    a.e("s_endpgm")
    a.end(name, 256, 102)

def k2(a):
    name = "k2_kernel"
    a.launch(name, (288,1,1), 256, 73728)
    a.begin(name)
    done = "k2_done"
    a.e(f"""
    s_cmp_ge_u32 s2, 288
    s_cbranch_scc1 {done}_x
    """)
    a.pstart()
    a.e(f"""
    s_cmp_ge_u32 s2, 144
    s_cbranch_scc1 k2_conv
    s_mov_b32 s3, s2
    """)
    small_gemm(a, 2, done)
    a.label("k2_conv")
    a.e("s_sub_u32 s3, s2, 144")
    conv(a, done)
    a.label(done)
    a.pend(int(name[1]))
    a.label(done + "_x")
    a.e("s_endpgm")
    a.end(name, 256, 102)

HEADER = """; gated_mix__ssm_conv_h3__mixer_s_mlp__prompt : generated by dev/gen.py (hand-written generator)
; kernarg: q,k,v,shift_k,ssm_k,ssm_D,B_x,w1,w2,w3,w4,gate_w,out,debug,ws (8 bytes each)"""

def build(path, prof=False):
    a = K()
    a.prof = prof
    k1(a); k2(a); k3(a); k4(a); k5(a)
    open(path, "w").write(a.text(HEADER))

if __name__ == "__main__":
    build("gated_mix__ssm_conv_h3__mixer_s_mlp__prompt.s")
    build("prof.s", prof=True)
```

```python
from gen import *

OFF_FLAG = 0x2000000
FL = dict(FG=5, FS=2)
def flag_bytes(): return 384 << FL['FG']
RING = 73728
SLOT = 12288
NSLOT = 7
L_CS = RING + NSLOT*SLOT
L_CONST = L_CS + 3072

def k34(a, nt_w="", nogelu=False, nored=False, mapB=True, xtile0=False, LA=6, trace=False, spf=1, st0=1, st1=0, dr0=5, dr1=5, p0=15, l0=21, bo=4, hv=1, ldp=1, cw=3, sc="sc1", free_at=12, p1=9, a2=24, spn=27, pro=6, skip=(40, 41, 52, 53, 63, 67), d2=40, lspf=0, lx2=0, g0w=42, g1n=17, ext=False, wb=False, front=False, mono=False, psl=4, xa=0, pipe=False):
    name = "k3_kernel"
    done = "k3_done"
    hs = "sc1" if mono else ""
    if mono:
        from kf import OFF_FF, FFB, F_X1, F_CS, F_Z, poll_bytes, poll_pipe, KNAME
        name = KNAME
        a.label("k3_entry")
        a.e("s_waitcnt lgkmcnt(0)")
        a.e("v_mbcnt_lo_u32_b32 v0, -1, 0")
        a.e("v_mbcnt_hi_u32_b32 v0, -1, v0")
        a.e("s_lshl_b32 s14, s101, 6")
        a.e("v_add_u32 v0, s14, v0")
        a.stamp(11)
    else:
        a.launch(name, (256,1,1), 1024, L_CONST + 1024)
        a.begin(name)
        a.e(f"s_cmp_ge_u32 s2, 256")
        a.e(f"s_cbranch_scc1 {done}_x")
        a.pstart()
    a.reset()
    rW3, rW4, rX, rS, rP, rF, rQ, rZ, rG, rO = 16, 20, 24, 28, 32, 36, 40, 44, 48, 52
    sSP, sTL, sG, sI, sBASE, sRET, sBUD = 56, 57, 58, 59, 60, 61, 3
    a.ldarg(4, "w3"); a.ldarg(6, "w4"); a.ldarg(8, "q"); a.ldarg(10, "ws"); a.ldarg(12, "out")
    if mapB:
        a.e(f"""
        s_and_b32 s14, s2, 3
        s_lshl_b32 s14, s14, 1
        s_bfe_u32 s15, s2, 0x10003
        s_add_u32 s{sSP}, s14, s15
        s_bfe_u32 s14, s2, 0x10002
        s_lshl_b32 s14, s14, 4
        s_lshr_b32 s15, s2, 4
        s_add_u32 s{sTL}, s14, s15
        """)
    else:
        a.e(f"""
        s_and_b32 s{sSP}, s2, 7
        s_lshr_b32 s{sTL}, s2, 3
        """)
    if xtile0: a.e(f"s_mov_b32 s{sTL}, 0")
    a.e(f"""
    v_lshrrev_b32 v1, 6, v0
    v_and_b32 v0, 63, v0
    v_readfirstlane_b32 s14, v1
    s_mov_b32 s{sBUD}, 0x4000
    s_lshr_b32 s15, s14, 2
    s_lshl_b32 s15, s15, 1
    s_lshr_b32 s{sG}, 0x4b, s15
    s_and_b32 s{sG}, s{sG}, 3
    s_and_b32 s{sI}, s14, 3
    v_and_b32 v9, 15, v0
    v_lshrrev_b32 v10, 4, v0
    v_lshlrev_b32 v7, 4, v0
    v_mov_b32 v2, 0
    v_mov_b32 v3, 0
    v_mov_b32 v11, 0
    v_mov_b32 v12, 0
    v_mov_b32 v13, 0
    s_cmp_lg_u32 s{sG}, 3
    s_cbranch_scc1 k3_comp
    """)
    cut = len(a.lines)
    a.label("k3_comp")
    def late_srds():
        a.srd_off(rP, 10, OFF_PART, 32*3*6*4*8*1024)
        a.srd_off(rF, 10, OFF_FLAG, flag_bytes())
        a.srd(rQ, 8, SZ_ACT)
        a.srd_off(rZ, 10, OFF_Z4, SZ_ACT)
        a.srd_off(rG, 10, OFF_G, S*4)
        a.srd(rO, 12, SZ_ACT)
    FB = [16, 44]; ACC = 72
    VA = [120, 121, 122, 123, 124, 125, 126]
    a.e(f"""
    v_add_u32 v8, 0x10000, v7
    v_lshrrev_b32 v5, 2, v0
    v_mul_u32_u24 v5, 384, v5
    v_and_b32 v4, 3, v0
    v_lshl_add_u32 v5, v4, 3, v5
    v_add_u32 v5, {RING}, v5
    v_bfe_u32 v4, v0, 3, 2
    v_xor_b32 v4, s{sI}, v4
    v_lshl_add_u32 v1, v4, 5, v5
    s_mov_b32 s{sRET}, 0
    s_waitcnt lgkmcnt(0)
    """)
    a.srd_off(rS, 10, OFF_ST, (18 if front else 9)*S*8)
    ST = 72
    if mono:
        a.srd_off(rW4, 10, OFF_FF, FFB)
        a.e(f"""
        s_cmp_lg_u32 s101, 12
        s_cbranch_scc1 m_poll_ok
        v_min_u32 v13, 17, v0
        v_cmp_lt_u32 vcc, 8, v13
        s_lshr_b32 s14, s{sTL}, 1
        s_lshl_b32 s14, s14, 8
        s_add_u32 s14, s14, {F_X1}
        s_lshl_b32 s15, s{sSP}, 8
        s_add_u32 s15, s15, {F_CS - 36}
        v_mov_b32 v14, s14
        v_mov_b32 v15, s15
        v_cndmask_b32 v14, v14, v15, vcc
        v_lshl_add_u32 v13, v13, 2, v14
        """)
        if pipe: poll_pipe(a, 13, rW4, sBUD, 112, "m_poll", psl)
        else: poll_bytes(a, 13, rW4, sBUD, 14, "m_poll", psl)
        a.e("s_barrier")
        a.stamp(12)
    a.e(f"""
    s_cmp_lg_u32 s{sG}, 2
    s_cbranch_scc1 k3_ns
    s_lshl_b32 s14, s{sTL}, 2
    s_add_u32 s14, s14, s{sI}
    s_lshl_b32 s14, s14, 4
    v_add_u32 v13, s14, v9
    v_lshlrev_b32 v13, 3, v13
    v_lshl_add_u32 v13, v10, 14, v13
    s_mov_b32 s14, 0x10000
    s_mov_b32 s15, 0x20000
    buffer_load_dwordx2 {vr(ST,2)}, v13, s[{rS}:{rS+3}], 0 offen {hs}
    buffer_load_dwordx2 {vr(ST+2,2)}, v13, s[{rS}:{rS+3}], s14 offen {hs}
    buffer_load_dwordx2 {vr(ST+4,2)}, v13, s[{rS}:{rS+3}], s15 offen {hs}
    s_mov_b32 s14, 0x30000
    s_mov_b32 s15, 0x40000
    buffer_load_dwordx2 {vr(ST+6,2)}, v13, s[{rS}:{rS+3}], s14 offen {hs}
    buffer_load_dwordx2 {vr(ST+8,2)}, v13, s[{rS}:{rS+3}], s15 offen {hs}
    k3_ns:
    """)
    a.srd_off(rX, 10, OFF_X1, SZ_ACT)
    late_srds()
    a.e(f"""
    s_mul_i32 s14, s{sSP}, {576*1152}
    s_mul_i32 s15, s{sTL}, {18*1152}
    s_add_u32 s14, s14, s15
    s_lshl_b32 s15, s{sI}, 6
    s_add_u32 s14, s14, s15
    s_add_u32 s16, s6, s14
    s_addc_u32 s17, s7, 0
    """)
    grp = sorted(range(81), key=lambda g: min(((g*256 + k*64) % 1152) // 384 for k in range(4)))
    def spf_ticks(t_end, per, lst):
        while T[0] < t_end:
            for _ in range(per):
                if lst: a.e(f"s_load_dword s2, s[16:17], {lst.pop(0)*256}")
            bar()
    T = [0]
    LIM = [10**9]
    def bar(n=1):
        n = min(n, LIM[0] - T[0])
        for _ in range(n): a.e("s_barrier")
        T[0] += n
    def upto(t):
        assert t >= T[0], (t, T[0])
        bar(t - T[0])
    def set_va(base):
        for j in range(7):
            a.e(f"v_add_u32 v{VA[j]}, {((base + j) % NSLOT)*SLOT}, v1")
    a.e(f"s_cmp_eq_u32 s{sG}, 1")
    a.e(f"s_cbranch_scc1 k3_g1")
    a.e(f"s_cmp_eq_u32 s{sG}, 0")
    a.e(f"s_cbranch_scc1 k3_g0")
    T[0] = -2
    a.reset()
    set_va(36)
    upto(cw)
    a.e("s_waitcnt vmcnt(0)")
    for n in (1, 2, 3, 4):
        a.e(f"v_add_f32 v{ST}, v{ST}, v{ST+2*n}")
        a.e(f"v_add_f32 v{ST+1}, v{ST+1}, v{ST+2*n+1}")
    a.xsum4(ST, 14); a.xsum4(ST+1, 14)
    bar()
    a.ln_consts(ST, ST+1, 84, 85, 86, 87, 14)
    a.e(f"s_lshl_b32 s14, s{sI}, 8")
    a.e(f"s_add_u32 s14, s14, {L_CONST}")
    a.e(f"v_lshl_add_u32 v13, v9, 4, s14")
    bar()
    a.e("s_mov_b64 exec, 0xffff")
    a.e(f"ds_write_b128 v13, v[84:87]")
    a.e("s_mov_b64 exec, -1")
    bar(2)
    a.e("s_waitcnt lgkmcnt(0)")
    l2 = grp[spn:] if spf else []
    spf_ticks(26, spf, l2)
    assert not l2, len(l2)
    upto(35)
    a.e("s_branch k3_body")
    a.label("k3_g1")
    T[0] = -2
    set_va(18)
    upto(0)
    l1 = grp[:spn] if spf else []
    spf_ticks(9, spf, l1)
    assert not l1
    upto(17)
    a.e("s_branch k3_body")
    a.label("k3_g0")
    set_va(0)
    a.e("s_barrier")
    a.label("k3_body")
    a.reset()
    def reads(k):
        fb = FB[k & 1]
        out = []
        va = VA[k % 7]
        for tt in range(4):
            off = k*4096 + tt*1024
            base = 7 if off < 65536 else 8
            out.append((f"ds_read_b128 {vr(fb+tt*4)}, v{base} offset:{off & 65535}", (k, "x")))
        for j in range(3):
            out.append((f"ds_read_b64_tr_b16 {vr(fb+16+j*4,2)}, v{va} offset:{128*j}", (k, j)))
            out.append((f"ds_read_b64_tr_b16 {vr(fb+16+j*4+2,2)}, v{va} offset:{128*j+6144}", (k, j)))
        return out
    a.e("s_setprio 2")
    for (s, t) in reads(0): a.lds(s, t)
    a.e("s_barrier")
    def tick(k, barrier=True):
        fb = FB[k & 1]
        rd = reads(k+1) if k < 17 else []
        ri = 0
        for m in range(12):
            j, tt = m // 4, m % 4
            if tt == 0: a.wait_lg_if((k, j))
            a.mfma(vr(ACC+(j*4+tt)*4), vr(fb+16+j*4), vr(fb+tt*4), "0" if k == 0 else None)
            if ri < len(rd):
                a.lds(*rd[ri]); ri += 1
            if k == free_at and m == 10 and barrier: a.e(f"s_cmp_eq_u32 s{sRET}, 2")
        if k > free_at:
            a.e(f"s_cbranch_scc1 k3_nb{k}")
        a.e("s_barrier")
        if k > free_at: a.label(f"k3_nb{k}")
    for k in range(18): tick(k)
    a.e("s_setprio 0")
    a.e(f"s_cmp_ge_u32 s{sRET}, 1")
    a.e(f"s_cbranch_scc1 k3_red")
    CO, CSR, TMP = 16, 32, 44
    a.e(f"""
    s_mul_i32 s14, s{sG}, 12
    s_add_u32 s14, s14, s{sI}
    s_lshl_b32 s62, s14, 6
    s_add_u32 s62, s62, {L_CS}
    v_lshl_add_u32 v4, v10, 4, s62
    v_lshlrev_b32 v3, 4, v9
    v_add_u32 v3, {L_CONST}, v3
    """)
    for tt in range(4): a.e(f"ds_read_b128 {vr(CO+tt*4)}, v3 offset:{tt*256}")
    for jj in range(3): a.e(f"ds_read_b128 {vr(CSR+jj*4)}, v4 offset:{jj*256}")
    a.e(f"""
    s_mul_i32 s14, s{sG}, 6
    s_add_u32 s15, s14, s{sI}
    s_lshl_b32 s15, s15, 12
    v_add_u32 v5, s15, v7
    s_lshr_b32 s15, s{sI}, 1
    s_add_u32 s15, s15, s14
    s_add_u32 s15, s15, 4
    s_lshl_b32 s15, s15, 12
    s_and_b32 s14, s{sI}, 1
    s_lshl_b32 s14, s14, 3
    s_add_u32 s15, s15, s14
    v_add_u32 v6, s15, v7
    s_mov_b32 s{sRET}, 1
    s_cmp_eq_u32 s{sG}, 1
    s_cbranch_scc1 k3_ge1
    s_cmp_eq_u32 s{sG}, 2
    s_cbranch_scc1 k3_ge2
    """)
    def gelu_ins(jjs):
        out = []
        for jj in jjs:
            for half in range(2):
                seqs = []
                for r in range(8):
                    tt = half*2 + r // 4
                    x, t = ACC + jj*16 + half*8 + r, TMP + r
                    c = CO + tt*4
                    seqs.append([f"v_fma_f32 v{x}, v{c}, v{CSR+jj*4+r%4}, v{x}"] + a.gelu_seq(x, t, c+1, c+2, c+3))
                ins = interleave(seqs)
                if nogelu: ins = ins[:8]
                out += [(x, 2 if ("exp" in x or "rcp" in x) else 1) for x in ins]
                for q in range(2):
                    b = ACC + half*8 + q*4 + (0, 2, 32)[jj]; t = TMP + q*4
                    out.append((f"v_cvt_pk_bf16_f32 v{b}, v{t}, v{t+1}", 1))
                    out.append((f"v_cvt_pk_bf16_f32 v{b+1}, v{t+2}, v{t+3}", 1))
        return out
    def paced(ins, nticks):
        tot = sum(c for _, c in ins); acc_c = 0; tk = 0
        for (x, c) in ins:
            a.e(x); acc_c += c
            if tk < nticks and acc_c >= tot*(tk+1)/nticks - 1e-9:
                tk += 1
                if tk == nticks: a.e("s_setprio 3")
                bar()
        assert tk == nticks
    def hw01():
        for tt in range(4): a.e(f"ds_write_b128 v5, {vr(ACC+tt*4)} offset:{tt*1024}")
    def hw2():
        for tt in range(4): a.e(f"ds_write_b64 v6, {vr(ACC+32+tt*4,2)} offset:{tt*1024}")
    def fin(g, tend):
        if hv >= 1 and g < 2:
            bar()
        a.e("s_setprio 0")
        set_va(54 + 18*g)
        a.e("s_waitcnt lgkmcnt(0)")
        upto(tend)
        a.e("s_branch k3_body")
    def hwall():
        if hv == 2:
            hw01(); bar(); hw2()
        elif hv == 3:
            for tt in range(4):
                a.e(f"ds_write_b128 v5, {vr(ACC+tt*4)} offset:{tt*1024}")
                if tt == 1: bar()
            bar(); hw2()
        elif hv == 4:
            hw01()
        else:
            hw01(); hw2()
    def gstart(t):
        T[0] = t
        bar()
        a.e("s_waitcnt lgkmcnt(0)")
    gstart(18)
    paced(gelu_ins([0, 1, 2]), 18)
    upto(g0w)
    hwall(); fin(0, 53)
    a.label("k3_ge1")
    gstart(36)
    paced(gelu_ins([0, 1, 2]), g1n)
    hwall(); fin(1, 71)
    a.label("k3_ge2")
    gstart(54)
    paced(gelu_ins([0, 1]), 9)
    hw01()
    a.e("s_setprio 0")
    gi = gelu_ins([2])
    gi = gi[:8] + [("s_waitcnt lgkmcnt(0)", 0)] + gi[8:]
    paced(gi, 4)
    a.e(f"s_mov_b32 s{sRET}, 2")
    hw2(); fin(2, 89)
    P = [True]
    def pb(n=1):
        if P[0]: bar(n)
    sJ = 62
    TT, SUM, PA = 88, 104, 16
    class RS_: pass
    def mk(v, sb):
        r = RS_(); r.X1, r.Q, r.Z, r.GG, r.OM, r.GA, r.VO = v; r.s = sb; return r
    SA = mk((72, 76, 80, 84, 85, 96, 3), 8)
    SB = mk((48, 52, 56, 84, 85, 0, 0), 16)
    SC = mk((60, 64, 68, 84, 85, 0, 0), 64 if not a.prof else 28)
    def unpack(d, s, n=2):
        for k in range(n):
            a.e(f"v_lshlrev_b32 v{d+2*k}, 16, v{s+k}")
            a.e(f"v_and_b32 v{d+2*k+1}, 0xffff0000, v{s+k}")
    def rnd8(d, t):
        for k in range(4): a.e(f"v_cvt_pk_bf16_f32 v{t+k}, v{d+2*k}, v{d+2*k+1}")
        unpack(d, t, 4)
    def cons_common():
        a.e(f"""
        s_mul_i32 s61, s{sSP}, 3
        s_add_u32 s61, s61, s{sI}
        s_lshr_b32 s4, s61, 3
        s_lshl_b32 s4, s4, 2
        s_and_b32 s6, s61, 3
        s_add_u32 s4, s4, s6
        s_bfe_u32 s6, s61, 0x10002
        s_lshl_b32 s7, s{sTL}, 2
        s_lshl_b32 s6, s6, 1
        s_add_u32 s7, s7, s6
        s_mul_i32 s5, s7, 18432
        s_lshl_b32 s7, s7, 4
        v_and_b32 v1, 31, v0
        v_add_u32 v1, s7, v1
        v_lshrrev_b32 v5, 5, v0
        v_lshlrev_b32 v2, 2, v1
        v_mul_u32_u24 v3, 1152, v1
        v_lshl_add_u32 v3, v5, 4, v3
        v_lshlrev_b32 v4, {2 if front else 3}, v1
        v_lshl_add_u32 v4, v5, 15, v4
        v_add_u32 v12, 8192, v4
        v_and_b32 v11, 1, v10
        v_mul_u32_u24 v11, 18432, v11
        v_lshl_add_u32 v11, v5, 9, v11
        v_lshl_add_u32 v11, v9, 4, v11
        v_and_b32 v5, 7, v0
        v_lshlrev_b32 v5, {FL['FS']}, v5
        """)
    def cons_addr(j, R):
        b = R.s
        a.e(f"""
        s_add_u32 s6, s4, {12*j}
        s_lshr_b32 s7, s6, 1
        s_lshl_b32 s7, s7, 10
        s_add_u32 s{b}, s5, s7
        s_and_b32 s7, s6, 1
        s_lshl_b32 s7, s7, 3
        s_add_u32 s{b}, s{b}, s7
        s_lshl_b32 s{b+2}, s6, 5
        s_lshl_b32 s{b+4}, s6, 16
        s_add_u32 s{b+3}, s{b+4}, 16384
        s_mul_i32 s6, s{sTL}, 3
        s_add_u32 s6, s6, {j}
        s_lshl_b32 s{b+5}, s6, 2
        s_and_b32 s7, s61, 3
        s_add_u32 s{b+5}, s{b+5}, s7
        s_lshl_b32 s{b+5}, s{b+5}, {FL['FG']}
        s_mul_i32 s{b+7}, s6, 24
        s_add_u32 s{b+7}, s{b+7}, s61
        s_lshl_b32 s{b+7}, s{b+7}, 13
        s_add_u32 s{b+6}, s{b+7}, 4096
        """)
    def cons_aux(R):
        b = R.s
        a.vmem(f"buffer_load_dwordx4 {vr(R.Q)}, v3, s[{rQ}:{rQ+3}], s{b+2} offen", "aux")
        if front:
            a.vmem(f"buffer_load_dword v{R.Z}, v4, s[{rZ}:{rZ+3}], s{b+4} offen {hs}", "aux")
            a.vmem(f"buffer_load_dword v{R.Z+1}, v12, s[{rZ}:{rZ+3}], s{b+4} offen {hs}", "aux")
            a.vmem(f"buffer_load_dword v{R.Z+2}, v4, s[{rZ}:{rZ+3}], s{b+3} offen {hs}", "aux")
            a.vmem(f"buffer_load_dword v{R.Z+3}, v12, s[{rZ}:{rZ+3}], s{b+3} offen {hs}", "aux")
        else:
            a.vmem(f"buffer_load_dwordx2 {vr(R.Z,2)}, v4, s[{rZ}:{rZ+3}], s{b+4} offen {hs}", "aux")
            a.vmem(f"buffer_load_dwordx2 {vr(R.Z+2,2)}, v4, s[{rZ}:{rZ+3}], s{b+3} offen {hs}", "aux")
        if R is SA: a.vmem(f"buffer_load_dword v{R.GG}, v2, s[{rG}:{rG+3}], 0 offen {hs}", "aux")
        a.vmem(f"buffer_load_dwordx2 {vr(R.X1,2)}, v11, s[{rX}:{rX+3}], s{b} offen {hs}", "aux")
        a.vmem(f"buffer_load_dwordx2 {vr(R.X1+2,2)}, v11, s[{rX}:{rX+3}], s{b} offen offset:256 {hs}", "aux")
    def cons_ga(R, D=None):
        D = D or R
        a.e(f"v_sub_f32 v{D.OM}, 1.0, v{R.GG}")
        a.bf16r(D.OM, D.OM)
        unpack(D.GA, R.Q, 4)
        unpack(TT, R.Z, 4)
        for r in range(8): a.e(f"v_mul_f32 v{D.GA+r}, v{D.GA+r}, v{TT+r}")
        pb()
        rnd8(D.GA, TT)
        for r in range(8): a.e(f"v_mul_f32 v{D.GA+r}, v{R.GG}, v{D.GA+r}")
        pb()
        rnd8(D.GA, TT)
        unpack(D.Q, R.X1, 4)
        pb()
    def poll_issue():
        a.vmem(f"buffer_load_dword v14, v5, s[{rF}:{rF+3}], s13 offen sc1", "pl")
    def cons_loads(backoff):
        lab = a.newlabel("poll")
        a.stamp(8)
        a.label(lab)
        a.e("s_waitcnt vmcnt(0)")
        a.e("v_cmp_ne_u32 vcc, 1, v14")
        a.e(f"s_cbranch_vccz {lab}_ok")
        a.e(f"s_sub_u32 s{sBUD}, s{sBUD}, 1")
        a.e(f"s_cbranch_scc1 {lab}_ok")
        if backoff: a.e(f"s_sleep {backoff}")
        poll_issue()
        a.e(f"s_branch {lab}")
        a.label(f"{lab}_ok")
        a.stamp(9)
        a.reset()
        for p in range(8):
            a.vmem(f"buffer_load_dwordx4 {vr(PA+4*p)}, v7, s[{rP}:{rP+3}], s{15 if p < 4 else 14} offen offset:{(p%4)*1024} sc1", p)
    def cons_fin():
        R = SA
        for p in range(8):
            a.wait_vm_if(p)
            unpack(SUM if p == 0 else TT, PA + 4*p, 4)
            if p:
                for k in range(8): a.e(f"v_add_f32 v{SUM+k}, v{SUM+k}, v{TT+k}")
            if p % 2 == 1: pb()
        a.stamp(10)
        rnd8(SUM, TT)
        for r in range(8): a.e(f"v_add_f32 v{SUM+r}, v{SUM+r}, v{R.Q+r}")
        rnd8(SUM, TT)
        pb()
        for r in range(8): a.e(f"v_mul_f32 v{SUM+r}, v{R.OM}, v{SUM+r}")
        rnd8(SUM, TT)
        for r in range(8): a.e(f"v_add_f32 v{SUM+r}, v{SUM+r}, v{R.GA+r}")
        for k in range(4): a.e(f"v_cvt_pk_bf16_f32 v{112+k}, v{SUM+2*k}, v{SUM+2*k+1}")
        a.e(f"buffer_store_dwordx4 {vr(112)}, v3, s[{rO}:{rO+3}], s10 offen")
    a.label("k3_red")
    a.stamp(0)
    if nored: a.e(f"s_branch {done}_x")
    a.reset()
    a.e(f"""
    s_mul_i32 s14, s{sTL}, 3
    s_add_u32 s14, s14, s{sG}
    s_mul_i32 s15, s14, 24
    s_add_u32 s15, s15, s{sI}
    s_lshl_b32 s15, s15, 3
    s_add_u32 s15, s15, s{sSP}
    s_lshl_b32 s15, s15, 10
    s_setprio 3
    """)
    def cv(c):
        jj, h = c >> 1, c & 1
        q = 16 + c*4
        for e in range(2):
            b = ACC + (jj*4 + 2*h + e)*4
            a.e(f"v_cvt_pk_bf16_f32 v{q+2*e}, v{b}, v{b+1}")
            a.e(f"v_cvt_pk_bf16_f32 v{q+2*e+1}, v{b+2}, v{b+3}")
    cv(0)
    for c in range(6):
        q = 16 + c*4
        if c < 5: cv(c+1)
        else: a.e("s_nop 1")
        a.e(f"v_permlane16_swap_b32 v{q}, v{q+2}")
        a.e(f"v_permlane16_swap_b32 v{q+1}, v{q+3}")
        a.e(f"buffer_store_dwordx4 {vr(q)}, v7, s[{rP}:{rP+3}], s15 offen {sc}")
        a.e("s_add_u32 s15, s15, 32768")
    a.e(f"""
    s_setprio 0
    s_lshl_b32 s14, s14, 2
    s_add_u32 s14, s14, s{sI}
    s_lshl_b32 s14, s14, {FL['FG']}
    s_lshl_b32 s63, s{sSP}, {FL['FS']}
    s_add_u32 s63, s63, s14
    v_mov_b32 v6, 0
    v_mov_b32 v15, 1
    """)
    a.stamp(1)
    if ext:
        a.e(f"s_cmp_eq_u32 s{sG}, 2")
        a.e(f"s_cbranch_scc1 {done}")
        for _ in range(4): a.e("s_barrier")
        if wb:
            a.e("s_waitcnt vmcnt(0)")
            a.e("s_barrier")
            a.e(f"s_cmp_lg_u32 s{sI}, 0")
            a.e(f"s_cbranch_scc1 {done}_x")
            a.e("buffer_wbl2 sc1")
            for _ in range(free_at + 1 - 5): a.e("s_barrier")
        a.e(f"s_branch {done}_x")
    a.e(f"s_cmp_eq_u32 s{sG}, 2")
    a.e("s_cbranch_scc1 k3_flag")
    T[0] = 0
    bar()
    cons_common()
    if mono:
        a.e(f"""
        v_min_u32 v13, 11, v0
        v_lshrrev_b32 v14, 2, v13
        v_mul_u32_u24 v14, 192, v14
        v_and_b32 v13, 3, v13
        v_mul_u32_u24 v13, 6, v13
        v_min_u32 v13, 15, v13
        s_lshl_b32 s6, s4, 4
        v_add3_u32 v13, v13, v14, s6
        v_min_u32 v13, 575, v13
        v_mul_u32_u24 v13, 10923, v13
        v_lshrrev_b32 v13, 16, v13
        v_lshlrev_b32 v13, 2, v13
        v_add_u32 v13, {F_Z}, v13
        buffer_load_dword v127, v13, s[{rW4}:{rW4+3}], 0 offen sc1
        """)
    upto(dr0)
    a.label("k3_flag")
    a.e("s_waitcnt vmcnt(0)")
    a.e("s_mov_b64 exec, 1")
    a.e(f"buffer_store_dword v15, v6, s[{rF}:{rF+3}], s63 offen sc1")
    a.e("s_mov_b64 exec, -1")
    a.stamp(2)
    a.e(f"s_cmp_eq_u32 s{sG}, 2")
    a.e(f"s_cbranch_scc1 {done}")
    a.e(f"s_cmp_eq_u32 s{sI}, 3")
    a.e(f"s_cbranch_scc1 k3_w3")
    a.e(f"s_cmp_eq_u32 s{sG}, 1")
    a.e(f"s_cbranch_scc1 k3_w3")
    tsave = T[0]
    P[0] = True; LIM[0] = 18 + free_at + 1
    a.reset()
    bar()
    cons_addr(0, SA); bar()
    upto(max(p0, T[0]))
    if mono:
        a.e("v_cmp_ne_u32 vcc, 1, v127")
        a.e("s_cbranch_vccz z_chk_ok")
        poll_bytes(a, 13, rW4, sBUD, 127, "z_chk", 4)
    poll_issue()
    def nxt_aux():
        a.e("s_add_u32 s8, s8, 6144")
        a.e("s_add_u32 s10, s10, 384")
        a.e(f"s_add_u32 s11, s11, {12<<16}")
        a.e(f"s_add_u32 s12, s12, {12<<16}")
    def nxt_part():
        a.e("s_add_u32 s10, s10, 384")
        a.e(f"s_add_u32 s13, s13, {4 << FL['FG']}")
        a.e(f"s_add_u32 s14, s14, {24<<13}")
        a.e(f"s_add_u32 s15, s15, {24<<13}")
    SB.s = SC.s = 8
    cons_aux(SA); nxt_aux(); cons_aux(SB); nxt_aux(); cons_aux(SC)
    a.e("s_sub_u32 s10, s10, 768")
    upto(l0)
    cons_loads(0)
    bar()
    cons_ga(SA)
    upto(max(l0 + 6, T[0]))
    cons_fin()
    nxt_part()
    bar()
    cons_ga(SB, SA)
    upto(max(18 + p1, T[0]))
    poll_issue()
    a.e("s_mov_b32 s9, 0")
    upto(18+free_at+1); P[0] = False
    a.label("k3_tail")
    cons_loads(bo)
    cons_fin()
    a.e("s_cmp_eq_u32 s9, 1")
    a.e(f"s_cbranch_scc1 {done}")
    a.e("s_mov_b32 s9, 1")
    nxt_part()
    cons_ga(SC, SA)
    poll_issue()
    a.e("s_branch k3_tail")
    a.label("k3_w3")
    for _ in range(free_at + 1 - tsave): a.e("s_barrier")
    a.e(f"s_branch {done}_x")
    a.label("k3_loader")
    a.reset()
    for e in range(3):
        a.e(f"""
        v_add_u32 v12, {64*e}, v0
        v_mul_u32_u24 v13, 2731, v12
        v_lshrrev_b32 v13, 16, v13
        v_mul_u32_u24 v14, 24, v13
        v_sub_u32 v14, v12, v14
        v_and_b32 v11, 6, v13
        v_xor_b32 v14, v14, v11
        v_lshlrev_b32 v14, 4, v14
        v_subrev_u32 v14, {1024*e}, v14
        v_mul_u32_u24 v11, 9216, v13
        v_add_u32 v{16+e}, v14, v11
        v_mul_u32_u24 v11, 1152, v13
        v_add_u32 v{20+e}, v14, v11
        """)
    a.e("s_waitcnt lgkmcnt(0)")
    a.stamp(7)
    a.srd(rW3, 4, D*F*2)
    a.srd_off(rX, 10, OFF_X1, SZ_ACT)
    a.srd(rW4, 6, F*D*2)
    a.srd_off(rG, 10, OFF_CS3, F*4)
    a.e(f"""
    s_mul_i32 s14, s{sSP}, {576*1152}
    s_mul_i32 s15, s{sTL}, {18*1152}
    s_add_u32 s14, s14, s15
    s_lshl_b32 s15, s{sI}, 6
    s_add_u32 s14, s14, s15
    s_add_u32 s28, s6, s14
    s_addc_u32 s29, s7, 0
    """)
    lgrp = list(grp) if lspf else []
    a.e(f"""
    s_mul_i32 s4, s{sSP}, 1152
    s_mul_i32 s6, s{sI}, {8*9216}
    s_add_u32 s4, s4, s6
    s_mul_i32 s5, s{sSP}, {576*1152}
    s_mul_i32 s6, s{sI}, {8*1152}
    s_add_u32 s5, s5, s6
    s_mul_i32 s6, s{sI}, 3072
    s_add_u32 s6, s6, {RING}
    s_lshl_b32 s14, s{sTL}, 2
    s_add_u32 s14, s14, s{sI}
    s_mul_i32 s62, s14, 18432
    s_lshl_b32 s63, s{sI}, 10
    s_lshr_b32 s14, s{sI}, 1
    s_mul_i32 s14, s14, {48*1152}
    s_add_u32 s60, s5, s14
    s_setprio {ldp}
    """)
    def xissue(u):
        a.e(f"s_add_u32 m0, s63, {u*4096}")
        a.e(f"s_add_u32 s7, s62, {u*1024}")
        a.vmem(f"buffer_load_dwordx4 v7, s[{rX}:{rX+3}], s7 offen {hs} lds", u)
    def csissue(u):
        a.e(f"s_min_u32 s14, s{sI}, 2")
        a.e(f"s_lshl_b32 s14, s14, 10")
        a.e(f"s_add_u32 m0, s14, {L_CS}")
        a.e(f"s_mul_i32 s15, s{sSP}, 2304")
        a.e(f"s_add_u32 s15, s15, s14")
        a.vmem(f"buffer_load_dwordx4 v7, s[{rG}:{rG+3}], s15 offen {hs} lds", u)
    xn = [0]
    def issue(u):
        ph, ks = u // 18, u % 18
        which, th = ph // 3, ph % 3
        pitch = 9216 if which == 0 else 1152
        rW = (rW3, rW4)[which]
        if not (mono and u < pro):
            while xn[0] < min(18, u + 1 + xa):
                xissue(xn[0]); xn[0] += 1
        a.e(f"s_add_u32 m0, s6, {(u % NSLOT)*SLOT}")
        if which == 1 and ks % 6 < 4:
            a.e(f"s_add_u32 s7, s60, {((ks//6)*192 + (ks%6)*16)*1152 + th*384}")
        else:
            a.e(f"s_add_u32 s7, s{4+which}, {ks*32*pitch + th*384}")
        for e in range(3):
            a.vmem(f"buffer_load_dwordx4 v{16+4*which+e}, s[{rW}:{rW+3}], s7 offen offset:{e*1024} {nt_w} lds", u)
            if u >= lspf and (e == 0 or (e == 1 and 18 <= u < 18 + lx2)) and lgrp:
                a.e(f"s_load_dword s2, s[28:29], {lgrp.pop(0)*256}")
        if u == (8 if mono else 2): csissue(u)
    nxt = [0]
    def issue_upto(lim, cnt):
        while cnt > 0 and nxt[0] < min(lim, 108):
            issue(nxt[0]); nxt[0] += 1; cnt -= 1
    issue_upto(pro, pro)
    if mono:
        a.e("s_barrier")
        while xn[0] < pro + xa:
            xissue(xn[0]); xn[0] += 1
    a.stamp(8)
    a.wait_vm(0)
    a.stamp(9)
    a.e("s_barrier")
    a.stamp(10)
    marks = [-1, 17, 35, 53, 71, 89, 101]
    def ltick(u):
        if trace and u >= 0:
            a.e("s_waitcnt lgkmcnt(0)")
            a.e(f"v_writelane_b32 v{60 + u//64}, s92, {u % 64}")
        if u + 2 < 108: a.wait_vm_if(u+2)
        a.e("s_barrier")
        if trace: a.e("s_memtime s[92:93]")
        if u in marks: a.stamp(marks.index(u))
    last = 108 - LA
    for u in range(-1, last):
        if u not in skip: issue_upto(u + LA + 1, 2)
        ltick(u)
    def tdump():
        if trace:
            a.e("s_load_dwordx2 s[16:17], s[0:1], 112")
            a.e("s_waitcnt lgkmcnt(0)")
            a.srd_off(20, 16, 0x5000000, 0x100000)
            a.e("s_lshl_b32 s16, s100, 2")
            a.e(f"s_add_u32 s16, s16, s{sI}")
            a.e("s_lshl_b32 s16, s16, 9")
            a.e("v_lshlrev_b32 v12, 2, v0")
            a.e("buffer_store_dword v60, v12, s[20:23], s16 offen")
            a.e("buffer_store_dword v61, v12, s[20:23], s16 offen offset:256")
    lastbar = 90 + free_at
    assert lastbar >= last - 1
    for u in range(last, lastbar + 1):
        if u == lastbar: a.wait_vm0()
        if u < lastbar: ltick(u)
        else: a.e("s_barrier")
    a.e("s_setprio 0")
    tdump()
    a.e(f"s_branch {done}")
    i0 = a.lines.index("k3_loader:")
    blk = a.lines[i0:]
    a.lines = a.lines[:cut] + blk + a.lines[cut:i0]
    a.label(done)
    a.pend(3)
    a.label(done + "_x")
    a.e("s_endpgm")
    a.label("k3_end")
    for _ in range(40): a.e("s_nop 0\n" * 16)
    a.e("s_endpgm")
    a.end(name, 128, 102)


def k5(a):
    name = "k5_kernel"
    a.launch(name, (576,1,1), 256, 0)
    a.begin(name)
    a.reset()
    done = "k5_done"
    a.e(f"s_cmp_ge_u32 s2, 576")
    a.e(f"s_cbranch_scc1 {done}_x")
    a.pstart()
    rX, rP, rQ, rZ, rG, rO = 24, 32, 40, 44, 48, 52
    a.ldarg(8, "q"); a.ldarg(10, "ws"); a.ldarg(12, "out")
    a.e(f"""
    v_lshrrev_b32 v1, 6, v0
    v_and_b32 v0, 63, v0
    v_readfirstlane_b32 s59, v1
    s_mul_i32 s57, s2, 3641
    s_lshr_b32 s57, s57, 16
    s_mul_i32 s14, s57, 18
    s_sub_u32 s14, s2, s14
    s_lshr_b32 s4, s14, 1
    s_lshl_b32 s4, s4, 2
    s_add_u32 s6, s4, s59
    s_and_b32 s5, s14, 1
    s_lshl_b32 s7, s57, 2
    s_lshl_b32 s5, s5, 1
    s_add_u32 s7, s7, s5
    s_mul_i32 s5, s7, 18432
    s_lshl_b32 s7, s7, 4
    v_and_b32 v9, 15, v0
    v_lshrrev_b32 v10, 4, v0
    v_lshlrev_b32 v7, 4, v0
    v_and_b32 v1, 31, v0
    v_add_u32 v1, s7, v1
    v_lshrrev_b32 v5, 5, v0
    v_lshlrev_b32 v2, 2, v1
    v_mul_u32_u24 v3, 1152, v1
    v_lshl_add_u32 v3, v5, 4, v3
    v_lshlrev_b32 v4, 3, v1
    v_lshl_add_u32 v4, v5, 15, v4
    v_and_b32 v11, 1, v10
    v_mul_u32_u24 v11, 18432, v11
    v_lshl_add_u32 v11, v5, 9, v11
    v_lshl_add_u32 v11, v9, 4, v11
    s_lshr_b32 s7, s6, 1
    s_lshl_b32 s7, s7, 10
    s_add_u32 s16, s5, s7
    s_and_b32 s7, s6, 1
    s_lshl_b32 s7, s7, 3
    s_add_u32 s16, s16, s7
    s_lshl_b32 s18, s6, 5
    s_lshl_b32 s20, s6, 16
    s_add_u32 s19, s20, 16384
    s_lshl_b32 s23, s2, 2
    s_add_u32 s23, s23, s59
    s_lshl_b32 s23, s23, 13
    s_add_u32 s22, s23, 4096
    s_waitcnt lgkmcnt(0)
    """)
    a.srd_off(rP, 10, OFF_PART, 32*3*6*4*8*1024)
    X1, Q, Z, GG, OM, GA, TT, SUM, PA = 72, 76, 80, 84, 85, 96, 88, 104, 16
    for p in range(8):
        a.vmem(f"buffer_load_dwordx4 {vr(PA+4*p)}, v7, s[{rP}:{rP+3}], s{23 if p < 4 else 22} offen offset:{(p%4)*1024}", p)
    a.srd(rQ, 8, SZ_ACT)
    a.srd_off(rZ, 10, OFF_Z4, SZ_ACT)
    a.srd_off(rG, 10, OFF_G, S*4)
    a.srd_off(rX, 10, OFF_X1, SZ_ACT)
    a.srd(rO, 12, SZ_ACT)
    a.vmem(f"buffer_load_dwordx4 {vr(Q)}, v3, s[{rQ}:{rQ+3}], s18 offen", "aux")
    a.vmem(f"buffer_load_dwordx2 {vr(Z,2)}, v4, s[{rZ}:{rZ+3}], s20 offen", "aux")
    a.vmem(f"buffer_load_dwordx2 {vr(Z+2,2)}, v4, s[{rZ}:{rZ+3}], s19 offen", "aux")
    a.vmem(f"buffer_load_dword v{GG}, v2, s[{rG}:{rG+3}], 0 offen", "aux")
    a.vmem(f"buffer_load_dwordx2 {vr(X1,2)}, v11, s[{rX}:{rX+3}], s16 offen", "aux")
    a.vmem(f"buffer_load_dwordx2 {vr(X1+2,2)}, v11, s[{rX}:{rX+3}], s16 offen offset:256", "aux")
    def unpack(d, s, n=2):
        for k in range(n):
            a.e(f"v_lshlrev_b32 v{d+2*k}, 16, v{s+k}")
            a.e(f"v_and_b32 v{d+2*k+1}, 0xffff0000, v{s+k}")
    def rnd8(d, t):
        for k in range(4): a.e(f"v_cvt_pk_bf16_f32 v{t+k}, v{d+2*k}, v{d+2*k+1}")
        unpack(d, t, 4)
    for p in range(8):
        a.wait_vm(p)
        unpack(SUM if p == 0 else TT, PA + 4*p, 4)
        if p:
            for k in range(8): a.e(f"v_add_f32 v{SUM+k}, v{SUM+k}, v{TT+k}")
    rnd8(SUM, TT)
    a.wait_vm0()
    a.e(f"v_sub_f32 v{OM}, 1.0, v{GG}")
    a.bf16r(OM, OM)
    unpack(GA, Q, 4)
    unpack(TT, Z, 4)
    for r in range(8): a.e(f"v_mul_f32 v{GA+r}, v{GA+r}, v{TT+r}")
    rnd8(GA, TT)
    for r in range(8): a.e(f"v_mul_f32 v{GA+r}, v{GG}, v{GA+r}")
    rnd8(GA, TT)
    unpack(Q, X1, 4)
    for r in range(8): a.e(f"v_add_f32 v{SUM+r}, v{SUM+r}, v{Q+r}")
    rnd8(SUM, TT)
    for r in range(8): a.e(f"v_mul_f32 v{SUM+r}, v{OM}, v{SUM+r}")
    rnd8(SUM, TT)
    for r in range(8): a.e(f"v_add_f32 v{SUM+r}, v{SUM+r}, v{GA+r}")
    for k in range(4): a.e(f"v_cvt_pk_bf16_f32 v{112+k}, v{SUM+2*k}, v{SUM+2*k+1}")
    a.e(f"buffer_store_dwordx4 {vr(112)}, v3, s[{rO}:{rO+3}], s18 offen")
    a.label(done)
    a.pend(5)
    a.label(done + "_x")
    a.e("s_endpgm")
    a.end(name, 116, 102)
```

```python
from gen import *
from k34 import OFF_FLAG, FL, flag_bytes
from k12 import tile_decode
URP = 4096
NST = 18
OFF_FF = 0xBA0000
FFB = 52*256
F_X1, F_CS, F_Z = 25*256, 41*256, 49*256
MONO = [False]
OFF_H20 = 0x2200000
HT = 20480
SZ_H20 = 128*HT
LCN = 160128

def poll_bytes(a, voff, rD, sbud, vt, lab, sleep=2, pre=False):
    if pre: a.e(f"s_branch {lab}_chk")
    a.label(lab)
    a.e(f"buffer_load_dword v{vt}, v{voff}, s[{rD}:{rD+3}], 0 offen sc1")
    a.label(f"{lab}_chk")
    a.e("s_waitcnt vmcnt(0)")
    a.e(f"v_cmp_ne_u32 vcc, 1, v{vt}")
    a.e(f"s_cbranch_vccz {lab}_ok")
    a.e(f"s_sub_u32 s{sbud}, s{sbud}, 1")
    a.e(f"s_cbranch_scc1 {lab}_ok")
    if sleep: a.e(f"s_sleep {sleep}")
    a.e(f"s_branch {lab}")
    a.label(f"{lab}_ok")

def poll_pipe(a, voff, rD, sbud, vt, lab, gap=2, depth=3):
    for d in range(depth):
        a.e(f"buffer_load_dword v{vt+d}, v{voff}, s[{rD}:{rD+3}], 0 offen sc1")
        if gap: a.e(f"s_sleep {gap}")
    a.label(lab)
    for d in range(depth):
        a.e(f"s_waitcnt vmcnt({depth-1})")
        a.e(f"v_cmp_ne_u32 vcc, 1, v{vt+d}")
        a.e(f"s_cbranch_vccz {lab}_ok")
        a.e(f"buffer_load_dword v{vt+d}, v{voff}, s[{rD}:{rD+3}], 0 offen sc1")
        if gap: a.e(f"s_sleep {gap}")
    a.e(f"s_sub_u32 s{sbud}, s{sbud}, 1")
    a.e(f"s_cbranch_scc0 {lab}")
    a.label(f"{lab}_ok")

def pub_bar(a, swv, who, rD, sflag, lab, off=0):
    a.e(f"""
    s_waitcnt vmcnt(0)
    s_barrier
    s_cmp_lg_u32 s{swv}, {who}
    s_cbranch_scc1 {lab}
    v_mov_b32 v10, s{sflag}
    v_mov_b32 v11, 1
    v_add_u32 v10, {off}, v10
    s_mov_b64 exec, 1
    buffer_store_dword v11, v10, s[{rD}:{rD+3}], 0 offen sc1
    s_mov_b64 exec, -1
    {lab}:
    """)

def publish(a, nwaves, lcnt, rD, sflag, lab, off=0):
    a.e(f"""
    s_waitcnt vmcnt(0)
    v_mov_b32 v10, {lcnt}
    v_mov_b32 v11, 1
    s_mov_b64 exec, 1
    ds_add_rtn_u32 v10, v10, v11
    s_waitcnt lgkmcnt(0)
    v_cmp_ne_u32 vcc, {nwaves-1}, v10
    s_cbranch_vccnz {lab}
    v_mov_b32 v10, s{sflag}
    s_nop 0
    v_add_u32 v10, {off}, v10
    buffer_store_dword v11, v10, s[{rD}:{rD+3}], 0 offen sc1
    {lab}:
    s_mov_b64 exec, -1
    """)

def gemm12(a, done, rot=1, NW0=2, NX0=2, rot2=1, psl=4, w2late=True, pipe=False, t1late=False, sw2=False):
    a.reset()
    rW, rA, rO, rQ, rS, rD = 16, 20, 24, 28, 32, 40
    sTM, sTN, sWV, sTG, sNH, sBUD = 36, 37, 38, 39, 55, 53
    NX = 5
    LX = 73728; LST = LX + NX*16384
    LON = LST + 3072; LCS = LON + 1152; LCNT = LCS + 256; LCO = 160256
    a.ldarg(4, "w1"); a.ldarg(12, "q"); a.ldarg(8, "ws"); a.ldarg(10, "gw"); a.ldarg(6, "w2"); a.ldarg(14, "dbg")
    tile_decode(a, sTM, sTN)
    a.e(f"""
    v_lshrrev_b32 v1, 6, v0
    s_lshl_b32 s61, s{sTM}, 7
    v_readfirstlane_b32 s{sWV}, v1
    v_and_b32 v0, 63, v0
    s_mov_b32 s{sBUD}, 0x8000
    s_cmp_ge_u32 s{sWV}, 4
    s_cbranch_scc1 g1_comp
    """)
    a.e(f"""
    v_lshrrev_b32 v10, 3, v0
    v_and_b32 v11, 7, v0
    v_lshrrev_b32 v12, 1, v10
    v_xor_b32 v13, v11, v12
    v_mul_u32_u24 v8, 1152, v10
    v_xor_b32 v14, 4, v13
    v_lshl_add_u32 v5, v14, 4, v8
    v_lshl_add_u32 v4, v13, 4, v8
    v_add_u32 v5, {8*1152 - 1024}, v5
    s_and_b32 s44, s{sTM}, 1
    s_lshl_b32 s44, s44, 2
    s_add_u32 s44, s44, s{sTN}
    s_cmp_ge_u32 s44, 9
    s_cselect_b32 s45, 9, 0
    s_sub_u32 s62, s44, s45
    s_mul_i32 s44, s62, {rot}
    s_lshl_b32 s58, s44, 7
    s_mov_b32 s60, s58
    s_mul_i32 s59, s44, {64*1152}
    s_lshl_b32 s44, s{sWV}, 5
    s_add_u32 s44, s44, s61
    s_mul_i32 s46, s44, 1152
    s_lshl_b32 s48, s{sWV}, 12
    s_add_u32 s48, s48, {LX}
    s_waitcnt lgkmcnt(0)
    """)
    a.srd(rQ, 12, SZ_ACT)
    def xdma(p):
        a.e(f"s_add_u32 m0, s48, {(p % NX)*16384}")
        a.e(f"s_add_u32 s50, s46, s58")
        a.vmem(f"buffer_load_dwordx4 v4, s[{rQ}:{rQ+3}], s50 offen lds", p)
        a.vmem(f"buffer_load_dwordx4 v5, s[{rQ}:{rQ+3}], s50 offen offset:1024 lds", p)
        a.e(f"s_add_u32 s50, s50, {16*1152 - 2048}")
        a.vmem(f"buffer_load_dwordx4 v4, s[{rQ}:{rQ+3}], s50 offen offset:2048 lds", p)
        a.vmem(f"buffer_load_dwordx4 v5, s[{rQ}:{rQ+3}], s50 offen offset:3072 lds", p)
        a.e(f"s_add_u32 s58, s58, 128")
        a.e(f"s_cmp_eq_u32 s58, 1152")
        a.e(f"s_cselect_b32 s58, 0, s58")
    def wdma(p, tag=None):
        a.e(f"s_add_u32 m0, s49, {p*8192}")
        a.e(f"s_add_u32 s50, s47, s59")
        a.vmem(f"buffer_load_dwordx4 v6, s[{rW}:{rW+3}], s50 offen lds", p if tag is None else tag)
        a.vmem(f"buffer_load_dwordx4 v7, s[{rW}:{rW+3}], s50 offen offset:1024 lds", p if tag is None else tag)
        a.e(f"s_add_u32 s59, s59, {64*1152}")
        a.e(f"s_cmp_eq_u32 s59, {576*1152}")
        a.e(f"s_cselect_b32 s59, 0, s59")
    xdma(0)
    a.srd(rW, 4, D*D*2)
    a.e(f"""
    v_and_b32 v12, 6, v10
    v_xor_b32 v9, v11, v12
    v_and_b32 v12, 4, v10
    v_lshlrev_b32 v12, 1, v12
    v_and_b32 v14, 3, v10
    v_add_u32 v12, v12, v14
    v_mul_u32_u24 v6, 1152, v12
    v_lshl_add_u32 v6, v9, 4, v6
    v_add_u32 v7, {16*1152 - 1024}, v6
    s_lshr_b32 s44, s{sWV}, 1
    s_mul_i32 s47, s44, {32*1152}
    s_and_b32 s44, s{sWV}, 1
    s_mul_i32 s44, s44, {4*1152}
    s_add_u32 s47, s47, s44
    s_lshl_b32 s63, s{sTN}, 7
    s_add_u32 s47, s47, s63
    s_lshl_b32 s49, s{sWV}, 11
    """)
    wdma(0)
    a.srd(rA, 10, D*2)
    a.e(f"""
    s_min_u32 s44, s{sWV}, 2
    s_lshl_b32 s44, s44, 10
    s_add_u32 m0, s44, {LST}
    v_lshl_add_u32 v15, v0, 4, s44
    v_add_u32 v13, s60, v15
    v_subrev_u32 v12, 1152, v13
    v_cmp_le_u32 vcc, 1152, v13
    s_nop 1
    v_cndmask_b32 v13, v13, v12, vcc
    v_cmp_le_u32 vcc, 1152, v15
    s_nop 1
    v_cndmask_b32 v15, v13, v15, vcc
    """)
    a.vmem(f"buffer_load_dwordx4 v15, s[{rA}:{rA+3}], 0 offen lds", 0)
    def stream(seq, issued, fx, fw, nslot, ahead, nb=9):
        b = [0]
        def certify():
            a.wait_vm_if(b[0])
            a.e("s_barrier")
            b[0] += 1
        for (kd, q) in seq:
            while kd == "x" and q >= nslot and b[0] < q - nslot + 3: certify()
            while b[0] < nb and ("x", b[0]) in issued and ("w", b[0]) in issued and b[0] in a.vm and \
                  len(a.vm) - 1 - max(i for i, t in enumerate(a.vm) if t == b[0]) >= ahead: certify()
            fx(q) if kd == "x" else fw(q)
            issued.add((kd, q))
        while b[0] < nb: certify()
    seq = [("w", p) for p in range(1, NW0)] + [("x", p) for p in range(1, NX0)]
    nx, nw = NX0, NW0
    while nx < 9 or nw < 9:
        if nx < 9 and (nw >= 9 or nx <= nw): seq.append(("x", nx)); nx += 1
        else: seq.append(("w", nw)); nw += 1
    a.srd(rD, 14, 256)
    a.e("v_mov_b32 v16, 0")
    def xdma1(p):
        xdma(p)
        if p == 7: a.vmem(f"buffer_load_dword v17, v16, s[{rD}:{rD+3}], 0 offen sc1", p)
    stream(seq, {("x", 0), ("w", 0)}, xdma1, wdma, NX, 14)
    poll_bytes(a, 16, rD, sBUD, 17, "g_val", 4, pre=True)
    a.srd(rW, 6, D*D*2)
    a.srd_off(rA, 8, OFF_H20, SZ_H20)
    a.srd_off(rD, 8, OFF_FF, FFB)
    a.e(f"""
    v_lshl_add_u32 v6, v9, 4, v8
    v_add_u32 v7, {8*1152 - 1024}, v6
    s_lshr_b32 s44, s{sWV}, 1
    s_mul_i32 s47, s44, {32*1152}
    s_and_b32 s44, s{sWV}, 1
    s_mul_i32 s44, s44, {16*1152}
    s_add_u32 s47, s47, s44
    s_add_u32 s47, s47, s63
    s_mov_b32 s59, 0
    v_xor_b32 v12, v11, v10
    v_lshl_add_u32 v5, v12, 4, v8
    s_add_u32 s51, s46, s63
    s_lshl_b32 s44, s{sWV}, 5
    s_add_u32 s44, s44, s61
    v_and_b32 v12, 15, v0
    v_add_u32 v12, s44, v12
    v_lshrrev_b32 v13, 4, v0
    v_lshlrev_b32 v13, 8, v13
    """)
    for g, sh in enumerate((1, -1, 2, -2)):
        for tt in range(2):
            d = 20 + g*2 + tt
            a.e(f"""
            v_add_u32 v14, {16*tt - sh}, v12
            v_ashrrev_i32 v15, 4, v14
            v_mul_i32_i24 v15, {HT}, v15
            v_and_b32 v14, 15, v14
            v_lshl_add_u32 v14, v14, 4, v13
            v_add_u32 v{d}, v14, v15
            """)
    a.e("s_barrier")
    a.reset()
    if w2late: a.e("s_barrier")
    for p in range(9): wdma(p, "w2")
    for g in range(4):
        a.e(f"s_add_u32 m0, s48, {4*16384 + g*1024}")
        a.e(f"s_add_u32 s50, s51, {g*8*1152}")
        a.vmem(f"buffer_load_dwordx4 v5, s[{rQ}:{rQ+3}], s50 offen lds", "w2")
    a.stamp(1)
    a.e("s_barrier")
    a.stamp(2)
    a.reset()
    def fgroup(f):
        if f == 18: return 1
        if f == 19: return 3
        return (2*f) // 9
    def hdma(p):
        for tt in range(2):
            for h in range(2):
                f = 2*p + h
                a.e(f"s_add_u32 m0, s48, {(p % 4)*16384 + tt*2048 + h*1024}")
                a.e(f"s_movk_i32 s50, {f*1024}")
                a.vmem(f"buffer_load_dwordx4 v{20+fgroup(f)*2+tt}, s[{rA}:{rA+3}], s50 offen sc1 lds", p)
    stream([("x", p) for p in range(10)], {("w", p) for p in range(10)}, hdma, None, 4, 12, 10)
    if MONO[0]: a.e("s_barrier")
    a.e(f"s_branch {done}")
    a.label("g1_comp")
    nbar = 9 + 1 + (1 if w2late else 0) + 1 + 10 + 1
    if MONO[0]:
        a.e(f"s_cmp_lt_u32 s{sWV}, 12")
        a.e("s_cbranch_scc1 g1_cc")
        idle(a)
        if sw2:
            a.e(f"""
            s_and_b32 s44, s{sTM}, 1
            s_lshl_b32 s44, s44, 2
            s_add_u32 s44, s44, s{sWV}
            s_sub_u32 s44, s44, 12
            s_mul_i32 s44, s44, {72*1152}
            s_lshl_b32 s45, s{sTN}, 7
            s_add_u32 s44, s44, s45
            s_waitcnt lgkmcnt(0)
            s_add_u32 s46, s6, s44
            s_addc_u32 s47, s7, 0
            """)
            r = 0
            for bb in range(nbar):
                for _ in range(8):
                    if r < 72:
                        a.e(f"s_load_dword s59, s[46:47], {r*1152}")
                        a.e(f"s_load_dword s59, s[46:47], {r*1152+64}")
                        r += 1
                a.e("s_barrier")
        else:
            for _ in range(nbar): a.e("s_barrier")
        a.e(f"s_branch {done}")
        a.label("g1_cc")
    a.reset()
    FBs = [24, 56]; SF = 88
    ACC, ST, CS, ONE, SQ = 96, 112, 116, 120, 124
    WB, XB, SA, GL = 14, 16, 20, 21
    a.e(f"""
    s_sub_u32 s{sWV}, s{sWV}, 4
    v_and_b32 v2, 15, v0
    v_lshrrev_b32 v3, 4, v0
    s_lshr_b32 s{sTG}, s{sWV}, 1
    s_and_b32 s{sNH}, s{sWV}, 1
    s_lshl_b32 s44, s{sWV}, 10
    v_lshl_add_u32 v8, v0, 4, s44
    v_mov_b32 v{ONE}, 0x3f803f80
    v_mov_b32 v{ONE+1}, 0x3f803f80
    v_mov_b32 v{ONE+2}, 0x3f803f80
    v_mov_b32 v{ONE+3}, 0x3f803f80
    v_cmp_gt_u32 vcc, 1152, v8
    v_add_u32 v8, {LON}, v8
    v_mov_b32 v10, {LCNT}
    v_mov_b32 v11, 0
    s_and_saveexec_b64 s[56:57], vcc
    ds_write_b128 v8, {vr(ONE)}
    ds_write_b32 v10, v11
    s_mov_b64 exec, s[56:57]
    v_lshrrev_b32 v10, 2, v0
    v_lshlrev_b32 v10, 7, v10
    v_and_b32 v11, 3, v0
    v_lshl_add_u32 v22, v11, 3, v10
    v_bfe_u32 v23, v0, 3, 2
    s_lshl_b32 s44, s{sNH}, 1
    s_and_b32 s45, s{sTG}, 1
    s_add_u32 s54, s44, s45
    v_xor_b32 v11, s54, v23
    v_lshl_add_u32 v{WB}, v11, 5, v22
    v_xor_b32 v11, 1, v11
    v_lshl_add_u32 v{WB+1}, v11, 5, v22
    v_lshrrev_b32 v11, 1, v2
    v_xor_b32 v11, v3, v11
    v_lshlrev_b32 v10, 7, v2
    v_lshl_add_u32 v{XB}, v11, 4, v10
    v_xor_b32 v{XB+1}, 64, v{XB}
    s_lshl_b32 s44, s{sTG}, 12
    s_lshl_b32 s45, s{sNH}, 11
    s_add_u32 s44, s44, {LX}
    s_add_u32 s51, s44, s45
    s_xor_b32 s45, s45, 2048
    s_add_u32 s52, s44, s45
    v_add_u32 v{XB+2}, s52, v{XB}
    v_add_u32 v{XB+3}, s52, v{XB+1}
    v_add_u32 v{XB}, s51, v{XB}
    v_add_u32 v{XB+1}, s51, v{XB+1}
    v_and_b32 v11, 3, v0
    v_mov_b32 v{SA}, {LST+1280}
    v_mov_b32 v10, {LON}
    v_cmp_eq_u32 vcc, 0, v11
    s_nop 1
    v_cndmask_b32 v{SA}, v{SA}, v10, vcc
    v_mov_b32 v10, {LST}
    v_cmp_eq_u32 vcc, 1, v11
    s_nop 1
    v_cndmask_b32 v{SA}, v{SA}, v10, vcc
    v_lshl_add_u32 v{SA}, v3, 4, v{SA}
    s_waitcnt lgkmcnt(0)
    """)
    a.srd_off(rO, 8, OFF_H20, SZ_H20)
    a.srd_off(rS, 8, OFF_G, S*4)
    a.srd_off(rD, 8, OFF_FF, FFB)
    a.e(f"""
    s_lshl_b32 s44, s{sTM}, 3
    s_add_u32 s45, s44, s{sWV}
    s_mul_i32 s48, s45, {HT}
    s_xor_b32 s45, s45, 1
    s_mul_i32 s49, s45, {HT}
    s_lshl_b32 s52, s{sTN}, 1
    s_add_u32 s52, s52, s{sNH}
    v_lshlrev_b32 v4, 4, v0
    s_lshl_b32 s44, s52, 10
    v_add_u32 v5, s44, v4
    """)
    a.e(f"""
    s_lshl_b32 s44, s{sWV}, 8
    s_add_u32 s44, s44, {LCO}
    v_lshl_add_u32 v12, v2, 4, s44
    s_lshl_b32 s45, s54, 6
    s_add_u32 s45, s45, {LCS}
    v_lshl_add_u32 v13, v3, 4, s45
    v_lshlrev_b32 v10, 2, v3
    v_sub_u32 v10, v2, v10
    v_cmp_eq_u32 s[58:59], 0, v10
    v_cmp_eq_u32 s[46:47], 1, v10
    v_cmp_eq_u32 s[62:63], 2, v10
    v_cmp_eq_u32 s[50:51], 3, v10
    v_cmp_eq_u32 s[56:57], 0, v2
    s_lshl_b32 s60, s{sTM}, 8
    s_lshl_b32 s44, s{sTN}, 2
    s_add_u32 s60, s60, s44
    """)
    def reads(p, ph):
        fb = FBs[p & 1]; out = []
        pre = ""
        if p == 4:
            pre = "".join(f"v_add_u32 v{WB+j}, 0x8000, v{WB+j}\n" for j in range(2))
            if ph == 1: pre += "".join(f"v_add_u32 v{XB+k}, 0x10000, v{XB+k}\n" for k in range(4))
        if p == 9: pre = "".join(f"v_subrev_u32 v{WB+j}, 0x8000, v{WB+j}\n" for j in range(2))
        if p == 5 and ph == 1: pre = "".join(f"v_subrev_u32 v{XB+k}, 0x10000, v{XB+k}\n" for k in range(4))
        for h in range(2):
            for tt in range(2):
                if ph == 1:
                    out.append((pre + f"ds_read_b128 {vr(fb+16+h*8+tt*4)}, v{XB+tt*2+h} offset:{((p % NX) & 3)*16384}", (p, h)))
                else:
                    out.append((pre + f"ds_read_b128 {vr(fb+16+h*8+tt*4)}, v{XB} offset:{(p % 4)*16384 + tt*2048 + h*1024}", (p, h)))
                pre = ""
            off = p*8192 + h*4096
            if off >= 0x8000: off -= 0x8000
            if p == 9: off = (4, 13)[h]*4096
            for j in range(2):
                out.append((f"ds_read_b64_tr_b16 {vr(fb+h*8+j*4,2)}, v{WB+j} offset:{off}", (p, h)))
                out.append((f"ds_read_b64_tr_b16 {vr(fb+h*8+j*4+2,2)}, v{WB+j} offset:{off+2048}", (p, h)))
        return out
    def sread(k): return (f"ds_read_b128 {vr(SF+(k&1)*4)}, v{SA} offset:{k*64}", ("s", k))
    def mainloop(ph):
        a.e("s_barrier")
        if ph == 1: a.lds(*sread(0))
        for (s, t) in reads(0, ph): a.lds(s, t)
        NP = 9 if ph == 1 else 10
        for p in range(NP):
            if p < NP-1: a.e("s_barrier")
            rd = reads(p+1, ph) if p < NP-1 else []
            fb = FBs[p & 1]
            for h in range(2):
                k = 2*p + h
                first = (k == 0)
                mm = [(vr(ACC+(j*2+tt)*4), vr(fb+h*8+j*4), vr(fb+16+h*8+tt*4)) for j in range(2) for tt in range(2)]
                if ph == 1:
                    ex = [(vr(SQ), vr(fb+16+h*8), vr(fb+16+h*8)), (vr(CS), vr(fb+h*8), vr(ONE)), (vr(ST), vr(SF+h*4), vr(fb+16+h*8))]
                    mm = ex + mm if k == 17 else mm + ex
                for n, m in enumerate(mm):
                    if n == 0:
                        a.wait_lg_if((p, h))
                        if ph == 1 and k < 17: a.lds(*sread(k+1))
                    if ph == 1 and m[0] == vr(ST): a.wait_lg_if(("s", k))
                    a.mfma(m[0], m[1], m[2], "0" if first else None)
                    for _ in range(1 if ph == 1 else (2 if n % 2 == 0 else 1)):
                        if rd and not (ph == 1 and n == 6): a.lds(*rd.pop(0))
            assert not rd
    mainloop(1)
    a.stamp(3)
    C = 56
    a.e(f"""
    s_nop 3
    v_cndmask_b32 v11, 0, v{SQ}, s[58:59]
    v_cndmask_b32 v11, v11, v{SQ+1}, s[46:47]
    v_cndmask_b32 v11, v11, v{SQ+2}, s[62:63]
    v_cndmask_b32 v{SQ}, v11, v{SQ+3}, s[50:51]
    s_mov_b64 exec, s[56:57]
    ds_write_b128 v13, {vr(CS)}
    s_mov_b64 exec, -1
    """)
    a.xsum4(SQ, 10)
    a.e(f"v_mov_b32 v{GL}, v{ST+1}")
    a.ln_consts(ST, SQ, C, C+1, C+2, C+3, 10)
    a.e(f"""
    s_mov_b64 exec, 0xffff
    ds_write_b128 v12, {vr(C)}
    s_mov_b64 exec, -1
    v_xor_b32 v12, 256, v12
    v_xor_b32 v13, 64, v13
    """)
    T = 72
    CSR = [CS, ONE]
    def quad(j, tt):
        return [[f"v_fma_f32 v{ACC+(j*2+tt)*4+r}, v{C+tt*4}, v{CSR[j]+r}, v{ACC+(j*2+tt)*4+r}"] +
                a.gelu_seq(ACC+(j*2+tt)*4+r, T+(j*2+tt)*4+r, C+tt*4+1, C+tt*4+2, C+tt*4+3) for r in range(4)]
    def pk(j, tt):
        q = j*2 + tt; P = 64 + tt*4 + j*2; t = T + q*4
        a.e(f"v_cvt_pk_bf16_f32 v{P}, v{t}, v{t+1}")
        a.e(f"v_cvt_pk_bf16_f32 v{P+1}, v{t+2}, v{t+3}")
    a.e("s_waitcnt lgkmcnt(0)")
    a.e("s_barrier")
    a.e(f"ds_read_b128 {vr(C+4)}, v12")
    a.e(f"ds_read_b128 {vr(ONE)}, v13")
    for x in interleave(quad(0, 0)): a.e(x)
    pk(0, 0)
    a.e("s_waitcnt lgkmcnt(0)")
    for x in interleave(quad(0, 1) + quad(1, 0) + quad(1, 1)): a.e(x)
    pk(1, 0); pk(0, 1); pk(1, 1)
    a.e(f"""
    s_bitcmp0_b32 s54, 0
    s_cbranch_scc1 g1_nsw
    v_swap_b32 v64, v66
    v_swap_b32 v65, v67
    v_swap_b32 v68, v70
    v_swap_b32 v69, v71
    g1_nsw:
    s_cmp_eq_u32 s52, 4
    s_cselect_b32 s44, {18*1024}, 0
    s_cmp_eq_u32 s52, 13
    s_cselect_b32 s44, {19*1024}, s44
    s_cmp_eq_u32 s44, 0
    s_cbranch_scc1 g1_std
    v_add_u32 v6, s44, v4
    v_mov_b32 v72, 0
    v_mov_b32 v73, 0
    v_mov_b32 v74, v66
    v_mov_b32 v75, v67
    v_mov_b32 v76, 0
    v_mov_b32 v77, 0
    v_mov_b32 v78, v70
    v_mov_b32 v79, v71
    v_mov_b32 v66, 0
    v_mov_b32 v67, 0
    v_mov_b32 v70, 0
    v_mov_b32 v71, 0
    buffer_store_dwordx4 v[72:75], v6, s[{rO}:{rO+3}], s48 offen sc1
    buffer_store_dwordx4 v[76:79], v6, s[{rO}:{rO+3}], s49 offen sc1
    g1_std:
    buffer_store_dwordx4 v[64:67], v5, s[{rO}:{rO+3}], s48 offen sc1
    buffer_store_dwordx4 v[68:71], v5, s[{rO}:{rO+3}], s49 offen sc1
    """)
    if w2late == 1: a.e("s_barrier")
    a.stamp(4)
    a.e(f"""
    s_lshl_b32 s44, s{sNH}, 1
    v_xor_b32 v11, s44, v23
    v_lshl_add_u32 v{WB}, v11, 5, v22
    v_xor_b32 v11, 1, v11
    v_lshl_add_u32 v{WB+1}, v11, 5, v22
    s_lshl_b32 s44, s{sTG}, 12
    s_add_u32 s44, s44, {LX}
    v_lshlrev_b32 v4, 4, v0
    v_add_u32 v{XB}, s44, v4
    v_lshrrev_b32 v12, 1, v3
    s_lshl_b32 s45, s{sNH}, 2
    v_add_u32 v12, s45, v12
    v_and_b32 v13, 7, v2
    v_xor_b32 v12, v12, v13
    v_lshlrev_b32 v13, 7, v2
    v_lshl_add_u32 v13, v12, 4, v13
    v_and_b32 v12, 1, v3
    v_lshl_add_u32 v13, v12, 3, v13
    s_add_u32 s44, s44, {4*16384}
    v_add_u32 v{XB+1}, s44, v13
    v_xor_b32 v{XB+2}, 32, v{XB+1}
    """)
    if w2late == 2: pub_bar(a, sWV, 1, rD, 60, "g1_pub")
    else: publish(a, 8, LCNT, rD, 60, "g1_pub")
    a.stamp(5)
    sc = "sc1" if MONO[0] else ""
    lab = a.newlabel("nog")
    a.e(f"s_cmp_lg_u32 s{sTN}, 0")
    a.e(f"s_cbranch_scc1 {lab}")
    a.bf16r(GL, GL)
    a.e(f"v_mul_f32 v{GL}, {hex(f2u(-1.4426950408889634))}, v{GL}")
    a.e(f"v_exp_f32 v{GL}, v{GL}")
    a.e("s_nop 0")
    a.e(f"v_add_f32 v{GL}, 1.0, v{GL}")
    a.e(f"v_rcp_f32 v{GL}, v{GL}")
    a.e("s_nop 0")
    a.bf16r(GL, GL)
    a.e(f"s_lshl_b32 s44, s{sWV}, 4")
    a.e(f"s_add_u32 s44, s44, s61")
    a.e(f"v_add_lshl_u32 v10, s44, v2, 2")
    a.e("s_mov_b64 exec, 0xffff")
    a.e(f"buffer_store_dword v{GL}, v10, s[{rS}:{rS+3}], 0 offen {sc}")
    a.e("s_mov_b64 exec, -1")
    a.label(lab)
    a.srd_off(rO, 8, OFF_X1, SZ_ACT)
    a.srd_off(rA, 8, OFF_ST, NST*S*8)
    a.e(f"""
    s_lshl_b32 s44, s{sTM}, 3
    s_lshl_b32 s45, s{sTG}, 1
    s_add_u32 s44, s44, s45
    s_mul_i32 s48, s44, 18432
    s_lshl_b32 s45, s{sTN}, 1
    s_add_u32 s45, s45, s{sNH}
    s_lshl_b32 s46, s45, 10
    s_add_u32 s48, s48, s46
    s_add_u32 s49, s48, 18432
    s_lshl_b32 s47, s45, 14
    s_lshl_b32 s44, s44, 4
    v_add_lshl_u32 v5, s44, v2, 3
    v_mov_b32 v{ONE}, 0x3f803f80
    s_cmp_lg_u32 s{sWV}, 0
    s_cbranch_scc1 g2_poll_ok
    v_min_u32 v12, 26, v0
    v_mul_u32_u24 v13, 7282, v12
    v_lshrrev_b32 v13, 16, v13
    v_mul_u32_u24 v10, 9, v13
    v_sub_u32 v12, v12, v10
    s_sub_u32 s44, s{sTM}, 1
    v_add_u32 v13, s44, v13
    v_max_i32 v13, 0, v13
    v_min_i32 v13, 15, v13
    v_lshlrev_b32 v13, 8, v13
    v_lshl_add_u32 v12, v12, 2, v13
    """)
    if pipe: poll_pipe(a, 12, rD, sBUD, 6, "g2_poll", psl)
    else: poll_bytes(a, 12, rD, sBUD, 13, "g2_poll", psl)
    a.reset()
    a.e("s_barrier")
    mainloop(2)
    a.stamp(6)
    XR = 24
    for tt in range(2):
        for j in range(2):
            a.e(f"ds_read_b64 {vr(XR+(tt*2+j)*2,2)}, v{XB+1+j} offset:{tt*2048}")
    a.e("s_nop 3")
    for q in range(4):
        acc = ACC + q*4; t = 64 + q*2
        a.e(f"v_cvt_pk_bf16_f32 v{t}, v{acc}, v{acc+1}")
        a.e(f"v_cvt_pk_bf16_f32 v{t+1}, v{acc+2}, v{acc+3}")
    a.e("s_waitcnt lgkmcnt(0)")
    if MONO[0] and not t1late: a.e("s_barrier")
    for q in range(4):
        acc = ACC + q*4; t = 64 + q*2
        a.e(f"v_lshlrev_b32 v{acc}, 16, v{t}")
        a.e(f"v_and_b32 v{acc+1}, 0xffff0000, v{t}")
        a.e(f"v_lshlrev_b32 v{acc+2}, 16, v{t+1}")
        a.e(f"v_and_b32 v{acc+3}, 0xffff0000, v{t+1}")
    for tt in range(2):
        for j in range(2):
            acc = ACC + (j*2+tt)*4; xr = XR + (tt*2+j)*2; t = 72 + j*4; P = 80 + tt*4 + j*2
            a.e(f"v_lshlrev_b32 v{t}, 16, v{xr}")
            a.e(f"v_and_b32 v{t+1}, 0xffff0000, v{xr}")
            a.e(f"v_lshlrev_b32 v{t+2}, 16, v{xr+1}")
            a.e(f"v_and_b32 v{t+3}, 0xffff0000, v{xr+1}")
            for r in range(4): a.e(f"v_add_f32 v{acc+r}, v{acc+r}, v{t+r}")
            a.e(f"v_cvt_pk_bf16_f32 v{P}, v{acc}, v{acc+1}")
            a.e(f"v_cvt_pk_bf16_f32 v{P+1}, v{acc+2}, v{acc+3}")
        a.e(f"buffer_store_dwordx4 {vr(80+tt*4)}, v4, s[{rO}:{rO+3}], s{48+tt} offen {sc}")
    for kk in range(4): a.e(f"v_mov_b32 v{88+kk}, 0")
    for kk in range(4):
        for tt in range(2):
            P = 80 + tt*4 + kk
            a.e(f"v_dot2c_f32_bf16 v{88+tt*2}, v{P}, v{ONE}")
            a.e(f"v_dot2c_f32_bf16 v{89+tt*2}, v{P}, v{P}")
    a.e("s_nop 2")
    for sw in ("32", "16"):
        for kk in range(4): a.e(f"v_mov_b32 v{92+kk}, v{88+kk}")
        a.e("s_nop 0")
        for kk in range(4): a.e(f"v_permlane{sw}_swap_b32 v{88+kk}, v{92+kk}")
        a.e("s_nop 0")
        for kk in range(4): a.e(f"v_add_f32 v{88+kk}, v{88+kk}, v{92+kk}")
    a.e("s_mov_b64 exec, 0xffff")
    for tt in range(2):
        a.e(f"buffer_store_dwordx2 {vr(88+tt*2,2)}, v5, s[{rA}:{rA+3}], s47 offen offset:{tt*128} {sc}")
    a.e("s_mov_b64 exec, -1")
    if MONO[0]:
        if t1late: pub_bar(a, sWV, 1, rD, 60, "g2_pub", F_X1)
        else: publish(a, 8 if w2late == 2 else 16, LCNT, rD, 60, "g2_pub", F_X1)
        a.stamp(7)
    a.e(f"s_branch {done}")
    return LCO + 2048

def idle(a):
    a.e("s_lshr_b32 s58, s2, 3")
    a.e("s_lshl_b32 s58, s58, 2")
    a.e("s_add_u32 s58, s58, s38")
    a.e("s_sub_u32 s58, s58, 12")
    l = a.newlabel("cpf")
    a.e(f"s_getpc_b64 s[60:61]")
    a.label(l)
    a.e(f"s_sub_u32 s60, s60, {l}-{KNAME}")
    a.e(f"s_subb_u32 s61, s61, 0")
    a.e(f"s_min_u32 s58, s58, (k3_end-{KNAME})/768")
    a.e(f"s_mul_i32 s58, s58, 768")
    a.e(f"s_add_u32 s60, s60, s58")
    a.e(f"s_addc_u32 s61, s61, 0")
    for i in range(12): a.e(f"s_load_dword s59, s[60:61], {i*64}")
KNAME = "gated_mix__ssm_conv_h3__mixer_s_mlp__prompt_kernel"

RS = 13120
L_EX = 6*RS
L_CNT = LCN

def side(a, done, nt="nt", cpf=3, help=False, w2pf=True, psl=6):
    a.reset()
    rK, rV, rSH, rU, rH, rD, rZ = 16, 20, 24, 28, 32, 40, 44
    sWV, sBUD = 38, 53
    a.ldarg(4, "k"); a.ldarg(6, "v"); a.ldarg(8, "shk"); a.ldarg(10, "ws"); a.ldarg(12, "ssmk"); a.ldarg(14, "dbg"); a.ldarg(56, "ssmD")
    a.ldarg(58, "w1"); a.ldarg(60, "q"); a.ldarg(62, "w2")
    a.e(f"""
    v_lshrrev_b32 v1, 6, v0
    v_and_b32 v0, 63, v0
    v_readfirstlane_b32 s{sWV}, v1
    v_and_b32 v2, 15, v0
    v_lshrrev_b32 v3, 4, v0
    s_mov_b32 s{sBUD}, 0x8000
    v_mov_b32 v10, {L_CNT}
    v_mov_b32 v11, 0
    ds_write2_b32 v10, v11, v11 offset0:0 offset1:1
    s_waitcnt lgkmcnt(0)
    """)
    a.srd_off(rU, 10, OFF_UR, D*URP + 16)
    a.srd(rD, 14, 256)
    a.e(f"""
    v_mov_b32 v126, 0
    s_cmp_ge_u32 s3, 72
    s_cbranch_scc1 sd_nop
    s_mul_i32 s37, s3, 7282
    s_lshr_b32 s37, s37, 16
    s_mul_i32 s39, s37, 9
    s_sub_u32 s39, s3, s39
    s_add_u32 s52, s39, 16
    s_lshl_b32 s52, s52, 8
    s_lshl_b32 s48, s37, 2
    s_add_u32 s52, s52, s48
    s_lshl_b32 s48, s37, 4
    s_add_u32 s48, s48, s{sWV}
    s_lshl_b32 s48, s48, 4
    v_lshrrev_b32 v13, 5, v0
    v_and_b32 v14, 31, v0
    v_lshl_add_u32 v4, v13, 3, s48
    s_lshl_b32 s49, s39, 6
    v_lshl_add_u32 v5, v14, 1, s49
    v_mul_u32_u24 v6, 1152, v4
    v_lshl_add_u32 v7, v5, 1, v6
    v_subrev_u32 v6, 4608, v7
    v_add_u32 v8, 4608, v7
    v_lshlrev_b32 v9, 3, v5
    """)
    a.srd(rK, 4, SZ_ACT); a.srd(rSH, 8, D*8)
    KR, VR, WR = 16, 28, 36
    a.vmem(f"buffer_load_dwordx4 {vr(WR)}, v9, s[{rSH}:{rSH+3}], 0 offen", "k")
    for r in range(1, 12):
        a.vmem(f"buffer_load_dword v{KR+r}, v{6+r//4}, s[{rK}:{rK+3}], 0 offen offset:{(r%4)*1152} {nt}", "k")
    a.srd(rV, 6, SZ_ACT)
    for r in range(8):
        rr = r + 4
        a.vmem(f"buffer_load_dword v{VR+r}, v{6+rr//4}, s[{rV}:{rV+3}], 0 offen offset:{(rr%4)*1152} {nt}", "v")
    a.e(f"""
    v_mul_u32_u24 v12, {2*528}, v14
    v_and_b32 v11, 255, v4
    v_sub_u32 v11, 248, v11
    v_lshl_add_u32 v12, v11, 1, v12
    v_add_u32 v12, {L_EX}, v12
    s_lshl_b32 s50, s{sWV}, 2
    v_add_u32 v13, s50, v13
    v_mul_u32_u24 v15, 528, v13
    v_lshl_add_u32 v15, v14, 4, v15
    v_add_u32 v15, {L_EX}, v15
    v_lshlrev_b32 v13, 12, v13
    v_lshl_add_u32 v13, v14, 4, v13
    s_lshl_b32 s50, s39, 18
    s_sub_u32 s51, 7, s37
    s_lshl_b32 s51, s51, 9
    s_add_u32 s50, s50, s51
    """)
    a.wait_vm("k")
    KF, WFl, U, VF, P = 40, 52, 56, 72, 80
    uns = [lambda d, s: f"v_lshlrev_b32 v{d}, 16, v{s}", lambda d, s: f"v_and_b32 v{d}, 0xffff0000, v{s}"]
    for ch in range(2):
        un = uns[ch]; Uc = U + ch*8
        for r in range(1, 12): a.e(un(KF+r, KR+r))
        a.e(f"v_lshlrev_b32 v{WFl}, 16, v{WR+2*ch}")
        a.e(f"v_and_b32 v{WFl+1}, 0xffff0000, v{WR+2*ch}")
        a.e(f"v_lshlrev_b32 v{WFl+2}, 16, v{WR+2*ch+1}")
        a.e(f"v_and_b32 v{WFl+3}, 0xffff0000, v{WR+2*ch+1}")
        for e in range(8): a.e(f"v_mul_f32 v{Uc+e}, v{KF+e+1}, v{WFl+3}")
        for j in (2, 1, 0):
            for e in range(8): a.e(f"v_fma_f32 v{Uc+e}, v{KF+e+4-j}, v{WFl+j}, v{Uc+e}")
    a.wait_vm("v")
    lab = a.newlabel("nv")
    a.e(f"s_cmp_lg_u32 s{sWV}, 0")
    a.e(f"s_cbranch_scc1 {lab}")
    a.e(f"buffer_load_dword v127, v126, s[{rD}:{rD+3}], 0 offen sc1")
    a.label(lab)
    for ch in range(2):
        un = uns[ch]; Uc = U + ch*8
        for r in range(8): a.e(un(VF+r, VR+r))
        for e in range(8): a.e(f"v_mul_f32 v{Uc+e}, v{Uc+e}, v{VF+e}")
        PP = P + ch*4
        for m in range(4):
            a.e(f"v_cvt_pk_bf16_f32 v{PP+m}, v{Uc+7-2*m}, v{Uc+6-2*m}")
        a.e(f"ds_write_b128 v12, {vr(PP)} offset:{ch*528}")
    a.e("s_waitcnt lgkmcnt(0)")
    a.e("s_barrier")
    for i in range(2): a.lds(f"ds_read_b128 {vr(16+4*i)}, v15 offset:{i*2*528}", i)
    for i in range(2):
        a.wait_lg(i)
        a.e(f"buffer_store_dwordx4 {vr(16+4*i)}, v13, s[{rU}:{rU+3}], s50 offen sc1")
        a.e(f"s_add_u32 s50, s50, {2*URP}")
    a.stamp(8)
    a.e(f"s_cmp_lg_u32 s{sWV}, 0")
    a.e("s_cbranch_scc1 p_val_ok")
    poll_bytes(a, 126, rD, sBUD, 127, "p_val", 4, pre=True)
    a.srd_off(rD, 10, OFF_FF, FFB)
    pub_bar(a, sWV, 0, rD, 52, "pr_pub")
    a.stamp(9)
    a.e("s_branch sd_conv")
    a.label("sd_nop")
    a.e(f"s_cmp_lg_u32 s{sWV}, 0")
    a.e("s_cbranch_scc1 s_val_ok")
    poll_bytes(a, 126, rD, sBUD, 127, "s_val", 8)
    a.label("sd_conv")
    a.e(f"s_cmp_lt_u32 s{sWV}, 12")
    a.e("s_cbranch_scc1 sd_act")
    for _ in range(6): a.e("s_barrier")
    a.e(f"s_branch {done}")
    a.label("sd_act")
    a.reset()
    a.e(f"""
    s_lshr_b32 s36, s{sWV}, 1
    s_and_b32 s37, s{sWV}, 1
    s_mul_i32 s39, s36, {RS}
    s_mul_i32 s48, s3, 6
    s_add_u32 s48, s48, s36
    s_and_b32 s49, s48, 0xfffe
    s_lshl_b32 s49, s49, 1
    s_load_dword s54, s[56:57], s49
    v_lshlrev_b32 v4, 4, v0
    s_lshl_b32 s50, s48, 12
    s_lshl_b32 s51, s37, 11
    s_add_u32 s49, s50, s51
    s_add_u32 s51, s51, s39
    """)
    a.srd(rH, 12, D*S*2)
    a.e(f"s_add_u32 m0, s51, {8320+512}")
    a.e("s_nop 0")
    for i in range(2):
        a.vmem(f"buffer_load_dwordx4 v4, s[{rH}:{rH+3}], s49 offen offset:{i*1024} {nt} lds")
    a.srd_off(rZ, 10, OFF_Z4, SZ_ACT)
    if cpf and not MONO[0]:
        a.e("s_lshr_b32 s58, s3, 3")
        a.e("s_mul_i32 s58, s58, 12")
        a.e(f"s_add_u32 s58, s58, s{sWV}")
        a.code_pf("k3_kernel", 58, cpf, 60, 59, f"(k3_end-k3_kernel)/{cpf*64}")
    a.e(f"""
    v_mov_b32 v8, 0
    v_mov_b32 v9, 0
    v_mov_b32 v10, 0
    v_mov_b32 v11, 0
    v_add_u32 v5, s39, v4
    s_mov_b32 exec_hi, 0xf
    ds_write_b128 v5, v[8:11] offset:8256
    s_mov_b64 exec, 0xf
    ds_write_b128 v5, v[8:11] offset:4096
    s_mov_b64 exec, -1
    v_or_b32 v5, 1, v2
    v_sub_u32 v5, 15, v5
    v_lshl_add_u32 v5, v3, 3, v5
    v_lshlrev_b32 v5, 1, v5
    v_and_b32 v6, 1, v2
    v_xor_b32 v6, 1, v6
    v_mul_u32_u24 v6, 4160, v6
    s_xor_b32 s49, s37, 1
    s_lshl_b32 s49, s49, 8
    s_add_u32 s49, s49, s39
    v_add3_u32 v12, v5, v6, s49
    v_add_u32 v13, 1024, v12
    v_add_u32 v14, 2048, v12
    v_add_u32 v15, 3072, v12
    v_lshlrev_b32 v5, 5, v2
    v_lshl_add_u32 v5, v3, 4, v5
    v_add_u32 v7, s49, v5
    v_add_u32 v7, {8320+32}, v7
    s_mul_i32 s49, s3, 6
    v_bfe_u32 v6, v0, 3, 1
    v_mul_u32_u24 v6, 5, v6
    v_add_u32 v6, s49, v6
    v_lshrrev_b32 v6, 6, v6
    v_add_u32 v6, 16, v6
    v_lshlrev_b32 v6, 8, v6
    v_and_b32 v5, 7, v0
    v_lshl_add_u32 v6, v5, 2, v6
    s_lshl_b32 s49, s37, 11
    s_add_u32 s50, s50, s49
    s_add_u32 s51, s49, s39
    """)
    a.stamp(2)
    a.srd_off(rD, 10, OFF_FF, FFB)
    a.e(f"s_cmp_lg_u32 s{sWV}, 0")
    a.e("s_cbranch_scc1 cv_poll_ok")
    poll_bytes(a, 6, rD, sBUD, 5, "cv_poll", psl)
    a.e("s_barrier")
    a.stamp(3)
    a.e("s_mov_b32 m0, s51")
    a.e("s_nop 0")
    for i in range(2):
        a.e(f"buffer_load_dwordx4 v4, s[{rU}:{rU+3}], s50 offen offset:{i*1024} sc1 lds")
    a.e(f"""
    v_add_u32 v5, s51, v4
    s_waitcnt vmcnt(0) lgkmcnt(0)
    s_barrier
    ds_read_b128 v[16:19], v5
    ds_read_b32 v20, v5 offset:16
    ds_read_b128 v[24:27], v5 offset:1024
    ds_read_b32 v28, v5 offset:1040
    s_waitcnt lgkmcnt(2)
    v_alignbit_b32 v16, v17, v16, 16
    v_alignbit_b32 v17, v18, v17, 16
    v_alignbit_b32 v18, v19, v18, 16
    v_alignbit_b32 v19, v20, v19, 16
    ds_write_b128 v5, v[16:19] offset:4160
    s_waitcnt lgkmcnt(1)
    v_alignbit_b32 v24, v25, v24, 16
    v_alignbit_b32 v25, v26, v25, 16
    v_alignbit_b32 v26, v27, v26, 16
    v_alignbit_b32 v27, v28, v27, 16
    ds_write_b128 v5, v[24:27] offset:{4160+1024}
    s_waitcnt lgkmcnt(0)
    s_barrier
    """)
    a.stamp(4)
    a.reset()
    ACC = 16; FB = 48
    NLA = 2 if MONO[0] else 6
    def treg(rl, x): return (FB if rl % 2 == 0 or x >= NLA else 112) + x*4
    def greg(rl, x): return (FB+32 if rl % 2 == 0 or x >= NLA else 112+4*NLA) + x*4
    def loads(rl):
        rho = 4 + rl; out = []
        for x in range(8):
            p = 8*x + rho
            boff = 64*(63-p)
            base = 12 + boff // 1024
            o = (boff % 1024) // 4
            t = treg(rl, x)
            out.append((f"ds_read2_b32 {vr(t,2)}, v{base} offset0:{o} offset1:{o+1}", (rl, x)))
            out.append((f"ds_read2_b32 {vr(t+2,2)}, v{base} offset0:{o+2} offset1:{o+3}", (rl, x)))
            n = 8*x - rho
            out.append((f"ds_read_b128 {vr(greg(rl, x))}, v7 offset:{64*(n+7)}", (rl, x)))
        return out
    q = loads(0)
    for _ in range(12): a.lds(*q.pop(0))
    for rl in range(4):
        nxt = loads(rl+1) if rl < 3 else []
        q += nxt[:3*NLA]
        for c in range(8):
            while any(t == (rl, c) for _, t in q): a.lds(*q.pop(0))
            a.wait_lg_if((rl, c))
            for x in range(c+1):
                first = (rl == 0 and x == 0)
                a.mfma(vr(ACC+c*4), vr(treg(rl, x)), vr(greg(rl, c-x)), "0" if first else None)
                if q and len(a.lg) < 14: a.lds(*q.pop(0))
                elif q and len(a.lg) >= 14 and (x % 2 == 1):
                    a.e("s_waitcnt lgkmcnt(8)"); a.lg = a.lg[-8:]
                    a.lds(*q.pop(0))
        q += nxt[3*NLA:]
    assert not q
    a.stamp(5)
    a.e(f"""
    s_lshl_b32 s49, s{sWV}, 12
    s_add_u32 s49, s49, {L_EX}
    v_add_u32 v5, s49, v4
    s_xor_b32 s49, s{sWV}, 1
    s_lshl_b32 s49, s49, 12
    s_add_u32 s49, s49, {L_EX}
    v_add_u32 v6, s49, v4
    s_cmp_eq_u32 s37, 0
    s_cbranch_scc1 cv_h0
    """)
    for c in range(4): a.e(f"ds_write_b128 v5, {vr(ACC+c*4)} offset:{c*1024}")
    for r in range(16): a.e(f"v_mov_b32 v{64+r}, v{ACC+16+r}")
    a.e("s_branch cv_hj")
    a.label("cv_h0")
    for c in range(4): a.e(f"ds_write_b128 v5, {vr(ACC+16+c*4)} offset:{c*1024}")
    for r in range(16): a.e(f"v_mov_b32 v{64+r}, v{ACC+r}")
    a.label("cv_hj")
    a.e(f"""
    v_lshlrev_b32 v8, 5, v2
    v_lshl_add_u32 v8, v3, 3, v8
    v_sub_u32 v9, 504, v8
    s_xor_b32 s49, s37, 1
    s_lshl_b32 s49, s49, 11
    s_add_u32 s49, s49, s39
    v_add_u32 v9, s49, v9
    s_mul_i32 s49, s37, {2048+128}
    s_add_u32 s49, s49, s39
    v_add_u32 v8, s49, v8
    s_bitcmp1_b32 s48, 0
    s_cselect_b32 s49, 0, 16
    s_lshl_b32 s54, s54, s49
    s_and_b32 s54, s54, 0xffff0000
    """)
    U = 48
    for cl in range(4): a.e(f"ds_read_b64 {vr(U+2*cl,2)}, v9 offset:{512*(3-cl)}")
    a.e("s_waitcnt lgkmcnt(0)")
    a.e("s_barrier")
    for cl in range(4): a.e(f"ds_read_b128 {vr(80+cl*4)}, v6 offset:{cl*1024}")
    for cl in range(4):
        t = 96 + cl*4
        a.e(f"v_and_b32 v{t}, 0xffff0000, v{U+2*cl+1}")
        a.e(f"v_lshlrev_b32 v{t+1}, 16, v{U+2*cl+1}")
        a.e(f"v_and_b32 v{t+2}, 0xffff0000, v{U+2*cl}")
        a.e(f"v_lshlrev_b32 v{t+3}, 16, v{U+2*cl}")
        for r in range(4): a.e(f"v_fma_f32 v{t+r}, v{t+r}, s54, v{64+cl*4+r}")
    a.e("s_waitcnt lgkmcnt(0)")
    for cl in range(4):
        t = 96 + cl*4
        for r in range(4): a.e(f"v_add_f32 v{t+r}, v{t+r}, v{80+cl*4+r}")
        a.e(f"v_cvt_pk_bf16_f32 v{t}, v{t}, v{t+1}")
        a.e(f"v_cvt_pk_bf16_f32 v{t+1}, v{t+2}, v{t+3}")
        a.e(f"ds_write_b64 v8, {vr(t,2)} offset:{8320+512*cl}")
    a.e(f"""
    v_bfe_u32 v5, v0, 2, 1
    v_mul_u32_u24 v5, {RS}, v5
    v_bfe_u32 v6, v0, 3, 1
    v_mul_u32_u24 v6, {2048+128}, v6
    v_add_u32 v5, v5, v6
    v_lshl_add_u32 v5, v3, 5, v5
    v_and_b32 v6, 3, v0
    v_lshl_add_u32 v5, v6, 3, v5
    s_lshr_b32 s49, s{sWV}, 2
    s_mul_i32 s50, s49, {2*RS}
    s_and_b32 s51, s{sWV}, 3
    s_lshl_b32 s52, s51, 9
    s_add_u32 s50, s50, s52
    v_add_u32 v5, s50, v5
    v_lshlrev_b32 v6, 2, v0
    s_mul_i32 s50, s3, 3
    s_add_u32 s50, s50, s49
    s_lshl_b32 s50, s50, 13
    s_lshl_b32 s51, s51, 10
    s_add_u32 s50, s50, s51
    s_add_u32 s51, s50, 4096
    s_waitcnt lgkmcnt(0)
    s_barrier
    """)
    a.reset()
    for j in range(4):
        a.lds(f"ds_read_b64_tr_b16 {vr(16+2*j,2)}, v5 offset:{8320+128*j}", j)
    sc = "sc1" if MONO[0] else ""
    if MONO[0]:
        a.wait_lg0()
        a.e("s_barrier")
    for j in range(4):
        a.wait_lg_if(j)
        a.e(f"buffer_store_dword v{16+2*j}, v6, s[{rZ}:{rZ+3}], s50 offen offset:{256*j} {sc}")
        a.e(f"buffer_store_dword v{17+2*j}, v6, s[{rZ}:{rZ+3}], s51 offen offset:{256*j} {sc}")
    a.stamp(6)
    if MONO[0]:
        a.e("s_lshl_b32 s52, s3, 2")
        publish(a, 12, L_CNT+4, rD, 52, "z_pub", F_Z)
    a.e(f"s_branch {done}")

def colsum12(a, done, win=18, w2pf=True, ns=4):
    a.reset()
    rW, rC = 16, 20
    a.ldarg(4, "w3"); a.ldarg(10, "ws"); a.ldarg(14, "dbg"); a.ldarg(6, "w2")
    a.e(f"""
    v_lshrrev_b32 v1, 8, v0
    v_and_b32 v6, 255, v0
    v_readfirstlane_b32 s38, v1
    v_lshrrev_b32 v1, 3, v6
    v_and_b32 v2, 7, v6
    v_mul_u32_u24 v3, 9216, v1
    v_lshl_add_u32 v3, v2, 4, v3
    s_sub_u32 s37, 255, s2
    s_mul_i32 s39, s37, {ns}
    s_add_u32 s39, s39, s38
    s_add_u32 s40, s37, {16*ns - 16}
    s_cmp_ge_u32 s37, 16
    s_cselect_b32 s39, s40, s39
    s_cselect_b32 s40, 1, {ns}
    s_cmp_ge_u32 s39, 72
    s_cselect_b32 s40, 0, s40
    s_waitcnt lgkmcnt(0)
    s_cmp_lg_u32 s2, 216
    s_cbranch_scc1 cs_nz
    """)
    a.srd_off(24, 10, OFF_FLAG, flag_bytes())
    a.srd_off(32, 10, OFF_FF, FFB)
    a.srd(28, 14, 256)
    a.e(f"""
    v_mov_b32 v88, 0
    v_mov_b32 v89, 0
    v_mov_b32 v90, 0
    v_mov_b32 v91, 0
    v_lshlrev_b32 v94, 4, v0
    buffer_store_dwordx4 v[88:91], v94, s[32:35], 0 offen sc1
    buffer_store_dwordx4 v[88:91], v94, s[24:27], 0 offen sc1
    s_mov_b32 s41, 0
    """)
    pub_bar(a, 101, 0, 28, 41, "cs_nz")
    a.e(f"""
    s_cmp_lt_u32 s38, s40
    s_cbranch_scc1 cs_go
    """)
    if w2pf:
        a.e(f"""
        s_cmp_lt_u32 s37, 16
        s_cbranch_scc1 cs_npf
        s_sub_u32 s41, s2, 216
        s_lshl_b32 s41, s41, 2
        s_add_u32 s41, s41, s101
        s_sub_u32 s41, s41, 12
        s_cmp_lt_u32 s101, 12
        s_cbranch_scc1 cs_npf
        s_lshl_b32 s41, s41, 13
        v_and_b32 v4, 63, v0
        v_lshlrev_b32 v4, 7, v4
        """)
        a.srd(16, 6, D*D*2)
        a.e(f"""
        buffer_load_dword v100, v4, s[16:19], s41 offen
        cs_npf:
        """)
    a.e(f"""
    s_barrier
    s_branch cs_end
    cs_go:
    """)
    a.srd(rW, 4, D*F*2)
    a.srd_off(rC, 10, OFF_CS3, F*4)
    a.e(f"""
    s_min_u32 s36, s39, 71
    s_lshl_b32 s36, s36, 7
    s_cmp_ge_u32 s39, 72
    s_cselect_b32 s18, 0, s18
    """)
    def cld(i):
        a.vmem(f"buffer_load_dwordx4 {vr(16+4*i)}, v3, s[{rW}:{rW+3}], s36 offen", i)
        a.e(f"s_add_u32 s36, s36, {32*9216}")
    for i in range(win): cld(i)
    a.e(f"""
    s_lshl_b32 s40, s38, 13
    s_add_u32 s40, s40, {L_EX}
    v_lshl_add_u32 v7, v6, 5, s40
    v_lshl_add_u32 v93, v6, 2, s40
    v_lshlrev_b32 v94, 2, v6
    """)
    for i in range(18):
        a.wait_vm(i)
        if i + win < 18: cld(i + win)
        for r in range(4):
            x = 16+4*i+r
            if i == 0:
                a.e(f"v_lshlrev_b32 v{8+2*r}, 16, v{x}")
                a.e(f"v_and_b32 v{9+2*r}, 0xffff0000, v{x}")
            else:
                a.e(f"v_lshlrev_b32 v4, 16, v{x}")
                a.e(f"v_and_b32 v5, 0xffff0000, v{x}")
                a.e(f"v_add_f32 v{8+2*r}, v{8+2*r}, v4")
                a.e(f"v_add_f32 v{9+2*r}, v{9+2*r}, v5")
    a.e(f"""
    ds_write_b128 v7, v[8:11]
    ds_write_b128 v7, v[12:15] offset:16
    s_waitcnt lgkmcnt(0)
    s_barrier
    v_cmp_gt_u32 vcc, 64, v6
    s_and_saveexec_b64 s[52:53], vcc
    s_cbranch_execz cs_ns
    """)
    for qq in range(4):
        for r in range(8):
            a.e(f"ds_read_b32 v{16+qq*8+r}, v93 offset:{(qq*8+r)*256}")
        a.e("s_waitcnt lgkmcnt(0)")
    for r in range(1, 32): a.e(f"v_add_f32 v16, v16, v{16+r}")
    a.e(f"""
    s_lshl_b32 s36, s39, 8
    buffer_store_dword v16, v94, s[{rC}:{rC+3}], s36 offen {"sc1" if MONO[0] else ""}
    """)
    if MONO[0]:
        a.srd(28, 14, 256)
        a.srd_off(32, 10, OFF_FF, FFB)
        a.e("v_mov_b32 v17, 0")
        a.e("s_mov_b32 s54, 0x8000")
        poll_bytes(a, 17, 28, 54, 18, "c_val", 8)
        a.e(f"""
        s_mul_i32 s41, s39, 7282
        s_lshr_b32 s41, s41, 16
        s_mul_i32 s42, s41, 9
        s_sub_u32 s42, s39, s42
        s_lshl_b32 s41, s41, 8
        s_lshl_b32 s42, s42, 2
        s_add_u32 s41, s41, s42
        s_add_u32 s41, s41, {F_CS}
        v_mov_b32 v18, 1
        s_mov_b64 exec, 1
        buffer_store_dword v18, v17, s[32:35], s41 offen sc1
        """)
    a.e(f"""
    cs_ns:
    s_mov_b64 exec, s[52:53]
    cs_end:
    s_cmp_lt_u32 s2, 240
    s_cbranch_scc1 kf_sd
    """)
    if MONO[0]: a.e("s_barrier")
    a.e(f"s_branch {done}")

def kfront(a, g={}, sd={}, cs={}):
    name = "k1_kernel"
    a.begin(name)
    done = "k1_done"
    a.e(f"""
    s_cmp_ge_u32 s2, 256
    s_cbranch_scc1 {done}_x
    """)
    a.pstart()
    a.e(f"""
    s_cmp_ge_u32 s2, 144
    s_cbranch_scc1 kf_side
    s_mov_b32 s3, s2
    """)
    lds = gemm12(a, done, **g)
    a.launch(name, (256,1,1), 768, lds)
    a.label("kf_side")
    a.e("s_cmp_lt_u32 s2, 216")
    a.e("s_cbranch_scc1 kf_sd")
    colsum12(a, done, **cs)
    a.label("kf_sd")
    a.e("s_sub_u32 s3, s2, 144")
    side(a, done, **sd)
    a.label(done)
    a.pend(1)
    a.label(done + "_x")
    a.e("s_endpgm")
    a.end(name, 160, 102)


def kmono(a, k34, g={}, sd={}, cs={}, **kw):
    MONO[0] = True
    name = KNAME
    a.launches.append("; @launch grid=(256,1,1) block=(1024,1,1) lds=163840")
    a.begin(name)
    a.e(f"""
    s_cmp_ge_u32 s2, 256
    s_cbranch_scc1 k3_done_x
    """)
    a.pstart()
    a.e(f"""
    v_lshrrev_b32 v1, 6, v0
    s_nop 0
    v_readfirstlane_b32 s101, v1
    s_cmp_ge_u32 s2, 144
    s_cbranch_scc1 kf_side
    s_mov_b32 s3, s2
    """)
    done = "k3_entry"
    gemm12(a, done, **g)
    a.label("kf_side")
    a.e("s_cmp_lt_u32 s2, 216")
    a.e("s_cbranch_scc1 kf_sd")
    colsum12(a, done, **cs)
    a.label("kf_sd")
    a.e("s_sub_u32 s3, s2, 144")
    side(a, done, **sd)
    k34(a, mono=True, front=True, **kw)
    MONO[0] = False
```

```python
import sys
from gen import *
import k12, kf
from k34 import k34, k5

def build(path, prof=False, dup=False, pre=None, k1={}, k2={}, wsbase=0, scs={}, fl=(5, 2), rt=False, kff={}, lst=True, **kw):
    k12.FL.update(FG=fl[0], FS=fl[1])
    k12.SC.update(dict(hs='', ur='', x1='', z='')); k12.SC.update(scs)
    a = K()
    a.wsbase = wsbase; a.rt = rt
    a.prof = prof
    mono = kw.pop("mono", False)
    if mono:
        kf.kmono(a, k34, **kff, **kw)
    elif kw.get("front"):
        kf.kfront(a, **kff)
    else:
        (k12.k1b if k2.get('cs') else k12.k1)(a, **k1); k12.k2(a, **k2)
    if not mono: k34(a, **kw)
    if kw.get('ext'): k5(a)
    if dup: a.launches.append(a.launches[-1])
    if pre: a.launches = [a.launches[i] for i in pre]
    roles = {1: [(0,144,0,4,"g1ld"),(0,144,4,12,"gemm1"),(144,216,0,8,"prep"),(216,256,0,8,"help")], 2: [(144,288,0,4,"gemm2"),(0,144,0,4,"conv"),(288,360,0,4,"colsum")],
             3: [(0,256,8,12,"g0"),(0,256,12,16,"g1"),(0,256,4,8,"g2"),(0,256,0,4,"ld")]}
    if kw.get("front"): roles[1] = [(0,144,0,4,"gld"),(0,144,4,12,"gemm"),(144,216,0,8,"prep"),(216,240,0,12,"conv"),(240,256,0,8,"colsum")]
    if mono:
        roles = {3: [(0,144,0,4,"G.ld"),(0,144,4,8,"G.g2"),(0,144,8,12,"G.g0"),(144,216,0,4,"P.ld"),(144,216,4,8,"P.g2"),(216,240,0,4,"C.ld"),(240,256,0,4,"S.ld")]}
        if lst: a.launches = [f"; @launch kernel={kf.KNAME} grid=(256,1,1) block=(1024,1,1) lds=163840"]
    open(path, "w").write(a.text(HEADER + ("\n; roles " + repr(roles) if prof else "")))

BASE = dict(k1=dict(ntkv="nt", NW0=2, NX0=2, rot=1), k2=dict(nth="nt", cs=4), mapB=True, spf=0, lspf=6, g0w=51, g1n=15,
            skip=(49, 50, 63, 67), dr0=7, p0=10, l0=14, p1=11)
if __name__ == "__main__":
    base = dict(BASE)
    ff = dict(sd=dict(w2pf=False), g=dict(w2late=False))
    f3 = dict(g=dict(w2late=2, t1late=True))
    build("gated_mix__ssm_conv_h3__mixer_s_mlp__prompt.s", mono=True, kff=f3, lst=False, **base)
    build("va.s", mono=True, kff=f3, **base)
    build("vb.s", mono=True, kff=dict(g=dict(w2late=2, t1late=True), cs=dict(ns=3)), **base)
    build("vd.s", mono=True, kff=dict(g=dict(w2late=1, t1late=True), sd=dict(psl=2)), **base)
    build("pa.s", prof=True, rt=True, mono=True, kff=f3, **base)
```

```python
from gen import *

OFF_FLAG = 0x2000000
FL = dict(FG=5, FS=2)
def flag_bytes(): return 384 << FL['FG']
RING = 73728
SLOT = 12288
NSLOT = 7
L_CS = RING + NSLOT*SLOT
L_CONST = L_CS + 3072

def k34(a, nt_w="", nogelu=False, nored=False, mapB=True, xtile0=False, LA=6, trace=False, spf=1, st0=1, st1=0, dr0=5, dr1=5, p0=15, l0=21, bo=4, hv=1, ldp=1, cw=3, sc="sc1", free_at=12, p1=9, a2=24, spn=27, pro=6, skip=(40, 41, 52, 53, 63, 67), d2=40, lspf=0, lx2=0, g0w=42, g1n=17, ext=False, wb=False, front=False, mono=False, psl=4, xa=0, pipe=False, lc=False, zt=30, tp=False, fg=0, fn=8):
    name = "k3_kernel"
    done = "k3_done"
    hs = "sc1" if mono else ""
    if mono:
        from kf import OFF_FF, FFB, F_X1, F_CS, F_Z, poll_bytes, poll_pipe, KNAME
        name = KNAME
        a.label("k3_entry")
        a.e("s_waitcnt lgkmcnt(0)")
        a.e("v_mbcnt_lo_u32_b32 v0, -1, 0")
        a.e("v_mbcnt_hi_u32_b32 v0, -1, v0")
        a.e("s_lshl_b32 s14, s101, 6")
        a.e("v_add_u32 v0, s14, v0")
        a.stamp(11)
    else:
        a.launch(name, (256,1,1), 1024, L_CONST + 1024)
        a.begin(name)
        a.e(f"s_cmp_ge_u32 s2, 256")
        a.e(f"s_cbranch_scc1 {done}_x")
        a.pstart()
    a.reset()
    rW3, rW4, rX, rS, rP, rF, rQ, rZ, rG, rO = 16, 20, 24, 28, 32, 36, 40, 44, 48, 52
    sSP, sTL, sG, sI, sBASE, sRET, sBUD = 56, 57, 58, 59, 60, 61, 3
    a.ldarg(4, "w3"); a.ldarg(6, "w4"); a.ldarg(8, "q"); a.ldarg(10, "ws"); a.ldarg(12, "out")
    if mapB == 2:
        a.e(f"""
        s_and_b32 s14, s2, 1
        s_lshl_b32 s14, s14, 2
        s_bfe_u32 s15, s2, 0x20003
        s_add_u32 s{sSP}, s14, s15
        s_bfe_u32 s14, s2, 0x20001
        s_lshl_b32 s14, s14, 3
        s_lshr_b32 s15, s2, 5
        s_add_u32 s{sTL}, s14, s15
        """)
    elif mapB:
        a.e(f"""
        s_and_b32 s14, s2, 3
        s_lshl_b32 s14, s14, 1
        s_bfe_u32 s15, s2, 0x10003
        s_add_u32 s{sSP}, s14, s15
        s_bfe_u32 s14, s2, 0x10002
        s_lshl_b32 s14, s14, 4
        s_lshr_b32 s15, s2, 4
        s_add_u32 s{sTL}, s14, s15
        """)
    else:
        a.e(f"""
        s_and_b32 s{sSP}, s2, 7
        s_lshr_b32 s{sTL}, s2, 3
        """)
    if xtile0: a.e(f"s_mov_b32 s{sTL}, 0")
    a.e(f"""
    v_lshrrev_b32 v1, 6, v0
    v_and_b32 v0, 63, v0
    v_readfirstlane_b32 s14, v1
    s_mov_b32 s{sBUD}, 0x4000
    s_lshr_b32 s15, s14, 2
    s_lshl_b32 s15, s15, 1
    s_lshr_b32 s{sG}, 0x4b, s15
    s_and_b32 s{sG}, s{sG}, 3
    s_and_b32 s{sI}, s14, 3
    v_and_b32 v9, 15, v0
    v_lshrrev_b32 v10, 4, v0
    v_lshlrev_b32 v7, 4, v0
    v_mov_b32 v2, 0
    v_mov_b32 v3, 0
    v_mov_b32 v11, 0
    v_mov_b32 v12, 0
    v_mov_b32 v13, 0
    s_cmp_lg_u32 s{sG}, 3
    s_cbranch_scc1 k3_comp
    """)
    cut = len(a.lines)
    a.label("k3_comp")
    def late_srds():
        a.srd_off(rP, 10, OFF_PART, 32*3*6*4*8*1024)
        a.srd_off(rF, 10, OFF_FLAG, flag_bytes())
        a.srd(rQ, 8, SZ_ACT)
        a.srd_off(rZ, 10, OFF_Z4, SZ_ACT)
        a.srd_off(rG, 10, OFF_G, S*4)
        a.srd(rO, 12, SZ_ACT)
    FB = [16, 44]; ACC = 72
    VA = [120, 121, 122, 123, 124, 125, 126]
    a.e(f"""
    v_add_u32 v8, 0x10000, v7
    v_lshrrev_b32 v5, 2, v0
    v_mul_u32_u24 v5, 384, v5
    v_and_b32 v4, 3, v0
    v_lshl_add_u32 v5, v4, 3, v5
    v_add_u32 v5, {RING}, v5
    v_bfe_u32 v4, v0, 3, 2
    v_xor_b32 v4, s{sI}, v4
    v_lshl_add_u32 v1, v4, 5, v5
    s_mov_b32 s{sRET}, 0
    s_waitcnt lgkmcnt(0)
    """)
    a.srd_off(rS, 10, OFF_ST, (18 if front else 9)*S*8)
    ST = 72
    if mono:
        a.srd_off(rW4, 10, OFF_FF, FFB)
        a.e(f"""
        s_cmp_lg_u32 s101, 12
        s_cbranch_scc1 m_poll_ok
        v_min_u32 v13, 17, v0
        v_cmp_lt_u32 vcc, 8, v13
        s_lshr_b32 s14, s{sTL}, 1
        s_lshl_b32 s14, s14, 8
        s_add_u32 s14, s14, {F_X1}
        s_lshl_b32 s15, s{sSP}, 8
        s_add_u32 s15, s15, {F_CS - 36}
        v_mov_b32 v14, s14
        v_mov_b32 v15, s15
        v_cndmask_b32 v14, v14, v15, vcc
        v_lshl_add_u32 v13, v13, 2, v14
        """)
        if pipe: poll_pipe(a, 13, rW4, sBUD, 112, "m_poll", psl)
        else: poll_bytes(a, 13, rW4, sBUD, 14, "m_poll", psl)
        a.e("s_barrier")
        a.stamp(12)
    a.e(f"""
    s_cmp_lg_u32 s{sG}, 2
    s_cbranch_scc1 k3_ns
    s_lshl_b32 s14, s{sTL}, 2
    s_add_u32 s14, s14, s{sI}
    s_lshl_b32 s14, s14, 4
    v_add_u32 v13, s14, v9
    v_lshlrev_b32 v13, 3, v13
    v_lshl_add_u32 v13, v10, 14, v13
    s_mov_b32 s14, 0x10000
    s_mov_b32 s15, 0x20000
    buffer_load_dwordx2 {vr(ST,2)}, v13, s[{rS}:{rS+3}], 0 offen {hs}
    buffer_load_dwordx2 {vr(ST+2,2)}, v13, s[{rS}:{rS+3}], s14 offen {hs}
    buffer_load_dwordx2 {vr(ST+4,2)}, v13, s[{rS}:{rS+3}], s15 offen {hs}
    s_mov_b32 s14, 0x30000
    s_mov_b32 s15, 0x40000
    buffer_load_dwordx2 {vr(ST+6,2)}, v13, s[{rS}:{rS+3}], s14 offen {hs}
    buffer_load_dwordx2 {vr(ST+8,2)}, v13, s[{rS}:{rS+3}], s15 offen {hs}
    k3_ns:
    """)
    a.srd_off(rX, 10, OFF_X1, SZ_ACT)
    late_srds()
    a.e(f"""
    s_mul_i32 s14, s{sSP}, {576*1152}
    s_mul_i32 s15, s{sTL}, {18*1152}
    s_add_u32 s14, s14, s15
    s_lshl_b32 s15, s{sI}, 6
    s_add_u32 s14, s14, s15
    s_add_u32 s16, s6, s14
    s_addc_u32 s17, s7, 0
    """)
    grp = sorted(range(81), key=lambda g: min(((g*256 + k*64) % 1152) // 384 for k in range(4)))
    def spf_ticks(t_end, per, lst):
        while T[0] < t_end:
            for _ in range(per):
                if lst: a.e(f"s_load_dword s2, s[16:17], {lst.pop(0)*256}")
            bar()
    T = [0]
    LIM = [10**9]
    def bar(n=1):
        n = min(n, LIM[0] - T[0])
        for _ in range(n): a.e("s_barrier")
        T[0] += n
    def upto(t):
        assert t >= T[0], (t, T[0])
        bar(t - T[0])
    def set_va(base):
        for j in range(7):
            a.e(f"v_add_u32 v{VA[j]}, {((base + j) % NSLOT)*SLOT}, v1")
    a.e(f"s_cmp_eq_u32 s{sG}, 1")
    a.e(f"s_cbranch_scc1 k3_g1")
    a.e(f"s_cmp_eq_u32 s{sG}, 0")
    a.e(f"s_cbranch_scc1 k3_g0")
    T[0] = -2
    a.reset()
    set_va(36)
    upto(cw)
    a.e("s_waitcnt vmcnt(0)")
    for n in (1, 2, 3, 4):
        a.e(f"v_add_f32 v{ST}, v{ST}, v{ST+2*n}")
        a.e(f"v_add_f32 v{ST+1}, v{ST+1}, v{ST+2*n+1}")
    a.xsum4(ST, 14); a.xsum4(ST+1, 14)
    bar()
    a.ln_consts(ST, ST+1, 84, 85, 86, 87, 14)
    a.e(f"s_lshl_b32 s14, s{sI}, 8")
    a.e(f"s_add_u32 s14, s14, {L_CONST}")
    a.e(f"v_lshl_add_u32 v13, v9, 4, s14")
    bar()
    a.e("s_mov_b64 exec, 0xffff")
    a.e(f"ds_write_b128 v13, v[84:87]")
    a.e("s_mov_b64 exec, -1")
    bar(2)
    a.e("s_waitcnt lgkmcnt(0)")
    l2 = grp[spn:] if spf else []
    spf_ticks(26, spf, l2)
    assert not l2, len(l2)
    upto(35)
    a.e("s_branch k3_body")
    a.label("k3_g1")
    T[0] = -2
    set_va(18)
    upto(0)
    l1 = grp[:spn] if spf else []
    spf_ticks(9, spf, l1)
    assert not l1
    upto(17)
    a.e("s_branch k3_body")
    a.label("k3_g0")
    set_va(0)
    a.e("s_barrier")
    a.label("k3_body")
    a.reset()
    def reads(k):
        fb = FB[k & 1]
        out = []
        va = VA[k % 7]
        for tt in range(4):
            off = k*4096 + tt*1024
            base = 7 if off < 65536 else 8
            out.append((f"ds_read_b128 {vr(fb+tt*4)}, v{base} offset:{off & 65535}", (k, "x")))
        for j in range(3):
            out.append((f"ds_read_b64_tr_b16 {vr(fb+16+j*4,2)}, v{va} offset:{128*j}", (k, j)))
            out.append((f"ds_read_b64_tr_b16 {vr(fb+16+j*4+2,2)}, v{va} offset:{128*j+6144}", (k, j)))
        return out
    a.e("s_setprio 2")
    for (s, t) in reads(0): a.lds(s, t)
    a.e("s_barrier")
    def tick(k, barrier=True):
        fb = FB[k & 1]
        rd = reads(k+1) if k < 17 else []
        ri = 0
        for m in range(12):
            j, tt = m // 4, m % 4
            if tt == 0: a.wait_lg_if((k, j))
            a.mfma(vr(ACC+(j*4+tt)*4), vr(fb+16+j*4), vr(fb+tt*4), "0" if k == 0 else None)
            if ri < len(rd):
                a.lds(*rd[ri]); ri += 1
            if k == free_at and m == 10 and barrier: a.e(f"s_cmp_eq_u32 s{sRET}, 2")
        if k > free_at:
            a.e(f"s_cbranch_scc1 k3_nb{k}")
        a.e("s_barrier")
        if k > free_at: a.label(f"k3_nb{k}")
    for k in range(18): tick(k)
    a.e("s_setprio 0")
    a.e(f"s_cmp_ge_u32 s{sRET}, 1")
    a.e(f"s_cbranch_scc1 k3_red")
    CO, CSR, TMP = 16, 32, 44
    a.e(f"""
    s_mul_i32 s14, s{sG}, 12
    s_add_u32 s14, s14, s{sI}
    s_lshl_b32 s62, s14, 6
    s_add_u32 s62, s62, {L_CS}
    v_lshl_add_u32 v4, v10, 4, s62
    v_lshlrev_b32 v3, 4, v9
    v_add_u32 v3, {L_CONST}, v3
    """)
    for tt in range(4): a.e(f"ds_read_b128 {vr(CO+tt*4)}, v3 offset:{tt*256}")
    for jj in range(3): a.e(f"ds_read_b128 {vr(CSR+jj*4)}, v4 offset:{jj*256}")
    a.e(f"""
    s_mul_i32 s14, s{sG}, 6
    s_add_u32 s15, s14, s{sI}
    s_lshl_b32 s15, s15, 12
    v_add_u32 v5, s15, v7
    s_lshr_b32 s15, s{sI}, 1
    s_add_u32 s15, s15, s14
    s_add_u32 s15, s15, 4
    s_lshl_b32 s15, s15, 12
    s_and_b32 s14, s{sI}, 1
    s_lshl_b32 s14, s14, 3
    s_add_u32 s15, s15, s14
    v_add_u32 v6, s15, v7
    s_mov_b32 s{sRET}, 1
    s_cmp_eq_u32 s{sG}, 1
    s_cbranch_scc1 k3_ge1
    s_cmp_eq_u32 s{sG}, 2
    s_cbranch_scc1 k3_ge2
    """)
    def gelu_ins(jjs):
        out = []
        for jj in jjs:
            for half in range(2):
                seqs = []
                for r in range(8):
                    tt = half*2 + r // 4
                    x, t = ACC + jj*16 + half*8 + r, TMP + r
                    c = CO + tt*4
                    seqs.append([f"v_fma_f32 v{x}, v{c}, v{CSR+jj*4+r%4}, v{x}"] + a.gelu_seq(x, t, c+1, c+2, c+3))
                ins = interleave(seqs)
                if nogelu: ins = ins[:8]
                out += [(x, 2 if ("exp" in x or "rcp" in x) else 1) for x in ins]
                for q in range(2):
                    b = ACC + half*8 + q*4 + (0, 2, 32)[jj]; t = TMP + q*4
                    out.append((f"v_cvt_pk_bf16_f32 v{b}, v{t}, v{t+1}", 1))
                    out.append((f"v_cvt_pk_bf16_f32 v{b+1}, v{t+2}, v{t+3}", 1))
        return out
    def paced(ins, nticks):
        tot = sum(c for _, c in ins); acc_c = 0; tk = 0
        for (x, c) in ins:
            a.e(x); acc_c += c
            if tk < nticks and acc_c >= tot*(tk+1)/nticks - 1e-9:
                tk += 1
                if tk == nticks: a.e("s_setprio 3")
                bar()
        assert tk == nticks
    def hw01():
        for tt in range(4): a.e(f"ds_write_b128 v5, {vr(ACC+tt*4)} offset:{tt*1024}")
    def hw2():
        for tt in range(4): a.e(f"ds_write_b64 v6, {vr(ACC+32+tt*4,2)} offset:{tt*1024}")
    def fin(g, tend):
        if hv >= 1 and g < 2:
            bar()
        a.e("s_setprio 0")
        set_va(54 + 18*g)
        a.e("s_waitcnt lgkmcnt(0)")
        upto(tend)
        a.e("s_branch k3_body")
    def hwall():
        if hv == 2:
            hw01(); bar(); hw2()
        elif hv == 3:
            for tt in range(4):
                a.e(f"ds_write_b128 v5, {vr(ACC+tt*4)} offset:{tt*1024}")
                if tt == 1: bar()
            bar(); hw2()
        elif hv == 4:
            hw01()
        else:
            hw01(); hw2()
    def gstart(t):
        T[0] = t
        bar()
        a.e("s_waitcnt lgkmcnt(0)")
    gstart(18)
    paced(gelu_ins([0, 1, 2]), 18)
    upto(g0w)
    hwall(); fin(0, 53)
    a.label("k3_ge1")
    gstart(36)
    paced(gelu_ins([0, 1, 2]), g1n)
    hwall(); fin(1, 71)
    a.label("k3_ge2")
    gstart(54)
    paced(gelu_ins([0, 1]), 9)
    hw01()
    a.e("s_setprio 0")
    gi = gelu_ins([2])
    gi = gi[:8] + [("s_waitcnt lgkmcnt(0)", 0)] + gi[8:]
    paced(gi, 4)
    a.e(f"s_mov_b32 s{sRET}, 2")
    hw2(); fin(2, 89)
    P = [True]
    def pb(n=1):
        if P[0]: bar(n)
    sJ = 62
    TT, SUM, PA = 88, 104, 16
    class RS_: pass
    def mk(v, sb):
        r = RS_(); r.X1, r.Q, r.Z, r.GG, r.OM, r.GA, r.VO = v; r.s = sb; return r
    SA = mk((72, 76, 80, 84, 85, 96, 3), 8)
    SB = mk((48, 52, 56, 84, 85, 0, 0), 16)
    SC = mk((60, 64, 68, 84, 85, 0, 0), 64 if not a.prof else 28)
    def unpack(d, s, n=2):
        for k in range(n):
            a.e(f"v_lshlrev_b32 v{d+2*k}, 16, v{s+k}")
            a.e(f"v_and_b32 v{d+2*k+1}, 0xffff0000, v{s+k}")
    def rnd8(d, t):
        for k in range(4): a.e(f"v_cvt_pk_bf16_f32 v{t+k}, v{d+2*k}, v{d+2*k+1}")
        unpack(d, t, 4)
    def cons_common():
        a.e(f"""
        s_mul_i32 s61, s{sSP}, 3
        s_add_u32 s61, s61, s{sI}
        s_lshr_b32 s4, s61, 3
        s_lshl_b32 s4, s4, 2
        s_and_b32 s6, s61, 3
        s_add_u32 s4, s4, s6
        s_bfe_u32 s6, s61, 0x10002
        s_lshl_b32 s7, s{sTL}, 2
        s_lshl_b32 s6, s6, 1
        s_add_u32 s7, s7, s6
        s_mul_i32 s5, s7, 18432
        s_lshl_b32 s7, s7, 4
        v_and_b32 v1, 31, v0
        v_add_u32 v1, s7, v1
        v_lshrrev_b32 v5, 5, v0
        v_lshlrev_b32 v2, 2, v1
        v_mul_u32_u24 v3, 1152, v1
        v_lshl_add_u32 v3, v5, 4, v3
        v_lshlrev_b32 v4, {2 if front else 3}, v1
        v_lshl_add_u32 v4, v5, 15, v4
        v_add_u32 v12, 8192, v4
        v_and_b32 v11, 1, v10
        v_mul_u32_u24 v11, 18432, v11
        v_lshl_add_u32 v11, v5, 9, v11
        v_lshl_add_u32 v11, v9, 4, v11
        v_and_b32 v5, 7, v0
        v_lshlrev_b32 v5, {FL['FS']}, v5
        """)
    def cons_addr(j, R):
        b = R.s
        a.e(f"""
        s_add_u32 s6, s4, {12*j}
        s_lshr_b32 s7, s6, 1
        s_lshl_b32 s7, s7, 10
        s_add_u32 s{b}, s5, s7
        s_and_b32 s7, s6, 1
        s_lshl_b32 s7, s7, 3
        s_add_u32 s{b}, s{b}, s7
        s_lshl_b32 s{b+2}, s6, 5
        s_lshl_b32 s{b+4}, s6, 16
        s_add_u32 s{b+3}, s{b+4}, 16384
        s_mul_i32 s6, s{sTL}, 3
        s_add_u32 s6, s6, {j}
        s_lshl_b32 s{b+5}, s6, 2
        s_and_b32 s7, s61, 3
        s_add_u32 s{b+5}, s{b+5}, s7
        s_lshl_b32 s{b+5}, s{b+5}, {FL['FG']}
        s_mul_i32 s{b+7}, s6, 24
        s_add_u32 s{b+7}, s{b+7}, s61
        s_lshl_b32 s{b+7}, s{b+7}, 13
        s_add_u32 s{b+6}, s{b+7}, 4096
        """)
    def cons_aux(R):
        b = R.s
        a.vmem(f"buffer_load_dwordx4 {vr(R.Q)}, v3, s[{rQ}:{rQ+3}], s{b+2} offen", "aux")
        if front:
            a.vmem(f"buffer_load_dword v{R.Z}, v4, s[{rZ}:{rZ+3}], s{b+4} offen {hs}", "aux")
            a.vmem(f"buffer_load_dword v{R.Z+1}, v12, s[{rZ}:{rZ+3}], s{b+4} offen {hs}", "aux")
            a.vmem(f"buffer_load_dword v{R.Z+2}, v4, s[{rZ}:{rZ+3}], s{b+3} offen {hs}", "aux")
            a.vmem(f"buffer_load_dword v{R.Z+3}, v12, s[{rZ}:{rZ+3}], s{b+3} offen {hs}", "aux")
        else:
            a.vmem(f"buffer_load_dwordx2 {vr(R.Z,2)}, v4, s[{rZ}:{rZ+3}], s{b+4} offen {hs}", "aux")
            a.vmem(f"buffer_load_dwordx2 {vr(R.Z+2,2)}, v4, s[{rZ}:{rZ+3}], s{b+3} offen {hs}", "aux")
        if R is SA: a.vmem(f"buffer_load_dword v{R.GG}, v2, s[{rG}:{rG+3}], 0 offen {hs}", "aux")
        a.vmem(f"buffer_load_dwordx2 {vr(R.X1,2)}, v11, s[{rX}:{rX+3}], s{b} offen {hs}", "aux")
        a.vmem(f"buffer_load_dwordx2 {vr(R.X1+2,2)}, v11, s[{rX}:{rX+3}], s{b} offen offset:256 {hs}", "aux")
    def cons_ga(R, D=None):
        D = D or R
        a.e(f"v_sub_f32 v{D.OM}, 1.0, v{R.GG}")
        a.bf16r(D.OM, D.OM)
        unpack(D.GA, R.Q, 4)
        unpack(TT, R.Z, 4)
        for r in range(8): a.e(f"v_mul_f32 v{D.GA+r}, v{D.GA+r}, v{TT+r}")
        pb()
        rnd8(D.GA, TT)
        for r in range(8): a.e(f"v_mul_f32 v{D.GA+r}, v{R.GG}, v{D.GA+r}")
        pb()
        rnd8(D.GA, TT)
        unpack(D.Q, R.X1, 4)
        pb()
    def poll_issue():
        a.vmem(f"buffer_load_dword v14, v5, s[{rF}:{rF+3}], s13 offen sc1", "pl")
    def cons_loads(backoff):
        lab = a.newlabel("poll")
        a.stamp(8)
        a.label(lab)
        a.e("s_waitcnt vmcnt(0)")
        a.e("v_cmp_ne_u32 vcc, 1, v14")
        a.e(f"s_cbranch_vccz {lab}_ok")
        a.e(f"s_sub_u32 s{sBUD}, s{sBUD}, 1")
        a.e(f"s_cbranch_scc1 {lab}_ok")
        if backoff: a.e(f"s_sleep {backoff}")
        poll_issue()
        a.e(f"s_branch {lab}")
        a.label(f"{lab}_ok")
        a.stamp(9)
        a.reset()
        for p in range(8):
            a.vmem(f"buffer_load_dwordx4 {vr(PA+4*p)}, v7, s[{rP}:{rP+3}], s{15 if p < 4 else 14} offen offset:{(p%4)*1024} sc1", p)
    def cons_fin():
        R = SA
        for p in range(8):
            a.wait_vm_if(p)
            unpack(SUM if p == 0 else TT, PA + 4*p, 4)
            if p:
                for k in range(8): a.e(f"v_add_f32 v{SUM+k}, v{SUM+k}, v{TT+k}")
            if p % 2 == 1: pb()
        a.stamp(10)
        rnd8(SUM, TT)
        for r in range(8): a.e(f"v_add_f32 v{SUM+r}, v{SUM+r}, v{R.Q+r}")
        rnd8(SUM, TT)
        pb()
        for r in range(8): a.e(f"v_mul_f32 v{SUM+r}, v{R.OM}, v{SUM+r}")
        rnd8(SUM, TT)
        for r in range(8): a.e(f"v_add_f32 v{SUM+r}, v{SUM+r}, v{R.GA+r}")
        for k in range(4): a.e(f"v_cvt_pk_bf16_f32 v{112+k}, v{SUM+2*k}, v{SUM+2*k+1}")
        a.e(f"buffer_store_dwordx4 {vr(112)}, v3, s[{rO}:{rO+3}], s10 offen")
    a.label("k3_red")
    a.stamp(0)
    if nored: a.e(f"s_branch {done}_x")
    a.reset()
    a.e(f"""
    s_mul_i32 s14, s{sTL}, 3
    s_add_u32 s14, s14, s{sG}
    s_mul_i32 s15, s14, 24
    s_add_u32 s15, s15, s{sI}
    s_lshl_b32 s15, s15, 3
    s_add_u32 s15, s15, s{sSP}
    s_lshl_b32 s15, s15, 10
    s_setprio 3
    """)
    def cv(c):
        jj, h = c >> 1, c & 1
        q = 16 + c*4
        for e in range(2):
            b = ACC + (jj*4 + 2*h + e)*4
            a.e(f"v_cvt_pk_bf16_f32 v{q+2*e}, v{b}, v{b+1}")
            a.e(f"v_cvt_pk_bf16_f32 v{q+2*e+1}, v{b+2}, v{b+3}")
    cv(0)
    for c in range(6):
        q = 16 + c*4
        if c < 5: cv(c+1)
        else: a.e("s_nop 1")
        a.e(f"v_permlane16_swap_b32 v{q}, v{q+2}")
        a.e(f"v_permlane16_swap_b32 v{q+1}, v{q+3}")
        a.e(f"buffer_store_dwordx4 {vr(q)}, v7, s[{rP}:{rP+3}], s15 offen {sc}")
        a.e("s_add_u32 s15, s15, 32768")
    a.e(f"""
    s_setprio 0
    s_lshl_b32 s14, s14, 2
    s_add_u32 s14, s14, s{sI}
    s_lshl_b32 s14, s14, {FL['FG']}
    s_lshl_b32 s63, s{sSP}, {FL['FS']}
    s_add_u32 s63, s63, s14
    v_mov_b32 v6, 0
    v_mov_b32 v15, 1
    """)
    a.stamp(1)
    if ext:
        a.e(f"s_cmp_eq_u32 s{sG}, 2")
        a.e(f"s_cbranch_scc1 {done}")
        for _ in range(4): a.e("s_barrier")
        if wb:
            a.e("s_waitcnt vmcnt(0)")
            a.e("s_barrier")
            a.e(f"s_cmp_lg_u32 s{sI}, 0")
            a.e(f"s_cbranch_scc1 {done}_x")
            a.e("buffer_wbl2 sc1")
            for _ in range(free_at + 1 - 5): a.e("s_barrier")
        a.e(f"s_branch {done}_x")
    a.e(f"s_cmp_eq_u32 s{sG}, 2")
    a.e("s_cbranch_scc1 k3_flag")
    T[0] = 0
    bar()
    if not lc: cons_common()
    if mono and not lc:
        a.e(f"""
        v_min_u32 v13, 11, v0
        v_lshrrev_b32 v14, 2, v13
        v_mul_u32_u24 v14, 192, v14
        v_and_b32 v13, 3, v13
        v_mul_u32_u24 v13, 6, v13
        v_min_u32 v13, 15, v13
        s_lshl_b32 s6, s4, 4
        v_add3_u32 v13, v13, v14, s6
        v_min_u32 v13, 575, v13
        v_mul_u32_u24 v13, 10923, v13
        v_lshrrev_b32 v13, 16, v13
        v_lshlrev_b32 v13, 2, v13
        v_add_u32 v13, {F_Z}, v13
        buffer_load_dword v127, v13, s[{rW4}:{rW4+3}], 0 offen sc1
        """)
    upto(dr0)
    a.label("k3_flag")
    a.e("s_waitcnt vmcnt(0)")
    a.e("s_mov_b64 exec, 1")
    a.e(f"buffer_store_dword v15, v6, s[{rF}:{rF+3}], s63 offen sc1")
    a.e("s_mov_b64 exec, -1")
    a.stamp(2)
    a.e(f"s_cmp_eq_u32 s{sG}, 2")
    a.e(f"s_cbranch_scc1 {done}")
    tsave = T[0]
    if lc:
        for _ in range(free_at + 1 - tsave): a.e("s_barrier")
        a.e(f"s_branch {done}_x")
        lcut = len(a.lines)
    a.e(f"s_cmp_eq_u32 s{sI}, 3")
    a.e(f"s_cbranch_scc1 k3_w3")
    a.e(f"s_cmp_eq_u32 s{sG}, 1")
    a.e(f"s_cbranch_scc1 k3_w3")
    P[0] = True; LIM[0] = 18 + free_at + 1
    a.reset()
    bar()
    cons_addr(0, SA); bar()
    upto(max(p0, T[0]))
    if mono:
        a.e("v_cmp_ne_u32 vcc, 1, v127")
        a.e("s_cbranch_vccz z_chk_ok")
        poll_bytes(a, 13, rW4, sBUD, 127, "z_chk", 4)
    poll_issue()
    def nxt_aux():
        a.e("s_add_u32 s8, s8, 6144")
        a.e("s_add_u32 s10, s10, 384")
        a.e(f"s_add_u32 s11, s11, {12<<16}")
        a.e(f"s_add_u32 s12, s12, {12<<16}")
    def nxt_part():
        a.e("s_add_u32 s10, s10, 384")
        a.e(f"s_add_u32 s13, s13, {4 << FL['FG']}")
        a.e(f"s_add_u32 s14, s14, {24<<13}")
        a.e(f"s_add_u32 s15, s15, {24<<13}")
    SB.s = SC.s = 8
    cons_aux(SA); nxt_aux(); cons_aux(SB); nxt_aux(); cons_aux(SC)
    a.e("s_sub_u32 s10, s10, 768")
    upto(l0)
    cons_loads(0)
    bar()
    cons_ga(SA)
    upto(max(l0 + 6, T[0]))
    cons_fin()
    nxt_part()
    bar()
    cons_ga(SB, SA)
    upto(max(18 + p1, T[0]))
    poll_issue()
    a.e("s_mov_b32 s9, 0")
    upto(18+free_at+1); P[0] = False
    a.label("k3_tail")
    cons_loads(bo)
    cons_fin()
    a.e("s_cmp_eq_u32 s9, 1")
    a.e(f"s_cbranch_scc1 {done}")
    a.e("s_mov_b32 s9, 1")
    nxt_part()
    cons_ga(SC, SA)
    poll_issue()
    a.e("s_branch k3_tail")
    a.label("k3_w3")
    for _ in range(free_at + 1 - tsave): a.e("s_barrier")
    a.e(f"s_branch {done}_x")
    if lc: a.lines = a.lines[:lcut]
    a.label("k3_loader")
    a.reset()
    for e in range(3):
        a.e(f"""
        v_add_u32 v12, {64*e}, v0
        v_mul_u32_u24 v13, 2731, v12
        v_lshrrev_b32 v13, 16, v13
        v_mul_u32_u24 v14, 24, v13
        v_sub_u32 v14, v12, v14
        v_and_b32 v11, 6, v13
        v_xor_b32 v14, v14, v11
        v_lshlrev_b32 v14, 4, v14
        v_subrev_u32 v14, {1024*e}, v14
        v_mul_u32_u24 v11, 9216, v13
        v_add_u32 v{16+e}, v14, v11
        v_mul_u32_u24 v11, 1152, v13
        v_add_u32 v{20+e}, v14, v11
        """)
    a.e("s_waitcnt lgkmcnt(0)")
    a.stamp(7)
    a.srd(rW3, 4, D*F*2)
    a.srd_off(rX, 10, OFF_X1, SZ_ACT)
    a.srd(rW4, 6, F*D*2)
    a.srd_off(rG, 10, OFF_CS3, F*4)
    a.e(f"""
    s_mul_i32 s14, s{sSP}, {576*1152}
    s_mul_i32 s15, s{sTL}, {18*1152}
    s_add_u32 s14, s14, s15
    s_lshl_b32 s15, s{sI}, 6
    s_add_u32 s14, s14, s15
    s_add_u32 s28, s6, s14
    s_addc_u32 s29, s7, 0
    """)
    lgrp = list(grp) if lspf else []
    a.e(f"""
    s_mul_i32 s4, s{sSP}, 1152
    s_mul_i32 s6, s{sI}, {8*9216}
    s_add_u32 s4, s4, s6
    s_mul_i32 s5, s{sSP}, {576*1152}
    s_mul_i32 s6, s{sI}, {8*1152}
    s_add_u32 s5, s5, s6
    s_mul_i32 s6, s{sI}, 3072
    s_add_u32 s6, s6, {RING}
    s_lshl_b32 s14, s{sTL}, 2
    s_add_u32 s14, s14, s{sI}
    s_mul_i32 s62, s14, 18432
    s_lshl_b32 s63, s{sI}, 10
    s_lshr_b32 s14, s{sI}, 1
    s_mul_i32 s14, s14, {48*1152}
    s_add_u32 s60, s5, s14
    s_setprio {ldp}
    """)
    def xissue(u):
        a.e(f"s_add_u32 m0, s63, {u*4096}")
        a.e(f"s_add_u32 s7, s62, {u*1024}")
        a.vmem(f"buffer_load_dwordx4 v7, s[{rX}:{rX+3}], s7 offen {hs} lds", u)
    def csissue(u):
        a.e(f"s_min_u32 s14, s{sI}, 2")
        a.e(f"s_lshl_b32 s14, s14, 10")
        a.e(f"s_add_u32 m0, s14, {L_CS}")
        a.e(f"s_mul_i32 s15, s{sSP}, 2304")
        a.e(f"s_add_u32 s15, s15, s14")
        a.vmem(f"buffer_load_dwordx4 v7, s[{rG}:{rG+3}], s15 offen {hs} lds", u)
    xn = [0]
    fill = []
    if lc and fg:
        GA_, T_ = 96, 104
        def up(d, s_, n):
            o = []
            for k in range(n):
                o += [f"v_lshlrev_b32 v{d+2*k}, 16, v{s_+k}", f"v_and_b32 v{d+2*k+1}, 0xffff0000, v{s_+k}"]
            return o
        for j in range(3):
            fill += up(GA_, 24+4*j, 4) + up(T_, 48+4*j, 4)
            fill += [f"v_mul_f32 v{GA_+r}, v{GA_+r}, v{T_+r}" for r in range(8)]
            fill += [f"v_cvt_pk_bf16_f32 v{T_+k}, v{GA_+2*k}, v{GA_+2*k+1}" for k in range(4)] + up(GA_, T_, 4)
            fill += [f"v_mul_f32 v{GA_+r}, v62, v{GA_+r}" for r in range(8)]
            fill += [f"v_cvt_pk_bf16_f32 v{24+4*j+k}, v{GA_+2*k}, v{GA_+2*k+1}" for k in range(4)]
        assert fg >= zt + 6
    def issue(u):
        ph, ks = u // 18, u % 18
        which, th = ph // 3, ph % 3
        pitch = 9216 if which == 0 else 1152
        rW = (rW3, rW4)[which]
        if not (mono and u < pro):
            while xn[0] < min(18, u + 1 + xa):
                xissue(xn[0]); xn[0] += 1
        a.e(f"s_add_u32 m0, s6, {(u % NSLOT)*SLOT}")
        if which == 1 and ks % 6 < 4:
            a.e(f"s_add_u32 s7, s60, {((ks//6)*192 + (ks%6)*16)*1152 + th*384}")
        else:
            a.e(f"s_add_u32 s7, s{4+which}, {ks*32*pitch + th*384}")
        for e in range(3):
            a.vmem(f"buffer_load_dwordx4 v{16+4*which+e}, s[{rW}:{rW+3}], s7 offen offset:{e*1024} {nt_w} lds", u)
            if fg and u - LA >= fg and e < 2:
                for _ in range(fn):
                    if fill: a.e(fill.pop(0))
            if u >= lspf and (e == 0 or (e == 1 and 18 <= u < 18 + lx2)) and lgrp:
                a.e(f"s_load_dword s2, s[28:29], {lgrp.pop(0)*256}")
        if u == (8 if mono else 2): csissue(u)
    nxt = [0]
    def issue_upto(lim, cnt):
        while cnt > 0 and nxt[0] < min(lim, 108):
            issue(nxt[0]); nxt[0] += 1; cnt -= 1
    issue_upto(pro, pro)
    LQ, LX1, LZ, LG, LFL, PA0, PA1 = 24, 36, 48, 62, 63, 64, 96
    if lc:
        a.srd_off(rP, 10, 0, 0x2200000)
        a.srd(rQ, 8, SZ_ACT)
        a.srd(rO, 12, SZ_ACT)
        a.e(f"""
        s_cmp_eq_u32 s{sI}, 3
        s_cselect_b32 s{rP+2}, 0, s{rP+2}
        s_cselect_b32 s{rQ+2}, 0, s{rQ+2}
        s_cselect_b32 s{rO+2}, 0, s{rO+2}
        s_cselect_b32 s12, 0, 1
        s_mul_i32 s61, s{sSP}, 3
        s_add_u32 s61, s61, s{sI}
        s_min_u32 s61, s61, 23
        s_lshr_b32 s30, s61, 3
        s_lshl_b32 s30, s30, 2
        s_and_b32 s31, s61, 3
        s_add_u32 s30, s30, s31
        s_lshl_b32 s8, s30, 5
        s_lshl_b32 s9, s30, 16
        s_add_u32 s9, s9, {OFF_Z4}
        s_mul_i32 s14, s{sTL}, 12
        s_add_u32 s10, s14, s31
        s_lshl_b32 s10, s10, {FL['FG']}
        s_add_u32 s10, s10, {OFF_FLAG}
        s_mul_i32 s11, s{sTL}, 72
        s_add_u32 s11, s11, s61
        s_lshl_b32 s11, s11, 13
        s_add_u32 s11, s11, {OFF_PART}
        s_bfe_u32 s14, s61, 0x10002
        s_lshl_b32 s15, s{sTL}, 6
        s_lshl_b32 s31, s14, 5
        s_add_u32 s15, s15, s31
        v_and_b32 v1, 31, v0
        v_add_u32 v1, s15, v1
        v_lshrrev_b32 v5, 5, v0
        v_lshlrev_b32 v2, 2, v1
        v_mul_u32_u24 v3, 1152, v1
        v_lshl_add_u32 v3, v5, 4, v3
        v_lshl_add_u32 v4, v5, 15, v2
        v_add_u32 v12, 8192, v4
        v_add_u32 v8, 16384, v4
        v_add_u32 v6, 24576, v4
        v_add_u32 v2, {OFF_G}, v2
        s_lshr_b32 s15, s30, 1
        s_lshl_b32 s15, s15, 12
        s_lshl_b32 s14, s14, 11
        s_add_u32 s15, s15, s14
        s_and_b32 s14, s30, 1
        s_lshl_b32 s14, s14, 3
        s_add_u32 s15, s15, s14
        v_and_b32 v11, 1, v10
        v_lshlrev_b32 v11, 10, v11
        v_lshl_add_u32 v11, v5, 9, v11
        v_lshl_add_u32 v11, v9, 4, v11
        v_add_u32 v11, s15, v11
        v_and_b32 v5, 7, v0
        v_lshlrev_b32 v5, {FL['FS']}, v5
        v_min_u32 v13, 11, v0
        v_lshrrev_b32 v14, 2, v13
        v_mul_u32_u24 v14, 192, v14
        v_and_b32 v13, 3, v13
        v_mul_u32_u24 v13, 6, v13
        v_min_u32 v13, 15, v13
        s_lshl_b32 s14, s30, 4
        v_add3_u32 v13, v13, v14, s14
        v_mul_u32_u24 v13, 10923, v13
        v_lshrrev_b32 v13, 16, v13
        v_lshlrev_b32 v13, 2, v13
        v_add_u32 v13, {OFF_FF + F_Z}, v13
        """)
        for j in range(3):
            a.vmem(f"buffer_load_dwordx4 {vr(LQ+4*j)}, v3, s[{rQ}:{rQ+3}], s8 offen offset:{384*j}", "q")
    def lchk(vaddr, soff, lab):
        a.e(f"v_cmp_ne_u32 vcc, s12, v{LFL}")
        a.e(f"s_cbranch_vccz {lab}_ok")
        a.label(lab)
        if bo: a.e(f"s_sleep {bo}")
        a.e(f"buffer_load_dword v{LFL}, v{vaddr}, s[{rP}:{rP+3}], {soff} offen sc1")
        a.e("s_waitcnt vmcnt(0)")
        a.e(f"v_cmp_ne_u32 vcc, s12, v{LFL}")
        a.e(f"s_cbranch_vccz {lab}_ok")
        a.e(f"s_sub_u32 s{sBUD}, s{sBUD}, 1")
        a.e(f"s_cbranch_scc0 {lab}")
        a.label(f"{lab}_ok")
    def lpart(PA):
        a.e("s_add_u32 s14, s11, 4096")
        for p in range(8):
            a.vmem(f"buffer_load_dwordx4 {vr(PA+4*p)}, v7, s[{rP}:{rP+3}], s{11 if p < 4 else 14} offen offset:{(p%4)*1024} sc1", ("p", p))
        a.e(f"s_add_u32 s11, s11, {24<<13}")
        a.e(f"s_add_u32 s10, s10, {4 << FL['FG']}")
    def lextra(u):
        if not lc: return
        if u == 20:
            for j in range(3):
                a.e(f"ds_read_b64 {vr(LX1+4*j,2)}, v11 offset:{24576*j}")
                a.e(f"ds_read_b64 {vr(LX1+4*j+2,2)}, v11 offset:{24576*j+256}")
        if u == zt - 6:
            a.vmem(f"buffer_load_dword v{LFL}, v13, s[{rP}:{rP+3}], 0 offen sc1", "f")
            a.vmem(f"buffer_load_dword v{LG}, v2, s[{rP}:{rP+3}], 0 offen sc1", "f")
        if u == zt:
            assert "f" not in a.vm
            lchk(13, "0", "lz")
            for j in range(3):
                for m, va in enumerate((4, 12, 8, 6)):
                    a.vmem(f"buffer_load_dword v{LZ+4*j+m}, v{va}, s[{rP}:{rP+3}], s9 offen sc1", "z")
                a.e(f"s_add_u32 s9, s9, {12<<16}")
        if u in (72 + p0, 90 + p1):
            a.vmem(f"buffer_load_dword v{LFL}, v5, s[{rP}:{rP+3}], s10 offen sc1", "f")
        if u == 72 + l0:
            assert "f" not in a.vm
            lchk(5, "s10", "lp0")
            lpart(PA0)
    if mono:
        a.e("s_barrier")
        while xn[0] < pro + xa:
            xissue(xn[0]); xn[0] += 1
    a.stamp(8)
    a.wait_vm(0)
    a.stamp(9)
    a.e("s_barrier")
    a.stamp(10)
    marks = [-1, 17, 35, 53, 71, 89, 101]
    def ltick(u):
        if trace and u >= 0:
            a.e("s_waitcnt lgkmcnt(0)")
            a.e(f"v_writelane_b32 v{60 + u//64}, s92, {u % 64}")
        if u + 2 < 108: a.wait_vm_if(u+2)
        a.e("s_barrier")
        if trace: a.e("s_memtime s[92:93]")
        if u in marks: a.stamp(marks.index(u))
    last = 108 - LA
    for u in range(-1, last):
        if u not in skip: issue_upto(u + LA + 1, 2)
        lextra(u)
        ltick(u)
    def tdump():
        if trace:
            a.e("s_load_dwordx2 s[16:17], s[0:1], 112")
            a.e("s_waitcnt lgkmcnt(0)")
            a.srd_off(20, 16, 0x5000000, 0x100000)
            a.e("s_lshl_b32 s16, s100, 2")
            a.e(f"s_add_u32 s16, s16, s{sI}")
            a.e("s_lshl_b32 s16, s16, 9")
            a.e("v_lshlrev_b32 v12, 2, v0")
            a.e("buffer_store_dword v60, v12, s[20:23], s16 offen")
            a.e("buffer_store_dword v61, v12, s[20:23], s16 offen offset:256")
    lastbar = 90 + free_at
    assert lastbar >= last - 1
    for u in range(last, lastbar + 1):
        if u == lastbar: a.wait_vm0()
        if u < lastbar: ltick(u)
        else: a.e("s_barrier")
    a.e("s_setprio 0")
    tdump()
    if lc and not nored:
        a.e(f"s_cmp_eq_u32 s{sI}, 3")
        a.e(f"s_cbranch_scc1 {done}_x")
        a.reset()
        lchk(5, "s10", "lp1")
        lpart(PA1)
        LS, LT, LO = 16, 8, 1
        a.e("s_waitcnt lgkmcnt(0)")
        a.e(f"v_sub_f32 v{LO}, 1.0, v{LG}")
        a.bf16r(LO, LO)
        assert not fill
        def lga(j, GA, XF):
            unpack(GA, LQ+4*j, 4)
            if fg:
                unpack(XF, LX1+4*j, 4)
                return
            unpack(LT, LZ+4*j, 4)
            for r in range(8): a.e(f"v_mul_f32 v{GA+r}, v{GA+r}, v{LT+r}")
            rnd8(GA, LT)
            for r in range(8): a.e(f"v_mul_f32 v{GA+r}, v{LG}, v{GA+r}")
            rnd8(GA, LT)
            unpack(XF, LX1+4*j, 4)
        def lsum(PA, wait):
            for p in range(8):
                if wait: a.wait_vm_if(("p", p))
                unpack(LS if p == 0 else LT, PA + 4*p, 4)
                if p:
                    for k in range(0, 8, 2): a.e(f"v_pk_add_f32 v[{LS+k}:{LS+k+1}], v[{LS+k}:{LS+k+1}], v[{LT+k}:{LT+k+1}]")
        def lfin(GA, XF, OUT):
            rnd8(LS, LT)
            for r in range(0, 8, 2): a.e(f"v_pk_add_f32 v[{LS+r}:{LS+r+1}], v[{LS+r}:{LS+r+1}], v[{XF+r}:{XF+r+1}]")
            rnd8(LS, LT)
            for r in range(8): a.e(f"v_mul_f32 v{LS+r}, v{LO}, v{LS+r}")
            rnd8(LS, LT)
            for r in range(0, 8, 2): a.e(f"v_pk_add_f32 v[{LS+r}:{LS+r+1}], v[{LS+r}:{LS+r+1}], v[{GA+r}:{GA+r+1}]")
            for k in range(4): a.e(f"v_cvt_pk_bf16_f32 v{OUT+k}, v{LS+2*k}, v{LS+2*k+1}")
            a.e(f"buffer_store_dwordx4 {vr(OUT)}, v3, s[{rO}:{rO+3}], s8 offen")
            a.e("s_add_u32 s8, s8, 384")
        lsum(PA0, False)
        lga(0, PA0, PA0+8)
        lfin(PA0, PA0+8, PA0+16)
        lga(1, PA0, PA0+8)
        a.e("s_mov_b32 s13, 0")
        a.label("k3_lt")
        a.stamp(9)
        lsum(PA1, True)
        a.stamp(10)
        lfin(PA0, PA0+8, PA0+20)
        a.e("s_cmp_eq_u32 s13, 1")
        a.e(f"s_cbranch_scc1 {done}")
        a.e("s_mov_b32 s13, 1")
        lga(2, PA0, PA0+8)
        a.stamp(8)
        if tp:
            a.e("v_add_u32 v5, s10, v5")
            poll_pipe(a, 5, rP, sBUD, 48, "lp2", bo)
        else:
            a.e(f"v_mov_b32 v{LFL}, 0")
            a.e("s_nop 0")
            lchk(5, "s10", "lp2")
        a.reset()
        lpart(PA1)
        a.e("s_branch k3_lt")
    else:
        a.e(f"s_branch {done}")
    i0 = a.lines.index("k3_loader:")
    blk = a.lines[i0:]
    a.lines = a.lines[:cut] + blk + a.lines[cut:i0]
    a.label(done)
    a.pend(3)
    a.label(done + "_x")
    a.e("s_endpgm")
    a.label("k3_end")
    for _ in range(40): a.e("s_nop 0\n" * 16)
    a.e("s_endpgm")
    a.end(name, 128, 102)


def k5(a):
    name = "k5_kernel"
    a.launch(name, (576,1,1), 256, 0)
    a.begin(name)
    a.reset()
    done = "k5_done"
    a.e(f"s_cmp_ge_u32 s2, 576")
    a.e(f"s_cbranch_scc1 {done}_x")
    a.pstart()
    rX, rP, rQ, rZ, rG, rO = 24, 32, 40, 44, 48, 52
    a.ldarg(8, "q"); a.ldarg(10, "ws"); a.ldarg(12, "out")
    a.e(f"""
    v_lshrrev_b32 v1, 6, v0
    v_and_b32 v0, 63, v0
    v_readfirstlane_b32 s59, v1
    s_mul_i32 s57, s2, 3641
    s_lshr_b32 s57, s57, 16
    s_mul_i32 s14, s57, 18
    s_sub_u32 s14, s2, s14
    s_lshr_b32 s4, s14, 1
    s_lshl_b32 s4, s4, 2
    s_add_u32 s6, s4, s59
    s_and_b32 s5, s14, 1
    s_lshl_b32 s7, s57, 2
    s_lshl_b32 s5, s5, 1
    s_add_u32 s7, s7, s5
    s_mul_i32 s5, s7, 18432
    s_lshl_b32 s7, s7, 4
    v_and_b32 v9, 15, v0
    v_lshrrev_b32 v10, 4, v0
    v_lshlrev_b32 v7, 4, v0
    v_and_b32 v1, 31, v0
    v_add_u32 v1, s7, v1
    v_lshrrev_b32 v5, 5, v0
    v_lshlrev_b32 v2, 2, v1
    v_mul_u32_u24 v3, 1152, v1
    v_lshl_add_u32 v3, v5, 4, v3
    v_lshlrev_b32 v4, 3, v1
    v_lshl_add_u32 v4, v5, 15, v4
    v_and_b32 v11, 1, v10
    v_mul_u32_u24 v11, 18432, v11
    v_lshl_add_u32 v11, v5, 9, v11
    v_lshl_add_u32 v11, v9, 4, v11
    s_lshr_b32 s7, s6, 1
    s_lshl_b32 s7, s7, 10
    s_add_u32 s16, s5, s7
    s_and_b32 s7, s6, 1
    s_lshl_b32 s7, s7, 3
    s_add_u32 s16, s16, s7
    s_lshl_b32 s18, s6, 5
    s_lshl_b32 s20, s6, 16
    s_add_u32 s19, s20, 16384
    s_lshl_b32 s23, s2, 2
    s_add_u32 s23, s23, s59
    s_lshl_b32 s23, s23, 13
    s_add_u32 s22, s23, 4096
    s_waitcnt lgkmcnt(0)
    """)
    a.srd_off(rP, 10, OFF_PART, 32*3*6*4*8*1024)
    X1, Q, Z, GG, OM, GA, TT, SUM, PA = 72, 76, 80, 84, 85, 96, 88, 104, 16
    for p in range(8):
        a.vmem(f"buffer_load_dwordx4 {vr(PA+4*p)}, v7, s[{rP}:{rP+3}], s{23 if p < 4 else 22} offen offset:{(p%4)*1024}", p)
    a.srd(rQ, 8, SZ_ACT)
    a.srd_off(rZ, 10, OFF_Z4, SZ_ACT)
    a.srd_off(rG, 10, OFF_G, S*4)
    a.srd_off(rX, 10, OFF_X1, SZ_ACT)
    a.srd(rO, 12, SZ_ACT)
    a.vmem(f"buffer_load_dwordx4 {vr(Q)}, v3, s[{rQ}:{rQ+3}], s18 offen", "aux")
    a.vmem(f"buffer_load_dwordx2 {vr(Z,2)}, v4, s[{rZ}:{rZ+3}], s20 offen", "aux")
    a.vmem(f"buffer_load_dwordx2 {vr(Z+2,2)}, v4, s[{rZ}:{rZ+3}], s19 offen", "aux")
    a.vmem(f"buffer_load_dword v{GG}, v2, s[{rG}:{rG+3}], 0 offen", "aux")
    a.vmem(f"buffer_load_dwordx2 {vr(X1,2)}, v11, s[{rX}:{rX+3}], s16 offen", "aux")
    a.vmem(f"buffer_load_dwordx2 {vr(X1+2,2)}, v11, s[{rX}:{rX+3}], s16 offen offset:256", "aux")
    def unpack(d, s, n=2):
        for k in range(n):
            a.e(f"v_lshlrev_b32 v{d+2*k}, 16, v{s+k}")
            a.e(f"v_and_b32 v{d+2*k+1}, 0xffff0000, v{s+k}")
    def rnd8(d, t):
        for k in range(4): a.e(f"v_cvt_pk_bf16_f32 v{t+k}, v{d+2*k}, v{d+2*k+1}")
        unpack(d, t, 4)
    for p in range(8):
        a.wait_vm(p)
        unpack(SUM if p == 0 else TT, PA + 4*p, 4)
        if p:
            for k in range(8): a.e(f"v_add_f32 v{SUM+k}, v{SUM+k}, v{TT+k}")
    rnd8(SUM, TT)
    a.wait_vm0()
    a.e(f"v_sub_f32 v{OM}, 1.0, v{GG}")
    a.bf16r(OM, OM)
    unpack(GA, Q, 4)
    unpack(TT, Z, 4)
    for r in range(8): a.e(f"v_mul_f32 v{GA+r}, v{GA+r}, v{TT+r}")
    rnd8(GA, TT)
    for r in range(8): a.e(f"v_mul_f32 v{GA+r}, v{GG}, v{GA+r}")
    rnd8(GA, TT)
    unpack(Q, X1, 4)
    for r in range(8): a.e(f"v_add_f32 v{SUM+r}, v{SUM+r}, v{Q+r}")
    rnd8(SUM, TT)
    for r in range(8): a.e(f"v_mul_f32 v{SUM+r}, v{OM}, v{SUM+r}")
    rnd8(SUM, TT)
    for r in range(8): a.e(f"v_add_f32 v{SUM+r}, v{SUM+r}, v{GA+r}")
    for k in range(4): a.e(f"v_cvt_pk_bf16_f32 v{112+k}, v{SUM+2*k}, v{SUM+2*k+1}")
    a.e(f"buffer_store_dwordx4 {vr(112)}, v3, s[{rO}:{rO+3}], s18 offen")
    a.label(done)
    a.pend(5)
    a.label(done + "_x")
    a.e("s_endpgm")
    a.end(name, 116, 102)
```

```python
from gen import *
from k34 import OFF_FLAG, FL, flag_bytes
from k12 import tile_decode
URP = 4096
NST = 18
OFF_FF = 0xBA0000
FFB = 52*256
F_X1, F_CS, F_Z = 25*256, 41*256, 49*256
MONO = [False]
OFF_H20 = 0x2200000
HT = 20480
SZ_H20 = 128*HT
LCN = 160128

def poll_bytes(a, voff, rD, sbud, vt, lab, sleep=2, pre=False):
    if pre: a.e(f"s_branch {lab}_chk")
    a.label(lab)
    a.e(f"buffer_load_dword v{vt}, v{voff}, s[{rD}:{rD+3}], 0 offen sc1")
    a.label(f"{lab}_chk")
    a.e("s_waitcnt vmcnt(0)")
    a.e(f"v_cmp_ne_u32 vcc, 1, v{vt}")
    a.e(f"s_cbranch_vccz {lab}_ok")
    a.e(f"s_sub_u32 s{sbud}, s{sbud}, 1")
    a.e(f"s_cbranch_scc1 {lab}_ok")
    if sleep: a.e(f"s_sleep {sleep}")
    a.e(f"s_branch {lab}")
    a.label(f"{lab}_ok")

def poll_pipe(a, voff, rD, sbud, vt, lab, gap=2, depth=3):
    for d in range(depth):
        a.e(f"buffer_load_dword v{vt+d}, v{voff}, s[{rD}:{rD+3}], 0 offen sc1")
        if gap: a.e(f"s_sleep {gap}")
    a.label(lab)
    for d in range(depth):
        a.e(f"s_waitcnt vmcnt({depth-1})")
        a.e(f"v_cmp_ne_u32 vcc, 1, v{vt+d}")
        a.e(f"s_cbranch_vccz {lab}_ok")
        a.e(f"buffer_load_dword v{vt+d}, v{voff}, s[{rD}:{rD+3}], 0 offen sc1")
        if gap: a.e(f"s_sleep {gap}")
    a.e(f"s_sub_u32 s{sbud}, s{sbud}, 1")
    a.e(f"s_cbranch_scc0 {lab}")
    a.label(f"{lab}_ok")

def pub_bar(a, swv, who, rD, sflag, lab, off=0):
    a.e(f"""
    s_waitcnt vmcnt(0)
    s_barrier
    s_cmp_lg_u32 s{swv}, {who}
    s_cbranch_scc1 {lab}
    v_mov_b32 v10, s{sflag}
    v_mov_b32 v11, 1
    v_add_u32 v10, {off}, v10
    s_mov_b64 exec, 1
    buffer_store_dword v11, v10, s[{rD}:{rD+3}], 0 offen sc1
    s_mov_b64 exec, -1
    {lab}:
    """)

def publish(a, nwaves, lcnt, rD, sflag, lab, off=0):
    a.e(f"""
    s_waitcnt vmcnt(0)
    v_mov_b32 v10, {lcnt}
    v_mov_b32 v11, 1
    s_mov_b64 exec, 1
    ds_add_rtn_u32 v10, v10, v11
    s_waitcnt lgkmcnt(0)
    v_cmp_ne_u32 vcc, {nwaves-1}, v10
    s_cbranch_vccnz {lab}
    v_mov_b32 v10, s{sflag}
    s_nop 0
    v_add_u32 v10, {off}, v10
    buffer_store_dword v11, v10, s[{rD}:{rD+3}], 0 offen sc1
    {lab}:
    s_mov_b64 exec, -1
    """)

def fgroup(f):
    if f == 18: return 1
    if f == 19: return 3
    return (2*f) // 9

def gemm12(a, done, rot=1, NW0=2, NX0=2, rot2=1, psl=4, w2late=True, pipe=False, t1late=False, sw2=False, noshift=False, w2e=6, ah2=10):
    a.reset()
    rW, rA, rO, rQ, rS, rD = 16, 20, 24, 28, 32, 40
    sTM, sTN, sWV, sTG, sNH, sBUD = 36, 37, 38, 39, 55, 53
    NX = 5
    LX = 73728; LST = LX + NX*16384
    LON = LST + 3072; LCS = LON + 1152; LCNT = LCS + 256; LCO = 160256
    a.ldarg(4, "w1"); a.ldarg(12, "q"); a.ldarg(8, "ws"); a.ldarg(10, "gw"); a.ldarg(6, "w2"); a.ldarg(14, "dbg")
    tile_decode(a, sTM, sTN)
    a.e(f"""
    v_lshrrev_b32 v1, 6, v0
    s_lshl_b32 s61, s{sTM}, 7
    v_readfirstlane_b32 s{sWV}, v1
    v_and_b32 v0, 63, v0
    s_mov_b32 s{sBUD}, 0x8000
    s_cmp_ge_u32 s{sWV}, 4
    s_cbranch_scc1 g1_comp
    """)
    a.e(f"""
    v_lshrrev_b32 v10, 3, v0
    v_and_b32 v11, 7, v0
    v_lshrrev_b32 v12, 1, v10
    v_xor_b32 v13, v11, v12
    v_mul_u32_u24 v8, 1152, v10
    v_xor_b32 v14, 4, v13
    v_lshl_add_u32 v5, v14, 4, v8
    v_lshl_add_u32 v4, v13, 4, v8
    v_add_u32 v5, {8*1152 - 1024}, v5
    s_and_b32 s44, s{sTM}, 1
    s_lshl_b32 s44, s44, 2
    s_add_u32 s44, s44, s{sTN}
    s_cmp_ge_u32 s44, 9
    s_cselect_b32 s45, 9, 0
    s_sub_u32 s62, s44, s45
    s_mul_i32 s44, s62, {rot}
    s_lshl_b32 s58, s44, 7
    s_mov_b32 s60, s58
    s_mul_i32 s59, s44, {64*1152}
    s_lshl_b32 s44, s{sWV}, 5
    s_add_u32 s44, s44, s61
    s_mul_i32 s46, s44, 1152
    s_lshl_b32 s48, s{sWV}, 12
    s_add_u32 s48, s48, {LX}
    s_waitcnt lgkmcnt(0)
    """)
    a.srd(rQ, 12, SZ_ACT)
    def xdma(p):
        a.e(f"s_add_u32 m0, s48, {(p % NX)*16384}")
        a.e(f"s_add_u32 s50, s46, s58")
        a.vmem(f"buffer_load_dwordx4 v4, s[{rQ}:{rQ+3}], s50 offen lds", p)
        a.vmem(f"buffer_load_dwordx4 v5, s[{rQ}:{rQ+3}], s50 offen offset:1024 lds", p)
        a.e(f"s_add_u32 s50, s50, {16*1152 - 2048}")
        a.vmem(f"buffer_load_dwordx4 v4, s[{rQ}:{rQ+3}], s50 offen offset:2048 lds", p)
        a.vmem(f"buffer_load_dwordx4 v5, s[{rQ}:{rQ+3}], s50 offen offset:3072 lds", p)
        a.e(f"s_add_u32 s58, s58, 128")
        a.e(f"s_cmp_eq_u32 s58, 1152")
        a.e(f"s_cselect_b32 s58, 0, s58")
    def wdma(p, tag=None):
        a.e(f"s_add_u32 m0, s49, {p*8192}")
        a.e(f"s_add_u32 s50, s47, s59")
        a.vmem(f"buffer_load_dwordx4 v6, s[{rW}:{rW+3}], s50 offen lds", p if tag is None else tag)
        a.vmem(f"buffer_load_dwordx4 v7, s[{rW}:{rW+3}], s50 offen offset:1024 lds", p if tag is None else tag)
        a.e(f"s_add_u32 s59, s59, {64*1152}")
        a.e(f"s_cmp_eq_u32 s59, {576*1152}")
        a.e(f"s_cselect_b32 s59, 0, s59")
    xdma(0)
    a.srd(rW, 4, D*D*2)
    a.e(f"""
    v_and_b32 v12, 6, v10
    v_xor_b32 v9, v11, v12
    v_and_b32 v12, 4, v10
    v_lshlrev_b32 v12, 1, v12
    v_and_b32 v14, 3, v10
    v_add_u32 v12, v12, v14
    v_mul_u32_u24 v6, 1152, v12
    v_lshl_add_u32 v6, v9, 4, v6
    v_add_u32 v7, {16*1152 - 1024}, v6
    s_lshr_b32 s44, s{sWV}, 1
    s_mul_i32 s47, s44, {32*1152}
    s_and_b32 s44, s{sWV}, 1
    s_mul_i32 s44, s44, {4*1152}
    s_add_u32 s47, s47, s44
    s_lshl_b32 s63, s{sTN}, 7
    s_add_u32 s47, s47, s63
    s_lshl_b32 s49, s{sWV}, 11
    """)
    wdma(0)
    a.srd(rA, 10, D*2)
    a.e(f"""
    s_min_u32 s44, s{sWV}, 2
    s_lshl_b32 s44, s44, 10
    s_add_u32 m0, s44, {LST}
    v_lshl_add_u32 v15, v0, 4, s44
    v_add_u32 v13, s60, v15
    v_subrev_u32 v12, 1152, v13
    v_cmp_le_u32 vcc, 1152, v13
    s_nop 1
    v_cndmask_b32 v13, v13, v12, vcc
    v_cmp_le_u32 vcc, 1152, v15
    s_nop 1
    v_cndmask_b32 v15, v13, v15, vcc
    """)
    a.vmem(f"buffer_load_dwordx4 v15, s[{rA}:{rA+3}], 0 offen lds", 0)
    def stream(seq, issued, fx, fw, nslot, ahead, nb=9, lag=3, after=None):
        b = [0]
        def certify():
            a.wait_vm_if(b[0])
            a.e("s_barrier")
            b[0] += 1
        for (kd, q) in seq:
            while kd == "x" and q >= nslot and b[0] < q - nslot + lag: certify()
            while b[0] < nb and ("x", b[0]) in issued and ("w", b[0]) in issued and b[0] in a.vm and \
                  len(a.vm) - 1 - max(i for i, t in enumerate(a.vm) if t == b[0]) >= ahead: certify()
            fx(q) if kd == "x" else fw(q)
            issued.add((kd, q))
        while b[0] < nb:
            if after: after(b[0])
            certify()
        if after: after(b[0])
    seq = [("w", p) for p in range(1, NW0)] + [("x", p) for p in range(1, NX0)]
    nx, nw = NX0, NW0
    while nx < 9 or nw < 9:
        if nx < 9 and (nw >= 9 or nx <= nw): seq.append(("x", nx)); nx += 1
        else: seq.append(("w", nw)); nw += 1
    a.srd(rD, 14, 256)
    a.e("v_mov_b32 v16, 0")
    def xdma1(p):
        xdma(p)
        if p == 7: a.vmem(f"buffer_load_dword v17, v16, s[{rD}:{rD+3}], 0 offen sc1", p)
    a.srd(rS, 6, D*D*2)
    a.e(f"""
    v_lshl_add_u32 v18, v9, 4, v8
    v_add_u32 v19, {8*1152 - 1024}, v18
    s_lshr_b32 s44, s{sWV}, 1
    s_mul_i32 s52, s44, {32*1152}
    s_and_b32 s44, s{sWV}, 1
    s_mul_i32 s44, s44, {16*1152}
    s_add_u32 s52, s52, s44
    s_add_u32 s52, s52, s63
    """)
    def w2dma(p):
        a.e(f"s_add_u32 m0, s49, {p*8192}")
        a.e(f"s_add_u32 s50, s52, {p*64*1152}")
        a.vmem(f"buffer_load_dwordx4 v18, s[{rS}:{rS+3}], s50 offen lds", "w2")
        a.vmem(f"buffer_load_dwordx4 v19, s[{rS}:{rS+3}], s50 offen offset:1024 lds", "w2")
    n2 = [0]
    def after(b):
        while n2[0] < w2e and n2[0] + 3 <= b:
            w2dma(n2[0]); n2[0] += 1
    stream(seq, {("x", 0), ("w", 0)}, xdma1, wdma, NX, 14, after=after)
    a.e("v_cmp_ne_u32 vcc, 1, v17")
    a.e("s_cbranch_vccz g_val_ok")
    poll_bytes(a, 16, rD, sBUD, 17, "g_val", 4)
    a.srd_off(rA, 8, OFF_H20, SZ_H20)
    a.e(f"""
    v_lshlrev_b32 v4, 4, v0
    v_xor_b32 v12, v11, v10
    v_lshl_add_u32 v5, v12, 4, v8
    s_add_u32 s51, s46, s63
    s_lshl_b32 s44, s{sTM}, 3
    s_lshl_b32 s45, s{sWV}, 1
    s_add_u32 s45, s44, s45
    s_mul_i32 s46, s45, {HT}
    s_add_u32 s47, s46, {HT - 1024}
    s_sub_u32 s45, s44, 1
    s_mul_i32 s58, s45, {HT}
    s_cmp_eq_u32 s{sTM}, 0
    s_cselect_b32 s58, 0x70000000, s58
    s_add_u32 s45, s44, 8
    s_mul_i32 s59, s45, {HT}
    s_lshl_b32 s60, s{sWV}, 11
    s_add_u32 s60, s60, {LX}
    s_barrier
    """)
    if w2late: a.e("s_barrier")
    for p in range(n2[0], 9): w2dma(p)
    a.stamp(1)
    a.e("s_barrier")
    a.stamp(2)
    a.reset()
    def hdma(p):
        sl = (p % 4)*18432
        for h in range(2):
            f = 2*p + h
            lo = 1 if fgroup(f) % 2 == 0 else 0
            a.e(f"s_add_u32 m0, s60, {sl + h*9216 + lo*1024}")
            a.e(f"s_add_u32 s50, s46, {f*1024}")
            a.vmem(f"buffer_load_dwordx4 v4, s[{rA}:{rA+3}], s50 offen sc1 lds", p)
            a.e(f"s_add_u32 s50, s47, {f*1024}")
            a.vmem(f"buffer_load_dwordx4 v4, s[{rA}:{rA+3}], s50 offen offset:1024 sc1 lds", p)
        cand = []
        for h in range(2):
            f = 2*p + h
            lo = 1 if fgroup(f) % 2 == 0 else 0
            cand.append((LX + sl + h*9216 + (0 if lo else 8192), 58 if lo else 59, f*1024))
        a.e(f"s_add_u32 s44, s{cand[0][1]}, {cand[0][2]}")
        a.e(f"s_add_u32 s45, s{cand[1][1]}, {cand[1][2]}")
        a.e(f"s_mov_b32 s50, {cand[0][0]}")
        a.e(f"s_bitcmp1_b32 s{sWV}, 0")
        a.e(f"s_cselect_b32 m0, {cand[1][0]}, s50")
        a.e(f"s_cselect_b32 s50, s45, s44")
        a.vmem(f"buffer_load_dwordx4 v4, s[{rA}:{rA+3}], s50 offen sc1 lds", p)
        if p == 9:
            for g in range(4):
                a.e(f"s_sub_u32 m0, s48, {LX - g*1024}")
                a.e(f"s_add_u32 s50, s51, {g*8*1152}")
                a.vmem(f"buffer_load_dwordx4 v5, s[{rQ}:{rQ+3}], s50 offen lds", p)
    stream([("x", p) for p in range(10)], {("w", p) for p in range(10)}, hdma, None, 4, ah2, 10, 2)
    if MONO[0]: a.e("s_barrier")
    a.e(f"s_branch {done}")
    a.label("g1_comp")
    nbar = 9 + 1 + (1 if w2late else 0) + 1 + 10 + 1
    if MONO[0]:
        a.e(f"s_cmp_lt_u32 s{sWV}, 12")
        a.e("s_cbranch_scc1 g1_cc")
        idle(a)
        if sw2:
            a.e(f"""
            s_and_b32 s44, s{sTM}, 1
            s_lshl_b32 s44, s44, 2
            s_add_u32 s44, s44, s{sWV}
            s_sub_u32 s44, s44, 12
            s_mul_i32 s44, s44, {72*1152}
            s_lshl_b32 s45, s{sTN}, 7
            s_add_u32 s44, s44, s45
            s_waitcnt lgkmcnt(0)
            s_add_u32 s46, s6, s44
            s_addc_u32 s47, s7, 0
            """)
            r = 0
            for bb in range(nbar):
                for _ in range(8):
                    if r < 72:
                        a.e(f"s_load_dword s59, s[46:47], {r*1152}")
                        a.e(f"s_load_dword s59, s[46:47], {r*1152+64}")
                        r += 1
                a.e("s_barrier")
        else:
            for _ in range(nbar): a.e("s_barrier")
        a.e(f"s_branch {done}")
        a.label("g1_cc")
    a.reset()
    FBs = [24, 56]; SF = 88
    ACC, ST, CS, ONE, SQ = 96, 112, 116, 120, 124
    WB, XB, SA, GL = 14, 16, 20, 21
    HB2 = 88
    a.e(f"""
    s_sub_u32 s{sWV}, s{sWV}, 4
    v_and_b32 v2, 15, v0
    v_lshrrev_b32 v3, 4, v0
    s_lshr_b32 s{sTG}, s{sWV}, 1
    s_and_b32 s{sNH}, s{sWV}, 1
    s_lshl_b32 s44, s{sWV}, 10
    v_lshl_add_u32 v8, v0, 4, s44
    v_mov_b32 v{ONE}, 0x3f803f80
    v_mov_b32 v{ONE+1}, 0x3f803f80
    v_mov_b32 v{ONE+2}, 0x3f803f80
    v_mov_b32 v{ONE+3}, 0x3f803f80
    v_cmp_gt_u32 vcc, 1152, v8
    v_add_u32 v8, {LON}, v8
    v_mov_b32 v10, {LCNT}
    v_mov_b32 v11, 0
    s_and_saveexec_b64 s[56:57], vcc
    ds_write_b128 v8, {vr(ONE)}
    ds_write_b32 v10, v11
    s_mov_b64 exec, s[56:57]
    v_lshrrev_b32 v10, 2, v0
    v_lshlrev_b32 v10, 7, v10
    v_and_b32 v11, 3, v0
    v_lshl_add_u32 v22, v11, 3, v10
    v_bfe_u32 v23, v0, 3, 2
    s_lshl_b32 s44, s{sNH}, 1
    s_and_b32 s45, s{sTG}, 1
    s_add_u32 s54, s44, s45
    v_xor_b32 v11, s54, v23
    v_lshl_add_u32 v{WB}, v11, 5, v22
    v_xor_b32 v11, 1, v11
    v_lshl_add_u32 v{WB+1}, v11, 5, v22
    v_lshrrev_b32 v11, 1, v2
    v_xor_b32 v11, v3, v11
    v_lshlrev_b32 v10, 7, v2
    v_lshl_add_u32 v{XB}, v11, 4, v10
    v_xor_b32 v{XB+1}, 64, v{XB}
    s_lshl_b32 s44, s{sTG}, 12
    s_lshl_b32 s45, s{sNH}, 11
    s_add_u32 s44, s44, {LX}
    s_add_u32 s51, s44, s45
    s_xor_b32 s45, s45, 2048
    s_add_u32 s52, s44, s45
    v_add_u32 v{XB+2}, s52, v{XB}
    v_add_u32 v{XB+3}, s52, v{XB+1}
    v_add_u32 v{XB}, s51, v{XB}
    v_add_u32 v{XB+1}, s51, v{XB+1}
    v_and_b32 v11, 3, v0
    v_mov_b32 v{SA}, {LST+1280}
    v_mov_b32 v10, {LON}
    v_cmp_eq_u32 vcc, 0, v11
    s_nop 1
    v_cndmask_b32 v{SA}, v{SA}, v10, vcc
    v_mov_b32 v10, {LST}
    v_cmp_eq_u32 vcc, 1, v11
    s_nop 1
    v_cndmask_b32 v{SA}, v{SA}, v10, vcc
    v_lshl_add_u32 v{SA}, v3, 4, v{SA}
    s_waitcnt lgkmcnt(0)
    """)
    a.srd_off(rO, 8, OFF_H20, SZ_H20)
    a.srd_off(rS, 8, OFF_G, S*4)
    a.srd_off(rD, 8, OFF_FF, FFB)
    a.e(f"""
    s_lshl_b32 s44, s{sTM}, 3
    s_add_u32 s45, s44, s{sWV}
    s_mul_i32 s48, s45, {HT}
    s_xor_b32 s45, s45, 1
    s_mul_i32 s49, s45, {HT}
    s_lshl_b32 s52, s{sTN}, 1
    s_add_u32 s52, s52, s{sNH}
    v_lshlrev_b32 v4, 4, v0
    s_lshl_b32 s44, s52, 10
    v_add_u32 v5, s44, v4
    """)
    a.e(f"""
    s_lshl_b32 s44, s{sWV}, 8
    s_add_u32 s44, s44, {LCO}
    v_lshl_add_u32 v12, v2, 4, s44
    s_lshl_b32 s45, s54, 6
    s_add_u32 s45, s45, {LCS}
    v_lshl_add_u32 v13, v3, 4, s45
    v_lshlrev_b32 v10, 2, v3
    v_sub_u32 v10, v2, v10
    v_cmp_eq_u32 s[58:59], 0, v10
    v_cmp_eq_u32 s[46:47], 1, v10
    v_cmp_eq_u32 s[62:63], 2, v10
    v_cmp_eq_u32 s[50:51], 3, v10
    v_cmp_eq_u32 s[56:57], 0, v2
    s_lshl_b32 s60, s{sTM}, 8
    s_lshl_b32 s44, s{sTN}, 2
    s_add_u32 s60, s60, s44
    """)
    def reads(p, ph):
        fb = FBs[p & 1]; out = []
        pre = ""
        if p == 4:
            pre = "".join(f"v_add_u32 v{WB+j}, 0x8000, v{WB+j}\n" for j in range(2))
            if ph == 1: pre += "".join(f"v_add_u32 v{XB+k}, 0x10000, v{XB+k}\n" for k in range(4))
        if ph == 2 and p % 4 == 3: pre += "".join(f"v_add_u32 v{HB2+g}, 0x2000, v{HB2+g}\n" for g in range(4))
        if ph == 2 and p % 4 == 0 and p: pre += "".join(f"v_subrev_u32 v{HB2+g}, 0x2000, v{HB2+g}\n" for g in range(4))
        if p == 9: pre = "".join(f"v_subrev_u32 v{WB+j}, 0x8000, v{WB+j}\n" for j in range(2))
        if p == 5 and ph == 1: pre = "".join(f"v_subrev_u32 v{XB+k}, 0x10000, v{XB+k}\n" for k in range(4))
        for h in range(2):
            for tt in range(2):
                if ph == 1:
                    out.append((pre + f"ds_read_b128 {vr(fb+16+h*8+tt*4)}, v{XB+tt*2+h} offset:{((p % NX) & 3)*16384}", (p, h)))
                else:
                    out.append((pre + f"ds_read_b128 {vr(fb+16+h*8+tt*4)}, v{HB2+fgroup(2*p+h)} offset:{(p % 4)*18432 + h*9216 + tt*1024 - (8192 if p % 4 == 3 else 0)}", (p, h)))
                pre = ""
            off = p*8192 + h*4096
            if off >= 0x8000: off -= 0x8000
            if p == 9: off = (4, 13)[h]*4096
            for j in range(2):
                out.append((f"ds_read_b64_tr_b16 {vr(fb+h*8+j*4,2)}, v{WB+j} offset:{off}", (p, h)))
                out.append((f"ds_read_b64_tr_b16 {vr(fb+h*8+j*4+2,2)}, v{WB+j} offset:{off+2048}", (p, h)))
        return out
    def sread(k): return (f"ds_read_b128 {vr(SF+(k&1)*4)}, v{SA} offset:{k*64}", ("s", k))
    def mainloop(ph):
        a.e("s_barrier")
        if ph == 1: a.lds(*sread(0))
        for (s, t) in reads(0, ph): a.lds(s, t)
        NP = 9 if ph == 1 else 10
        for p in range(NP):
            if p < NP-1:
                if ph == 2: a.wait_lg0()
                a.e("s_barrier")
            if ph == 2 and p in (0, 4): a.stamp(9 + p//4)
            rd = reads(p+1, ph) if p < NP-1 else []
            fb = FBs[p & 1]
            for h in range(2):
                k = 2*p + h
                first = (k == 0)
                mm = [(vr(ACC+(j*2+tt)*4), vr(fb+h*8+j*4), vr(fb+16+h*8+tt*4)) for j in range(2) for tt in range(2)]
                if ph == 1:
                    ex = [(vr(SQ), vr(fb+16+h*8), vr(fb+16+h*8)), (vr(CS), vr(fb+h*8), vr(ONE)), (vr(ST), vr(SF+h*4), vr(fb+16+h*8))]
                    mm = ex + mm if k == 17 else mm + ex
                for n, m in enumerate(mm):
                    if n == 0:
                        a.wait_lg_if((p, h))
                        if ph == 1 and k < 17: a.lds(*sread(k+1))
                    if ph == 1 and m[0] == vr(ST): a.wait_lg_if(("s", k))
                    a.mfma(m[0], m[1], m[2], "0" if first else None)
                    for _ in range(1 if ph == 1 else 2):
                        if rd and not (ph == 1 and n == 6): a.lds(*rd.pop(0))
            assert not rd
    mainloop(1)
    a.stamp(3)
    C = 56
    a.e(f"""
    s_nop 3
    v_cndmask_b32 v11, 0, v{SQ}, s[58:59]
    v_cndmask_b32 v11, v11, v{SQ+1}, s[46:47]
    v_cndmask_b32 v11, v11, v{SQ+2}, s[62:63]
    v_cndmask_b32 v{SQ}, v11, v{SQ+3}, s[50:51]
    s_mov_b64 exec, s[56:57]
    ds_write_b128 v13, {vr(CS)}
    s_mov_b64 exec, -1
    """)
    a.xsum4(SQ, 10)
    a.e(f"v_mov_b32 v{GL}, v{ST+1}")
    a.ln_consts(ST, SQ, C, C+1, C+2, C+3, 10)
    a.e(f"""
    s_mov_b64 exec, 0xffff
    ds_write_b128 v12, {vr(C)}
    s_mov_b64 exec, -1
    v_xor_b32 v12, 256, v12
    v_xor_b32 v13, 64, v13
    """)
    T = 72
    CSR = [CS, ONE]
    def quad(j, tt):
        return [[f"v_fma_f32 v{ACC+(j*2+tt)*4+r}, v{C+tt*4}, v{CSR[j]+r}, v{ACC+(j*2+tt)*4+r}"] +
                a.gelu_seq(ACC+(j*2+tt)*4+r, T+(j*2+tt)*4+r, C+tt*4+1, C+tt*4+2, C+tt*4+3) for r in range(4)]
    def pk(j, tt):
        q = j*2 + tt; P = 64 + tt*4 + j*2; t = T + q*4
        a.e(f"v_cvt_pk_bf16_f32 v{P}, v{t}, v{t+1}")
        a.e(f"v_cvt_pk_bf16_f32 v{P+1}, v{t+2}, v{t+3}")
    a.e("s_waitcnt lgkmcnt(0)")
    a.e("s_barrier")
    a.e(f"ds_read_b128 {vr(C+4)}, v12")
    a.e(f"ds_read_b128 {vr(ONE)}, v13")
    for x in interleave(quad(0, 0)): a.e(x)
    pk(0, 0)
    a.e("s_waitcnt lgkmcnt(0)")
    for x in interleave(quad(0, 1) + quad(1, 0) + quad(1, 1)): a.e(x)
    pk(1, 0); pk(0, 1); pk(1, 1)
    a.e(f"""
    s_bitcmp0_b32 s54, 0
    s_cbranch_scc1 g1_nsw
    v_swap_b32 v64, v66
    v_swap_b32 v65, v67
    v_swap_b32 v68, v70
    v_swap_b32 v69, v71
    g1_nsw:
    s_cmp_eq_u32 s52, 4
    s_cselect_b32 s44, {18*1024}, 0
    s_cmp_eq_u32 s52, 13
    s_cselect_b32 s44, {19*1024}, s44
    s_cmp_eq_u32 s44, 0
    s_cbranch_scc1 g1_std
    v_add_u32 v6, s44, v4
    v_mov_b32 v72, 0
    v_mov_b32 v73, 0
    v_mov_b32 v74, v66
    v_mov_b32 v75, v67
    v_mov_b32 v76, 0
    v_mov_b32 v77, 0
    v_mov_b32 v78, v70
    v_mov_b32 v79, v71
    v_mov_b32 v66, 0
    v_mov_b32 v67, 0
    v_mov_b32 v70, 0
    v_mov_b32 v71, 0
    buffer_store_dwordx4 v[72:75], v6, s[{rO}:{rO+3}], s48 offen sc1
    buffer_store_dwordx4 v[76:79], v6, s[{rO}:{rO+3}], s49 offen sc1
    g1_std:
    buffer_store_dwordx4 v[64:67], v5, s[{rO}:{rO+3}], s48 offen sc1
    buffer_store_dwordx4 v[68:71], v5, s[{rO}:{rO+3}], s49 offen sc1
    """)
    if w2late == 1: a.e("s_barrier")
    a.stamp(4)
    a.e(f"""
    s_lshl_b32 s44, s{sNH}, 1
    v_xor_b32 v11, s44, v23
    v_lshl_add_u32 v{WB}, v11, 5, v22
    v_xor_b32 v11, 1, v11
    v_lshl_add_u32 v{WB+1}, v11, 5, v22
    s_lshl_b32 s44, s{sTG}, 12
    v_lshrrev_b32 v12, 1, v3
    s_lshl_b32 s45, s{sNH}, 2
    v_add_u32 v12, s45, v12
    v_and_b32 v13, 7, v2
    v_xor_b32 v12, v12, v13
    v_lshlrev_b32 v13, 7, v2
    v_lshl_add_u32 v13, v12, 4, v13
    v_and_b32 v12, 1, v3
    v_lshl_add_u32 v13, v12, 3, v13
    v_add_u32 v{XB+1}, s44, v13
    v_xor_b32 v{XB+2}, 32, v{XB+1}
    s_lshl_b32 s44, s{sTG}, 11
    s_add_u32 s44, s44, {LX}
    v_lshl_add_u32 v13, v3, 8, s44
    """)
    for g, sh in enumerate((1, -1, 2, -2)):
        a.e(f"""
        v_add_u32 v12, {(16 if sh > 0 else 0) - sh}, v2
        v_lshrrev_b32 v11, 4, v12
        v_and_b32 v12, 15, v12
        v_lshl_add_u32 v12, v12, 4, v13
        v_lshl_add_u32 v{HB2+g}, v11, 10, v12
        """)
    if w2late == 2: pub_bar(a, sWV, 1, rD, 60, "g1_pub")
    else: publish(a, 8, LCNT, rD, 60, "g1_pub")
    a.stamp(5)
    sc = "sc1" if MONO[0] else ""
    lab = a.newlabel("nog")
    a.e(f"s_cmp_lg_u32 s{sTN}, 0")
    a.e(f"s_cbranch_scc1 {lab}")
    a.bf16r(GL, GL)
    a.e(f"v_mul_f32 v{GL}, {hex(f2u(-1.4426950408889634))}, v{GL}")
    a.e(f"v_exp_f32 v{GL}, v{GL}")
    a.e("s_nop 0")
    a.e(f"v_add_f32 v{GL}, 1.0, v{GL}")
    a.e(f"v_rcp_f32 v{GL}, v{GL}")
    a.e("s_nop 0")
    a.bf16r(GL, GL)
    a.e(f"s_lshl_b32 s44, s{sWV}, 4")
    a.e(f"s_add_u32 s44, s44, s61")
    a.e(f"v_add_lshl_u32 v10, s44, v2, 2")
    a.e("s_mov_b64 exec, 0xffff")
    a.e(f"buffer_store_dword v{GL}, v10, s[{rS}:{rS+3}], 0 offen {sc}")
    a.e("s_mov_b64 exec, -1")
    a.label(lab)
    a.srd_off(rO, 8, OFF_X1, SZ_ACT)
    a.srd_off(rA, 8, OFF_ST, NST*S*8)
    a.e(f"""
    s_lshl_b32 s44, s{sTM}, 3
    s_lshl_b32 s45, s{sTG}, 1
    s_add_u32 s44, s44, s45
    s_mul_i32 s48, s44, 18432
    s_lshl_b32 s45, s{sTN}, 1
    s_add_u32 s45, s45, s{sNH}
    s_lshl_b32 s46, s45, 10
    s_add_u32 s48, s48, s46
    s_add_u32 s49, s48, 18432
    s_lshl_b32 s47, s45, 14
    s_lshl_b32 s44, s44, 4
    v_add_lshl_u32 v5, s44, v2, 3
    v_mov_b32 v{ONE}, 0x3f803f80
    s_cmp_lg_u32 s{sWV}, 0
    s_cbranch_scc1 g2_poll_ok
    v_min_u32 v12, 26, v0
    v_mul_u32_u24 v13, 7282, v12
    v_lshrrev_b32 v13, 16, v13
    v_mul_u32_u24 v10, 9, v13
    v_sub_u32 v12, v12, v10
    s_sub_u32 s44, s{sTM}, 1
    v_add_u32 v13, s44, v13
    v_max_i32 v13, 0, v13
    v_min_i32 v13, 15, v13
    v_lshlrev_b32 v13, 8, v13
    v_lshl_add_u32 v12, v12, 2, v13
    """)
    if pipe: poll_pipe(a, 12, rD, sBUD, 6, "g2_poll", psl)
    else: poll_bytes(a, 12, rD, sBUD, 13, "g2_poll", psl)
    a.reset()
    a.e("s_barrier")
    a.stamp(8)
    mainloop(2)
    a.stamp(6)
    XR = 24
    for tt in range(2):
        for j in range(2):
            a.e(f"ds_read_b64 {vr(XR+(tt*2+j)*2,2)}, v{XB+1+j} offset:{tt*2048}")
    a.e("s_nop 3")
    for q in range(4):
        acc = ACC + q*4; t = 64 + q*2
        a.e(f"v_cvt_pk_bf16_f32 v{t}, v{acc}, v{acc+1}")
        a.e(f"v_cvt_pk_bf16_f32 v{t+1}, v{acc+2}, v{acc+3}")
    a.e("s_waitcnt lgkmcnt(0)")
    if MONO[0] and not t1late: a.e("s_barrier")
    for q in range(4):
        acc = ACC + q*4; t = 64 + q*2
        a.e(f"v_lshlrev_b32 v{acc}, 16, v{t}")
        a.e(f"v_and_b32 v{acc+1}, 0xffff0000, v{t}")
        a.e(f"v_lshlrev_b32 v{acc+2}, 16, v{t+1}")
        a.e(f"v_and_b32 v{acc+3}, 0xffff0000, v{t+1}")
    for tt in range(2):
        for j in range(2):
            acc = ACC + (j*2+tt)*4; xr = XR + (tt*2+j)*2; t = 72 + j*4; P = 80 + tt*4 + j*2
            a.e(f"v_lshlrev_b32 v{t}, 16, v{xr}")
            a.e(f"v_and_b32 v{t+1}, 0xffff0000, v{xr}")
            a.e(f"v_lshlrev_b32 v{t+2}, 16, v{xr+1}")
            a.e(f"v_and_b32 v{t+3}, 0xffff0000, v{xr+1}")
            for r in range(4): a.e(f"v_add_f32 v{acc+r}, v{acc+r}, v{t+r}")
            a.e(f"v_cvt_pk_bf16_f32 v{P}, v{acc}, v{acc+1}")
            a.e(f"v_cvt_pk_bf16_f32 v{P+1}, v{acc+2}, v{acc+3}")
        a.e(f"buffer_store_dwordx4 {vr(80+tt*4)}, v4, s[{rO}:{rO+3}], s{48+tt} offen {sc}")
    for kk in range(4): a.e(f"v_mov_b32 v{88+kk}, 0")
    for kk in range(4):
        for tt in range(2):
            P = 80 + tt*4 + kk
            a.e(f"v_dot2c_f32_bf16 v{88+tt*2}, v{P}, v{ONE}")
            a.e(f"v_dot2c_f32_bf16 v{89+tt*2}, v{P}, v{P}")
    a.e("s_nop 2")
    for sw in ("32", "16"):
        for kk in range(4): a.e(f"v_mov_b32 v{92+kk}, v{88+kk}")
        a.e("s_nop 0")
        for kk in range(4): a.e(f"v_permlane{sw}_swap_b32 v{88+kk}, v{92+kk}")
        a.e("s_nop 0")
        for kk in range(4): a.e(f"v_add_f32 v{88+kk}, v{88+kk}, v{92+kk}")
    a.e("s_mov_b64 exec, 0xffff")
    for tt in range(2):
        a.e(f"buffer_store_dwordx2 {vr(88+tt*2,2)}, v5, s[{rA}:{rA+3}], s47 offen offset:{tt*128} {sc}")
    a.e("s_mov_b64 exec, -1")
    if MONO[0]:
        if t1late: pub_bar(a, sWV, 1, rD, 60, "g2_pub", F_X1)
        else: publish(a, 8 if w2late == 2 else 16, LCNT, rD, 60, "g2_pub", F_X1)
        a.stamp(7)
    a.e(f"s_branch {done}")
    return LCO + 2048

def idle(a):
    a.e("s_lshr_b32 s58, s2, 3")
    a.e("s_lshl_b32 s58, s58, 2")
    a.e("s_add_u32 s58, s58, s38")
    a.e("s_sub_u32 s58, s58, 12")
    l = a.newlabel("cpf")
    a.e(f"s_getpc_b64 s[60:61]")
    a.label(l)
    a.e(f"s_sub_u32 s60, s60, {l}-{KNAME}")
    a.e(f"s_subb_u32 s61, s61, 0")
    a.e(f"s_min_u32 s58, s58, (k3_end-{KNAME})/768")
    a.e(f"s_mul_i32 s58, s58, 768")
    a.e(f"s_add_u32 s60, s60, s58")
    a.e(f"s_addc_u32 s61, s61, 0")
    for i in range(12): a.e(f"s_load_dword s59, s[60:61], {i*64}")
KNAME = "gated_mix__ssm_conv_h3__mixer_s_mlp__prompt_kernel"

RS = 21312
HB = 4*4160
L_EX = 0
L_CS2 = 6*RS
L_CNT = LCN

def side(a, done, nt="nt", cpf=3, help=False, w2pf=True, psl=6, w4pf=0):
    a.reset()
    rK, rV, rSH, rU, rH, rD, rZ = 16, 20, 24, 28, 32, 40, 44
    sWV, sBUD = 38, 53
    a.ldarg(4, "k"); a.ldarg(6, "v"); a.ldarg(8, "shk"); a.ldarg(10, "ws"); a.ldarg(12, "ssmk"); a.ldarg(14, "dbg"); a.ldarg(56, "ssmD")
    a.ldarg(58, "w1"); a.ldarg(60, "q"); a.ldarg(62, "w2")
    a.e(f"""
    v_lshrrev_b32 v1, 6, v0
    v_and_b32 v0, 63, v0
    v_readfirstlane_b32 s{sWV}, v1
    v_and_b32 v2, 15, v0
    v_lshrrev_b32 v3, 4, v0
    s_mov_b32 s{sBUD}, 0x8000
    v_mov_b32 v10, {L_CNT}
    v_mov_b32 v11, 0
    ds_write2_b32 v10, v11, v11 offset0:0 offset1:1
    s_waitcnt lgkmcnt(0)
    """)
    a.srd_off(rU, 10, OFF_UR, D*URP + 16)
    a.srd(rD, 14, 256)
    a.e(f"""
    v_mov_b32 v126, 0
    s_cmp_ge_u32 s3, 72
    s_cbranch_scc1 sd_nop
    s_mul_i32 s37, s3, 7282
    s_lshr_b32 s37, s37, 16
    s_mul_i32 s39, s37, 9
    s_sub_u32 s39, s3, s39
    s_add_u32 s52, s39, 16
    s_lshl_b32 s52, s52, 8
    s_lshl_b32 s48, s37, 2
    s_add_u32 s52, s52, s48
    s_lshl_b32 s48, s37, 4
    s_add_u32 s48, s48, s{sWV}
    s_lshl_b32 s48, s48, 4
    v_lshrrev_b32 v13, 5, v0
    v_and_b32 v14, 31, v0
    v_lshl_add_u32 v4, v13, 3, s48
    s_lshl_b32 s49, s39, 6
    v_lshl_add_u32 v5, v14, 1, s49
    v_mul_u32_u24 v6, 1152, v4
    v_lshl_add_u32 v7, v5, 1, v6
    v_subrev_u32 v6, 4608, v7
    v_add_u32 v8, 4608, v7
    v_lshlrev_b32 v9, 3, v5
    """)
    a.srd(rK, 4, SZ_ACT); a.srd(rSH, 8, D*8)
    KR, VR, WR = 16, 28, 36
    a.vmem(f"buffer_load_dwordx4 {vr(WR)}, v9, s[{rSH}:{rSH+3}], 0 offen", "k")
    for r in range(1, 12):
        a.vmem(f"buffer_load_dword v{KR+r}, v{6+r//4}, s[{rK}:{rK+3}], 0 offen offset:{(r%4)*1152} {nt}", "k")
    a.srd(rV, 6, SZ_ACT)
    for r in range(8):
        rr = r + 4
        a.vmem(f"buffer_load_dword v{VR+r}, v{6+rr//4}, s[{rV}:{rV+3}], 0 offen offset:{(rr%4)*1152} {nt}", "v")
    a.e(f"""
    v_mul_u32_u24 v12, {2*528}, v14
    v_and_b32 v11, 255, v4
    v_sub_u32 v11, 248, v11
    v_lshl_add_u32 v12, v11, 1, v12
    v_add_u32 v12, {L_EX}, v12
    s_lshl_b32 s50, s{sWV}, 2
    v_add_u32 v13, s50, v13
    v_mul_u32_u24 v15, 528, v13
    v_lshl_add_u32 v15, v14, 4, v15
    v_add_u32 v15, {L_EX}, v15
    v_lshlrev_b32 v13, 12, v13
    v_lshl_add_u32 v13, v14, 4, v13
    s_lshl_b32 s50, s39, 18
    s_sub_u32 s51, 7, s37
    s_lshl_b32 s51, s51, 9
    s_add_u32 s50, s50, s51
    """)
    a.wait_vm("k")
    KF, WFl, U, VF, P = 40, 52, 56, 72, 80
    uns = [lambda d, s: f"v_lshlrev_b32 v{d}, 16, v{s}", lambda d, s: f"v_and_b32 v{d}, 0xffff0000, v{s}"]
    for ch in range(2):
        un = uns[ch]; Uc = U + ch*8
        for r in range(1, 12): a.e(un(KF+r, KR+r))
        a.e(f"v_lshlrev_b32 v{WFl}, 16, v{WR+2*ch}")
        a.e(f"v_and_b32 v{WFl+1}, 0xffff0000, v{WR+2*ch}")
        a.e(f"v_lshlrev_b32 v{WFl+2}, 16, v{WR+2*ch+1}")
        a.e(f"v_and_b32 v{WFl+3}, 0xffff0000, v{WR+2*ch+1}")
        for e in range(8): a.e(f"v_mul_f32 v{Uc+e}, v{KF+e+1}, v{WFl+3}")
        for j in (2, 1, 0):
            for e in range(8): a.e(f"v_fma_f32 v{Uc+e}, v{KF+e+4-j}, v{WFl+j}, v{Uc+e}")
    a.wait_vm("v")
    lab = a.newlabel("nv")
    a.e(f"s_cmp_lg_u32 s{sWV}, 0")
    a.e(f"s_cbranch_scc1 {lab}")
    a.e(f"buffer_load_dword v127, v126, s[{rD}:{rD+3}], 0 offen sc1")
    a.label(lab)
    for ch in range(2):
        un = uns[ch]; Uc = U + ch*8
        for r in range(8): a.e(un(VF+r, VR+r))
        for e in range(8): a.e(f"v_mul_f32 v{Uc+e}, v{Uc+e}, v{VF+e}")
        PP = P + ch*4
        for m in range(4):
            a.e(f"v_cvt_pk_bf16_f32 v{PP+m}, v{Uc+7-2*m}, v{Uc+6-2*m}")
        a.e(f"ds_write_b128 v12, {vr(PP)} offset:{ch*528}")
    a.e("s_waitcnt lgkmcnt(0)")
    a.e("s_barrier")
    for i in range(2): a.lds(f"ds_read_b128 {vr(16+4*i)}, v15 offset:{i*2*528}", i)
    for i in range(2):
        a.wait_lg(i)
        a.e(f"buffer_store_dwordx4 {vr(16+4*i)}, v13, s[{rU}:{rU+3}], s50 offen sc1")
        a.e(f"s_add_u32 s50, s50, {2*URP}")
    a.stamp(8)
    a.e(f"s_cmp_lg_u32 s{sWV}, 0")
    a.e("s_cbranch_scc1 p_val_ok")
    poll_bytes(a, 126, rD, sBUD, 127, "p_val", 4, pre=True)
    a.srd_off(rD, 10, OFF_FF, FFB)
    pub_bar(a, sWV, 0, rD, 52, "pr_pub")
    a.stamp(9)
    a.e("s_branch sd_conv")
    a.label("sd_nop")
    a.e(f"s_cmp_lg_u32 s{sWV}, 0")
    a.e("s_cbranch_scc1 s_val_ok")
    poll_bytes(a, 126, rD, sBUD, 127, "s_val", 8)
    a.label("sd_conv")
    a.e(f"s_cmp_lt_u32 s{sWV}, 12")
    a.e("s_cbranch_scc1 sd_act")
    a.ldarg(62, "w4")
    for _ in range(2): a.e("s_barrier")
    if w4pf:
        a.e(f"""
        s_lshr_b32 s48, s3, 3
        s_lshl_b32 s48, s48, 2
        s_add_u32 s48, s48, s{sWV}
        s_sub_u32 s48, s48, 12
        s_and_b32 s49, s3, 3
        s_mul_i32 s49, s49, {2*576*1152}
        v_lshlrev_b32 v4, 7, v0
        s_waitcnt lgkmcnt(0)
        """)
        a.srd(rK, 62, D*F*2)
        if w4pf == 1:
            a.e("s_bfe_u32 s50, s3, 0x10002")
            a.e(f"s_mul_i32 s50, s50, {576*1152}")
            a.e("s_add_u32 s49, s49, s50")
        nblk = 81 if w4pf == 1 else 162
        for i in range((nblk + 47) // 48):
            a.e(f"s_add_u32 s50, s48, {48*i}")
            a.e(f"s_min_u32 s50, s50, {nblk-1}")
            a.e(f"s_lshl_b32 s50, s50, 13")
            a.e(f"s_add_u32 s50, s50, s49")
            a.e(f"buffer_load_dword v100, v4, s[{rK}:{rK+3}], s50 offen")
    for _ in range(5): a.e("s_barrier")
    a.e(f"s_branch {done}")
    a.label("sd_act")
    a.reset()
    a.e(f"""
    s_lshr_b32 s36, s{sWV}, 1
    s_and_b32 s37, s{sWV}, 1
    s_mul_i32 s39, s36, {RS}
    s_mul_i32 s48, s3, 6
    s_add_u32 s48, s48, s36
    s_and_b32 s49, s48, 0xfffe
    s_lshl_b32 s49, s49, 1
    s_load_dword s54, s[56:57], s49
    v_lshlrev_b32 v4, 4, v0
    s_lshl_b32 s50, s48, 12
    s_lshl_b32 s51, s37, 11
    s_add_u32 s49, s50, s51
    s_add_u32 s51, s51, s39
    """)
    a.srd(rH, 12, D*S*2)
    a.e(f"s_add_u32 m0, s51, {HB+512}")
    a.e("s_nop 0")
    for i in range(2):
        a.vmem(f"buffer_load_dwordx4 v4, s[{rH}:{rH+3}], s49 offen offset:{i*1024} {nt} lds")
    a.srd_off(rZ, 10, OFF_Z4, SZ_ACT)
    if cpf and not MONO[0]:
        a.e("s_lshr_b32 s58, s3, 3")
        a.e("s_mul_i32 s58, s58, 12")
        a.e(f"s_add_u32 s58, s58, s{sWV}")
        a.code_pf("k3_kernel", 58, cpf, 60, 59, f"(k3_end-k3_kernel)/{cpf*64}")
    a.e(f"""
    v_mov_b32 v8, 0
    v_mov_b32 v9, 0
    v_mov_b32 v10, 0
    v_mov_b32 v11, 0
    v_add_u32 v5, s39, v4
    s_mov_b32 exec_hi, 0xf
    ds_write_b128 v5, v[8:11] offset:{HB-64}
    s_mov_b64 exec, 0xf
    ds_write_b128 v5, v[8:11] offset:4096
    ds_write_b128 v5, v[8:11] offset:{4160+4096}
    ds_write_b128 v5, v[8:11] offset:{2*4160+4096}
    s_mov_b64 exec, -1
    v_lshrrev_b32 v5, 2, v2
    v_sub_u32 v5, 3, v5
    v_lshl_add_u32 v5, v3, 1, v5
    v_lshlrev_b32 v5, 3, v5
    v_and_b32 v6, 3, v2
    v_xor_b32 v6, 3, v6
    v_mul_u32_u24 v6, 4160, v6
    s_xor_b32 s49, s37, 1
    s_lshl_b32 s49, s49, 8
    s_add_u32 s49, s49, s39
    v_add3_u32 v12, v5, v6, s49
    v_lshlrev_b32 v5, 5, v2
    v_lshl_add_u32 v5, v3, 4, v5
    v_add_u32 v7, s49, v5
    v_add_u32 v7, {HB+32}, v7
    s_mul_i32 s49, s3, 6
    v_bfe_u32 v6, v0, 3, 1
    v_mul_u32_u24 v6, 5, v6
    v_add_u32 v6, s49, v6
    v_lshrrev_b32 v6, 6, v6
    v_add_u32 v6, 16, v6
    v_lshlrev_b32 v6, 8, v6
    v_and_b32 v5, 7, v0
    v_lshl_add_u32 v6, v5, 2, v6
    s_lshl_b32 s49, s37, 11
    s_add_u32 s50, s50, s49
    s_add_u32 s51, s49, s39
    """)
    a.stamp(2)
    a.srd_off(rD, 10, OFF_FF, FFB)
    a.e(f"s_cmp_lg_u32 s{sWV}, 0")
    a.e("s_cbranch_scc1 cv_poll_ok")
    poll_bytes(a, 6, rD, sBUD, 5, "cv_poll", psl)
    a.e("s_barrier")
    a.stamp(3)
    a.e("s_mov_b32 m0, s51")
    a.e("s_nop 0")
    for i in range(2):
        a.e(f"buffer_load_dwordx4 v4, s[{rU}:{rU+3}], s50 offen offset:{i*1024} sc1 lds")
    a.e(f"""
    v_add_u32 v5, s51, v4
    s_waitcnt vmcnt(0) lgkmcnt(0)
    s_barrier
    ds_read_b128 v[16:19], v5
    ds_read_b64 v[20:21], v5 offset:16
    ds_read_b128 v[24:27], v5 offset:1024
    ds_read_b64 v[28:29], v5 offset:1040
    """)
    for i in range(2):
        d = 16 + 8*i; o = 32 + 12*i
        a.e(f"s_waitcnt lgkmcnt({2 if i == 0 else 3})")
        for kk in range(4): a.e(f"v_alignbit_b32 v{o+kk}, v{d+kk+1}, v{d+kk}, 16")
        a.e(f"ds_write_b128 v5, {vr(o)} offset:{4160+1024*i}")
        for kk in range(4): a.e(f"v_mov_b32 v{o+4+kk}, v{d+kk+1}")
        a.e(f"ds_write_b128 v5, {vr(o+4)} offset:{2*4160+1024*i}")
        for kk in range(4): a.e(f"v_alignbit_b32 v{o+8+kk}, v{d+kk+2}, v{d+kk+1}, 16")
        a.e(f"ds_write_b128 v5, {vr(o+8)} offset:{3*4160+1024*i}")
    a.e("s_waitcnt lgkmcnt(0)")
    a.e("s_barrier")
    a.stamp(4)
    a.reset()
    ACC = 16; FB = 48
    NLA = 2 if MONO[0] else 6
    def treg(rl, x): return (FB if rl % 2 == 0 or x >= NLA else 112) + x*4
    def greg(rl, x): return (FB+32 if rl % 2 == 0 or x >= NLA else 112+4*NLA) + x*4
    def loads(rl):
        rho = 4 + rl; out = []
        for x in range(8):
            p = 8*x + rho
            boff = 64*(63-p)
            t = treg(rl, x)
            out.append((f"ds_read_b64 {vr(t,2)}, v12 offset:{boff}", (rl, x)))
            out.append((f"ds_read_b64 {vr(t+2,2)}, v12 offset:{boff+8}", (rl, x)))
            n = 8*x - rho
            out.append((f"ds_read_b128 {vr(greg(rl, x))}, v7 offset:{64*(n+7)}", (rl, x)))
        return out
    q = loads(0)
    for _ in range(12): a.lds(*q.pop(0))
    for rl in range(4):
        nxt = loads(rl+1) if rl < 3 else []
        q += nxt[:3*NLA]
        for c in range(8):
            while any(t == (rl, c) for _, t in q): a.lds(*q.pop(0))
            a.wait_lg_if((rl, c))
            for x in range(c+1):
                first = (rl == 0 and x == 0)
                a.mfma(vr(ACC+c*4), vr(treg(rl, x)), vr(greg(rl, c-x)), "0" if first else None)
                if q and len(a.lg) < 14: a.lds(*q.pop(0))
                elif q and len(a.lg) >= 14 and (x % 2 == 1):
                    a.e("s_waitcnt lgkmcnt(8)"); a.lg = a.lg[-8:]
                    a.lds(*q.pop(0))
        q += nxt[3*NLA:]
    assert not q
    a.stamp(5)
    a.e(f"""
    s_lshl_b32 s49, s37, 12
    s_add_u32 s49, s49, s39
    s_add_u32 s49, s49, 4160
    v_add_u32 v5, s49, v4
    s_xor_b32 s49, s37, 1
    s_lshl_b32 s49, s49, 12
    s_add_u32 s49, s49, s39
    s_add_u32 s49, s49, 4160
    v_add_u32 v6, s49, v4
    s_barrier
    s_cmp_eq_u32 s37, 0
    s_cbranch_scc1 cv_h0
    """)
    for c in range(4): a.e(f"ds_write_b128 v5, {vr(ACC+c*4)} offset:{c*1024}")
    for r in range(16): a.e(f"v_mov_b32 v{64+r}, v{ACC+16+r}")
    a.e("s_branch cv_hj")
    a.label("cv_h0")
    for c in range(4): a.e(f"ds_write_b128 v5, {vr(ACC+16+c*4)} offset:{c*1024}")
    for r in range(16): a.e(f"v_mov_b32 v{64+r}, v{ACC+r}")
    a.label("cv_hj")
    a.e(f"""
    v_lshlrev_b32 v8, 5, v2
    v_lshl_add_u32 v8, v3, 3, v8
    v_sub_u32 v9, 504, v8
    s_xor_b32 s49, s37, 1
    s_lshl_b32 s49, s49, 11
    s_add_u32 s49, s49, s39
    v_add_u32 v9, s49, v9
    s_mul_i32 s49, s37, {2048+128}
    s_add_u32 s49, s49, s39
    v_add_u32 v8, s49, v8
    s_bitcmp1_b32 s48, 0
    s_cselect_b32 s49, 0, 16
    s_lshl_b32 s54, s54, s49
    s_and_b32 s54, s54, 0xffff0000
    """)
    U = 48
    for cl in range(4): a.e(f"ds_read_b64 {vr(U+2*cl,2)}, v9 offset:{512*(3-cl)}")
    a.e("s_waitcnt lgkmcnt(0)")
    a.e("s_barrier")
    for cl in range(4): a.e(f"ds_read_b128 {vr(80+cl*4)}, v6 offset:{cl*1024}")
    for cl in range(4):
        t = 96 + cl*4
        a.e(f"v_and_b32 v{t}, 0xffff0000, v{U+2*cl+1}")
        a.e(f"v_lshlrev_b32 v{t+1}, 16, v{U+2*cl+1}")
        a.e(f"v_and_b32 v{t+2}, 0xffff0000, v{U+2*cl}")
        a.e(f"v_lshlrev_b32 v{t+3}, 16, v{U+2*cl}")
        for r in range(4): a.e(f"v_fma_f32 v{t+r}, v{t+r}, s54, v{64+cl*4+r}")
    a.e("s_waitcnt lgkmcnt(0)")
    for cl in range(4):
        t = 96 + cl*4
        for r in range(4): a.e(f"v_add_f32 v{t+r}, v{t+r}, v{80+cl*4+r}")
        a.e(f"v_cvt_pk_bf16_f32 v{t}, v{t}, v{t+1}")
        a.e(f"v_cvt_pk_bf16_f32 v{t+1}, v{t+2}, v{t+3}")
        a.e(f"ds_write_b64 v8, {vr(t,2)} offset:{HB+512*cl}")
    a.e(f"""
    v_bfe_u32 v5, v0, 2, 1
    v_mul_u32_u24 v5, {RS}, v5
    v_bfe_u32 v6, v0, 3, 1
    v_mul_u32_u24 v6, {2048+128}, v6
    v_add_u32 v5, v5, v6
    v_lshl_add_u32 v5, v3, 5, v5
    v_and_b32 v6, 3, v0
    v_lshl_add_u32 v5, v6, 3, v5
    s_lshr_b32 s49, s{sWV}, 2
    s_mul_i32 s50, s49, {2*RS}
    s_and_b32 s51, s{sWV}, 3
    s_lshl_b32 s52, s51, 9
    s_add_u32 s50, s50, s52
    v_add_u32 v5, s50, v5
    v_lshlrev_b32 v6, 2, v0
    s_mul_i32 s50, s3, 3
    s_add_u32 s50, s50, s49
    s_lshl_b32 s50, s50, 13
    s_lshl_b32 s51, s51, 10
    s_add_u32 s50, s50, s51
    s_add_u32 s51, s50, 4096
    s_waitcnt lgkmcnt(0)
    s_barrier
    """)
    a.reset()
    for j in range(4):
        a.lds(f"ds_read_b64_tr_b16 {vr(16+2*j,2)}, v5 offset:{HB+128*j}", j)
    sc = "sc1" if MONO[0] else ""
    if MONO[0]:
        a.wait_lg0()
        a.e("s_barrier")
    for j in range(4):
        a.wait_lg_if(j)
        a.e(f"buffer_store_dword v{16+2*j}, v6, s[{rZ}:{rZ+3}], s50 offen offset:{256*j} {sc}")
        a.e(f"buffer_store_dword v{17+2*j}, v6, s[{rZ}:{rZ+3}], s51 offen offset:{256*j} {sc}")
    a.stamp(6)
    if MONO[0]:
        a.e("s_lshl_b32 s52, s3, 2")
        publish(a, 12, L_CNT+4, rD, 52, "z_pub", F_Z)
    a.e(f"s_branch {done}")

def colsum12(a, done, win=18, w2pf=True, ns=4):
    a.reset()
    rW, rC = 16, 20
    a.ldarg(4, "w3"); a.ldarg(10, "ws"); a.ldarg(14, "dbg"); a.ldarg(6, "w2")
    a.e(f"""
    v_lshrrev_b32 v1, 8, v0
    v_and_b32 v6, 255, v0
    v_readfirstlane_b32 s38, v1
    v_lshrrev_b32 v1, 3, v6
    v_and_b32 v2, 7, v6
    v_mul_u32_u24 v3, 9216, v1
    v_lshl_add_u32 v3, v2, 4, v3
    s_sub_u32 s37, 255, s2
    s_mul_i32 s39, s37, {ns}
    s_add_u32 s39, s39, s38
    s_add_u32 s40, s37, {16*ns - 16}
    s_cmp_ge_u32 s37, 16
    s_cselect_b32 s39, s40, s39
    s_cselect_b32 s40, 1, {ns}
    s_cmp_ge_u32 s39, 72
    s_cselect_b32 s40, 0, s40
    s_waitcnt lgkmcnt(0)
    s_cmp_lg_u32 s2, 216
    s_cbranch_scc1 cs_nz
    """)
    a.srd_off(24, 10, OFF_FLAG, flag_bytes())
    a.srd_off(32, 10, OFF_FF, FFB)
    a.srd(28, 14, 256)
    a.e(f"""
    v_mov_b32 v88, 0
    v_mov_b32 v89, 0
    v_mov_b32 v90, 0
    v_mov_b32 v91, 0
    v_lshlrev_b32 v94, 4, v0
    buffer_store_dwordx4 v[88:91], v94, s[32:35], 0 offen sc1
    buffer_store_dwordx4 v[88:91], v94, s[24:27], 0 offen sc1
    s_mov_b32 s41, 0
    """)
    pub_bar(a, 101, 0, 28, 41, "cs_nz")
    a.e(f"""
    s_cmp_lt_u32 s38, s40
    s_cbranch_scc1 cs_go
    """)
    if w2pf:
        a.e(f"""
        s_cmp_lt_u32 s37, 16
        s_cbranch_scc1 cs_npf
        s_sub_u32 s41, s2, 216
        s_lshl_b32 s41, s41, 2
        s_add_u32 s41, s41, s101
        s_sub_u32 s41, s41, 12
        s_cmp_lt_u32 s101, 12
        s_cbranch_scc1 cs_npf
        s_lshl_b32 s41, s41, 13
        v_and_b32 v4, 63, v0
        v_lshlrev_b32 v4, 7, v4
        """)
        a.srd(16, 6, D*D*2)
        a.e(f"""
        buffer_load_dword v100, v4, s[16:19], s41 offen
        cs_npf:
        """)
    a.e(f"""
    s_barrier
    s_branch cs_end
    cs_go:
    """)
    a.srd(rW, 4, D*F*2)
    a.srd_off(rC, 10, OFF_CS3, F*4)
    a.e(f"""
    s_min_u32 s36, s39, 71
    s_lshl_b32 s36, s36, 7
    s_cmp_ge_u32 s39, 72
    s_cselect_b32 s18, 0, s18
    """)
    def cld(i):
        a.vmem(f"buffer_load_dwordx4 {vr(16+4*i)}, v3, s[{rW}:{rW+3}], s36 offen", i)
        a.e(f"s_add_u32 s36, s36, {32*9216}")
    for i in range(win): cld(i)
    a.e(f"""
    s_lshl_b32 s40, s38, 13
    s_add_u32 s40, s40, {L_CS2}
    v_lshl_add_u32 v7, v6, 5, s40
    v_lshl_add_u32 v93, v6, 2, s40
    v_lshlrev_b32 v94, 2, v6
    """)
    for i in range(18):
        a.wait_vm(i)
        if i + win < 18: cld(i + win)
        for r in range(4):
            x = 16+4*i+r
            if i == 0:
                a.e(f"v_lshlrev_b32 v{8+2*r}, 16, v{x}")
                a.e(f"v_and_b32 v{9+2*r}, 0xffff0000, v{x}")
            else:
                a.e(f"v_lshlrev_b32 v4, 16, v{x}")
                a.e(f"v_and_b32 v5, 0xffff0000, v{x}")
                a.e(f"v_add_f32 v{8+2*r}, v{8+2*r}, v4")
                a.e(f"v_add_f32 v{9+2*r}, v{9+2*r}, v5")
    a.e(f"""
    ds_write_b128 v7, v[8:11]
    ds_write_b128 v7, v[12:15] offset:16
    s_waitcnt lgkmcnt(0)
    s_barrier
    v_cmp_gt_u32 vcc, 64, v6
    s_and_saveexec_b64 s[52:53], vcc
    s_cbranch_execz cs_ns
    """)
    for qq in range(4):
        for r in range(8):
            a.e(f"ds_read_b32 v{16+qq*8+r}, v93 offset:{(qq*8+r)*256}")
        a.e("s_waitcnt lgkmcnt(0)")
    for r in range(1, 32): a.e(f"v_add_f32 v16, v16, v{16+r}")
    a.e(f"""
    s_lshl_b32 s36, s39, 8
    buffer_store_dword v16, v94, s[{rC}:{rC+3}], s36 offen {"sc1" if MONO[0] else ""}
    """)
    if MONO[0]:
        a.srd(28, 14, 256)
        a.srd_off(32, 10, OFF_FF, FFB)
        a.e("v_mov_b32 v17, 0")
        a.e("s_mov_b32 s54, 0x8000")
        poll_bytes(a, 17, 28, 54, 18, "c_val", 8)
        a.e(f"""
        s_mul_i32 s41, s39, 7282
        s_lshr_b32 s41, s41, 16
        s_mul_i32 s42, s41, 9
        s_sub_u32 s42, s39, s42
        s_lshl_b32 s41, s41, 8
        s_lshl_b32 s42, s42, 2
        s_add_u32 s41, s41, s42
        s_add_u32 s41, s41, {F_CS}
        v_mov_b32 v18, 1
        s_mov_b64 exec, 1
        buffer_store_dword v18, v17, s[32:35], s41 offen sc1
        """)
    a.e(f"""
    cs_ns:
    s_mov_b64 exec, s[52:53]
    cs_end:
    s_cmp_lt_u32 s2, 240
    s_cbranch_scc1 kf_sd
    """)
    if MONO[0]: a.e("s_barrier")
    a.e(f"s_branch {done}")

def kfront(a, g={}, sd={}, cs={}):
    name = "k1_kernel"
    a.begin(name)
    done = "k1_done"
    a.e(f"""
    s_cmp_ge_u32 s2, 256
    s_cbranch_scc1 {done}_x
    """)
    a.pstart()
    a.e(f"""
    s_cmp_ge_u32 s2, 144
    s_cbranch_scc1 kf_side
    s_mov_b32 s3, s2
    """)
    lds = gemm12(a, done, **g)
    a.launch(name, (256,1,1), 768, lds)
    a.label("kf_side")
    a.e("s_cmp_lt_u32 s2, 216")
    a.e("s_cbranch_scc1 kf_sd")
    colsum12(a, done, **cs)
    a.label("kf_sd")
    a.e("s_sub_u32 s3, s2, 144")
    side(a, done, **sd)
    a.label(done)
    a.pend(1)
    a.label(done + "_x")
    a.e("s_endpgm")
    a.end(name, 160, 102)


def kmono(a, k34, g={}, sd={}, cs={}, **kw):
    MONO[0] = True
    name = KNAME
    a.launches.append("; @launch grid=(256,1,1) block=(1024,1,1) lds=163840")
    a.begin(name)
    a.e(f"""
    s_cmp_ge_u32 s2, 256
    s_cbranch_scc1 k3_done_x
    """)
    a.pstart()
    a.e(f"""
    v_lshrrev_b32 v1, 6, v0
    s_nop 0
    v_readfirstlane_b32 s101, v1
    s_cmp_ge_u32 s2, 144
    s_cbranch_scc1 kf_side
    s_mov_b32 s3, s2
    """)
    done = "k3_entry"
    gemm12(a, done, **g)
    a.label("kf_side")
    a.e("s_cmp_lt_u32 s2, 216")
    a.e("s_cbranch_scc1 kf_sd")
    colsum12(a, done, **cs)
    a.label("kf_sd")
    a.e("s_sub_u32 s3, s2, 144")
    side(a, done, **sd)
    k34(a, mono=True, front=True, **kw)
    MONO[0] = False
```

```python
import sys
from gen import *
import k12, kf
from k34 import k34, k5

def build(path, prof=False, dup=False, pre=None, k1={}, k2={}, wsbase=0, scs={}, fl=(5, 2), rt=False, kff={}, lst=True, **kw):
    k12.FL.update(FG=fl[0], FS=fl[1])
    k12.SC.update(dict(hs='', ur='', x1='', z='')); k12.SC.update(scs)
    a = K()
    a.wsbase = wsbase; a.rt = rt
    a.prof = prof
    mono = kw.pop("mono", False)
    if mono:
        kf.kmono(a, k34, **kff, **kw)
    elif kw.get("front"):
        kf.kfront(a, **kff)
    else:
        (k12.k1b if k2.get('cs') else k12.k1)(a, **k1); k12.k2(a, **k2)
    if not mono: k34(a, **kw)
    if kw.get('ext'): k5(a)
    if dup: a.launches.append(a.launches[-1])
    if pre: a.launches = [a.launches[i] for i in pre]
    roles = {1: [(0,144,0,4,"g1ld"),(0,144,4,12,"gemm1"),(144,216,0,8,"prep"),(216,256,0,8,"help")], 2: [(144,288,0,4,"gemm2"),(0,144,0,4,"conv"),(288,360,0,4,"colsum")],
             3: [(0,256,8,12,"g0"),(0,256,12,16,"g1"),(0,256,4,8,"g2"),(0,256,0,4,"ld")]}
    if kw.get("front"): roles[1] = [(0,144,0,4,"gld"),(0,144,4,12,"gemm"),(144,216,0,8,"prep"),(216,240,0,12,"conv"),(240,256,0,8,"colsum")]
    if mono:
        roles = {3: [(0,144,0,4,"G.ld"),(0,144,4,8,"G.g2"),(0,144,8,12,"G.g0"),(144,216,0,4,"P.ld"),(144,216,4,8,"P.g2"),(216,240,0,4,"C.ld"),(240,256,0,4,"S.ld")]}
        if lst: a.launches = [f"; @launch kernel={kf.KNAME} grid=(256,1,1) block=(1024,1,1) lds=163840"]
    open(path, "w").write(a.text(HEADER + ("\n; roles " + repr(roles) if prof else "")))

BASE = dict(k1=dict(ntkv="nt", NW0=2, NX0=2, rot=1), k2=dict(nth="nt", cs=4), mapB=True, spf=0, lspf=6, g0w=51, g1n=15,
            skip=(49, 50, 63, 67), dr0=7, p0=10, l0=14, p1=11)
if __name__ == "__main__":
    base = dict(BASE)
    ff = dict(sd=dict(w2pf=False), g=dict(w2late=False))
    f3 = dict(g=dict(w2late=2, t1late=True))
    bl = {**base, "lc": True, "p0": 19, "l0": 25, "p1": 11, "zt": 52, "fg": 78}
    build("gated_mix__ssm_conv_h3__mixer_s_mlp__prompt.s", mono=True, kff=f3, lst=False, **bl)
    build("va.s", mono=True, kff=f3, **bl)
    build("vb.s", mono=True, kff=f3, **{**bl, "mapB": 2})
    build("vc.s", mono=True, kff=f3, **{**bl, "dr0": 5, "p1": 10})
    build("vd.s", mono=True, kff=f3, **{**bl, "psl": 1, "bo": 1})
    build("ve.s", mono=True, kff=dict(g=dict(w2late=2, t1late=True, psl=1), sd=dict(psl=1)), **{**bl, "psl": 1})
    build("vf.s", mono=True, kff=dict(g=dict(w2late=2, t1late=True, rot=0, NW0=3, NX0=3)), **bl)
```

```python
import sys
from gen import *
import k12, kf
from k34 import k34, k5

def build(path, prof=False, dup=False, pre=None, k1={}, k2={}, wsbase=0, scs={}, fl=(5, 2), rt=False, kff={}, lst=True, **kw):
    k12.FL.update(FG=fl[0], FS=fl[1])
    k12.SC.update(dict(hs='', ur='', x1='', z='')); k12.SC.update(scs)
    a = K()
    a.wsbase = wsbase; a.rt = rt
    a.prof = prof
    mono = kw.pop("mono", False)
    if mono:
        kf.kmono(a, k34, **kff, **kw)
    elif kw.get("front"):
        kf.kfront(a, **kff)
    else:
        (k12.k1b if k2.get('cs') else k12.k1)(a, **k1); k12.k2(a, **k2)
    if not mono: k34(a, **kw)
    if kw.get('ext'): k5(a)
    if dup: a.launches.append(a.launches[-1])
    if pre: a.launches = [a.launches[i] for i in pre]
    roles = {1: [(0,144,0,4,"g1ld"),(0,144,4,12,"gemm1"),(144,216,0,8,"prep"),(216,256,0,8,"help")], 2: [(144,288,0,4,"gemm2"),(0,144,0,4,"conv"),(288,360,0,4,"colsum")],
             3: [(0,256,8,12,"g0"),(0,256,12,16,"g1"),(0,256,4,8,"g2"),(0,256,0,4,"ld")]}
    if kw.get("front"): roles[1] = [(0,144,0,4,"gld"),(0,144,4,12,"gemm"),(144,216,0,8,"prep"),(216,240,0,12,"conv"),(240,256,0,8,"colsum")]
    if mono:
        roles = {3: [(0,144,0,4,"G.ld"),(0,144,4,8,"G.g2"),(0,144,8,12,"G.g0"),(144,216,0,4,"P.ld"),(144,216,4,8,"P.g2"),(216,240,0,4,"C.ld"),(240,256,0,4,"S.ld")]}
        if lst: a.launches = [f"; @launch kernel={kf.KNAME} grid=(256,1,1) block=(1024,1,1) lds=163840"]
    open(path, "w").write(a.text(HEADER + ("\n; roles " + repr(roles) if prof else "")))

BASE = dict(k1=dict(ntkv="nt", NW0=2, NX0=2, rot=1), k2=dict(nth="nt", cs=4), mapB=True, spf=0, lspf=6, g0w=51, g1n=15,
            skip=(49, 50, 63, 67), dr0=7, p0=10, l0=14, p1=11)
if __name__ == "__main__":
    base = dict(BASE)
    ff = dict(sd=dict(w2pf=False), g=dict(w2late=False))
    f3 = dict(g=dict(w2late=2, t1late=True))
    build("va.s", mono=True, kff=f3, **base)
    build("vb.s", mono=True, kff=dict(g=dict(w2late=2, t1late=True), cs=dict(ns=3)), **base)
    build("vd.s", mono=True, kff=dict(g=dict(w2late=1, t1late=True), sd=dict(psl=2)), **base)
    build("pa.s", prof=True, rt=True, mono=True, kff=f3, **base)
```

```python
import sys, math
from asmlib import Asm

S, D, F = 2048, 576, 4608
OFF_HS, OFF_X1, OFF_UR, OFF_Z4 = 0x0, 0x240000, 0x480000, 0x900000
OFF_ST, OFF_G, OFF_CS3 = 0x700000, 0xB80000, 0xB90000
OFF_H2, OFF_PART = 0xC00000, 0xC00000
SZ_ACT = S * D * 2
KA = dict(q=0, k=8, v=16, shk=24, ssmk=32, ssmD=40, w1=56, w2=64, w3=72, w4=80, gw=88, out=96, dbg=104, ws=112)
import struct
def f2u(x): return struct.unpack("<I", struct.pack("<f", x))[0]
GK = 2.0 * 0.7978845608028654 * 1.4426950408889634

class K(Asm):
    def __init__(self):
        super().__init__()
        self.vm = []
        self.lg = []
    def reset(self):
        self.vm = []; self.lg = []
    prof = False
    rt = False
    def pstart(self):
        self.nst = 0
        if self.prof:
            self.e("s_memrealtime s[64:65]")
            self.e(f"{'s_memrealtime' if self.rt else 's_memtime'} s[66:67]")
            self.e("v_lshrrev_b32 v1, 6, v0")
            self.e("s_nop 1")
            self.e("v_readfirstlane_b32 s101, v1")
            self.e("s_mov_b32 s100, s2")
            for i in range(68, 98): self.e(f"s_mov_b32 s{i}, 0")
    def stamp(self, i):
        if self.prof:
            assert i < 14
            self.e(f"{'s_memrealtime' if self.rt else 's_memtime'} s[{68+2*i}:{69+2*i}]")
    def pend(self, kidx):
        if not self.prof: return
        if getattr(self, "echo", None) is not None:
            wg, wv, st = self.echo
            self.e(f"s_cmp_lg_u32 s100, {wg}")
            self.e("s_cbranch_scc1 k3_done_x")
            self.e(f"s_cmp_lg_u32 s101, {wv}")
            self.e("s_cbranch_scc1 k3_done_x")
            self.e("s_waitcnt vmcnt(0) lgkmcnt(0)")
            self.e("s_memrealtime s[96:97]")
            self.e("s_waitcnt lgkmcnt(0)")
            self.e(f"s_sub_u32 s12, s{68+2*st}, s66")
            self.e("s_min_u32 s12, s12, 10000")
            self.label("echo_l")
            self.e("s_memrealtime s[14:15]")
            self.e("s_waitcnt lgkmcnt(0)")
            self.e("s_sub_u32 s14, s14, s96")
            self.e("s_cmp_lt_u32 s14, s12")
            self.e("s_cbranch_scc1 echo_l")
            return
        if getattr(self, "dbgwg", None) is not None:
            wg, wv = self.dbgwg
            self.e(f"s_cmp_lg_u32 s100, {wg}")
            self.e("s_cbranch_scc1 k3_done_x")
            self.e(f"s_cmp_lg_u32 s101, {wv}")
            self.e("s_cbranch_scc1 k3_done_x")
            self.e("s_waitcnt vmcnt(0) lgkmcnt(0)")
            self.e("s_memrealtime s[96:97]")
            self.e("s_load_dwordx2 s[4:5], s[0:1], 104")
            self.e("s_waitcnt lgkmcnt(0)")
            self.srd(8, 4, 256)
            self.e("v_mov_b32 v1, 0")
            self.e("s_mov_b64 exec, 1")
            for i in range(15):
                self.e(f"s_sub_u32 s12, s{68+2*i}, s66")
                self.e(f"v_mov_b32 v2, s12")
                self.e(f"buffer_store_dword v2, v1, s[8:11], 0 offen offset:{4+4*i}")
                self.e("s_nop 1")
            return
        self.e("s_mov_b64 exec, -1")
        self.e("s_waitcnt vmcnt(0) lgkmcnt(0)")
        self.e(f"{'s_memrealtime' if self.rt else 's_memtime'} s[96:97]")
        self.e("s_memrealtime s[98:99]")
        self.e("s_load_dwordx2 s[4:5], s[0:1], 112")
        self.e("s_waitcnt lgkmcnt(0)")
        self.srd_off(8, 4, 0x4000000 + kidx*0x100000, 0x100000)
        self.e("s_lshl_b32 s12, s100, 4")
        self.e("s_add_u32 s12, s12, s101")
        self.e("s_lshl_b32 s12, s12, 7")
        self.e("v_mov_b32 v1, 0")
        self.e("s_mov_b64 exec, 1")
        for i in range(18):
            self.e(f"v_mov_b32 v2, s{64+2*i}")
            self.e(f"buffer_store_dword v2, v1, s[8:11], s12 offen offset:{4*i}")
            self.e("s_nop 1")
        self.e("s_getreg_b32 s13, hwreg(HW_REG_XCC_ID)")
        self.e(f"v_mov_b32 v2, s13")
        self.e(f"buffer_store_dword v2, v1, s[8:11], s12 offen offset:{4*18}")
        self.e("s_getreg_b32 s13, hwreg(HW_REG_HW_ID)")
        self.e(f"v_mov_b32 v3, s13")
        self.e(f"buffer_store_dword v3, v1, s[8:11], s12 offen offset:{4*19}")
    def vmem(self, s, tag=None):
        self.e(s); self.vm.append(tag)
    def lds(self, s, tag=None):
        self.e(s); self.lg.append(tag)
    def wait_vm(self, tag):
        idx = max(i for i, t in enumerate(self.vm) if t == tag)
        n = len(self.vm) - 1 - idx
        assert n <= 63
        self.e(f"s_waitcnt vmcnt({n})")
        self.vm = self.vm[idx+1:]
    def wait_vm_if(self, tag):
        if tag in self.vm: self.wait_vm(tag)
    def wait_lg(self, tag):
        idx = max(i for i, t in enumerate(self.lg) if t == tag)
        n = len(self.lg) - 1 - idx
        if n > 15: n = 15; idx = len(self.lg) - 1 - 15
        self.e(f"s_waitcnt lgkmcnt({n})")
        self.lg = self.lg[idx+1:]
    def wait_lg_if(self, tag):
        if tag in self.lg: self.wait_lg(tag)
    def wait_all(self):
        self.e("s_waitcnt vmcnt(0) lgkmcnt(0)"); self.reset()
    def wait_lg0(self):
        self.e("s_waitcnt lgkmcnt(0)"); self.lg = []
    def wait_vm0(self):
        self.e("s_waitcnt vmcnt(0)"); self.vm = []
    def ldarg(self, sreg, name):
        self.e(f"s_load_dwordx2 s[{sreg}:{sreg+1}], s[0:1], {KA[name]}")
    def srd_off(self, d, base, off, nbytes):
        off += getattr(self, "wsbase", 0)
        self.e(f"s_add_u32 s{d}, s{base}, {off}")
        self.e(f"s_addc_u32 s{d+1}, s{base+1}, 0")
        self.e(f"s_and_b32 s{d+1}, s{d+1}, 0xffff")
        self.e(f"s_mov_b32 s{d+2}, {nbytes}")
        self.e(f"s_mov_b32 s{d+3}, 0x20000")
    def code_pf(self, label, sidx, per, sa, sd, maxidx):
        l = self.newlabel("cpf")
        self.e(f"s_getpc_b64 s[{sa}:{sa+1}]")
        self.label(l)
        self.e(f"s_add_u32 s{sa}, s{sa}, {label}-{l}")
        self.e(f"s_addc_u32 s{sa+1}, s{sa+1}, 0")
        self.e(f"s_min_u32 s{sd}, s{sidx}, {maxidx}")
        self.e(f"s_mul_i32 s{sd}, s{sd}, {per*64}")
        self.e(f"s_add_u32 s{sa}, s{sa}, s{sd}")
        self.e(f"s_addc_u32 s{sa+1}, s{sa+1}, 0")
        for i in range(per):
            self.e(f"s_load_dword s{sd}, s[{sa}:{sa+1}], {i*64}")
    def mfma(self, acc, a, b, c=None):
        cs = f"{acc}" if c is None else c
        self.e(f"v_mfma_f32_16x16x32_bf16 {acc}, {a}, {b}, {cs}")
    def bf16r(self, d, s):
        self.e(f"v_cvt_pk_bf16_f32 v{d}, v{s}, v{s}")
        self.e(f"v_lshlrev_b32 v{d}, 16, v{d}")
    def xsum4(self, v, t):
        self.e(f"v_mov_b32 v{t}, v{v}")
        self.e("s_nop 1")
        self.e(f"v_permlane32_swap_b32 v{v}, v{t}")
        self.e("s_nop 1")
        self.e(f"v_add_f32 v{v}, v{v}, v{t}")
        self.e(f"v_mov_b32 v{t}, v{v}")
        self.e("s_nop 1")
        self.e(f"v_permlane16_swap_b32 v{v}, v{t}")
        self.e("s_nop 1")
        self.e(f"v_add_f32 v{v}, v{v}, v{t}")
    def ln_consts(self, vsum, vsq, negm, c1, c2, sd, t):
        self.e(f"v_mul_f32 v{vsum}, {hex(f2u(1.0/576))}, v{vsum}")
        self.e(f"v_mul_f32 v{vsq}, {hex(f2u(1.0/576))}, v{vsq}")
        self.e(f"v_fma_f32 v{vsq}, -v{vsum}, v{vsum}, v{vsq}")
        self.e(f"v_max_f32 v{vsq}, 0, v{vsq}")
        self.bf16r(negm, vsum)
        self.e(f"v_xor_b32 v{negm}, 0x80000000, v{negm}")
        self.bf16r(vsq, vsq)
        self.e(f"v_add_f32 v{vsq}, {hex(f2u(1e-5))}, v{vsq}")
        self.bf16r(vsq, vsq)
        self.e(f"v_sqrt_f32 v{vsq}, v{vsq}")
        self.e("s_nop 0")
        self.bf16r(sd, vsq)
        self.e(f"v_rcp_f32 v{t}, v{sd}")
        self.e("s_nop 0")
        self.e(f"v_mul_f32 v{c1}, {hex(f2u(-GK))}, v{t}")
        self.e(f"v_mul_f32 v{c2}, v{t}, v{t}")
        self.e(f"v_mul_f32 v{c2}, v{c2}, v{c1}")
        self.e(f"v_mul_f32 v{c2}, {hex(f2u(0.044715))}, v{c2}")
    def gelu_seq(self, a, t, c1, c2, sd):
        return [f"v_mul_f32 v{t}, v{a}, v{a}",
                f"v_fma_f32 v{t}, v{t}, v{c2}, v{c1}",
                f"v_mul_f32 v{t}, v{a}, v{t}",
                f"v_exp_f32 v{t}, v{t}",
                f"v_fma_f32 v{t}, v{t}, v{sd}, v{sd}",
                f"v_rcp_f32 v{t}, v{t}",
                f"v_mul_f32 v{t}, v{a}, v{t}"]

def interleave(seqs):
    out = []
    n = max(len(s) for s in seqs)
    for i in range(n):
        for s in seqs:
            if i < len(s): out.append(s[i])
    return out
def vr(b, n=4): return f"v[{b}:{b+n-1}]"

def small_gemm(a, which, done):
    a.reset()
    sW, sX, sWS, sGW, sQ = 4, 6, 8, 10, 12
    rW, rA, rO, rQ, rS = 16, 20, 24, 28, 32
    sTM, sTN, sWV = 36, 37, 38
    a.ldarg(sW, "w1" if which == 1 else "w2")
    a.ldarg(sQ, "q")
    a.ldarg(sWS, "ws")
    if which == 1: a.ldarg(sGW, "gw")
    a.e(f"""
    s_and_b32 s40, s3, 7
    s_lshr_b32 s41, s3, 3
    s_cmp_ge_u32 s41, 9
    s_cselect_b32 s42, 1, 0
    s_lshl_b32 s{sTM}, s40, 1
    s_add_u32 s{sTM}, s{sTM}, s42
    s_mul_i32 s42, s42, 9
    s_sub_u32 s{sTN}, s41, s42
    v_lshrrev_b32 v1, 6, v0
    v_and_b32 v0, 63, v0
    v_readfirstlane_b32 s{sWV}, v1
    v_and_b32 v2, 15, v0
    v_lshrrev_b32 v3, 4, v0
    """)
    vXA, vWD, vTR, vSTA = 4, 5, 6, 10
    XF = 16
    ACC = 160
    ST = 192
    CS = 200
    WF = 216
    SF = 248
    SQ = 12
    a.e("s_waitcnt lgkmcnt(0)")
    a.srd(rW, sW, D*D*2)
    a.srd(rQ, sQ, SZ_ACT)
    if which == 1:
        a.srd_off(rO, sWS, OFF_HS, SZ_ACT)
        a.srd_off(rS, sWS, OFF_G, S*4)
        a.srd(rA, sGW, D*2)
    else:
        a.srd_off(rA, sWS, OFF_HS, SZ_ACT)
        a.srd_off(rO, sWS, OFF_X1, SZ_ACT)
        a.srd_off(rS, sWS, OFF_ST, 9*S*8)
    a.e(f"""
    s_lshl_b32 s43, s{sTM}, 7
    s_lshl_b32 s44, s{sWV}, 5
    s_add_u32 s43, s43, s44
    """)
    if which == 1:
        a.e(f"s_lshl_b32 s45, s{sWV}, 10")
        a.e(f"v_lshl_add_u32 v14, v0, 4, s45")
        a.vmem(f"buffer_load_dwordx4 {vr(WF)}, v14, s[{rA}:{rA+3}], 0 offen", "gw")
        a.e(f"v_add_u32 v{vXA}, s43, v2")
        a.e(f"v_mul_u32_u24 v{vXA}, 1152, v{vXA}")
        a.e(f"v_lshl_add_u32 v{vXA}, v3, 4, v{vXA}")
        a.e(f"s_mov_b32 s46, {16*1152}")
    else:
        a.e(f"s_lshr_b32 s45, s43, 4")
        a.e(f"s_mul_i32 s45, s45, 18432")
        a.e(f"v_lshl_add_u32 v{vXA}, v0, 4, s45")
    a.e(f"""
    v_lshrrev_b32 v14, 3, v0
    s_lshl_b32 s45, s{sWV}, 3
    v_add_u32 v14, s45, v14
    v_and_b32 v15, 6, v14
    v_and_b32 v{vWD}, 7, v0
    v_xor_b32 v{vWD}, v{vWD}, v15
    v_lshlrev_b32 v{vWD}, 4, v{vWD}
    """)
    if which == 1:
        a.e(f"""
        v_and_b32 v15, 12, v14
        v_lshlrev_b32 v15, 1, v15
        v_and_b32 v11, 3, v14
        v_add_u32 v15, v15, v11
        v_lshrrev_b32 v11, 4, v14
        v_lshl_add_u32 v14, v11, 2, v15
        """)
    a.e(f"""
    v_mul_u32_u24 v14, 1152, v14
    v_add_u32 v{vWD}, v{vWD}, v14
    s_lshl_b32 s45, s{sTN}, 7
    v_add_u32 v{vWD}, s45, v{vWD}
    s_lshl_b32 s47, s{sWV}, 10
    s_mov_b32 s48, 0
    s_mov_b32 s49, 0
    """)
    for ks in range(18):
        a.e(f"s_add_u32 m0, s47, {ks*4096}")
        if which == 2:
            a.e(f"s_add_u32 s50, s49, 18432")
        else:
            a.e("s_nop 0")
        a.vmem(f"buffer_load_dwordx4 v{vWD}, s[{rW}:{rW+3}], s48 offen lds", f"k{ks}")
        a.e(f"s_add_u32 s48, s48, {32*1152}")
        if which == 1:
            a.vmem(f"buffer_load_dwordx4 {vr(XF+ks*4)}, v{vXA}, s[{rQ}:{rQ+3}], 0 offen offset:{ks*64}", f"k{ks}")
            a.vmem(f"buffer_load_dwordx4 {vr(XF+72+ks*4)}, v{vXA}, s[{rQ}:{rQ+3}], s46 offen offset:{ks*64}", f"k{ks}")
        else:
            a.vmem(f"buffer_load_dwordx4 {vr(XF+ks*4)}, v{vXA}, s[{rA}:{rA+3}], s49 offen", f"k{ks}")
            a.vmem(f"buffer_load_dwordx4 {vr(XF+72+ks*4)}, v{vXA}, s[{rA}:{rA+3}], s50 offen", f"k{ks}")
            a.e(f"s_add_u32 s49, s49, 1024")
    a.e(f"""
    v_lshrrev_b32 v14, 2, v0
    v_lshlrev_b32 v14, 7, v14
    v_and_b32 v15, 3, v0
    v_lshl_add_u32 v14, v15, 3, v14
    v_bfe_u32 v15, v0, 3, 2
    """)
    if which == 1:
        a.e(f"v_xor_b32 v15, s{sWV}, v15")
    for i in range(4):
        a.e(f"v_xor_b32 v11, {i}, v15")
        a.e(f"v_lshl_add_u32 v{vTR+i}, v11, 5, v14")
    LST = 73728
    if which == 1:
        a.e(f"""
        v_and_b32 v11, 3, v0
        v_mov_b32 v{vSTA}, {LST+2304}
        v_mov_b32 v14, {LST+1152}
        v_cmp_eq_u32 vcc, 0, v11
        s_nop 1
        v_cndmask_b32 v{vSTA}, v{vSTA}, v14, vcc
        v_mov_b32 v14, {LST}
        v_cmp_eq_u32 vcc, 1, v11
        s_nop 1
        v_cndmask_b32 v{vSTA}, v{vSTA}, v14, vcc
        v_lshl_add_u32 v{vSTA}, v3, 4, v{vSTA}
        v_mov_b32 v{SF+4}, 0x3f803f80
        v_mov_b32 v{SF+5}, 0x3f803f80
        v_mov_b32 v{SF+6}, 0x3f803f80
        v_mov_b32 v{SF+7}, 0x3f803f80
        v_mov_b32 v{SF}, 0
        v_mov_b32 v{SF+1}, 0
        v_mov_b32 v{SF+2}, 0
        v_mov_b32 v{SF+3}, 0
        v_mov_b32 v{SQ}, 0
        v_mov_b32 v{SQ+1}, 0
        """)
        a.e(f"s_lshl_b32 s45, s{sWV}, 10")
        a.e(f"v_lshl_add_u32 v14, v0, 4, s45")
        a.e(f"v_cmp_gt_u32 vcc, 1152, v14")
        a.e(f"v_add_u32 v14, {LST}, v14")
        a.wait_vm("gw")
        a.e("s_and_saveexec_b64 s[52:53], vcc")
        a.e(f"ds_write_b128 v14, {vr(WF)}")
        a.e(f"ds_write_b128 v14, {vr(SF+4)} offset:1152")
        a.e(f"ds_write_b128 v14, {vr(SF)} offset:2304")
        a.e("s_mov_b64 exec, s[52:53]")
        a.e("s_waitcnt lgkmcnt(0)")
    else:
        a.e(f"v_add_u32 v14, s43, v2")
        a.e(f"v_mul_u32_u24 v14, 1152, v14")
        a.e(f"v_lshl_add_u32 v14, v3, 3, v14")
        a.e(f"s_lshl_b32 s45, s{sTN}, 7")
        a.e(f"s_add_u32 s46, s45, {16*1152}")
        for tt in range(2):
            for i in range(4):
                a.vmem(f"buffer_load_dwordx2 {vr(192+(tt*4+i)*2, 2)}, v14, s[{rQ}:{rQ+3}], s{45+tt} offen offset:{i*32}", "xres")
    a.stamp(0)
    groups = [[0], [1, 2], [3, 4, 5], [6, 7, 8], [9, 10, 11], [12, 13, 14], [15, 16, 17]]
    def wread(ks):
        buf = WF + (ks & 1) * 16
        off = ks * 4096
        if ks == 16:
            for i in range(4): a.e(f"v_add_u32 v{vTR+i}, 0x10000, v{vTR+i}")
        if ks >= 16: off -= 65536
        for i in range(4):
            a.lds(f"ds_read_b64_tr_b16 {vr(buf+i*4, 2)}, v{vTR+i} offset:{off}", f"w{ks}")
            a.lds(f"ds_read_b64_tr_b16 {vr(buf+i*4+2, 2)}, v{vTR+i} offset:{off+2048}", f"w{ks}")
    for gi, g in enumerate(groups):
        a.wait_vm(f"k{g[-1]}")
        a.e("s_barrier")
        a.stamp(1+gi)
        wread(g[0])
        for j, ks in enumerate(g):
            if which == 1:
                a.lds(f"ds_read_b128 {vr(SF)}, v{vSTA} offset:{ks*64}", f"w{ks}")
            if j + 1 < len(g):
                a.wait_lg(f"w{ks}")
                wread(g[j+1])
            else:
                a.wait_lg(f"w{ks}")
            buf = WF + (ks & 1) * 16
            for i in range(4):
                for tt in range(2):
                    acc = vr(ACC + tt*16 + i*4)
                    a.mfma(acc, vr(buf+i*4), vr(XF+tt*72+ks*4), "0" if ks == 0 else None)
            if which == 1:
                a.mfma(vr(CS), vr(buf), vr(SF+4), "0" if ks == 0 else None)
                for tt in range(2):
                    a.mfma(vr(ST+tt*4), vr(SF), vr(XF+tt*72+ks*4), "0" if ks == 0 else None)
                for tt in range(2):
                    for r in range(4):
                        x = XF+tt*72+ks*4+r
                        a.e(f"v_dot2c_f32_bf16 v{SQ+tt}, v{x}, v{x}")
    a.e("s_nop 7")
    a.e("s_nop 1")
    a.stamp(8)
    if which == 1:
        a.e(f"s_lshl_b32 s45, s{sWV}, 6")
        a.e(f"v_lshl_add_u32 v14, v3, 4, s45")
        a.e(f"v_add_u32 v14, {LST+3456}, v14")
        a.e(f"v_cmp_eq_u32 vcc, 0, v2")
        a.e("s_and_saveexec_b64 s[52:53], vcc")
        a.e(f"ds_write_b128 v14, {vr(CS)}")
        a.e("s_mov_b64 exec, s[52:53]")
        a.e("s_waitcnt lgkmcnt(0)")
        a.e("s_barrier")
        for i in range(4):
            a.e(f"s_xor_b32 s45, s{sWV}, {i}")
            a.e(f"s_lshl_b32 s45, s45, 6")
            a.e(f"v_lshl_add_u32 v14, v3, 4, s45")
            a.e(f"v_add_u32 v14, {LST+3456}, v14")
            a.e(f"ds_read_b128 {vr(CS+i*4)}, v14")
        C = 16
        for tt in range(2):
            a.xsum4(SQ+tt, 14)
            a.ln_consts(ST+tt*4, SQ+tt, C+tt*4, C+tt*4+1, C+tt*4+2, C+tt*4+3, 14)
        lab = a.newlabel("nog")
        a.e(f"s_cmp_lg_u32 s{sTN}, 0")
        a.e(f"s_cbranch_scc1 {lab}")
        for tt in range(2):
            g = 24 + tt
            a.bf16r(g, ST+tt*4+1)
            a.e(f"v_mul_f32 v{g}, {hex(f2u(-1.4426950408889634))}, v{g}")
            a.e(f"v_exp_f32 v{g}, v{g}")
            a.e("s_nop 0")
            a.e(f"v_add_f32 v{g}, 1.0, v{g}")
            a.e(f"v_rcp_f32 v{g}, v{g}")
            a.e("s_nop 0")
            a.bf16r(g, g)
        a.e(f"v_add_u32 v14, s43, v2")
        a.e(f"v_lshlrev_b32 v14, 2, v14")
        a.e(f"v_cmp_eq_u32 vcc, 0, v3")
        a.e("s_and_saveexec_b64 s[52:53], vcc")
        a.e(f"buffer_store_dword v24, v14, s[{rS}:{rS+3}], 0 offen")
        a.e(f"buffer_store_dword v25, v14, s[{rS}:{rS+3}], 0 offen offset:64")
        a.e("s_mov_b64 exec, s[52:53]")
        a.label(lab)
        a.e("s_waitcnt lgkmcnt(0)")
        T = 32
        for i in range(4):
            a.e(f"""
            s_xor_b32 s45, s{sWV}, {i}
            s_lshl_b32 s46, s{sTN}, 2
            s_add_u32 s45, s45, s46
            s_mul_i32 s46, s45, 57
            s_lshr_b32 s46, s46, 9
            s_lshr_b32 s47, s46, 1
            s_add_u32 s47, s47, 1
            s_sub_u32 s48, 0, s47
            s_bitcmp1_b32 s46, 0
            s_cselect_b32 s47, s48, s47
            s_add_u32 s47, s47, s43
            s_lshr_b32 s48, s45, 1
            s_lshl_b32 s48, s48, 10
            s_and_b32 s49, s45, 1
            s_lshl_b32 s49, s49, 3
            s_add_u32 s48, s48, s49
            """)
            seqs = []
            for tt in range(2):
                for r in range(4):
                    acc = ACC + tt*16 + i*4 + r
                    seqs.append([f"v_fma_f32 v{acc}, v{C+tt*4}, v{CS+i*4+r}, v{acc}"] +
                                a.gelu_seq(acc, T+tt*4+r, C+tt*4+1, C+tt*4+2, C+tt*4+3))
            for x in interleave(seqs): a.e(x)
            for tt in range(2):
                P = 64 + (i*2+tt)*2
                a.e(f"v_cvt_pk_bf16_f32 v{P}, v{T+tt*4}, v{T+tt*4+1}")
                a.e(f"v_cvt_pk_bf16_f32 v{P+1}, v{T+tt*4+2}, v{T+tt*4+3}")
                ad = 96 + i*2 + tt
                a.e(f"v_add_u32 v{ad}, s47, v2")
                if tt: a.e(f"v_add_u32 v{ad}, 16, v{ad}")
                a.e(f"v_cmp_gt_u32 vcc, {S}, v{ad}")
                a.e(f"v_and_b32 v{ad}, {S-1}, v{ad}")
                a.e(f"v_lshrrev_b32 v14, 4, v{ad}")
                a.e(f"v_mul_u32_u24 v14, 18432, v14")
                a.e(f"v_cndmask_b32 v{P}, 0, v{P}, vcc")
                a.e(f"v_cndmask_b32 v{P+1}, 0, v{P+1}, vcc")
                a.e(f"v_and_b32 v{ad}, 15, v{ad}")
                a.e(f"v_lshl_add_u32 v{ad}, v3, 4, v{ad}")
                a.e(f"v_lshl_add_u32 v{ad}, v{ad}, 4, v14")
                a.e(f"buffer_store_dwordx2 {vr(P,2)}, v{ad}, s[{rO}:{rO+3}], s48 offen")
    else:
        a.wait_vm0()
        T = 16
        a.e(f"s_lshr_b32 s45, s43, 4")
        a.e(f"s_mul_i32 s45, s45, 18432")
        a.e(f"s_lshl_b32 s46, s{sTN}, 11")
        a.e(f"s_add_u32 s45, s45, s46")
        a.e(f"s_add_u32 s46, s45, 18432")
        a.e(f"v_lshlrev_b32 v15, 4, v0")
        for tt in range(2):
            sm, sq = 12, 13
            for i in range(4):
                acc = ACC + tt*16 + i*4
                xr = 192 + (tt*4+i)*2
                t = T + i*8
                P = 64 + tt*8 + i*2
                a.e(f"v_cvt_pk_bf16_f32 v{t}, v{acc}, v{acc+1}")
                a.e(f"v_cvt_pk_bf16_f32 v{t+1}, v{acc+2}, v{acc+3}")
                a.e(f"v_lshlrev_b32 v{acc}, 16, v{t}")
                a.e(f"v_and_b32 v{acc+1}, 0xffff0000, v{t}")
                a.e(f"v_lshlrev_b32 v{acc+2}, 16, v{t+1}")
                a.e(f"v_and_b32 v{acc+3}, 0xffff0000, v{t+1}")
                a.e(f"v_lshlrev_b32 v{t+2}, 16, v{xr}")
                a.e(f"v_and_b32 v{t+3}, 0xffff0000, v{xr}")
                a.e(f"v_lshlrev_b32 v{t+4}, 16, v{xr+1}")
                a.e(f"v_and_b32 v{t+5}, 0xffff0000, v{xr+1}")
                for r in range(4):
                    a.e(f"v_add_f32 v{acc+r}, v{acc+r}, v{t+2+r}")
                a.e(f"v_cvt_pk_bf16_f32 v{P}, v{acc}, v{acc+1}")
                a.e(f"v_cvt_pk_bf16_f32 v{P+1}, v{acc+2}, v{acc+3}")
                a.e(f"v_lshlrev_b32 v{acc}, 16, v{P}")
                a.e(f"v_and_b32 v{acc+1}, 0xffff0000, v{P}")
                a.e(f"v_lshlrev_b32 v{acc+2}, 16, v{P+1}")
                a.e(f"v_and_b32 v{acc+3}, 0xffff0000, v{P+1}")
                for r in range(4):
                    if i == 0 and r == 0:
                        a.e(f"v_mov_b32 v{sm}, v{acc}")
                        a.e(f"v_mul_f32 v{sq}, v{acc}, v{acc}")
                    else:
                        a.e(f"v_add_f32 v{sm}, v{sm}, v{acc+r}")
                        a.e(f"v_fma_f32 v{sq}, v{acc+r}, v{acc+r}, v{sq}")
            P = 64 + tt*8
            a.e(f"buffer_store_dwordx4 {vr(P)}, v15, s[{rO}:{rO+3}], s{45+tt} offen")
            a.e(f"buffer_store_dwordx4 {vr(P+4)}, v15, s[{rO}:{rO+3}], s{45+tt} offen offset:1024")
            a.xsum4(sm, 14)
            a.xsum4(sq, 14)
            a.e(f"v_add_u32 v14, s43, v2")
            a.e(f"v_lshlrev_b32 v14, 3, v14")
            a.e(f"s_lshl_b32 s47, s{sTN}, 14")
            a.e(f"v_mov_b32 v{80+tt*2}, v{sm}")
            a.e(f"v_mov_b32 v{81+tt*2}, v{sq}")
            a.e(f"v_cmp_eq_u32 vcc, 0, v3")
            a.e("s_and_saveexec_b64 s[52:53], vcc")
            a.e(f"buffer_store_dwordx2 {vr(80+tt*2,2)}, v14, s[{rS}:{rS+3}], s47 offen offset:{tt*128}")
            a.e("s_mov_b64 exec, s[52:53]")
    a.e(f"s_branch {done}")

def prep(a, done):
    a.reset()
    rK, rV, rSH, rU = 16, 20, 24, 28
    a.ldarg(4, "k"); a.ldarg(6, "v"); a.ldarg(8, "shk"); a.ldarg(10, "ws")
    a.e(f"""
    v_lshrrev_b32 v1, 6, v0
    v_and_b32 v0, 63, v0
    v_readfirstlane_b32 s38, v1
    v_and_b32 v2, 15, v0
    v_lshrrev_b32 v3, 4, v0
    s_lshl_b32 s36, s3, 2
    s_add_u32 s36, s36, s38
    s_mul_i32 s37, s36, 7282
    s_lshr_b32 s37, s37, 16
    s_mul_i32 s39, s37, 9
    s_sub_u32 s39, s36, s39
    """)
    a.e("s_waitcnt lgkmcnt(0)")
    a.srd(rK, 4, SZ_ACT); a.srd(rV, 6, SZ_ACT); a.srd(rSH, 8, D*8)
    a.srd_off(rU, 10, OFF_UR, D*8192)
    a.e(f"""
    s_lshl_b32 s40, s37, 5
    v_lshl_add_u32 v4, v3, 3, s40
    s_lshl_b32 s41, s39, 6
    v_lshl_add_u32 v5, v2, 2, s41
    v_mul_u32_u24 v6, 1152, v4
    v_lshl_add_u32 v7, v5, 1, v6
    v_subrev_u32 v6, 4608, v7
    v_add_u32 v8, 4608, v7
    v_lshlrev_b32 v9, 3, v5
    """)
    KR, VR, WR = 16, 40, 60
    a.vmem(f"buffer_load_dwordx4 {vr(WR)}, v9, s[{rSH}:{rSH+3}], 0 offen")
    a.vmem(f"buffer_load_dwordx4 {vr(WR+4)}, v9, s[{rSH}:{rSH+3}], 0 offen offset:16")
    for r in range(12):
        a.vmem(f"buffer_load_dwordx2 {vr(KR+2*r,2)}, v{6+r//4}, s[{rK}:{rK+3}], 0 offen offset:{(r%4)*1152}")
    for r in range(9):
        rr = r + 3
        a.vmem(f"buffer_load_dwordx2 {vr(VR+2*r,2)}, v{6+rr//4}, s[{rV}:{rV+3}], 0 offen offset:{(rr%4)*1152}")
    a.e(f"""
    v_lshlrev_b32 v10, 13, v5
    v_sub_u32 v11, 2040, v4
    v_lshl_add_u32 v10, v11, 1, v10
    s_mov_b32 s42, 0
    """)
    a.wait_vm0()
    KF, WFl, U, VF, P = 72, 84, 88, 100, 112
    for ch in range(4):
        un = (lambda d, s: f"v_lshlrev_b32 v{d}, 16, v{s}") if ch % 2 == 0 else (lambda d, s: f"v_and_b32 v{d}, 0xffff0000, v{s}")
        for r in range(12): a.e(un(KF+r, KR+2*r+ch//2))
        for r in range(9): a.e(un(VF+r, VR+2*r+ch//2))
        a.e(f"v_lshlrev_b32 v{WFl}, 16, v{WR+2*ch}")
        a.e(f"v_and_b32 v{WFl+1}, 0xffff0000, v{WR+2*ch}")
        a.e(f"v_lshlrev_b32 v{WFl+2}, 16, v{WR+2*ch+1}")
        a.e(f"v_and_b32 v{WFl+3}, 0xffff0000, v{WR+2*ch+1}")
        for e in range(9): a.e(f"v_mul_f32 v{U+e}, v{KF+e}, v{WFl+3}")
        for j in (2, 1, 0):
            for e in range(9): a.e(f"v_fma_f32 v{U+e}, v{KF+e+3-j}, v{WFl+j}, v{U+e}")
        for e in range(9): a.e(f"v_mul_f32 v{U+e}, v{U+e}, v{VF+e}")
        PP = P + ch*8
        for m in range(4):
            a.e(f"v_cvt_pk_bf16_f32 v{PP+m}, v{U+8-2*m}, v{U+7-2*m}")
            a.e(f"v_cvt_pk_bf16_f32 v{PP+4+m}, v{U+7-2*m}, v{U+6-2*m}")
        a.e(f"buffer_store_dwordx4 {vr(PP)}, v10, s[{rU}:{rU+3}], s42 offen")
        a.e(f"s_add_u32 s42, s42, 4096")
        a.e(f"buffer_store_dwordx4 {vr(PP+4)}, v10, s[{rU}:{rU+3}], s42 offen")
        a.e(f"s_add_u32 s42, s42, 4096")
    a.e(f"s_branch {done}")

def colsum3(a, done):
    a.reset()
    rW, rC = 16, 20
    a.ldarg(4, "w3"); a.ldarg(10, "ws")
    a.e(f"""
    v_lshrrev_b32 v1, 3, v0
    v_and_b32 v2, 7, v0
    v_mul_u32_u24 v3, 9216, v1
    v_lshl_add_u32 v3, v2, 4, v3
    s_lshl_b32 s36, s3, 7
    s_waitcnt lgkmcnt(0)
    """)
    a.srd(rW, 4, D*F*2)
    a.srd_off(rC, 10, OFF_CS3, F*4)
    for i in range(18):
        a.vmem(f"buffer_load_dwordx4 {vr(16+4*i)}, v3, s[{rW}:{rW+3}], s36 offen", i)
        a.e(f"s_add_u32 s36, s36, {32*9216}")
    for i in range(18):
        a.wait_vm(i)
        for r in range(4):
            x = 16+4*i+r
            if i == 0:
                a.e(f"v_lshlrev_b32 v{8+2*r}, 16, v{x}")
                a.e(f"v_and_b32 v{9+2*r}, 0xffff0000, v{x}")
            else:
                a.e(f"v_lshlrev_b32 v4, 16, v{x}")
                a.e(f"v_and_b32 v5, 0xffff0000, v{x}")
                a.e(f"v_add_f32 v{8+2*r}, v{8+2*r}, v4")
                a.e(f"v_add_f32 v{9+2*r}, v{9+2*r}, v5")
    a.e(f"""
    v_lshlrev_b32 v4, 5, v0
    ds_write_b128 v4, v[8:11]
    ds_write_b128 v4, v[12:15] offset:16
    s_waitcnt lgkmcnt(0)
    s_barrier
    v_cmp_gt_u32 vcc, 64, v0
    s_and_saveexec_b64 s[52:53], vcc
    s_cbranch_execz {done}
    v_lshlrev_b32 v4, 2, v0
    """)
    for half in range(2):
        for r in range(16):
            a.e(f"ds_read_b32 v{16+r}, v4 offset:{(half*16+r)*256}")
            if r == 7: a.e("s_waitcnt lgkmcnt(0)")
        a.e("s_waitcnt lgkmcnt(0)")
        for r in range(16):
            if half == 0 and r == 0: a.e("v_mov_b32 v8, v16")
            else: a.e(f"v_add_f32 v8, v8, v{16+r}")
    a.e(f"s_lshl_b32 s36, s3, 8")
    a.e(f"buffer_store_dword v8, v4, s[{rC}:{rC+3}], s36 offen")
    a.e(f"s_branch {done}")

def conv(a, done):
    a.reset()
    rU, rH, rZ = 16, 20, 24
    RS = 13120
    a.ldarg(4, "ssmk"); a.ldarg(6, "ssmD"); a.ldarg(10, "ws")
    a.e(f"""
    v_lshrrev_b32 v1, 6, v0
    v_and_b32 v0, 63, v0
    v_readfirstlane_b32 s38, v1
    v_and_b32 v2, 15, v0
    v_lshrrev_b32 v3, 4, v0
    s_lshl_b32 s36, s3, 2
    s_add_u32 s36, s36, s38
    s_mul_i32 s39, s38, {RS}
    s_lshl_b32 s40, s3, 3
    s_waitcnt lgkmcnt(0)
    s_load_dwordx2 s[44:45], s[6:7], s40
    """)
    a.srd(rH, 4, D*S*2)
    a.srd_off(rU, 10, OFF_UR, D*8192)
    a.srd_off(rZ, 10, OFF_Z4, SZ_ACT)
    a.e(f"""
    v_lshlrev_b32 v4, 4, v0
    s_lshl_b32 s41, s36, 13
    s_lshl_b32 s42, s36, 12
    s_mov_b32 m0, s39
    s_add_u32 s43, s41, 4096
    """)
    for i in range(4):
        a.vmem(f"buffer_load_dwordx4 v4, s[{rU}:{rU+3}], s41 offen offset:{i*1024} lds")
    a.e(f"s_add_u32 m0, s39, 4160")
    a.e("s_nop 0")
    for i in range(4):
        a.vmem(f"buffer_load_dwordx4 v4, s[{rU}:{rU+3}], s43 offen offset:{i*1024} lds")
    a.e(f"s_add_u32 m0, s39, {8320+512}")
    a.e("s_nop 0")
    for i in range(4):
        a.vmem(f"buffer_load_dwordx4 v4, s[{rH}:{rH+3}], s42 offen offset:{i*1024} lds")
    a.e(f"""
    v_mov_b32 v8, 0
    v_mov_b32 v9, 0
    v_mov_b32 v10, 0
    v_mov_b32 v11, 0
    v_add_u32 v5, s39, v4
    v_cmp_gt_u32 vcc, 36, v0
    s_and_saveexec_b64 s[52:53], vcc
    ds_write_b128 v5, v[8:11] offset:8256
    v_cmp_gt_u32 vcc, 4, v0
    s_and_b64 exec, exec, vcc
    ds_write_b128 v5, v[8:11] offset:4096
    s_mov_b64 exec, s[52:53]
    """)
    a.e(f"""
    v_or_b32 v5, 1, v2
    v_sub_u32 v5, 15, v5
    v_lshl_add_u32 v5, v3, 3, v5
    v_lshlrev_b32 v5, 1, v5
    v_and_b32 v6, 1, v2
    v_xor_b32 v6, 1, v6
    v_mul_u32_u24 v6, 4160, v6
    v_add3_u32 v12, v5, v6, s39
    v_add_u32 v13, 1024, v12
    v_add_u32 v14, 2048, v12
    v_add_u32 v15, 3072, v12
    v_lshlrev_b32 v5, 5, v2
    v_lshl_add_u32 v5, v3, 4, v5
    v_add_u32 v7, s39, v5
    v_add_u32 v7, {8320+32}, v7
    """)
    a.stamp(0)
    a.e("s_waitcnt vmcnt(0) lgkmcnt(0)"); a.reset()
    a.stamp(1)
    ACC = 16; FB = 48
    def loads(rho):
        buf = FB + (rho & 1) * 64
        out = []
        for x in range(8):
            p = 8*x + rho
            boff = 64*(63-p)
            base = 12 + boff // 1024
            o = (boff % 1024) // 4
            out.append((f"ds_read2_b32 {vr(buf+x*4,2)}, v{base} offset0:{o} offset1:{o+1}", f"r{rho}"))
            out.append((f"ds_read2_b32 {vr(buf+x*4+2,2)}, v{base} offset0:{o+2} offset1:{o+3}", f"r{rho}"))
            n = 8*x - rho
            out.append((f"ds_read_b128 {vr(buf+32+x*4)}, v7 offset:{64*(n+7)}", f"r{rho}"))
        return out
    for (s, t) in loads(0):
        a.lds(s, t)
        if len(a.lg) >= 12: a.wait_lg0()
    for rho in range(8):
        a.wait_lg0()
        buf = FB + (rho & 1) * 64
        nxt = loads(rho+1) if rho < 7 else []
        k = 0; cnt = 0
        for c in range(8):
            for x in range(c+1):
                first = (rho == 0 and x == 0)
                a.mfma(vr(ACC+c*4), vr(buf+x*4), vr(buf+32+(c-x)*4), "0" if first else None)
                cnt += 1
                if k < len(nxt) and cnt <= 30:
                    a.lds(*nxt[k]); k += 1
                    if k in (12,):
                        pass
        assert k == len(nxt)
    a.stamp(2)
    a.e(f"""
    v_lshlrev_b32 v5, 5, v2
    v_lshl_add_u32 v5, v3, 3, v5
    v_sub_u32 v6, 504, v5
    v_add_u32 v6, s39, v6
    v_add_u32 v5, s39, v5
    s_lshr_b32 s46, s38, 1
    s_cmp_eq_u32 s46, 0
    s_cselect_b32 s44, s44, s45
    s_bitcmp1_b32 s38, 0
    s_cselect_b32 s46, 0, 16
    s_lshl_b32 s44, s44, s46
    s_and_b32 s44, s44, 0xffff0000
    """)
    U = 48
    for c in range(8):
        a.e(f"ds_read_b64 {vr(U+2*c,2)}, v6 offset:{512*(7-c)}")
    a.e("s_waitcnt lgkmcnt(0)")
    a.e("s_nop 7")
    for c in range(8):
        acc = ACC + c*4; t = 64 + c*8
        a.e(f"v_and_b32 v{t}, 0xffff0000, v{U+2*c+1}")
        a.e(f"v_lshlrev_b32 v{t+1}, 16, v{U+2*c+1}")
        a.e(f"v_and_b32 v{t+2}, 0xffff0000, v{U+2*c}")
        a.e(f"v_lshlrev_b32 v{t+3}, 16, v{U+2*c}")
        for r in range(4): a.e(f"v_mul_f32 v{t+r}, s44, v{t+r}")
        a.e(f"v_cvt_pk_bf16_f32 v{t+4}, v{t}, v{t+1}")
        a.e(f"v_cvt_pk_bf16_f32 v{t+5}, v{t+2}, v{t+3}")
        a.e(f"v_cvt_pk_bf16_f32 v{t+6}, v{acc}, v{acc+1}")
        a.e(f"v_cvt_pk_bf16_f32 v{t+7}, v{acc+2}, v{acc+3}")
        a.e(f"v_lshlrev_b32 v{t}, 16, v{t+4}")
        a.e(f"v_and_b32 v{t+1}, 0xffff0000, v{t+4}")
        a.e(f"v_lshlrev_b32 v{t+2}, 16, v{t+5}")
        a.e(f"v_and_b32 v{t+3}, 0xffff0000, v{t+5}")
        a.e(f"v_lshlrev_b32 v{acc}, 16, v{t+6}")
        a.e(f"v_and_b32 v{acc+1}, 0xffff0000, v{t+6}")
        a.e(f"v_lshlrev_b32 v{acc+2}, 16, v{t+7}")
        a.e(f"v_and_b32 v{acc+3}, 0xffff0000, v{t+7}")
        for r in range(4): a.e(f"v_add_f32 v{t+r}, v{t+r}, v{acc+r}")
        a.e(f"v_cvt_pk_bf16_f32 v{t+4}, v{t}, v{t+1}")
        a.e(f"v_cvt_pk_bf16_f32 v{t+5}, v{t+2}, v{t+3}")
        a.e(f"ds_write_b64 v5, {vr(t+4,2)} offset:{8320+512*c}")
    a.e("s_waitcnt lgkmcnt(0)")
    a.e("s_barrier")
    a.e(f"""
    v_bfe_u32 v5, v0, 2, 2
    v_mul_u32_u24 v5, {RS}, v5
    v_lshl_add_u32 v5, v3, 5, v5
    v_and_b32 v6, 3, v0
    v_lshl_add_u32 v5, v6, 3, v5
    s_lshl_b32 s46, s38, 10
    v_add_u32 v5, s46, v5
    v_lshlrev_b32 v6, 3, v0
    s_lshl_b32 s47, s3, 14
    s_lshl_b32 s46, s38, 12
    s_add_u32 s47, s47, s46
    """)
    for j in range(8):
        a.e(f"ds_read_b64_tr_b16 {vr(16+2*j,2)}, v5 offset:{8320+128*j}")
    a.e("s_waitcnt lgkmcnt(0)")
    for j in range(8):
        a.e(f"buffer_store_dwordx2 {vr(16+2*j,2)}, v6, s[{rZ}:{rZ+3}], s47 offen offset:{512*j}")
    a.e(f"s_branch {done}")

def k3(a):
    name = "k3_kernel"
    a.launch(name, (256,1,1), 512, 156672)
    a.begin(name)
    a.reset()
    done = "k3_done"
    rW, rX, rH, rS, rC = 16, 20, 24, 28, 32
    a.e(f"s_cmp_ge_u32 s2, 256")
    a.e(f"s_cbranch_scc1 {done}_x")
    a.pstart()
    a.ldarg(4, "w3"); a.ldarg(10, "ws")
    a.e(f"""
    s_and_b32 s40, s2, 7
    s_lshr_b32 s41, s2, 3
    s_and_b32 s36, s40, 1
    s_lshl_b32 s36, s36, 2
    s_and_b32 s42, s41, 3
    s_add_u32 s36, s36, s42
    s_lshr_b32 s37, s40, 1
    s_lshl_b32 s37, s37, 3
    s_lshr_b32 s42, s41, 2
    s_add_u32 s37, s37, s42
    v_lshrrev_b32 v1, 6, v0
    v_mov_b32 v4, v0
    v_readfirstlane_b32 s38, v1
    v_and_b32 v0, 63, v0
    v_and_b32 v2, 15, v0
    v_lshrrev_b32 v3, 4, v0
    """)
    a.e(f"""
    v_mul_u32_u24 v5, 3641, v4
    v_lshrrev_b32 v5, 16, v5
    v_mul_u32_u24 v6, 18, v5
    v_sub_u32 v6, v4, v6
    v_mul_u32_u24 v5, 9216, v5
    v_lshl_add_u32 v5, v6, 4, v5
    s_mul_i32 s42, s37, 288
    v_add_u32 v5, s42, v5
    s_lshl_b32 s43, s36, 4
    s_lshl_b32 s44, s38, 1
    s_add_u32 s43, s43, s44
    s_mul_i32 s45, s43, 18432
    v_lshl_add_u32 v7, v0, 4, s45
    s_lshl_b32 s47, s38, 10
    s_waitcnt lgkmcnt(0)
    """)
    a.srd(rW, 4, D*F*2)
    a.srd_off(rX, 10, OFF_X1, SZ_ACT)
    a.srd_off(rH, 10, OFF_H2, S*F*2)
    a.srd_off(rS, 10, OFF_ST, 9*S*8)
    a.srd_off(rC, 10, OFF_CS3, F*4)
    XF, ACC, WF = 16, 160, 232
    def adv():
        a.e(f"""
        v_add_u32 v6, 8, v6
        v_add_u32 v5, {28*9216+128}, v5
        v_cmp_le_u32 vcc, 18, v6
        v_subrev_u32 v8, 18, v6
        v_add_u32 v9, {9216-288}, v5
        v_cndmask_b32 v6, v6, v8, vcc
        v_cndmask_b32 v5, v5, v9, vcc
        """)
    a.e("s_mov_b32 s49, 0")
    a.e("s_mov_b32 s50, 18432")
    m = 0
    for ks in range(18):
        need = (9*ks + 8) // 8
        while m <= min(need, 18):
            a.e(f"s_add_u32 m0, s47, {m*8192}")
            a.e("s_nop 0")
            a.vmem(f"buffer_load_dwordx4 v5, s[{rW}:{rW+3}], 0 offen lds", f"k{ks}")
            adv()
            m += 1
        a.vmem(f"buffer_load_dwordx4 {vr(XF+ks*8)}, v7, s[{rX}:{rX+3}], s49 offen", f"k{ks}")
        a.vmem(f"buffer_load_dwordx4 {vr(XF+ks*8+4)}, v7, s[{rX}:{rX+3}], s50 offen", f"k{ks}")
        a.e("s_add_u32 s49, s49, 1024")
        a.e("s_add_u32 s50, s50, 1024")
    assert m == 19
    a.e(f"""
    v_lshrrev_b32 v10, 2, v0
    v_mul_u32_u24 v10, 288, v10
    v_and_b32 v11, 3, v0
    v_lshl_add_u32 v10, v11, 3, v10
    v_add_u32 v11, {7*9216}, v10
    v_add_u32 v12, {14*9216}, v10
    """)
    a.stamp(0)
    groups = [[0], [1], [2, 3], [4, 5, 6], [7, 8, 9, 10], [11, 12, 13, 14, 15], [16, 17]]
    seq = []
    fi = 0
    def wread(ks, t, slot):
        sl = ks if ks < 17 else 0
        base = 10 + sl // 7
        off = (sl % 7) * 9216 + t * 32
        a.lds(f"ds_read_b64_tr_b16 {vr(WF+slot*4,2)}, v{base} offset:{off}", (ks, t))
        a.lds(f"ds_read_b64_tr_b16 {vr(WF+slot*4+2,2)}, v{base} offset:{off+16*288}", (ks, t))
    for gi, g in enumerate(groups):
        if g[0] == 16:
            a.wait_vm0()
        else:
            a.wait_vm(f"k{g[-1]}")
        a.e("s_barrier")
        a.stamp(1+gi)
        if gi == 2:
            a.e(f"s_sub_u32 s51, s47, 1024")
            a.e(f"s_cmp_eq_u32 s38, 0")
            a.e(f"s_cselect_b32 m0, {152*1024}, s51")
            a.e("s_nop 0")
            a.vmem(f"buffer_load_dwordx4 v5, s[{rW}:{rW+3}], 0 offen lds", "late")
            adv()
            lab = a.newlabel("k3s")
            a.e(f"s_cmp_ge_u32 s38, 2")
            a.e(f"s_cbranch_scc1 {lab}")
            a.e(f"s_add_u32 m0, s47, {7*1024}")
            a.e("s_nop 0")
            a.e(f"buffer_load_dwordx4 v5, s[{rW}:{rW+3}], 0 offen lds")
            a.label(lab)
        items = [(ks, t) for ks in g for t in range(9)]
        PD = 5
        for j in range(min(PD, len(items))):
            wread(items[j][0], items[j][1], (fi + j) % 6)
        for j, (ks, t) in enumerate(items):
            a.wait_lg((ks, t))
            slot = (fi + j) % 6
            for tt in range(2):
                a.mfma(vr(ACC+(t*2+tt)*4), vr(WF+slot*4), vr(XF+ks*8+tt*4), "0" if ks == 0 else None)
            if j + PD < len(items):
                wread(items[j+PD][0], items[j+PD][1], (fi + j + PD) % 6)
        fi += len(items)
        if g[-1] == 6:
            a.e(f"s_lshl_b32 s45, s43, 4")
            a.e(f"v_add_u32 v13, s45, v2")
            a.e(f"v_lshlrev_b32 v13, 3, v13")
            a.e("s_mov_b32 s46, 0")
            for n in range(9):
                for tt in range(2):
                    a.vmem(f"buffer_load_dwordx2 {vr(16+(tt*9+n)*2,2)}, v13, s[{rS}:{rS+3}], s46 offen offset:{tt*128}", "st")
                a.e(f"s_add_u32 s46, s46, 16384")
        if g[-1] == 10:
            a.e(f"s_mul_i32 s46, s37, 576")
            a.e(f"v_lshlrev_b32 v13, 4, v3")
            for t in range(9):
                a.vmem(f"buffer_load_dwordx4 {vr(52+t*4)}, v13, s[{rC}:{rC+3}], s46 offen offset:{t*64}", "cs")
    a.stamp(8)
    C = 88
    for tt in range(2):
        b = 16 + tt*18
        for n in range(1, 9):
            a.e(f"v_add_f32 v{b}, v{b}, v{b+2*n}")
            a.e(f"v_add_f32 v{b+1}, v{b+1}, v{b+2*n+1}")
        a.ln_consts(b, b+1, C+tt*4, C+tt*4+1, C+tt*4+2, C+tt*4+3, 14)
    a.e(f"""
    s_mul_i32 s45, s43, 147456
    s_lshr_b32 s46, s37, 3
    s_mul_i32 s46, s46, {36*1024}
    s_add_u32 s45, s45, s46
    s_and_b32 s46, s37, 7
    s_lshl_b32 s48, s46, 12
    s_add_u32 s48, s48, s45
    s_add_u32 s49, s48, 147456
    s_lshr_b32 s50, s46, 1
    s_add_u32 s50, s50, 32
    s_lshl_b32 s50, s50, 10
    s_and_b32 s46, s46, 1
    s_lshl_b32 s46, s46, 3
    s_add_u32 s50, s50, s46
    s_add_u32 s50, s50, s45
    s_add_u32 s51, s50, 147456
    v_lshlrev_b32 v13, 4, v0
    """)
    a.stamp(9)
    T = 96; P = 112
    for t in range(9):
        seqs = []
        for tt in range(2):
            for r in range(4):
                acc = ACC + (t*2+tt)*4 + r
                seqs.append([f"v_fma_f32 v{acc}, v{C+tt*4}, v{52+t*4+r}, v{acc}"] +
                            a.gelu_seq(acc, T+tt*4+r, C+tt*4+1, C+tt*4+2, C+tt*4+3))
        for x in interleave(seqs): a.e(x)
        for tt in range(2):
            pp = P + ((t >> 1) & 1)*8 + tt*4 + (t & 1)*2
            a.e(f"v_cvt_pk_bf16_f32 v{pp}, v{T+tt*4}, v{T+tt*4+1}")
            a.e(f"v_cvt_pk_bf16_f32 v{pp+1}, v{T+tt*4+2}, v{T+tt*4+3}")
        for tt in range(2):
            pb = P + ((t >> 1) & 1)*8 + tt*4
            if t & 1:
                a.e(f"buffer_store_dwordx4 {vr(pb)}, v13, s[{rH}:{rH+3}], s{48+tt} offen offset:{(t>>1)*1024}")
            elif t == 8:
                a.e(f"buffer_store_dwordx2 {vr(pb,2)}, v13, s[{rH}:{rH+3}], s{50+tt} offen")
    a.label(done)
    a.pend(int(name[1]))
    a.label(done + "_x")
    a.e("s_endpgm")
    a.end(name, 256, 102)

def k4(a):
    name = "k4_kernel"
    a.launch(name, (256,1,1), 256, 147456)
    a.begin(name)
    a.reset()
    done = "k4_done"
    rW, rH, rP = 16, 20, 24
    a.e(f"s_cmp_ge_u32 s2, 256")
    a.e(f"s_cbranch_scc1 {done}_x")
    a.pstart()
    a.ldarg(4, "w4"); a.ldarg(10, "ws")
    a.e(f"""
    s_and_b32 s40, s2, 7
    s_lshr_b32 s41, s2, 3
    s_lshr_b32 s39, s40, 1
    s_and_b32 s36, s40, 1
    s_lshl_b32 s36, s36, 3
    s_lshr_b32 s42, s41, 2
    s_add_u32 s36, s36, s42
    s_and_b32 s37, s41, 3
    v_lshrrev_b32 v1, 6, v0
    v_and_b32 v0, 63, v0
    v_readfirstlane_b32 s38, v1
    """)
    VO, VL = 8, 17
    for i in range(9):
        a.e(f"""
        v_add_u32 v1, {64*i}, v0
        v_mul_u32_u24 v2, 3641, v1
        v_lshrrev_b32 v2, 16, v2
        v_mul_u32_u24 v3, 18, v2
        v_sub_u32 v3, v1, v3
        v_mul_u32_u24 v1, 1152, v2
        v_lshl_add_u32 v{VO+i}, v3, 4, v1
        v_lshrrev_b32 v2, 4, v2
        v_mul_u32_u24 v2, {128*1152}, v2
        v_add_u32 v{VL+i}, v{VO+i}, v2
        """)
    a.e(f"""
    s_mul_i32 s44, s39, {1152*1152}
    s_mul_i32 s45, s37, 288
    s_add_u32 s44, s44, s45
    s_mul_i32 s45, s38, {32*1152}
    s_add_u32 s46, s44, s45
    s_mul_i32 s45, s38, {288*1152}
    s_add_u32 s47, s44, s45
    s_add_u32 s47, s47, {128*1152}
    s_mul_i32 s48, s38, 9216
    s_lshl_b32 s43, s36, 3
    s_lshl_b32 s45, s38, 1
    s_add_u32 s43, s43, s45
    s_mul_i32 s49, s43, 147456
    s_mul_i32 s45, s39, {36*1024}
    s_add_u32 s49, s49, s45
    s_add_u32 s50, s49, 147456
    v_lshlrev_b32 v1, 4, v0
    v_lshrrev_b32 v4, 2, v0
    v_mul_u32_u24 v4, 288, v4
    v_and_b32 v2, 3, v0
    v_lshl_add_u32 v4, v2, 3, v4
    v_add_u32 v5, {36864}, v4
    v_add_u32 v6, {2*36864}, v4
    v_add_u32 v7, {3*36864}, v4
    s_waitcnt lgkmcnt(0)
    """)
    a.srd(rW, 4, F*D*2)
    a.srd_off(rH, 10, OFF_H2, S*F*2)
    a.srd_off(rP, 10, OFF_PART, 4*S*D*4)
    XF, WF = 28, 124
    NWF = 8
    ar = lambda b: f"a[{b}:{b+3}]"
    def dma(s, i):
        slot = s % 4
        a.e(f"s_add_u32 m0, s48, {slot*36864 + i*1024}")
        a.e("s_nop 0")
        if s < 8:
            a.vmem(f"buffer_load_dwordx4 v{VO+i}, s[{rW}:{rW+3}], s46 offen lds", f"w{s}")
            if i == 8: a.e(f"s_add_u32 s46, s46, {144*1152}")
        else:
            a.vmem(f"buffer_load_dwordx4 v{VL+i}, s[{rW}:{rW+3}], s47 offen lds", f"w{s}")
    def xld(s, j, tt):
        b = XF + (s % 3)*32 + j*8 + tt*4
        a.vmem(f"buffer_load_dwordx4 {vr(b)}, v1, s[{rH}:{rH+3}], s{49+tt} offen offset:{j*1024}", f"x{s}")
        if j == 3: a.e(f"s_add_u32 s{49+tt}, s{49+tt}, 4096")
    for s in range(4):
        for i in range(9): dma(s, i)
        if s < 3:
            for j in range(4):
                for tt in range(2): xld(s, j, tt)
    items = [(s, j, t) for s in range(9) for j in range(4) for t in range(9)]
    def wread(n):
        s, j, t = items[n]
        base = 4 + s % 4
        off = j*9216 + t*32
        r = WF + (n % NWF)*4
        a.lds(f"ds_read_b64_tr_b16 {vr(r,2)}, v{base} offset:{off}", n)
        a.lds(f"ds_read_b64_tr_b16 {vr(r+2,2)}, v{base} offset:{off+16*288}", n)
    PD = 7
    a.stamp(0)
    a.wait_vm("w0")
    a.e("s_barrier")
    a.stamp(1)
    for n in range(PD): wread(n)
    for n, (s, j, t) in enumerate(items):
        if j == 0 and t == 0:
            a.wait_vm_if(f"x{s}")
        a.wait_lg(n)
        r = WF + (n % NWF)*4
        for tt in range(2):
            a.mfma(ar((t*2+tt)*4), vr(r), vr(XF+(s%3)*32+j*8+tt*4), "0" if (s == 0 and j == 0) else None)
        nn = n + PD
        if nn < len(items):
            if items[nn][1] == 0 and items[nn][2] == 0:
                a.wait_vm_if(f"w{s+1}")
                a.e("s_barrier")
                a.stamp(2+s)
            wread(nn)
        idx = j*9 + t
        if s >= 2 and s + 2 <= 8 and idx < 27 and idx % 3 == 0:
            dma(s+2, idx // 3)
        if s >= 1 and s + 2 <= 8 and idx < 24 and idx % 3 == 1:
            q = idx // 3
            xld(s+2, q >> 1, q & 1)
    a.e("s_nop 7")
    a.e("s_nop 1")
    a.stamp(10)
    a.e(f"""
    s_lshl_b32 s44, s39, 7
    s_add_u32 s44, s44, s43
    s_mul_i32 s44, s44, 36
    s_mul_i32 s45, s37, 9
    s_add_u32 s44, s44, s45
    s_lshl_b32 s44, s44, 10
    s_add_u32 s45, s44, {36*1024}
    """)
    for t in range(9):
        for tt in range(2):
            a.e(f"buffer_store_dwordx4 {ar((t*2+tt)*4)}, v1, s[{rP}:{rP+3}], s{44+tt} offen offset:{(t%4)*1024}")
        if t % 4 == 3:
            a.e("s_add_u32 s44, s44, 4096")
            a.e("s_add_u32 s45, s45, 4096")
    a.label(done)
    a.pend(int(name[1]))
    a.label(done + "_x")
    a.e("s_endpgm")
    a.end(name, 160+72, 102, accum=160)

def k5(a):
    name = "k5_kernel"
    a.launch(name, (288,1,1), 256, 0)
    a.begin(name)
    a.reset()
    done = "k5_done"
    rP, rX, rQ, rZ, rG, rO = 16, 20, 24, 28, 32, 44
    a.e(f"s_cmp_ge_u32 s2, 288")
    a.e(f"s_cbranch_scc1 {done}_x")
    a.pstart()
    a.ldarg(4, "q"); a.ldarg(6, "out"); a.ldarg(10, "ws")
    a.e(f"""
    s_mul_i32 s36, s2, 7282
    s_lshr_b32 s36, s36, 16
    s_mul_i32 s37, s36, 9
    s_sub_u32 s37, s2, s37
    v_lshrrev_b32 v1, 6, v0
    v_and_b32 v0, 63, v0
    v_readfirstlane_b32 s38, v1
    v_and_b32 v2, 15, v0
    v_lshrrev_b32 v3, 4, v0
    s_lshl_b32 s39, s36, 2
    s_add_u32 s39, s39, s38
    v_lshlrev_b32 v1, 4, v0
    s_waitcnt lgkmcnt(0)
    """)
    a.srd_off(rP, 10, OFF_PART, 4*S*D*4)
    a.srd_off(rX, 10, OFF_X1, SZ_ACT)
    a.srd_off(rZ, 10, OFF_Z4, SZ_ACT)
    a.srd_off(rG, 10, OFF_G, S*4)
    a.srd(rQ, 4, SZ_ACT)
    a.srd(rO, 6, SZ_ACT)
    a.e(f"""
    s_mul_i32 s40, s39, 36
    s_lshl_b32 s41, s37, 2
    s_add_u32 s40, s40, s41
    s_lshl_b32 s40, s40, 10
    s_mul_i32 s41, s39, 18432
    s_lshl_b32 s42, s37, 11
    s_add_u32 s41, s41, s42
    s_lshl_b32 s42, s39, 4
    v_add_u32 v4, s42, v2
    v_lshlrev_b32 v5, 2, v4
    v_mul_u32_u24 v6, 1152, v4
    v_lshl_add_u32 v6, v3, 3, v6
    s_lshl_b32 s42, s37, 7
    v_lshlrev_b32 v7, 3, v4
    v_lshl_add_u32 v7, v3, 14, v7
    s_lshl_b32 s43, s37, 18
    """)
    PA, X1, Q, Z, G = 16, 80, 88, 96, 104
    a.vmem(f"buffer_load_dword v{G}, v5, s[{rG}:{rG+3}], 0 offen")
    for i in range(2):
        a.vmem(f"buffer_load_dwordx4 {vr(X1+4*i)}, v1, s[{rX}:{rX+3}], s41 offen offset:{i*1024}")
    for i in range(4):
        a.vmem(f"buffer_load_dwordx2 {vr(Q+2*i,2)}, v6, s[{rQ}:{rQ+3}], s42 offen offset:{i*32}")
        a.vmem(f"buffer_load_dwordx2 {vr(Z+2*i,2)}, v7, s[{rZ}:{rZ+3}], s43 offen")
        a.e(f"s_add_u32 s43, s43, 65536")
    for sp in range(4):
        for i in range(4):
            a.vmem(f"buffer_load_dwordx4 {vr(PA+(sp*4+i)*4)}, v1, s[{rP}:{rP+3}], s40 offen offset:{i*1024}")
        a.e(f"s_add_u32 s40, s40, {128*36*1024}")
    a.e("s_waitcnt vmcnt(16)")
    a.e(f"v_sub_f32 v{G+1}, 1.0, v{G}")
    a.bf16r(G+1, G+1)
    T = 108
    GA = 124
    def unpack(d, s):
        a.e(f"v_lshlrev_b32 v{d}, 16, v{s}")
        a.e(f"v_and_b32 v{d+1}, 0xffff0000, v{s}")
        a.e(f"v_lshlrev_b32 v{d+2}, 16, v{s+1}")
        a.e(f"v_and_b32 v{d+3}, 0xffff0000, v{s+1}")
    def rnd4(d, t):
        a.e(f"v_cvt_pk_bf16_f32 v{t}, v{d}, v{d+1}")
        a.e(f"v_cvt_pk_bf16_f32 v{t+1}, v{d+2}, v{d+3}")
        unpack(d, t)
    for i in range(4):
        g = GA + i*4
        unpack(g, Q+2*i)
        unpack(T, Z+2*i)
        for r in range(4): a.e(f"v_mul_f32 v{g+r}, v{g+r}, v{T+r}")
        rnd4(g, T+4)
        for r in range(4): a.e(f"v_mul_f32 v{g+r}, v{G}, v{g+r}")
        rnd4(g, T+4)
    a.e("s_waitcnt vmcnt(0)")
    for i in range(4):
        p = PA + i*4
        for r in range(4):
            a.e(f"v_add_f32 v{p+r}, v{p+r}, v{p+16+r}")
            a.e(f"v_add_f32 v{p+32+r}, v{p+32+r}, v{p+48+r}")
        for r in range(4):
            a.e(f"v_add_f32 v{p+r}, v{p+r}, v{p+32+r}")
        rnd4(p, T+4)
        unpack(T, X1+2*i)
        for r in range(4): a.e(f"v_add_f32 v{p+r}, v{p+r}, v{T+r}")
        rnd4(p, T+4)
        for r in range(4): a.e(f"v_mul_f32 v{p+r}, v{G+1}, v{p+r}")
        rnd4(p, T+4)
        for r in range(4): a.e(f"v_add_f32 v{p+r}, v{p+r}, v{GA+i*4+r}")
        o = 140 + 2*i
        a.e(f"v_cvt_pk_bf16_f32 v{o}, v{p}, v{p+1}")
        a.e(f"v_cvt_pk_bf16_f32 v{o+1}, v{p+2}, v{p+3}")
        a.e(f"buffer_store_dwordx2 {vr(o,2)}, v6, s[{rO}:{rO+3}], s42 offen offset:{i*32}")
    a.label(done)
    a.pend(int(name[1]))
    a.label(done + "_x")
    a.e("s_endpgm")
    a.end(name, 148, 102)

def k1(a):
    name = "k1_kernel"
    a.launch(name, (360,1,1), 256, 77824)
    a.begin(name)
    done = "k1_done"
    a.e(f"""
    s_cmp_ge_u32 s2, 360
    s_cbranch_scc1 {done}_x
    """)
    a.pstart()
    a.e(f"""
    s_cmp_ge_u32 s2, 288
    s_cbranch_scc1 k1_cs
    s_cmp_ge_u32 s2, 144
    s_cbranch_scc1 k1_prep
    s_mov_b32 s3, s2
    """)
    small_gemm(a, 1, done)
    a.label("k1_prep")
    a.e("s_sub_u32 s3, s2, 144")
    prep(a, done)
    a.label("k1_cs")
    a.e("s_sub_u32 s3, s2, 288")
    colsum3(a, done)
    a.label(done)
    a.pend(int(name[1]))
    a.label(done + "_x")
    a.e("s_endpgm")
    a.end(name, 256, 102)

def k2(a):
    name = "k2_kernel"
    a.launch(name, (288,1,1), 256, 73728)
    a.begin(name)
    done = "k2_done"
    a.e(f"""
    s_cmp_ge_u32 s2, 288
    s_cbranch_scc1 {done}_x
    """)
    a.pstart()
    a.e(f"""
    s_cmp_ge_u32 s2, 144
    s_cbranch_scc1 k2_conv
    s_mov_b32 s3, s2
    """)
    small_gemm(a, 2, done)
    a.label("k2_conv")
    a.e("s_sub_u32 s3, s2, 144")
    conv(a, done)
    a.label(done)
    a.pend(int(name[1]))
    a.label(done + "_x")
    a.e("s_endpgm")
    a.end(name, 256, 102)

HEADER = """; gated_mix__ssm_conv_h3__mixer_s_mlp__prompt : generated by dev/gen.py (hand-written generator)
; kernarg: q,k,v,shift_k,ssm_k,ssm_D,B_x,w1,w2,w3,w4,gate_w,out,debug,ws (8 bytes each)"""

def build(path, prof=False):
    a = K()
    a.prof = prof
    k1(a); k2(a); k3(a); k4(a); k5(a)
    open(path, "w").write(a.text(HEADER))

if __name__ == "__main__":
    build("gated_mix__ssm_conv_h3__mixer_s_mlp__prompt.s")
    build("prof.s", prof=True)
```

```python
from gen import *

OFF_FLAG = 0x2000000
FL = dict(FG=5, FS=2)
def flag_bytes(): return 384 << FL['FG']
RING = 73728
SLOT = 12288
NSLOT = 7
L_CS = RING + NSLOT*SLOT
L_CONST = L_CS + 3072

def k34(a, nt_w="", nogelu=False, nored=False, mapB=True, xtile0=False, LA=6, trace=False, spf=1, st0=1, st1=0, dr0=5, dr1=5, p0=15, l0=21, bo=4, hv=1, ldp=1, cw=3, sc="sc1", free_at=12, p1=9, a2=24, spn=27, pro=6, skip=(40, 41, 52, 53, 63, 67), d2=40, lspf=0, lx2=0, g0w=42, g1n=17, ext=False, wb=False, front=False, mono=False, psl=4, xa=0, pipe=False, lc=False, zt=30, tp=False, fg=0, fn=8, serp=False, ep=False, cw7=0, pad=True, early=False, pre2=2, osc=''):
    name = "k3_kernel"
    done = "k3_done"
    hs = "sc1" if mono else ""
    if mono:
        from kf import OFF_FF, FFB, F_X1, F_CS, F_Z, poll_bytes, poll_pipe, KNAME
        name = KNAME
        a.label("k3_entry")
        a.e("s_waitcnt lgkmcnt(0)")
        a.e("v_mbcnt_lo_u32_b32 v0, -1, 0")
        a.e("v_mbcnt_hi_u32_b32 v0, -1, v0")
        a.e("s_lshl_b32 s14, s101, 6")
        a.e("v_add_u32 v0, s14, v0")
        a.stamp(11)
    else:
        a.launch(name, (256,1,1), 1024, L_CONST + 1024)
        a.begin(name)
        a.e(f"s_cmp_ge_u32 s2, 256")
        a.e(f"s_cbranch_scc1 {done}_x")
        a.pstart()
    a.reset()
    rW3, rW4, rX, rS, rP, rF, rQ, rZ, rG, rO = 16, 20, 24, 28, 32, 36, 40, 44, 48, 52
    sSP, sTL, sG, sI, sBASE, sRET, sBUD = 56, 57, 58, 59, 60, 61, 3
    a.ldarg(4, "w3"); a.ldarg(6, "w4"); a.ldarg(8, "q"); a.ldarg(10, "ws"); a.ldarg(12, "out")
    if mapB == 2:
        a.e(f"""
        s_and_b32 s14, s2, 1
        s_lshl_b32 s14, s14, 2
        s_bfe_u32 s15, s2, 0x20003
        s_add_u32 s{sSP}, s14, s15
        s_bfe_u32 s14, s2, 0x20001
        s_lshl_b32 s14, s14, 3
        s_lshr_b32 s15, s2, 5
        s_add_u32 s{sTL}, s14, s15
        """)
    elif mapB:
        a.e(f"""
        s_and_b32 s14, s2, 3
        s_lshl_b32 s14, s14, 1
        s_bfe_u32 s15, s2, 0x10003
        s_add_u32 s{sSP}, s14, s15
        s_bfe_u32 s14, s2, 0x10002
        s_lshl_b32 s14, s14, 4
        s_lshr_b32 s15, s2, 4
        s_add_u32 s{sTL}, s14, s15
        """)
    else:
        a.e(f"""
        s_and_b32 s{sSP}, s2, 7
        s_lshr_b32 s{sTL}, s2, 3
        """)
    if xtile0: a.e(f"s_mov_b32 s{sTL}, 0")
    a.e(f"""
    v_lshrrev_b32 v1, 6, v0
    v_and_b32 v0, 63, v0
    v_readfirstlane_b32 s14, v1
    s_mov_b32 s{sBUD}, 0x4000
    s_lshr_b32 s15, s14, 2
    s_lshl_b32 s15, s15, 1
    s_lshr_b32 s{sG}, {0xc9 if early else 0x4b}, s15
    s_and_b32 s{sG}, s{sG}, 3
    s_and_b32 s{sI}, s14, 3
    v_and_b32 v9, 15, v0
    v_lshrrev_b32 v10, 4, v0
    v_lshlrev_b32 v7, 4, v0
    v_mov_b32 v2, 0
    v_mov_b32 v3, 0
    v_mov_b32 v11, 0
    v_mov_b32 v12, 0
    v_mov_b32 v13, 0
    s_cmp_lg_u32 s{sG}, 3
    s_cbranch_scc1 k3_comp
    """)
    cut = len(a.lines)
    a.label("k3_comp")
    def late_srds():
        a.srd_off(rP, 10, OFF_PART, 32*3*6*4*8*1024)
        a.srd_off(rF, 10, OFF_FLAG, flag_bytes())
        a.srd(rQ, 8, SZ_ACT)
        a.srd_off(rZ, 10, OFF_Z4, SZ_ACT)
        a.srd_off(rG, 10, OFF_G, S*4)
        a.srd(rO, 12, SZ_ACT)
    FB = [16, 44]; ACC = 72
    VA = [120, 121, 122, 123, 124, 125, 126]
    a.e(f"""
    v_add_u32 v8, 0x10000, v7
    v_lshrrev_b32 v5, 2, v0
    v_mul_u32_u24 v5, 384, v5
    v_and_b32 v4, 3, v0
    v_lshl_add_u32 v5, v4, 3, v5
    v_add_u32 v5, {RING}, v5
    v_bfe_u32 v4, v0, 3, 2
    v_xor_b32 v4, s{sI}, v4
    v_lshl_add_u32 v1, v4, 5, v5
    s_mov_b32 s{sRET}, 0
    s_waitcnt lgkmcnt(0)
    """)
    a.srd_off(rS, 10, OFF_ST, (18 if front else 9)*S*8)
    ST = 72
    if mono and not early:
        a.srd_off(rW4, 10, OFF_FF, FFB)
        a.e(f"""
        s_cmp_lg_u32 s101, 12
        s_cbranch_scc1 m_poll_ok
        v_min_u32 v13, 17, v0
        v_cmp_lt_u32 vcc, 8, v13
        s_lshr_b32 s14, s{sTL}, 1
        s_lshl_b32 s14, s14, 8
        s_add_u32 s14, s14, {F_X1}
        s_lshl_b32 s15, s{sSP}, 8
        s_add_u32 s15, s15, {F_CS - 36}
        v_mov_b32 v14, s14
        v_mov_b32 v15, s15
        v_cndmask_b32 v14, v14, v15, vcc
        v_lshl_add_u32 v13, v13, 2, v14
        """)
        if pipe: poll_pipe(a, 13, rW4, sBUD, 112, "m_poll", psl)
        else: poll_bytes(a, 13, rW4, sBUD, 14, "m_poll", psl)
        a.e("s_barrier")
        a.stamp(12)
    def stats_loads():
        a.e(f"""
    s_cmp_lg_u32 s{sG}, 2
    s_cbranch_scc1 k3_ns
    s_lshl_b32 s14, s{sTL}, 2
    s_add_u32 s14, s14, s{sI}
    s_lshl_b32 s14, s14, 4
    v_add_u32 v13, s14, v9
    v_lshlrev_b32 v13, 3, v13
    v_lshl_add_u32 v13, v10, 14, v13
    s_mov_b32 s14, 0x10000
    s_mov_b32 s15, 0x20000
    buffer_load_dwordx2 {vr(ST,2)}, v13, s[{rS}:{rS+3}], 0 offen {hs}
    buffer_load_dwordx2 {vr(ST+2,2)}, v13, s[{rS}:{rS+3}], s14 offen {hs}
    buffer_load_dwordx2 {vr(ST+4,2)}, v13, s[{rS}:{rS+3}], s15 offen {hs}
    s_mov_b32 s14, 0x30000
    s_mov_b32 s15, 0x40000
    buffer_load_dwordx2 {vr(ST+6,2)}, v13, s[{rS}:{rS+3}], s14 offen {hs}
    buffer_load_dwordx2 {vr(ST+8,2)}, v13, s[{rS}:{rS+3}], s15 offen {hs}
    k3_ns:
        """)
    if not early: stats_loads()
    a.srd_off(rX, 10, OFF_X1, SZ_ACT)
    late_srds()
    a.e(f"""
    s_mul_i32 s14, s{sSP}, {576*1152}
    s_mul_i32 s15, s{sTL}, {18*1152}
    s_add_u32 s14, s14, s15
    s_lshl_b32 s15, s{sI}, 6
    s_add_u32 s14, s14, s15
    s_add_u32 s16, s6, s14
    s_addc_u32 s17, s7, 0
    """)
    grp = sorted(range(81), key=lambda g: min(((g*256 + k*64) % 1152) // 384 for k in range(4)))
    def spf_ticks(t_end, per, lst):
        while T[0] < t_end:
            for _ in range(per):
                if lst: a.e(f"s_load_dword s2, s[16:17], {lst.pop(0)*256}")
            bar()
    T = [0]
    LIM = [10**9]
    def bar(n=1):
        n = min(n, LIM[0] - T[0])
        for _ in range(n): a.e("s_barrier")
        T[0] += n
    def upto(t):
        assert t >= T[0], (t, T[0])
        bar(t - T[0])
    def set_va(base):
        for j in range(7):
            a.e(f"v_add_u32 v{VA[j]}, {((base + j) % NSLOT)*SLOT}, v1")
    a.e(f"s_cmp_eq_u32 s{sG}, 1")
    a.e(f"s_cbranch_scc1 k3_g1")
    a.e(f"s_cmp_eq_u32 s{sG}, 0")
    a.e(f"s_cbranch_scc1 k3_g0")
    T[0] = -2
    a.reset()
    set_va(36)
    if early:
        upto(-1)
        stats_loads()
    upto(cw + (3 if early else 0))
    a.e("s_waitcnt vmcnt(0)")
    for n in (1, 2, 3, 4):
        a.e(f"v_add_f32 v{ST}, v{ST}, v{ST+2*n}")
        a.e(f"v_add_f32 v{ST+1}, v{ST+1}, v{ST+2*n+1}")
    a.xsum4(ST, 14); a.xsum4(ST+1, 14)
    bar()
    a.ln_consts(ST, ST+1, 84, 85, 86, 87, 14)
    a.e(f"s_lshl_b32 s14, s{sI}, 8")
    a.e(f"s_add_u32 s14, s14, {L_CONST}")
    a.e(f"v_lshl_add_u32 v13, v9, 4, s14")
    bar()
    a.e("s_mov_b64 exec, 0xffff")
    a.e(f"ds_write_b128 v13, v[84:87]")
    a.e("s_mov_b64 exec, -1")
    bar(2)
    a.e("s_waitcnt lgkmcnt(0)")
    l2 = grp[spn:] if spf else []
    spf_ticks(26, spf, l2)
    assert not l2, len(l2)
    upto(35)
    a.e("s_branch k3_body")
    a.label("k3_g1")
    T[0] = -2
    set_va(18)
    upto(0)
    l1 = grp[:spn] if spf else []
    spf_ticks(9, spf, l1)
    assert not l1
    upto(17)
    a.e("s_branch k3_body")
    a.label("k3_g0")
    set_va(0)
    a.e("s_barrier")
    a.label("k3_body")
    a.reset()
    def reads(k):
        fb = FB[k & 1]
        out = []
        va = VA[k % 7]
        for tt in range(4):
            off = k*4096 + tt*1024
            base = 7 if off < 65536 else 8
            out.append((f"ds_read_b128 {vr(fb+tt*4)}, v{base} offset:{off & 65535}", (k, "x")))
        for j in range(3):
            out.append((f"ds_read_b64_tr_b16 {vr(fb+16+j*4,2)}, v{va} offset:{128*j}", (k, j)))
            out.append((f"ds_read_b64_tr_b16 {vr(fb+16+j*4+2,2)}, v{va} offset:{128*j+6144}", (k, j)))
        return out
    a.e("s_setprio 2")
    for (s, t) in reads(0): a.lds(s, t)
    a.e("s_barrier")
    def tick(k, barrier=True):
        fb = FB[k & 1]
        rd = reads(k+1) if k < 17 else []
        ri = 0
        for m in range(12):
            j, tt = m // 4, m % 4
            if tt == 0: a.wait_lg_if((k, j))
            if serp and j == 1: tt = 3 - tt
            a.mfma(vr(ACC+(j*4+tt)*4), vr(fb+16+j*4), vr(fb+tt*4), "0" if k == 0 else None)
            if ri < len(rd):
                a.lds(*rd[ri]); ri += 1
            if k == free_at and m == 10 and barrier: a.e(f"s_cmp_eq_u32 s{sRET}, 2")
        if k > free_at:
            a.e(f"s_cbranch_scc1 k3_nb{k}")
        a.e("s_barrier")
        if k > free_at: a.label(f"k3_nb{k}")
    for k in range(18): tick(k)
    a.e("s_setprio 0")
    a.e(f"s_cmp_ge_u32 s{sRET}, 1")
    a.e(f"s_cbranch_scc1 k3_red")
    CO, CSR, TMP = 16, 32, 44
    a.e(f"""
    s_mul_i32 s14, s{sG}, 12
    s_add_u32 s14, s14, s{sI}
    s_lshl_b32 s62, s14, 6
    s_add_u32 s62, s62, {L_CS}
    v_lshl_add_u32 v4, v10, 4, s62
    v_lshlrev_b32 v3, 4, v9
    v_add_u32 v3, {L_CONST}, v3
    """)
    for tt in range(4): a.e(f"ds_read_b128 {vr(CO+tt*4)}, v3 offset:{tt*256}")
    for jj in range(3): a.e(f"ds_read_b128 {vr(CSR+jj*4)}, v4 offset:{jj*256}")
    a.e(f"""
    s_mul_i32 s14, s{sG}, 6
    s_add_u32 s15, s14, s{sI}
    s_lshl_b32 s15, s15, 12
    v_add_u32 v5, s15, v7
    s_lshr_b32 s15, s{sI}, 1
    s_add_u32 s15, s15, s14
    s_add_u32 s15, s15, 4
    s_lshl_b32 s15, s15, 12
    s_and_b32 s14, s{sI}, 1
    s_lshl_b32 s14, s14, 3
    s_add_u32 s15, s15, s14
    v_add_u32 v6, s15, v7
    s_mov_b32 s{sRET}, 1
    s_cmp_eq_u32 s{sG}, 1
    s_cbranch_scc1 k3_ge1
    s_cmp_eq_u32 s{sG}, 2
    s_cbranch_scc1 k3_ge2
    """)
    def gelu_ins(jjs):
        out = []
        for jj in jjs:
            for half in range(2):
                seqs = []
                for r in range(8):
                    tt = half*2 + r // 4
                    x, t = ACC + jj*16 + half*8 + r, TMP + r
                    c = CO + tt*4
                    seqs.append([f"v_fma_f32 v{x}, v{c}, v{CSR+jj*4+r%4}, v{x}"] + a.gelu_seq(x, t, c+1, c+2, c+3))
                ins = interleave(seqs)
                if nogelu: ins = ins[:8]
                out += [(x, 2 if ("exp" in x or "rcp" in x) else 1) for x in ins]
                for q in range(2):
                    b = ACC + half*8 + q*4 + (0, 2, 32)[jj]; t = TMP + q*4
                    out.append((f"v_cvt_pk_bf16_f32 v{b}, v{t}, v{t+1}", 1))
                    out.append((f"v_cvt_pk_bf16_f32 v{b+1}, v{t+2}, v{t+3}", 1))
        return out
    def paced(ins, nticks):
        tot = sum(c for _, c in ins); acc_c = 0; tk = 0
        for (x, c) in ins:
            a.e(x); acc_c += c
            if tk < nticks and acc_c >= tot*(tk+1)/nticks - 1e-9:
                tk += 1
                if tk == nticks: a.e("s_setprio 3")
                bar()
        assert tk == nticks
    def hw01():
        for tt in range(4): a.e(f"ds_write_b128 v5, {vr(ACC+tt*4)} offset:{tt*1024}")
    def hw2():
        for tt in range(4): a.e(f"ds_write_b64 v6, {vr(ACC+32+tt*4,2)} offset:{tt*1024}")
    def fin(g, tend):
        if hv >= 1 and g < 2 and T[0] + 1 < tend:
            bar()
        a.e("s_setprio 0")
        set_va(54 + 18*g)
        a.e("s_waitcnt lgkmcnt(0)")
        upto(tend)
        a.e("s_branch k3_body")
    def hwall():
        if hv == 2:
            hw01(); bar(); hw2()
        elif hv == 3:
            for tt in range(4):
                a.e(f"ds_write_b128 v5, {vr(ACC+tt*4)} offset:{tt*1024}")
                if tt == 1: bar()
            bar(); hw2()
        elif hv == 4:
            hw01()
        else:
            hw01(); hw2()
    def gstart(t):
        T[0] = t
        bar()
        a.e("s_waitcnt lgkmcnt(0)")
    gstart(18)
    paced(gelu_ins([0, 1, 2]), 18)
    upto(g0w)
    hwall(); fin(0, 53)
    a.label("k3_ge1")
    gstart(36)
    paced(gelu_ins([0, 1, 2]), g1n)
    hwall(); fin(1, 71)
    a.label("k3_ge2")
    gstart(54)
    paced(gelu_ins([0, 1]), 9)
    hw01()
    a.e("s_setprio 0")
    gi = gelu_ins([2])
    gi = gi[:8] + [("s_waitcnt lgkmcnt(0)", 0)] + gi[8:]
    paced(gi, 4)
    a.e(f"s_mov_b32 s{sRET}, 2")
    hw2(); fin(2, 89)
    P = [True]
    def pb(n=1):
        if P[0]: bar(n)
    sJ = 62
    TT, SUM, PA = 88, 104, 16
    class RS_: pass
    def mk(v, sb):
        r = RS_(); r.X1, r.Q, r.Z, r.GG, r.OM, r.GA, r.VO = v; r.s = sb; return r
    SA = mk((72, 76, 80, 84, 85, 96, 3), 8)
    SB = mk((48, 52, 56, 84, 85, 0, 0), 16)
    SC = mk((60, 64, 68, 84, 85, 0, 0), 64 if not a.prof else 28)
    def unpack(d, s, n=2):
        for k in range(n):
            a.e(f"v_lshlrev_b32 v{d+2*k}, 16, v{s+k}")
            a.e(f"v_and_b32 v{d+2*k+1}, 0xffff0000, v{s+k}")
    def rnd8(d, t):
        for k in range(4): a.e(f"v_cvt_pk_bf16_f32 v{t+k}, v{d+2*k}, v{d+2*k+1}")
        unpack(d, t, 4)
    def cons_common():
        a.e(f"""
        s_mul_i32 s61, s{sSP}, 3
        s_add_u32 s61, s61, s{sI}
        s_lshr_b32 s4, s61, 3
        s_lshl_b32 s4, s4, 2
        s_and_b32 s6, s61, 3
        s_add_u32 s4, s4, s6
        s_bfe_u32 s6, s61, 0x10002
        s_lshl_b32 s7, s{sTL}, 2
        s_lshl_b32 s6, s6, 1
        s_add_u32 s7, s7, s6
        s_mul_i32 s5, s7, 18432
        s_lshl_b32 s7, s7, 4
        v_and_b32 v1, 31, v0
        v_add_u32 v1, s7, v1
        v_lshrrev_b32 v5, 5, v0
        v_lshlrev_b32 v2, 2, v1
        v_mul_u32_u24 v3, 1152, v1
        v_lshl_add_u32 v3, v5, 4, v3
        v_lshlrev_b32 v4, {2 if front else 3}, v1
        v_lshl_add_u32 v4, v5, 15, v4
        v_add_u32 v12, 8192, v4
        v_and_b32 v11, 1, v10
        v_mul_u32_u24 v11, 18432, v11
        v_lshl_add_u32 v11, v5, 9, v11
        v_lshl_add_u32 v11, v9, 4, v11
        v_and_b32 v5, 7, v0
        v_lshlrev_b32 v5, {FL['FS']}, v5
        """)
    def cons_addr(j, R):
        b = R.s
        a.e(f"""
        s_add_u32 s6, s4, {12*j}
        s_lshr_b32 s7, s6, 1
        s_lshl_b32 s7, s7, 10
        s_add_u32 s{b}, s5, s7
        s_and_b32 s7, s6, 1
        s_lshl_b32 s7, s7, 3
        s_add_u32 s{b}, s{b}, s7
        s_lshl_b32 s{b+2}, s6, 5
        s_lshl_b32 s{b+4}, s6, 16
        s_add_u32 s{b+3}, s{b+4}, 16384
        s_mul_i32 s6, s{sTL}, 3
        s_add_u32 s6, s6, {j}
        s_lshl_b32 s{b+5}, s6, 2
        s_and_b32 s7, s61, 3
        s_add_u32 s{b+5}, s{b+5}, s7
        s_lshl_b32 s{b+5}, s{b+5}, {FL['FG']}
        s_mul_i32 s{b+7}, s6, 24
        s_add_u32 s{b+7}, s{b+7}, s61
        s_lshl_b32 s{b+7}, s{b+7}, 13
        s_add_u32 s{b+6}, s{b+7}, 4096
        """)
    def cons_aux(R):
        b = R.s
        a.vmem(f"buffer_load_dwordx4 {vr(R.Q)}, v3, s[{rQ}:{rQ+3}], s{b+2} offen", "aux")
        if front:
            a.vmem(f"buffer_load_dword v{R.Z}, v4, s[{rZ}:{rZ+3}], s{b+4} offen {hs}", "aux")
            a.vmem(f"buffer_load_dword v{R.Z+1}, v12, s[{rZ}:{rZ+3}], s{b+4} offen {hs}", "aux")
            a.vmem(f"buffer_load_dword v{R.Z+2}, v4, s[{rZ}:{rZ+3}], s{b+3} offen {hs}", "aux")
            a.vmem(f"buffer_load_dword v{R.Z+3}, v12, s[{rZ}:{rZ+3}], s{b+3} offen {hs}", "aux")
        else:
            a.vmem(f"buffer_load_dwordx2 {vr(R.Z,2)}, v4, s[{rZ}:{rZ+3}], s{b+4} offen {hs}", "aux")
            a.vmem(f"buffer_load_dwordx2 {vr(R.Z+2,2)}, v4, s[{rZ}:{rZ+3}], s{b+3} offen {hs}", "aux")
        if R is SA: a.vmem(f"buffer_load_dword v{R.GG}, v2, s[{rG}:{rG+3}], 0 offen {hs}", "aux")
        a.vmem(f"buffer_load_dwordx2 {vr(R.X1,2)}, v11, s[{rX}:{rX+3}], s{b} offen {hs}", "aux")
        a.vmem(f"buffer_load_dwordx2 {vr(R.X1+2,2)}, v11, s[{rX}:{rX+3}], s{b} offen offset:256 {hs}", "aux")
    def cons_ga(R, D=None):
        D = D or R
        a.e(f"v_sub_f32 v{D.OM}, 1.0, v{R.GG}")
        a.bf16r(D.OM, D.OM)
        unpack(D.GA, R.Q, 4)
        unpack(TT, R.Z, 4)
        for r in range(8): a.e(f"v_mul_f32 v{D.GA+r}, v{D.GA+r}, v{TT+r}")
        pb()
        rnd8(D.GA, TT)
        for r in range(8): a.e(f"v_mul_f32 v{D.GA+r}, v{R.GG}, v{D.GA+r}")
        pb()
        rnd8(D.GA, TT)
        unpack(D.Q, R.X1, 4)
        pb()
    def poll_issue():
        a.vmem(f"buffer_load_dword v14, v5, s[{rF}:{rF+3}], s13 offen sc1", "pl")
    def cons_loads(backoff):
        lab = a.newlabel("poll")
        a.stamp(8)
        a.label(lab)
        a.e("s_waitcnt vmcnt(0)")
        a.e("v_cmp_ne_u32 vcc, 1, v14")
        a.e(f"s_cbranch_vccz {lab}_ok")
        a.e(f"s_sub_u32 s{sBUD}, s{sBUD}, 1")
        a.e(f"s_cbranch_scc1 {lab}_ok")
        if backoff: a.e(f"s_sleep {backoff}")
        poll_issue()
        a.e(f"s_branch {lab}")
        a.label(f"{lab}_ok")
        a.stamp(9)
        a.reset()
        for p in range(8):
            a.vmem(f"buffer_load_dwordx4 {vr(PA+4*p)}, v7, s[{rP}:{rP+3}], s{15 if p < 4 else 14} offen offset:{(p%4)*1024} sc1", p)
    def cons_fin():
        R = SA
        for p in range(8):
            a.wait_vm_if(p)
            unpack(SUM if p == 0 else TT, PA + 4*p, 4)
            if p:
                for k in range(8): a.e(f"v_add_f32 v{SUM+k}, v{SUM+k}, v{TT+k}")
            if p % 2 == 1: pb()
        a.stamp(10)
        rnd8(SUM, TT)
        for r in range(8): a.e(f"v_add_f32 v{SUM+r}, v{SUM+r}, v{R.Q+r}")
        rnd8(SUM, TT)
        pb()
        for r in range(8): a.e(f"v_mul_f32 v{SUM+r}, v{R.OM}, v{SUM+r}")
        rnd8(SUM, TT)
        for r in range(8): a.e(f"v_add_f32 v{SUM+r}, v{SUM+r}, v{R.GA+r}")
        for k in range(4): a.e(f"v_cvt_pk_bf16_f32 v{112+k}, v{SUM+2*k}, v{SUM+2*k+1}")
        a.e(f"buffer_store_dwordx4 {vr(112)}, v3, s[{rO}:{rO+3}], s10 offen")
    a.label("k3_red")
    a.stamp(0)
    if nored: a.e(f"s_branch {done}_x")
    a.reset()
    a.e(f"""
    s_mul_i32 s14, s{sTL}, 3
    s_add_u32 s14, s14, s{sG}
    s_mul_i32 s15, s14, 24
    s_add_u32 s15, s15, s{sI}
    s_lshl_b32 s15, s15, 3
    s_add_u32 s15, s15, s{sSP}
    s_lshl_b32 s15, s15, 10
    s_setprio 3
    """)
    def cv(c):
        jj, h = c >> 1, c & 1
        q = 16 + c*4
        for e in range(2):
            b = ACC + (jj*4 + 2*h + e)*4
            a.e(f"v_cvt_pk_bf16_f32 v{q+2*e}, v{b}, v{b+1}")
            a.e(f"v_cvt_pk_bf16_f32 v{q+2*e+1}, v{b+2}, v{b+3}")
    cv(0)
    for c in range(6):
        q = 16 + c*4
        if c < 5: cv(c+1)
        else: a.e("s_nop 1")
        a.e(f"v_permlane16_swap_b32 v{q}, v{q+2}")
        a.e(f"v_permlane16_swap_b32 v{q+1}, v{q+3}")
        a.e(f"buffer_store_dwordx4 {vr(q)}, v7, s[{rP}:{rP+3}], s15 offen {sc}")
        a.e("s_add_u32 s15, s15, 32768")
    a.e(f"""
    s_setprio 0
    s_lshl_b32 s14, s14, 2
    s_add_u32 s14, s14, s{sI}
    s_lshl_b32 s14, s14, {FL['FG']}
    s_lshl_b32 s63, s{sSP}, {FL['FS']}
    s_add_u32 s63, s63, s14
    v_mov_b32 v6, 0
    v_mov_b32 v15, 1
    """)
    a.stamp(1)
    if ext:
        a.e(f"s_cmp_eq_u32 s{sG}, 2")
        a.e(f"s_cbranch_scc1 {done}")
        for _ in range(4): a.e("s_barrier")
        if wb:
            a.e("s_waitcnt vmcnt(0)")
            a.e("s_barrier")
            a.e(f"s_cmp_lg_u32 s{sI}, 0")
            a.e(f"s_cbranch_scc1 {done}_x")
            a.e("buffer_wbl2 sc1")
            for _ in range(free_at + 1 - 5): a.e("s_barrier")
        a.e(f"s_branch {done}_x")
    a.e(f"s_cmp_eq_u32 s{sG}, 2")
    a.e("s_cbranch_scc1 k3_flag")
    T[0] = 0
    bar()
    if not lc: cons_common()
    if mono and not lc:
        a.e(f"""
        v_min_u32 v13, 11, v0
        v_lshrrev_b32 v14, 2, v13
        v_mul_u32_u24 v14, 192, v14
        v_and_b32 v13, 3, v13
        v_mul_u32_u24 v13, 6, v13
        v_min_u32 v13, 15, v13
        s_lshl_b32 s6, s4, 4
        v_add3_u32 v13, v13, v14, s6
        v_min_u32 v13, 575, v13
        v_mul_u32_u24 v13, 10923, v13
        v_lshrrev_b32 v13, 16, v13
        v_lshlrev_b32 v13, 2, v13
        v_add_u32 v13, {F_Z}, v13
        buffer_load_dword v127, v13, s[{rW4}:{rW4+3}], 0 offen sc1
        """)
    upto(dr0)
    a.label("k3_flag")
    a.e("s_waitcnt vmcnt(0)")
    a.e("s_mov_b64 exec, 1")
    a.e(f"buffer_store_dword v15, v6, s[{rF}:{rF+3}], s63 offen sc1")
    a.e("s_mov_b64 exec, -1")
    a.stamp(2)
    a.e(f"s_cmp_eq_u32 s{sG}, 2")
    a.e(f"s_cbranch_scc1 {done}")
    tsave = T[0]
    if lc:
        for _ in range(free_at + 1 - tsave): a.e("s_barrier")
        a.e(f"s_branch {done}_x")
        lcut = len(a.lines)
    a.e(f"s_cmp_eq_u32 s{sI}, 3")
    a.e(f"s_cbranch_scc1 k3_w3")
    a.e(f"s_cmp_eq_u32 s{sG}, 1")
    a.e(f"s_cbranch_scc1 k3_w3")
    P[0] = True; LIM[0] = 18 + free_at + 1
    a.reset()
    bar()
    cons_addr(0, SA); bar()
    upto(max(p0, T[0]))
    if mono:
        a.e("v_cmp_ne_u32 vcc, 1, v127")
        a.e("s_cbranch_vccz z_chk_ok")
        poll_bytes(a, 13, rW4, sBUD, 127, "z_chk", 4)
    poll_issue()
    def nxt_aux():
        a.e("s_add_u32 s8, s8, 6144")
        a.e("s_add_u32 s10, s10, 384")
        a.e(f"s_add_u32 s11, s11, {12<<16}")
        a.e(f"s_add_u32 s12, s12, {12<<16}")
    def nxt_part():
        a.e("s_add_u32 s10, s10, 384")
        a.e(f"s_add_u32 s13, s13, {4 << FL['FG']}")
        a.e(f"s_add_u32 s14, s14, {24<<13}")
        a.e(f"s_add_u32 s15, s15, {24<<13}")
    SB.s = SC.s = 8
    cons_aux(SA); nxt_aux(); cons_aux(SB); nxt_aux(); cons_aux(SC)
    a.e("s_sub_u32 s10, s10, 768")
    upto(l0)
    cons_loads(0)
    bar()
    cons_ga(SA)
    upto(max(l0 + 6, T[0]))
    cons_fin()
    nxt_part()
    bar()
    cons_ga(SB, SA)
    upto(max(18 + p1, T[0]))
    poll_issue()
    a.e("s_mov_b32 s9, 0")
    upto(18+free_at+1); P[0] = False
    a.label("k3_tail")
    cons_loads(bo)
    cons_fin()
    a.e("s_cmp_eq_u32 s9, 1")
    a.e(f"s_cbranch_scc1 {done}")
    a.e("s_mov_b32 s9, 1")
    nxt_part()
    cons_ga(SC, SA)
    poll_issue()
    a.e("s_branch k3_tail")
    a.label("k3_w3")
    for _ in range(free_at + 1 - tsave): a.e("s_barrier")
    a.e(f"s_branch {done}_x")
    if lc: a.lines = a.lines[:lcut]
    a.label("k3_loader")
    a.reset()
    for e in range(3):
        a.e(f"""
        v_add_u32 v12, {64*e}, v0
        v_mul_u32_u24 v13, 2731, v12
        v_lshrrev_b32 v13, 16, v13
        v_mul_u32_u24 v14, 24, v13
        v_sub_u32 v14, v12, v14
        v_and_b32 v11, 6, v13
        v_xor_b32 v14, v14, v11
        v_lshlrev_b32 v14, 4, v14
        v_subrev_u32 v14, {1024*e}, v14
        v_mul_u32_u24 v11, 9216, v13
        v_add_u32 v{16+e}, v14, v11
        v_mul_u32_u24 v11, 1152, v13
        v_add_u32 v{20+e}, v14, v11
        """)
    a.e("s_waitcnt lgkmcnt(0)")
    a.stamp(7)
    a.srd(rW3, 4, D*F*2)
    a.srd_off(rX, 10, OFF_X1, SZ_ACT)
    a.srd(rW4, 6, F*D*2)
    a.srd_off(rG, 10, OFF_CS3, F*4)
    a.e(f"""
    s_mul_i32 s14, s{sSP}, {576*1152}
    s_mul_i32 s15, s{sTL}, {18*1152}
    s_add_u32 s14, s14, s15
    s_lshl_b32 s15, s{sI}, 6
    s_add_u32 s14, s14, s15
    s_add_u32 s28, s6, s14
    s_addc_u32 s29, s7, 0
    """)
    lgrp = list(grp) if lspf else []
    a.e(f"""
    s_mul_i32 s4, s{sSP}, 1152
    s_mul_i32 s6, s{sI}, {8*9216}
    s_add_u32 s4, s4, s6
    s_mul_i32 s5, s{sSP}, {576*1152}
    s_mul_i32 s6, s{sI}, {8*1152}
    s_add_u32 s5, s5, s6
    s_mul_i32 s6, s{sI}, 3072
    s_add_u32 s6, s6, {RING}
    s_lshl_b32 s14, s{sTL}, 2
    s_add_u32 s14, s14, s{sI}
    s_mul_i32 s62, s14, 18432
    s_lshl_b32 s63, s{sI}, 10
    s_lshr_b32 s14, s{sI}, 1
    s_mul_i32 s14, s14, {48*1152}
    s_add_u32 s60, s5, s14
    s_setprio {ldp}
    """)
    def xissue(u):
        a.e(f"s_add_u32 m0, s63, {u*4096}")
        a.e(f"s_add_u32 s7, s62, {u*1024}")
        a.vmem(f"buffer_load_dwordx4 v7, s[{rX}:{rX+3}], s7 offen {hs} lds", u)
    def csissue(u):
        a.e(f"s_min_u32 s14, s{sI}, 2")
        a.e(f"s_lshl_b32 s14, s14, 10")
        a.e(f"s_add_u32 m0, s14, {L_CS}")
        a.e(f"s_mul_i32 s15, s{sSP}, 2304")
        a.e(f"s_add_u32 s15, s15, s14")
        a.vmem(f"buffer_load_dwordx4 v7, s[{rG}:{rG+3}], s15 offen {hs} lds", u)
    xn = [0]
    fill = []
    if lc and fg:
        GA_, T_ = 96, 104
        def up(d, s_, n):
            o = []
            for k in range(n):
                o += [f"v_lshlrev_b32 v{d+2*k}, 16, v{s_+k}", f"v_and_b32 v{d+2*k+1}, 0xffff0000, v{s_+k}"]
            return o
        for j in range(3):
            fill += up(GA_, 24+4*j, 4) + up(T_, 48+4*j, 4)
            fill += [f"v_mul_f32 v{GA_+r}, v{GA_+r}, v{T_+r}" for r in range(8)]
            fill += [f"v_cvt_pk_bf16_f32 v{T_+k}, v{GA_+2*k}, v{GA_+2*k+1}" for k in range(4)] + up(GA_, T_, 4)
            fill += [f"v_mul_f32 v{GA_+r}, v62, v{GA_+r}" for r in range(8)]
            fill += [f"v_cvt_pk_bf16_f32 v{24+4*j+k}, v{GA_+2*k}, v{GA_+2*k+1}" for k in range(4)]
        assert fg >= zt + 6
    def issue(u):
        ph, ks = u // 18, u % 18
        which, th = ph // 3, ph % 3
        pitch = 9216 if which == 0 else 1152
        rW = (rW3, rW4)[which]
        if not (mono and u < pro):
            while xn[0] < min(18, u + 1 + xa):
                xissue(xn[0]); xn[0] += 1
        a.e(f"s_add_u32 m0, s6, {(u % NSLOT)*SLOT}")
        if which == 1 and ks % 6 < 4:
            a.e(f"s_add_u32 s7, s60, {((ks//6)*192 + (ks%6)*16)*1152 + th*384}")
        else:
            a.e(f"s_add_u32 s7, s{4+which}, {ks*32*pitch + th*384}")
        for e in range(3):
            a.vmem(f"buffer_load_dwordx4 v{16+4*which+e}, s[{rW}:{rW+3}], s7 offen offset:{e*1024} {nt_w} lds", u)
            if fg and u - LA >= fg and e < 2:
                for _ in range(fn):
                    if fill: a.e(fill.pop(0))
            if u >= lspf and (e == 0 or (e == 1 and 18 <= u < 18 + lx2)) and lgrp:
                a.e(f"s_load_dword s2, s[28:29], {lgrp.pop(0)*256}")
        if u == (8 if mono else 2): csissue(u)
    nxt = [0]
    def issue_upto(lim, cnt):
        while cnt > 0 and nxt[0] < min(lim, 108):
            issue(nxt[0]); nxt[0] += 1; cnt -= 1
    if not early: issue_upto(pro, pro)
    LQ, LX1, LZ, LG, LFL, PA0, PA1 = 24, 36, 48, 62, 63, 64, 96
    if lc:
        a.srd_off(rP, 10, 0, 0x2200000)
        a.srd(rQ, 8, SZ_ACT)
        a.srd(rO, 12, SZ_ACT)
        a.e(f"""
        s_cmp_eq_u32 s{sI}, 3
        s_cselect_b32 s{rP+2}, 0, s{rP+2}
        s_cselect_b32 s{rQ+2}, 0, s{rQ+2}
        s_cselect_b32 s{rO+2}, 0, s{rO+2}
        s_cselect_b32 s12, 0, 1
        s_mul_i32 s61, s{sSP}, 3
        s_add_u32 s61, s61, s{sI}
        s_min_u32 s61, s61, 23
        s_lshr_b32 s30, s61, 3
        s_lshl_b32 s30, s30, 2
        s_and_b32 s31, s61, 3
        s_add_u32 s30, s30, s31
        s_lshl_b32 s8, s30, 5
        s_lshl_b32 s9, s30, 16
        s_add_u32 s9, s9, {OFF_Z4}
        s_mul_i32 s14, s{sTL}, 12
        s_add_u32 s10, s14, s31
        s_lshl_b32 s10, s10, {FL['FG']}
        s_add_u32 s10, s10, {OFF_FLAG}
        s_mul_i32 s11, s{sTL}, 72
        s_add_u32 s11, s11, s61
        s_lshl_b32 s11, s11, 13
        s_add_u32 s11, s11, {OFF_PART}
        s_bfe_u32 s14, s61, 0x10002
        s_lshl_b32 s15, s{sTL}, 6
        s_lshl_b32 s31, s14, 5
        s_add_u32 s15, s15, s31
        v_and_b32 v1, 31, v0
        v_add_u32 v1, s15, v1
        v_lshrrev_b32 v5, 5, v0
        v_lshlrev_b32 v2, 2, v1
        v_mul_u32_u24 v3, 1152, v1
        v_lshl_add_u32 v3, v5, 4, v3
        v_lshl_add_u32 v4, v5, 15, v2
        v_add_u32 v12, 8192, v4
        v_add_u32 v8, 16384, v4
        v_add_u32 v6, 24576, v4
        v_add_u32 v2, {OFF_G}, v2
        s_lshr_b32 s15, s30, 1
        s_lshl_b32 s15, s15, 12
        s_lshl_b32 s14, s14, 11
        s_add_u32 s15, s15, s14
        s_and_b32 s14, s30, 1
        s_lshl_b32 s14, s14, 3
        s_add_u32 s15, s15, s14
        v_and_b32 v11, 1, v10
        v_lshlrev_b32 v11, 10, v11
        v_lshl_add_u32 v11, v5, 9, v11
        v_lshl_add_u32 v11, v9, 4, v11
        v_add_u32 v11, s15, v11
        v_and_b32 v5, 7, v0
        v_lshlrev_b32 v5, {FL['FS']}, v5
        v_min_u32 v13, 11, v0
        v_lshrrev_b32 v14, 2, v13
        v_mul_u32_u24 v14, 192, v14
        v_and_b32 v13, 3, v13
        v_mul_u32_u24 v13, 6, v13
        v_min_u32 v13, 15, v13
        s_lshl_b32 s14, s30, 4
        v_add3_u32 v13, v13, v14, s14
        v_mul_u32_u24 v13, 10923, v13
        v_lshrrev_b32 v13, 16, v13
        v_lshlrev_b32 v13, 2, v13
        v_add_u32 v13, {OFF_FF + F_Z}, v13
        """)
        for j in range(3):
            a.vmem(f"buffer_load_dwordx4 {vr(LQ+4*j)}, v3, s[{rQ}:{rQ+3}], s8 offen offset:{384*j}", "q")
    def lchk(vaddr, soff, lab):
        a.e(f"v_cmp_ne_u32 vcc, s12, v{LFL}")
        a.e(f"s_cbranch_vccz {lab}_ok")
        a.label(lab)
        if bo: a.e(f"s_sleep {bo}")
        a.e(f"buffer_load_dword v{LFL}, v{vaddr}, s[{rP}:{rP+3}], {soff} offen sc1")
        a.e("s_waitcnt vmcnt(0)")
        a.e(f"v_cmp_ne_u32 vcc, s12, v{LFL}")
        a.e(f"s_cbranch_vccz {lab}_ok")
        a.e(f"s_sub_u32 s{sBUD}, s{sBUD}, 1")
        a.e(f"s_cbranch_scc0 {lab}")
        a.label(f"{lab}_ok")
    def lpart(PA):
        a.e("s_add_u32 s14, s11, 4096")
        for p in range(8):
            a.vmem(f"buffer_load_dwordx4 {vr(PA+4*p)}, v7, s[{rP}:{rP+3}], s{11 if p < 4 else 14} offen offset:{(p%4)*1024} sc1", ("p", p))
        a.e(f"s_add_u32 s11, s11, {24<<13}")
        a.e(f"s_add_u32 s10, s10, {4 << FL['FG']}")
    def lextra(u):
        if not lc: return
        if u == 20:
            for j in range(3):
                a.e(f"ds_read_b64 {vr(LX1+4*j,2)}, v11 offset:{24576*j}")
                a.e(f"ds_read_b64 {vr(LX1+4*j+2,2)}, v11 offset:{24576*j+256}")
        if u == zt - 6:
            a.vmem(f"buffer_load_dword v{LFL}, v13, s[{rP}:{rP+3}], 0 offen sc1", "f")
            a.vmem(f"buffer_load_dword v{LG}, v2, s[{rP}:{rP+3}], 0 offen sc1", "f")
        if u == zt:
            assert "f" not in a.vm
            lchk(13, "0", "lz")
            for j in range(3):
                for m, va in enumerate((4, 12, 8, 6)):
                    a.vmem(f"buffer_load_dword v{LZ+4*j+m}, v{va}, s[{rP}:{rP+3}], s9 offen sc1", "z")
                a.e(f"s_add_u32 s9, s9, {12<<16}")
        if u in (72 + p0, 90 + p1):
            a.vmem(f"buffer_load_dword v{LFL}, v5, s[{rP}:{rP+3}], s10 offen sc1", "f")
        if u == 72 + l0:
            assert "f" not in a.vm
            lchk(5, "s10", "lp0")
            lpart(PA0)
    if early:
        a.e("s_load_dwordx2 s[30:31], s[0:1], 112")
        a.e(f"""
        v_min_u32 v15, 17, v0
        v_cmp_lt_u32 vcc, 8, v15
        s_lshr_b32 s14, s{sTL}, 1
        s_lshl_b32 s14, s14, 8
        s_add_u32 s14, s14, {F_X1}
        s_lshl_b32 s15, s{sSP}, 8
        s_add_u32 s15, s15, {F_CS - 36}
        v_mov_b32 v14, s14
        v_mov_b32 v60, s15
        v_cndmask_b32 v14, v14, v60, vcc
        v_lshl_add_u32 v15, v15, 2, v14
        s_waitcnt lgkmcnt(0)
        """)
        a.srd_off(rZ, 30, OFF_FF, FFB)
        a.e(f"""
        k3_fb:
        s_cmp_le_u32 s99, 1
        s_cbranch_scc1 k3_fbe
        s_barrier
        s_sub_u32 s99, s99, 1
        s_branch k3_fb
        k3_fbe:
        s_barrier
        """)
        a.vmem(f"buffer_load_dword v60, v15, s[{rZ}:{rZ+3}], 0 offen sc1", "g")
        issue_upto(pre2, pre2)
        a.wait_vm("g")
        a.e("v_cmp_ne_u32 vcc, 1, v60")
        a.e("s_cbranch_vccz k3_xgo")
        sv = list(a.vm); n0 = nxt[0]
        issue_upto(pro, pro)
        poll_bytes(a, 15, rZ, sBUD, 60, "m_poll", psl)
        for u in range(pro): xissue(u)
        a.e("s_waitcnt vmcnt(%d)" % (pro - 1))
        a.e("s_branch k3_xj")
        a.label("k3_xgo")
        a.vm = sv; nxt[0] = n0
        for u in range(pre2): xissue(u)
        xn[0] = 99
        for u in range(pre2, pro):
            issue_upto(u+1, 1); xissue(u)
        a.wait_vm(0)
        a.label("k3_xj")
        xn[0] = pro
        a.vm = list(range(1, pro))
    elif mono:
        a.e("s_barrier")
        while xn[0] < pro + xa:
            xissue(xn[0]); xn[0] += 1
    a.stamp(8)
    a.wait_vm_if(0)
    a.stamp(9)
    a.e("s_barrier")
    a.stamp(10)
    marks = [-1, 17, 35, 53, 71, 89, 101]
    def ltick(u):
        if trace and u >= 0:
            a.e("s_waitcnt lgkmcnt(0)")
            a.e(f"v_writelane_b32 v{60 + u//64}, s92, {u % 64}")
        if u + 2 < 108: a.wait_vm_if(u+2)
        a.e("s_barrier")
        if trace: a.e("s_memtime s[92:93]")
        if u in marks: a.stamp(marks.index(u))
    last = 108 - LA
    for u in range(-1, last):
        if u not in skip: issue_upto(u + LA + 1, 2)
        lextra(u)
        ltick(u)
    def tdump():
        if trace:
            a.e("s_load_dwordx2 s[16:17], s[0:1], 112")
            a.e("s_waitcnt lgkmcnt(0)")
            a.srd_off(20, 16, 0x5000000, 0x100000)
            a.e("s_lshl_b32 s16, s100, 2")
            a.e(f"s_add_u32 s16, s16, s{sI}")
            a.e("s_lshl_b32 s16, s16, 9")
            a.e("v_lshlrev_b32 v12, 2, v0")
            a.e("buffer_store_dword v60, v12, s[20:23], s16 offen")
            a.e("buffer_store_dword v61, v12, s[20:23], s16 offen offset:256")
    lastbar = 90 + free_at
    assert lastbar >= last - 1
    for u in range(last, lastbar + 1):
        if u == lastbar:
            if lc and cw7: a.wait_vm(107)
            else: a.wait_vm0()
        if u < lastbar: ltick(u)
        else: a.e("s_barrier")
    a.e("s_setprio 0")
    tdump()
    if lc and not nored:
        a.e(f"s_cmp_eq_u32 s{sI}, 3")
        a.e(f"s_cbranch_scc1 {done}_x")
        LS, LT, LO = 16, 8, 1
        if cw7:
            for p in range(8):
                unpack(LS if p == 0 else LT, PA0 + 4*p, 4)
                if p:
                    for k in range(8): a.e(f"v_add_f32 v{LS+k}, v{LS+k}, v{LT+k}")
                if p == cw7:
                    a.wait_vm0()
                    lchk(5, "s10", "lp1")
                    lpart(PA1)
        a.stamp(0)
        if not cw7:
            a.reset()
            lchk(5, "s10", "lp1")
        a.stamp(1)
        if not cw7: lpart(PA1)
        LS, LT, LO = 16, 8, 1
        a.e("s_waitcnt lgkmcnt(0)")
        a.e(f"v_sub_f32 v{LO}, 1.0, v{LG}")
        a.bf16r(LO, LO)
        assert not fill
        def lga(j, GA, XF):
            unpack(GA, LQ+4*j, 4)
            if fg:
                unpack(XF, LX1+4*j, 4)
                return
            unpack(LT, LZ+4*j, 4)
            for r in range(8): a.e(f"v_mul_f32 v{GA+r}, v{GA+r}, v{LT+r}")
            rnd8(GA, LT)
            for r in range(8): a.e(f"v_mul_f32 v{GA+r}, v{LG}, v{GA+r}")
            rnd8(GA, LT)
            unpack(XF, LX1+4*j, 4)
        def lsum(PA, wait):
            for p in range(8):
                if wait: a.wait_vm_if(("p", p))
                unpack(LS if p == 0 else LT, PA + 4*p, 4)
                if p:
                    for k in range(0, 8, 2): a.e(f"v_pk_add_f32 v[{LS+k}:{LS+k+1}], v[{LS+k}:{LS+k+1}], v[{LT+k}:{LT+k+1}]")
        def lfin(GA, XF, OUT):
            rnd8(LS, LT)
            for r in range(0, 8, 2): a.e(f"v_pk_add_f32 v[{LS+r}:{LS+r+1}], v[{LS+r}:{LS+r+1}], v[{XF+r}:{XF+r+1}]")
            rnd8(LS, LT)
            for r in range(8): a.e(f"v_mul_f32 v{LS+r}, v{LO}, v{LS+r}")
            rnd8(LS, LT)
            for r in range(0, 8, 2): a.e(f"v_pk_add_f32 v[{LS+r}:{LS+r+1}], v[{LS+r}:{LS+r+1}], v[{GA+r}:{GA+r+1}]")
            for k in range(4): a.e(f"v_cvt_pk_bf16_f32 v{OUT+k}, v{LS+2*k}, v{LS+2*k+1}")
            a.e(f"buffer_store_dwordx4 {vr(OUT)}, v3, s[{rO}:{rO+3}], s8 offen {osc}")
            a.e("s_add_u32 s8, s8, 384")
        if not cw7: lsum(PA0, False)
        lga(0, PA0, PA0+8)
        lfin(PA0, PA0+8, PA0+16)
        lga(1, PA0, PA0+8)
        a.stamp(2)
        if ep:
            a.e("s_waitcnt vmcnt(5)")
            a.e(f"buffer_load_dword v{LFL}, v5, s[{rP}:{rP+3}], s10 offen sc1")
        a.e("s_mov_b32 s13, 0")
        a.label("k3_lt")
        a.stamp(9)
        lsum(PA1, True)
        a.stamp(10)
        lfin(PA0, PA0+8, PA0+20)
        a.e("s_cmp_eq_u32 s13, 1")
        a.e(f"s_cbranch_scc1 {done}")
        a.e("s_mov_b32 s13, 1")
        lga(2, PA0, PA0+8)
        a.stamp(8)
        if tp:
            a.e("v_add_u32 v5, s10, v5")
            poll_pipe(a, 5, rP, sBUD, 48, "lp2", bo)
        else:
            if ep: a.e("s_waitcnt vmcnt(1)")
            else:
                a.e(f"v_mov_b32 v{LFL}, 0")
                a.e("s_nop 0")
            lchk(5, "s10", "lp2")
        a.reset()
        lpart(PA1)
        a.e("s_branch k3_lt")
    else:
        a.e(f"s_branch {done}")
    i0 = a.lines.index("k3_loader:")
    blk = a.lines[i0:]
    a.lines = a.lines[:cut] + blk + a.lines[cut:i0]
    a.label(done)
    a.pend(3)
    a.label(done + "_x")
    a.e("s_endpgm")
    a.label("k3_end")
    if pad:
        for _ in range(13): a.e("s_endpgm\n" * 16)
    a.end(name, 128, 102)


def k5(a):
    name = "k5_kernel"
    a.launch(name, (576,1,1), 256, 0)
    a.begin(name)
    a.reset()
    done = "k5_done"
    a.e(f"s_cmp_ge_u32 s2, 576")
    a.e(f"s_cbranch_scc1 {done}_x")
    a.pstart()
    rX, rP, rQ, rZ, rG, rO = 24, 32, 40, 44, 48, 52
    a.ldarg(8, "q"); a.ldarg(10, "ws"); a.ldarg(12, "out")
    a.e(f"""
    v_lshrrev_b32 v1, 6, v0
    v_and_b32 v0, 63, v0
    v_readfirstlane_b32 s59, v1
    s_mul_i32 s57, s2, 3641
    s_lshr_b32 s57, s57, 16
    s_mul_i32 s14, s57, 18
    s_sub_u32 s14, s2, s14
    s_lshr_b32 s4, s14, 1
    s_lshl_b32 s4, s4, 2
    s_add_u32 s6, s4, s59
    s_and_b32 s5, s14, 1
    s_lshl_b32 s7, s57, 2
    s_lshl_b32 s5, s5, 1
    s_add_u32 s7, s7, s5
    s_mul_i32 s5, s7, 18432
    s_lshl_b32 s7, s7, 4
    v_and_b32 v9, 15, v0
    v_lshrrev_b32 v10, 4, v0
    v_lshlrev_b32 v7, 4, v0
    v_and_b32 v1, 31, v0
    v_add_u32 v1, s7, v1
    v_lshrrev_b32 v5, 5, v0
    v_lshlrev_b32 v2, 2, v1
    v_mul_u32_u24 v3, 1152, v1
    v_lshl_add_u32 v3, v5, 4, v3
    v_lshlrev_b32 v4, 3, v1
    v_lshl_add_u32 v4, v5, 15, v4
    v_and_b32 v11, 1, v10
    v_mul_u32_u24 v11, 18432, v11
    v_lshl_add_u32 v11, v5, 9, v11
    v_lshl_add_u32 v11, v9, 4, v11
    s_lshr_b32 s7, s6, 1
    s_lshl_b32 s7, s7, 10
    s_add_u32 s16, s5, s7
    s_and_b32 s7, s6, 1
    s_lshl_b32 s7, s7, 3
    s_add_u32 s16, s16, s7
    s_lshl_b32 s18, s6, 5
    s_lshl_b32 s20, s6, 16
    s_add_u32 s19, s20, 16384
    s_lshl_b32 s23, s2, 2
    s_add_u32 s23, s23, s59
    s_lshl_b32 s23, s23, 13
    s_add_u32 s22, s23, 4096
    s_waitcnt lgkmcnt(0)
    """)
    a.srd_off(rP, 10, OFF_PART, 32*3*6*4*8*1024)
    X1, Q, Z, GG, OM, GA, TT, SUM, PA = 72, 76, 80, 84, 85, 96, 88, 104, 16
    for p in range(8):
        a.vmem(f"buffer_load_dwordx4 {vr(PA+4*p)}, v7, s[{rP}:{rP+3}], s{23 if p < 4 else 22} offen offset:{(p%4)*1024}", p)
    a.srd(rQ, 8, SZ_ACT)
    a.srd_off(rZ, 10, OFF_Z4, SZ_ACT)
    a.srd_off(rG, 10, OFF_G, S*4)
    a.srd_off(rX, 10, OFF_X1, SZ_ACT)
    a.srd(rO, 12, SZ_ACT)
    a.vmem(f"buffer_load_dwordx4 {vr(Q)}, v3, s[{rQ}:{rQ+3}], s18 offen", "aux")
    a.vmem(f"buffer_load_dwordx2 {vr(Z,2)}, v4, s[{rZ}:{rZ+3}], s20 offen", "aux")
    a.vmem(f"buffer_load_dwordx2 {vr(Z+2,2)}, v4, s[{rZ}:{rZ+3}], s19 offen", "aux")
    a.vmem(f"buffer_load_dword v{GG}, v2, s[{rG}:{rG+3}], 0 offen", "aux")
    a.vmem(f"buffer_load_dwordx2 {vr(X1,2)}, v11, s[{rX}:{rX+3}], s16 offen", "aux")
    a.vmem(f"buffer_load_dwordx2 {vr(X1+2,2)}, v11, s[{rX}:{rX+3}], s16 offen offset:256", "aux")
    def unpack(d, s, n=2):
        for k in range(n):
            a.e(f"v_lshlrev_b32 v{d+2*k}, 16, v{s+k}")
            a.e(f"v_and_b32 v{d+2*k+1}, 0xffff0000, v{s+k}")
    def rnd8(d, t):
        for k in range(4): a.e(f"v_cvt_pk_bf16_f32 v{t+k}, v{d+2*k}, v{d+2*k+1}")
        unpack(d, t, 4)
    for p in range(8):
        a.wait_vm(p)
        unpack(SUM if p == 0 else TT, PA + 4*p, 4)
        if p:
            for k in range(8): a.e(f"v_add_f32 v{SUM+k}, v{SUM+k}, v{TT+k}")
    rnd8(SUM, TT)
    a.wait_vm0()
    a.e(f"v_sub_f32 v{OM}, 1.0, v{GG}")
    a.bf16r(OM, OM)
    unpack(GA, Q, 4)
    unpack(TT, Z, 4)
    for r in range(8): a.e(f"v_mul_f32 v{GA+r}, v{GA+r}, v{TT+r}")
    rnd8(GA, TT)
    for r in range(8): a.e(f"v_mul_f32 v{GA+r}, v{GG}, v{GA+r}")
    rnd8(GA, TT)
    unpack(Q, X1, 4)
    for r in range(8): a.e(f"v_add_f32 v{SUM+r}, v{SUM+r}, v{Q+r}")
    rnd8(SUM, TT)
    for r in range(8): a.e(f"v_mul_f32 v{SUM+r}, v{OM}, v{SUM+r}")
    rnd8(SUM, TT)
    for r in range(8): a.e(f"v_add_f32 v{SUM+r}, v{SUM+r}, v{GA+r}")
    for k in range(4): a.e(f"v_cvt_pk_bf16_f32 v{112+k}, v{SUM+2*k}, v{SUM+2*k+1}")
    a.e(f"buffer_store_dwordx4 {vr(112)}, v3, s[{rO}:{rO+3}], s18 offen")
    a.label(done)
    a.pend(5)
    a.label(done + "_x")
    a.e("s_endpgm")
    a.end(name, 116, 102)
```

```python
from gen import *
from k34 import OFF_FLAG, FL, flag_bytes
from k12 import tile_decode
URP = 4096
NST = 18
OFF_FF = 0xBA0000
FFB = 52*256
F_X1, F_CS, F_Z = 25*256, 41*256, 49*256
MONO = [False]
EARLY = [False]
OFF_H20 = 0x2200000
HT = 20480
SZ_H20 = 128*HT
LCN = 160128

def poll_bytes(a, voff, rD, sbud, vt, lab, sleep=2, pre=False):
    if pre: a.e(f"s_branch {lab}_chk")
    a.label(lab)
    a.e(f"buffer_load_dword v{vt}, v{voff}, s[{rD}:{rD+3}], 0 offen sc1")
    a.label(f"{lab}_chk")
    a.e("s_waitcnt vmcnt(0)")
    a.e(f"v_cmp_ne_u32 vcc, 1, v{vt}")
    a.e(f"s_cbranch_vccz {lab}_ok")
    a.e(f"s_sub_u32 s{sbud}, s{sbud}, 1")
    a.e(f"s_cbranch_scc1 {lab}_ok")
    if sleep: a.e(f"s_sleep {sleep}")
    a.e(f"s_branch {lab}")
    a.label(f"{lab}_ok")

def poll_pipe(a, voff, rD, sbud, vt, lab, gap=2, depth=3):
    for d in range(depth):
        a.e(f"buffer_load_dword v{vt+d}, v{voff}, s[{rD}:{rD+3}], 0 offen sc1")
        if gap: a.e(f"s_sleep {gap}")
    a.label(lab)
    for d in range(depth):
        a.e(f"s_waitcnt vmcnt({depth-1})")
        a.e(f"v_cmp_ne_u32 vcc, 1, v{vt+d}")
        a.e(f"s_cbranch_vccz {lab}_ok")
        a.e(f"buffer_load_dword v{vt+d}, v{voff}, s[{rD}:{rD+3}], 0 offen sc1")
        if gap: a.e(f"s_sleep {gap}")
    a.e(f"s_sub_u32 s{sbud}, s{sbud}, 1")
    a.e(f"s_cbranch_scc0 {lab}")
    a.label(f"{lab}_ok")

def pub_bar(a, swv, who, rD, sflag, lab, off=0):
    a.e(f"""
    s_waitcnt vmcnt(0)
    s_barrier
    s_cmp_lg_u32 s{swv}, {who}
    s_cbranch_scc1 {lab}
    v_mov_b32 v10, s{sflag}
    v_mov_b32 v11, 1
    v_add_u32 v10, {off}, v10
    s_mov_b64 exec, 1
    buffer_store_dword v11, v10, s[{rD}:{rD+3}], 0 offen sc1
    s_mov_b64 exec, -1
    {lab}:
    """)

def publish(a, nwaves, lcnt, rD, sflag, lab, off=0):
    a.e(f"""
    s_waitcnt vmcnt(0)
    v_mov_b32 v10, {lcnt}
    v_mov_b32 v11, 1
    s_mov_b64 exec, 1
    ds_add_rtn_u32 v10, v10, v11
    s_waitcnt lgkmcnt(0)
    v_cmp_ne_u32 vcc, {nwaves-1}, v10
    s_cbranch_vccnz {lab}
    v_mov_b32 v10, s{sflag}
    s_nop 0
    v_add_u32 v10, {off}, v10
    buffer_store_dword v11, v10, s[{rD}:{rD+3}], 0 offen sc1
    {lab}:
    s_mov_b64 exec, -1
    """)

def fgroup(f):
    if f == 18: return 1
    if f == 19: return 3
    return (2*f) // 9

def gemm12(a, done, rot=1, NW0=2, NX0=2, rot2=1, psl=4, w2late=True, pipe=False, t1late=False, sw2=False, noshift=False, w2e=6, ah2=10, hpf2=0, cpf=True):
    a.reset()
    rW, rA, rO, rQ, rS, rD = 16, 20, 24, 28, 32, 40
    sTM, sTN, sWV, sTG, sNH, sBUD = 36, 37, 38, 39, 55, 53
    NX = 5
    LX = 73728; LST = LX + NX*16384
    LON = LST + 3072; LCS = LON + 1152; LCNT = LCS + 256; LCO = 160256
    a.ldarg(4, "w1"); a.ldarg(12, "q"); a.ldarg(8, "ws"); a.ldarg(10, "gw"); a.ldarg(6, "w2"); a.ldarg(14, "dbg")
    tile_decode(a, sTM, sTN)
    a.e(f"""
    v_lshrrev_b32 v1, 6, v0
    s_lshl_b32 s61, s{sTM}, 7
    v_readfirstlane_b32 s{sWV}, v1
    v_and_b32 v0, 63, v0
    s_mov_b32 s{sBUD}, 0x8000
    s_cmp_ge_u32 s{sWV}, 4
    s_cbranch_scc1 g1_comp
    """)
    a.e(f"""
    v_lshrrev_b32 v10, 3, v0
    v_and_b32 v11, 7, v0
    v_lshrrev_b32 v12, 1, v10
    v_xor_b32 v13, v11, v12
    v_mul_u32_u24 v8, 1152, v10
    v_xor_b32 v14, 4, v13
    v_lshl_add_u32 v5, v14, 4, v8
    v_lshl_add_u32 v4, v13, 4, v8
    v_add_u32 v5, {8*1152 - 1024}, v5
    s_and_b32 s44, s{sTM}, 1
    s_lshl_b32 s44, s44, 2
    s_add_u32 s44, s44, s{sTN}
    s_cmp_ge_u32 s44, 9
    s_cselect_b32 s45, 9, 0
    s_sub_u32 s62, s44, s45
    s_mul_i32 s44, s62, {rot}
    s_lshl_b32 s58, s44, 7
    s_mov_b32 s60, s58
    s_mul_i32 s59, s44, {64*1152}
    s_lshl_b32 s44, s{sWV}, 5
    s_add_u32 s44, s44, s61
    s_mul_i32 s46, s44, 1152
    s_lshl_b32 s48, s{sWV}, 12
    s_add_u32 s48, s48, {LX}
    s_waitcnt lgkmcnt(0)
    """)
    a.srd(rQ, 12, SZ_ACT)
    def xdma(p):
        a.e(f"s_add_u32 m0, s48, {(p % NX)*16384}")
        a.e(f"s_add_u32 s50, s46, s58")
        a.vmem(f"buffer_load_dwordx4 v4, s[{rQ}:{rQ+3}], s50 offen lds", p)
        a.vmem(f"buffer_load_dwordx4 v5, s[{rQ}:{rQ+3}], s50 offen offset:1024 lds", p)
        a.e(f"s_add_u32 s50, s50, {16*1152 - 2048}")
        a.vmem(f"buffer_load_dwordx4 v4, s[{rQ}:{rQ+3}], s50 offen offset:2048 lds", p)
        a.vmem(f"buffer_load_dwordx4 v5, s[{rQ}:{rQ+3}], s50 offen offset:3072 lds", p)
        a.e(f"s_add_u32 s58, s58, 128")
        a.e(f"s_cmp_eq_u32 s58, 1152")
        a.e(f"s_cselect_b32 s58, 0, s58")
    def wdma(p, tag=None):
        a.e(f"s_add_u32 m0, s49, {p*8192}")
        a.e(f"s_add_u32 s50, s47, s59")
        a.vmem(f"buffer_load_dwordx4 v6, s[{rW}:{rW+3}], s50 offen lds", p if tag is None else tag)
        a.vmem(f"buffer_load_dwordx4 v7, s[{rW}:{rW+3}], s50 offen offset:1024 lds", p if tag is None else tag)
        a.e(f"s_add_u32 s59, s59, {64*1152}")
        a.e(f"s_cmp_eq_u32 s59, {576*1152}")
        a.e(f"s_cselect_b32 s59, 0, s59")
    xdma(0)
    a.srd(rW, 4, D*D*2)
    a.e(f"""
    v_and_b32 v12, 6, v10
    v_xor_b32 v9, v11, v12
    v_and_b32 v12, 4, v10
    v_lshlrev_b32 v12, 1, v12
    v_and_b32 v14, 3, v10
    v_add_u32 v12, v12, v14
    v_mul_u32_u24 v6, 1152, v12
    v_lshl_add_u32 v6, v9, 4, v6
    v_add_u32 v7, {16*1152 - 1024}, v6
    s_lshr_b32 s44, s{sWV}, 1
    s_mul_i32 s47, s44, {32*1152}
    s_and_b32 s44, s{sWV}, 1
    s_mul_i32 s44, s44, {4*1152}
    s_add_u32 s47, s47, s44
    s_lshl_b32 s63, s{sTN}, 7
    s_add_u32 s47, s47, s63
    s_lshl_b32 s49, s{sWV}, 11
    """)
    wdma(0)
    a.srd(rA, 10, D*2)
    a.e(f"""
    s_min_u32 s44, s{sWV}, 2
    s_lshl_b32 s44, s44, 10
    s_add_u32 m0, s44, {LST}
    v_lshl_add_u32 v15, v0, 4, s44
    v_add_u32 v13, s60, v15
    v_subrev_u32 v12, 1152, v13
    v_cmp_le_u32 vcc, 1152, v13
    s_nop 1
    v_cndmask_b32 v13, v13, v12, vcc
    v_cmp_le_u32 vcc, 1152, v15
    s_nop 1
    v_cndmask_b32 v15, v13, v15, vcc
    """)
    a.vmem(f"buffer_load_dwordx4 v15, s[{rA}:{rA+3}], 0 offen lds", 0)
    def stream(seq, issued, fx, fw, nslot, ahead, nb=9, lag=3, after=None):
        b = [0]
        def certify():
            a.wait_vm_if(b[0])
            a.e("s_barrier")
            b[0] += 1
        for (kd, q) in seq:
            while kd == "x" and q >= nslot and b[0] < q - nslot + lag: certify()
            while b[0] < nb and ("x", b[0]) in issued and ("w", b[0]) in issued and b[0] in a.vm and \
                  len(a.vm) - 1 - max(i for i, t in enumerate(a.vm) if t == b[0]) >= ahead: certify()
            fx(q) if kd == "x" else fw(q)
            issued.add((kd, q))
        while b[0] < nb:
            if after: after(b[0])
            certify()
        if after: after(b[0])
    seq = [("w", p) for p in range(1, NW0)] + [("x", p) for p in range(1, NX0)]
    nx, nw = NX0, NW0
    while nx < 9 or nw < 9:
        if nx < 9 and (nw >= 9 or nx <= nw): seq.append(("x", nx)); nx += 1
        else: seq.append(("w", nw)); nw += 1
    a.srd(rD, 14, 256)
    a.e("v_mov_b32 v16, 0")
    def xdma1(p):
        xdma(p)
        if p == 7: a.vmem(f"buffer_load_dword v17, v16, s[{rD}:{rD+3}], 0 offen sc1", p)
    a.srd(rS, 6, D*D*2)
    a.e(f"""
    v_lshl_add_u32 v18, v9, 4, v8
    v_add_u32 v19, {8*1152 - 1024}, v18
    s_lshr_b32 s44, s{sWV}, 1
    s_mul_i32 s52, s44, {32*1152}
    s_and_b32 s44, s{sWV}, 1
    s_mul_i32 s44, s44, {16*1152}
    s_add_u32 s52, s52, s44
    s_add_u32 s52, s52, s63
    """)
    def w2dma(p):
        a.e(f"s_add_u32 m0, s49, {p*8192}")
        a.e(f"s_add_u32 s50, s52, {p*64*1152}")
        a.vmem(f"buffer_load_dwordx4 v18, s[{rS}:{rS+3}], s50 offen lds", "w2")
        a.vmem(f"buffer_load_dwordx4 v19, s[{rS}:{rS+3}], s50 offen offset:1024 lds", "w2")
    n2 = [0]
    def after(b):
        while n2[0] < w2e and n2[0] + 3 <= b:
            w2dma(n2[0]); n2[0] += 1
    stream(seq, {("x", 0), ("w", 0)}, xdma1, wdma, NX, 14, after=after)
    a.stamp(13)
    a.e("v_cmp_ne_u32 vcc, 1, v17")
    a.e("s_cbranch_vccz g_val_ok")
    poll_bytes(a, 16, rD, sBUD, 17, "g_val", 4)
    a.srd_off(rA, 8, OFF_H20, SZ_H20)
    a.e(f"""
    v_lshlrev_b32 v4, 4, v0
    v_xor_b32 v12, v11, v10
    v_lshl_add_u32 v5, v12, 4, v8
    s_add_u32 s51, s46, s63
    s_lshl_b32 s44, s{sTM}, 3
    s_lshl_b32 s45, s{sWV}, 1
    s_add_u32 s45, s44, s45
    s_mul_i32 s46, s45, {HT}
    s_add_u32 s47, s46, {HT - 1024}
    s_sub_u32 s45, s44, 1
    s_mul_i32 s58, s45, {HT}
    s_cmp_eq_u32 s{sTM}, 0
    s_cselect_b32 s58, 0x70000000, s58
    s_add_u32 s45, s44, 8
    s_mul_i32 s59, s45, {HT}
    s_lshl_b32 s60, s{sWV}, 11
    s_add_u32 s60, s60, {LX}
    s_barrier
    """)
    if w2late: a.e("s_barrier")
    for p in range(n2[0], 9): w2dma(p)
    a.stamp(1)
    a.e("s_barrier")
    a.stamp(2)
    a.reset()
    def hdma(p):
        sl = (p % 4)*18432
        for h in range(2):
            f = 2*p + h
            lo = 1 if fgroup(f) % 2 == 0 else 0
            a.e(f"s_add_u32 m0, s60, {sl + h*9216 + lo*1024}")
            a.e(f"s_add_u32 s50, s46, {f*1024}")
            a.vmem(f"buffer_load_dwordx4 v4, s[{rA}:{rA+3}], s50 offen sc1 lds", p)
            a.e(f"s_add_u32 s50, s47, {f*1024}")
            a.vmem(f"buffer_load_dwordx4 v4, s[{rA}:{rA+3}], s50 offen offset:1024 sc1 lds", p)
        cand = []
        for h in range(2):
            f = 2*p + h
            lo = 1 if fgroup(f) % 2 == 0 else 0
            cand.append((LX + sl + h*9216 + (0 if lo else 8192), 58 if lo else 59, f*1024))
        a.e(f"s_add_u32 s44, s{cand[0][1]}, {cand[0][2]}")
        a.e(f"s_add_u32 s45, s{cand[1][1]}, {cand[1][2]}")
        a.e(f"s_mov_b32 s50, {cand[0][0]}")
        a.e(f"s_bitcmp1_b32 s{sWV}, 0")
        a.e(f"s_cselect_b32 m0, {cand[1][0]}, s50")
        a.e(f"s_cselect_b32 s50, s45, s44")
        a.vmem(f"buffer_load_dwordx4 v4, s[{rA}:{rA+3}], s50 offen sc1 lds", p)
        if p == 9:
            for g in range(4):
                a.e(f"s_sub_u32 m0, s48, {LX - g*1024}")
                a.e(f"s_add_u32 s50, s51, {g*8*1152}")
                a.vmem(f"buffer_load_dwordx4 v5, s[{rQ}:{rQ+3}], s50 offen lds", p)
    stream([("x", p) for p in range(10)], {("w", p) for p in range(10)}, hdma, None, 4, ah2, 10, 2)
    if MONO[0]: a.e("s_barrier")
    a.e(f"s_branch {done}")
    a.label("g1_comp")
    nbar = 9 + 1 + (1 if w2late else 0) + 1 + 10 + 1
    if MONO[0]:
        a.e(f"s_cmp_lt_u32 s{sWV}, 12")
        a.e("s_cbranch_scc1 g1_cc")
        if cpf: idle(a)
        if EARLY[0]:
            a.e(f"s_movk_i32 s99, {nbar}")
        elif sw2:
            a.e(f"""
            s_and_b32 s44, s{sTM}, 1
            s_lshl_b32 s44, s44, 2
            s_add_u32 s44, s44, s{sWV}
            s_sub_u32 s44, s44, 12
            s_mul_i32 s44, s44, {72*1152}
            s_lshl_b32 s45, s{sTN}, 7
            s_add_u32 s44, s44, s45
            s_waitcnt lgkmcnt(0)
            s_add_u32 s46, s6, s44
            s_addc_u32 s47, s7, 0
            """)
            r = 0
            for bb in range(nbar):
                for _ in range(8):
                    if r < 72:
                        a.e(f"s_load_dword s59, s[46:47], {r*1152}")
                        a.e(f"s_load_dword s59, s[46:47], {r*1152+64}")
                        r += 1
                a.e("s_barrier")
        else:
            if hpf2:
                a.e("s_waitcnt lgkmcnt(0)")
                a.srd_off(rA, 8, OFF_H20, SZ_H20)
                a.e(f"""
                s_sub_u32 s44, s{sWV}, 12
                s_mul_i32 s44, s44, 9
                s_add_u32 s44, s44, s{sTN}
                s_add_u32 s44, s44, {hpf2}
                s_lshl_b32 s45, s44, 10
                s_mul_i32 s46, s{sTM}, {8*HT}
                s_add_u32 s45, s45, s46
                s_cmp_ge_u32 s44, 20
                s_cselect_b32 s45, 0x70000000, s45
                v_lshrrev_b32 v4, 3, v0
                v_mul_u32_u24 v4, {HT}, v4
                v_and_b32 v5, 7, v0
                v_lshl_add_u32 v4, v5, 7, v4
                """)
            for bb in range(nbar):
                a.e("s_barrier")
                if hpf2 and bb == nbar - 12: a.e(f"buffer_load_dword v100, v4, s[{rA}:{rA+3}], s45 offen sc1")
        a.e(f"s_branch {done}")
        a.label("g1_cc")
    a.reset()
    FBs = [24, 56]; SF = 88
    ACC, ST, CS, ONE, SQ = 96, 112, 116, 120, 124
    WB, XB, SA, GL = 14, 16, 20, 21
    HB2 = 88
    a.e(f"""
    s_sub_u32 s{sWV}, s{sWV}, 4
    v_and_b32 v2, 15, v0
    v_lshrrev_b32 v3, 4, v0
    s_lshr_b32 s{sTG}, s{sWV}, 1
    s_and_b32 s{sNH}, s{sWV}, 1
    s_lshl_b32 s44, s{sWV}, 10
    v_lshl_add_u32 v8, v0, 4, s44
    v_mov_b32 v{ONE}, 0x3f803f80
    v_mov_b32 v{ONE+1}, 0x3f803f80
    v_mov_b32 v{ONE+2}, 0x3f803f80
    v_mov_b32 v{ONE+3}, 0x3f803f80
    v_cmp_gt_u32 vcc, 1152, v8
    v_add_u32 v8, {LON}, v8
    v_mov_b32 v10, {LCNT}
    v_mov_b32 v11, 0
    s_and_saveexec_b64 s[56:57], vcc
    ds_write_b128 v8, {vr(ONE)}
    ds_write_b32 v10, v11
    s_mov_b64 exec, s[56:57]
    v_lshrrev_b32 v10, 2, v0
    v_lshlrev_b32 v10, 7, v10
    v_and_b32 v11, 3, v0
    v_lshl_add_u32 v22, v11, 3, v10
    v_bfe_u32 v23, v0, 3, 2
    s_lshl_b32 s44, s{sNH}, 1
    s_and_b32 s45, s{sTG}, 1
    s_add_u32 s54, s44, s45
    v_xor_b32 v11, s54, v23
    v_lshl_add_u32 v{WB}, v11, 5, v22
    v_xor_b32 v11, 1, v11
    v_lshl_add_u32 v{WB+1}, v11, 5, v22
    v_lshrrev_b32 v11, 1, v2
    v_xor_b32 v11, v3, v11
    v_lshlrev_b32 v10, 7, v2
    v_lshl_add_u32 v{XB}, v11, 4, v10
    v_xor_b32 v{XB+1}, 64, v{XB}
    s_lshl_b32 s44, s{sTG}, 12
    s_lshl_b32 s45, s{sNH}, 11
    s_add_u32 s44, s44, {LX}
    s_add_u32 s51, s44, s45
    s_xor_b32 s45, s45, 2048
    s_add_u32 s52, s44, s45
    v_add_u32 v{XB+2}, s52, v{XB}
    v_add_u32 v{XB+3}, s52, v{XB+1}
    v_add_u32 v{XB}, s51, v{XB}
    v_add_u32 v{XB+1}, s51, v{XB+1}
    v_and_b32 v11, 3, v0
    v_mov_b32 v{SA}, {LST+1280}
    v_mov_b32 v10, {LON}
    v_cmp_eq_u32 vcc, 0, v11
    s_nop 1
    v_cndmask_b32 v{SA}, v{SA}, v10, vcc
    v_mov_b32 v10, {LST}
    v_cmp_eq_u32 vcc, 1, v11
    s_nop 1
    v_cndmask_b32 v{SA}, v{SA}, v10, vcc
    v_lshl_add_u32 v{SA}, v3, 4, v{SA}
    s_waitcnt lgkmcnt(0)
    """)
    a.srd_off(rO, 8, OFF_H20, SZ_H20)
    a.srd_off(rS, 8, OFF_G, S*4)
    a.srd_off(rD, 8, OFF_FF, FFB)
    a.e(f"""
    s_lshl_b32 s44, s{sTM}, 3
    s_add_u32 s45, s44, s{sWV}
    s_mul_i32 s48, s45, {HT}
    s_xor_b32 s45, s45, 1
    s_mul_i32 s49, s45, {HT}
    s_lshl_b32 s52, s{sTN}, 1
    s_add_u32 s52, s52, s{sNH}
    v_lshlrev_b32 v4, 4, v0
    s_lshl_b32 s44, s52, 10
    v_add_u32 v5, s44, v4
    """)
    a.e(f"""
    s_lshl_b32 s44, s{sWV}, 8
    s_add_u32 s44, s44, {LCO}
    v_lshl_add_u32 v12, v2, 4, s44
    s_lshl_b32 s45, s54, 6
    s_add_u32 s45, s45, {LCS}
    v_lshl_add_u32 v13, v3, 4, s45
    v_lshlrev_b32 v10, 2, v3
    v_sub_u32 v10, v2, v10
    v_cmp_eq_u32 s[58:59], 0, v10
    v_cmp_eq_u32 s[46:47], 1, v10
    v_cmp_eq_u32 s[62:63], 2, v10
    v_cmp_eq_u32 s[50:51], 3, v10
    v_cmp_eq_u32 s[56:57], 0, v2
    s_lshl_b32 s60, s{sTM}, 8
    s_lshl_b32 s44, s{sTN}, 2
    s_add_u32 s60, s60, s44
    """)
    def reads(p, ph):
        fb = FBs[p & 1]; out = []
        pre = ""
        if p == 4:
            pre = "".join(f"v_add_u32 v{WB+j}, 0x8000, v{WB+j}\n" for j in range(2))
            if ph == 1: pre += "".join(f"v_add_u32 v{XB+k}, 0x10000, v{XB+k}\n" for k in range(4))
        if ph == 2 and p % 4 == 3: pre += "".join(f"v_add_u32 v{HB2+g}, 0x2000, v{HB2+g}\n" for g in range(4))
        if ph == 2 and p % 4 == 0 and p: pre += "".join(f"v_subrev_u32 v{HB2+g}, 0x2000, v{HB2+g}\n" for g in range(4))
        if p == 9: pre = "".join(f"v_subrev_u32 v{WB+j}, 0x8000, v{WB+j}\n" for j in range(2))
        if p == 5 and ph == 1: pre = "".join(f"v_subrev_u32 v{XB+k}, 0x10000, v{XB+k}\n" for k in range(4))
        for h in range(2):
            for tt in range(2):
                if ph == 1:
                    out.append((pre + f"ds_read_b128 {vr(fb+16+h*8+tt*4)}, v{XB+tt*2+h} offset:{((p % NX) & 3)*16384}", (p, h)))
                else:
                    out.append((pre + f"ds_read_b128 {vr(fb+16+h*8+tt*4)}, v{HB2+fgroup(2*p+h)} offset:{(p % 4)*18432 + h*9216 + tt*1024 - (8192 if p % 4 == 3 else 0)}", (p, h)))
                pre = ""
            off = p*8192 + h*4096
            if off >= 0x8000: off -= 0x8000
            if p == 9: off = (4, 13)[h]*4096
            for j in range(2):
                out.append((f"ds_read_b64_tr_b16 {vr(fb+h*8+j*4,2)}, v{WB+j} offset:{off}", (p, h)))
                out.append((f"ds_read_b64_tr_b16 {vr(fb+h*8+j*4+2,2)}, v{WB+j} offset:{off+2048}", (p, h)))
        return out
    def sread(k): return (f"ds_read_b128 {vr(SF+(k&1)*4)}, v{SA} offset:{k*64}", ("s", k))
    def mainloop(ph):
        a.e("s_barrier")
        if ph == 1: a.lds(*sread(0))
        for (s, t) in reads(0, ph): a.lds(s, t)
        NP = 9 if ph == 1 else 10
        for p in range(NP):
            if p < NP-1:
                if ph == 2: a.wait_lg0()
                a.e("s_barrier")
            if ph == 2 and p in (0, 4): a.stamp(9 + p//4)
            rd = reads(p+1, ph) if p < NP-1 else []
            fb = FBs[p & 1]
            for h in range(2):
                k = 2*p + h
                first = (k == 0)
                mm = [(vr(ACC+(j*2+tt)*4), vr(fb+h*8+j*4), vr(fb+16+h*8+tt*4)) for j in range(2) for tt in range(2)]
                if ph == 1:
                    ex = [(vr(SQ), vr(fb+16+h*8), vr(fb+16+h*8)), (vr(CS), vr(fb+h*8), vr(ONE)), (vr(ST), vr(SF+h*4), vr(fb+16+h*8))]
                    mm = ex + mm if k == 17 else mm + ex
                for n, m in enumerate(mm):
                    if n == 0:
                        a.wait_lg_if((p, h))
                        if ph == 1 and k < 17: a.lds(*sread(k+1))
                    if ph == 1 and m[0] == vr(ST): a.wait_lg_if(("s", k))
                    a.mfma(m[0], m[1], m[2], "0" if first else None)
                    for _ in range(1 if ph == 1 else 2):
                        if rd and not (ph == 1 and n == 6): a.lds(*rd.pop(0))
            assert not rd
    mainloop(1)
    a.stamp(3)
    C = 56
    a.e(f"""
    s_nop 3
    v_cndmask_b32 v11, 0, v{SQ}, s[58:59]
    v_cndmask_b32 v11, v11, v{SQ+1}, s[46:47]
    v_cndmask_b32 v11, v11, v{SQ+2}, s[62:63]
    v_cndmask_b32 v{SQ}, v11, v{SQ+3}, s[50:51]
    s_mov_b64 exec, s[56:57]
    ds_write_b128 v13, {vr(CS)}
    s_mov_b64 exec, -1
    """)
    a.xsum4(SQ, 10)
    a.e(f"v_mov_b32 v{GL}, v{ST+1}")
    a.ln_consts(ST, SQ, C, C+1, C+2, C+3, 10)
    a.e(f"""
    s_mov_b64 exec, 0xffff
    ds_write_b128 v12, {vr(C)}
    s_mov_b64 exec, -1
    v_xor_b32 v12, 256, v12
    v_xor_b32 v13, 64, v13
    """)
    T = 72
    CSR = [CS, ONE]
    def quad(j, tt):
        return [[f"v_fma_f32 v{ACC+(j*2+tt)*4+r}, v{C+tt*4}, v{CSR[j]+r}, v{ACC+(j*2+tt)*4+r}"] +
                a.gelu_seq(ACC+(j*2+tt)*4+r, T+(j*2+tt)*4+r, C+tt*4+1, C+tt*4+2, C+tt*4+3) for r in range(4)]
    def pk(j, tt):
        q = j*2 + tt; P = 64 + tt*4 + j*2; t = T + q*4
        a.e(f"v_cvt_pk_bf16_f32 v{P}, v{t}, v{t+1}")
        a.e(f"v_cvt_pk_bf16_f32 v{P+1}, v{t+2}, v{t+3}")
    a.e("s_waitcnt lgkmcnt(0)")
    a.e("s_barrier")
    a.e(f"ds_read_b128 {vr(C+4)}, v12")
    a.e(f"ds_read_b128 {vr(ONE)}, v13")
    for x in interleave(quad(0, 0)): a.e(x)
    pk(0, 0)
    a.e("s_waitcnt lgkmcnt(0)")
    for x in interleave(quad(0, 1) + quad(1, 0) + quad(1, 1)): a.e(x)
    pk(1, 0); pk(0, 1); pk(1, 1)
    a.e(f"""
    s_bitcmp0_b32 s54, 0
    s_cbranch_scc1 g1_nsw
    v_swap_b32 v64, v66
    v_swap_b32 v65, v67
    v_swap_b32 v68, v70
    v_swap_b32 v69, v71
    g1_nsw:
    s_cmp_eq_u32 s52, 4
    s_cselect_b32 s44, {18*1024}, 0
    s_cmp_eq_u32 s52, 13
    s_cselect_b32 s44, {19*1024}, s44
    s_cmp_eq_u32 s44, 0
    s_cbranch_scc1 g1_std
    v_add_u32 v6, s44, v4
    v_mov_b32 v72, 0
    v_mov_b32 v73, 0
    v_mov_b32 v74, v66
    v_mov_b32 v75, v67
    v_mov_b32 v76, 0
    v_mov_b32 v77, 0
    v_mov_b32 v78, v70
    v_mov_b32 v79, v71
    v_mov_b32 v66, 0
    v_mov_b32 v67, 0
    v_mov_b32 v70, 0
    v_mov_b32 v71, 0
    buffer_store_dwordx4 v[72:75], v6, s[{rO}:{rO+3}], s48 offen sc1
    buffer_store_dwordx4 v[76:79], v6, s[{rO}:{rO+3}], s49 offen sc1
    g1_std:
    buffer_store_dwordx4 v[64:67], v5, s[{rO}:{rO+3}], s48 offen sc1
    buffer_store_dwordx4 v[68:71], v5, s[{rO}:{rO+3}], s49 offen sc1
    """)
    if w2late == 1: a.e("s_barrier")
    a.stamp(4)
    a.e(f"""
    s_lshl_b32 s44, s{sNH}, 1
    v_xor_b32 v11, s44, v23
    v_lshl_add_u32 v{WB}, v11, 5, v22
    v_xor_b32 v11, 1, v11
    v_lshl_add_u32 v{WB+1}, v11, 5, v22
    s_lshl_b32 s44, s{sTG}, 12
    v_lshrrev_b32 v12, 1, v3
    s_lshl_b32 s45, s{sNH}, 2
    v_add_u32 v12, s45, v12
    v_and_b32 v13, 7, v2
    v_xor_b32 v12, v12, v13
    v_lshlrev_b32 v13, 7, v2
    v_lshl_add_u32 v13, v12, 4, v13
    v_and_b32 v12, 1, v3
    v_lshl_add_u32 v13, v12, 3, v13
    v_add_u32 v{XB+1}, s44, v13
    v_xor_b32 v{XB+2}, 32, v{XB+1}
    s_lshl_b32 s44, s{sTG}, 11
    s_add_u32 s44, s44, {LX}
    v_lshl_add_u32 v13, v3, 8, s44
    """)
    for g, sh in enumerate((1, -1, 2, -2)):
        a.e(f"""
        v_add_u32 v12, {(16 if sh > 0 else 0) - sh}, v2
        v_lshrrev_b32 v11, 4, v12
        v_and_b32 v12, 15, v12
        v_lshl_add_u32 v12, v12, 4, v13
        v_lshl_add_u32 v{HB2+g}, v11, 10, v12
        """)
    if w2late == 2: pub_bar(a, sWV, 1, rD, 60, "g1_pub")
    else: publish(a, 8, LCNT, rD, 60, "g1_pub")
    a.stamp(5)
    sc = "sc1" if MONO[0] else ""
    lab = a.newlabel("nog")
    a.e(f"s_cmp_lg_u32 s{sTN}, 0")
    a.e(f"s_cbranch_scc1 {lab}")
    a.bf16r(GL, GL)
    a.e(f"v_mul_f32 v{GL}, {hex(f2u(-1.4426950408889634))}, v{GL}")
    a.e(f"v_exp_f32 v{GL}, v{GL}")
    a.e("s_nop 0")
    a.e(f"v_add_f32 v{GL}, 1.0, v{GL}")
    a.e(f"v_rcp_f32 v{GL}, v{GL}")
    a.e("s_nop 0")
    a.bf16r(GL, GL)
    a.e(f"s_lshl_b32 s44, s{sWV}, 4")
    a.e(f"s_add_u32 s44, s44, s61")
    a.e(f"v_add_lshl_u32 v10, s44, v2, 2")
    a.e("s_mov_b64 exec, 0xffff")
    a.e(f"buffer_store_dword v{GL}, v10, s[{rS}:{rS+3}], 0 offen {sc}")
    a.e("s_mov_b64 exec, -1")
    a.label(lab)
    a.srd_off(rO, 8, OFF_X1, SZ_ACT)
    a.srd_off(rA, 8, OFF_ST, NST*S*8)
    a.e(f"""
    s_lshl_b32 s44, s{sTM}, 3
    s_lshl_b32 s45, s{sTG}, 1
    s_add_u32 s44, s44, s45
    s_mul_i32 s48, s44, 18432
    s_lshl_b32 s45, s{sTN}, 1
    s_add_u32 s45, s45, s{sNH}
    s_lshl_b32 s46, s45, 10
    s_add_u32 s48, s48, s46
    s_add_u32 s49, s48, 18432
    s_lshl_b32 s47, s45, 14
    s_lshl_b32 s44, s44, 4
    v_add_lshl_u32 v5, s44, v2, 3
    v_mov_b32 v{ONE}, 0x3f803f80
    s_cmp_lg_u32 s{sWV}, 0
    s_cbranch_scc1 g2_poll_ok
    v_min_u32 v12, 26, v0
    v_mul_u32_u24 v13, 7282, v12
    v_lshrrev_b32 v13, 16, v13
    v_mul_u32_u24 v10, 9, v13
    v_sub_u32 v12, v12, v10
    s_sub_u32 s44, s{sTM}, 1
    v_add_u32 v13, s44, v13
    v_max_i32 v13, 0, v13
    v_min_i32 v13, 15, v13
    v_lshlrev_b32 v13, 8, v13
    v_lshl_add_u32 v12, v12, 2, v13
    """)
    if pipe: poll_pipe(a, 12, rD, sBUD, 6, "g2_poll", psl)
    else: poll_bytes(a, 12, rD, sBUD, 13, "g2_poll", psl)
    a.reset()
    a.e("s_barrier")
    a.stamp(8)
    mainloop(2)
    a.stamp(6)
    XR = 24
    for tt in range(2):
        for j in range(2):
            a.e(f"ds_read_b64 {vr(XR+(tt*2+j)*2,2)}, v{XB+1+j} offset:{tt*2048}")
    a.e("s_nop 3")
    for q in range(4):
        acc = ACC + q*4; t = 64 + q*2
        a.e(f"v_cvt_pk_bf16_f32 v{t}, v{acc}, v{acc+1}")
        a.e(f"v_cvt_pk_bf16_f32 v{t+1}, v{acc+2}, v{acc+3}")
    a.e("s_waitcnt lgkmcnt(0)")
    if MONO[0] and not t1late: a.e("s_barrier")
    for q in range(4):
        acc = ACC + q*4; t = 64 + q*2
        a.e(f"v_lshlrev_b32 v{acc}, 16, v{t}")
        a.e(f"v_and_b32 v{acc+1}, 0xffff0000, v{t}")
        a.e(f"v_lshlrev_b32 v{acc+2}, 16, v{t+1}")
        a.e(f"v_and_b32 v{acc+3}, 0xffff0000, v{t+1}")
    for tt in range(2):
        for j in range(2):
            acc = ACC + (j*2+tt)*4; xr = XR + (tt*2+j)*2; t = 72 + j*4; P = 80 + tt*4 + j*2
            a.e(f"v_lshlrev_b32 v{t}, 16, v{xr}")
            a.e(f"v_and_b32 v{t+1}, 0xffff0000, v{xr}")
            a.e(f"v_lshlrev_b32 v{t+2}, 16, v{xr+1}")
            a.e(f"v_and_b32 v{t+3}, 0xffff0000, v{xr+1}")
            for r in range(4): a.e(f"v_add_f32 v{acc+r}, v{acc+r}, v{t+r}")
            a.e(f"v_cvt_pk_bf16_f32 v{P}, v{acc}, v{acc+1}")
            a.e(f"v_cvt_pk_bf16_f32 v{P+1}, v{acc+2}, v{acc+3}")
        a.e(f"buffer_store_dwordx4 {vr(80+tt*4)}, v4, s[{rO}:{rO+3}], s{48+tt} offen {sc}")
    for kk in range(4): a.e(f"v_mov_b32 v{88+kk}, 0")
    for kk in range(4):
        for tt in range(2):
            P = 80 + tt*4 + kk
            a.e(f"v_dot2c_f32_bf16 v{88+tt*2}, v{P}, v{ONE}")
            a.e(f"v_dot2c_f32_bf16 v{89+tt*2}, v{P}, v{P}")
    a.e("s_nop 2")
    for sw in ("32", "16"):
        for kk in range(4): a.e(f"v_mov_b32 v{92+kk}, v{88+kk}")
        a.e("s_nop 0")
        for kk in range(4): a.e(f"v_permlane{sw}_swap_b32 v{88+kk}, v{92+kk}")
        a.e("s_nop 0")
        for kk in range(4): a.e(f"v_add_f32 v{88+kk}, v{88+kk}, v{92+kk}")
    a.e("s_mov_b64 exec, 0xffff")
    for tt in range(2):
        a.e(f"buffer_store_dwordx2 {vr(88+tt*2,2)}, v5, s[{rA}:{rA+3}], s47 offen offset:{tt*128} {sc}")
    a.e("s_mov_b64 exec, -1")
    if MONO[0]:
        if t1late: pub_bar(a, sWV, 1, rD, 60, "g2_pub", F_X1)
        else: publish(a, 8 if w2late == 2 else 16, LCNT, rD, 60, "g2_pub", F_X1)
        a.stamp(7)
    a.e(f"s_branch {done}")
    return LCO + 2048

def idle(a):
    a.e("s_lshr_b32 s58, s2, 3")
    a.e("s_lshl_b32 s58, s58, 2")
    a.e("s_add_u32 s58, s58, s38")
    a.e("s_sub_u32 s58, s58, 12")
    l = a.newlabel("cpf")
    a.e(f"s_getpc_b64 s[60:61]")
    a.label(l)
    a.e(f"s_sub_u32 s60, s60, {l}-{KNAME}")
    a.e(f"s_subb_u32 s61, s61, 0")
    a.e(f"s_min_u32 s58, s58, (k3_end-{KNAME})/768")
    a.e(f"s_mul_i32 s58, s58, 768")
    a.e(f"s_add_u32 s60, s60, s58")
    a.e(f"s_addc_u32 s61, s61, 0")
    for i in range(12): a.e(f"s_load_dword s59, s[60:61], {i*64}")
KNAME = "gated_mix__ssm_conv_h3__mixer_s_mlp__prompt_kernel"

RS = 21312
HB = 4*4160
L_EX = 6*RS
L_CS2 = 6*RS
L_CNT = 163000 - 163000 % 8

def side(a, done, nt="nt", cpf=3, help=False, w2pf=True, psl=6, w4pf=0, hearly=False):
    a.reset()
    rK, rV, rSH, rU, rH, rD, rZ = 16, 20, 24, 28, 32, 40, 44
    sWV, sBUD = 38, 53
    a.ldarg(4, "k"); a.ldarg(6, "v"); a.ldarg(8, "shk"); a.ldarg(10, "ws"); a.ldarg(12, "ssmk"); a.ldarg(14, "dbg"); a.ldarg(56, "ssmD")
    a.ldarg(58, "w1"); a.ldarg(60, "q"); a.ldarg(62, "w2")
    a.e(f"""
    v_lshrrev_b32 v1, 6, v0
    v_and_b32 v0, 63, v0
    v_readfirstlane_b32 s{sWV}, v1
    v_and_b32 v2, 15, v0
    v_lshrrev_b32 v3, 4, v0
    s_mov_b32 s{sBUD}, 0x8000
    v_mov_b32 v10, {L_CNT}
    v_mov_b32 v11, 0
    ds_write2_b32 v10, v11, v11 offset0:0 offset1:1
    s_waitcnt lgkmcnt(0)
    """)
    a.srd_off(rU, 10, OFF_UR, D*URP + 16)
    a.srd(rD, 14, 256)
    a.e(f"""
    v_mov_b32 v126, 0
    s_cmp_ge_u32 s3, 72
    s_cbranch_scc1 sd_nop
    s_mul_i32 s37, s3, 7282
    s_lshr_b32 s37, s37, 16
    s_mul_i32 s39, s37, 9
    s_sub_u32 s39, s3, s39
    s_add_u32 s52, s39, 16
    s_lshl_b32 s52, s52, 8
    s_lshl_b32 s48, s37, 2
    s_add_u32 s52, s52, s48
    s_lshl_b32 s48, s37, 4
    s_add_u32 s48, s48, s{sWV}
    s_lshl_b32 s48, s48, 4
    v_lshrrev_b32 v13, 5, v0
    v_and_b32 v14, 31, v0
    v_lshl_add_u32 v4, v13, 3, s48
    s_lshl_b32 s49, s39, 6
    v_lshl_add_u32 v5, v14, 1, s49
    v_mul_u32_u24 v6, 1152, v4
    v_lshl_add_u32 v7, v5, 1, v6
    v_subrev_u32 v6, 4608, v7
    v_add_u32 v8, 4608, v7
    v_lshlrev_b32 v9, 3, v5
    """)
    a.srd(rK, 4, SZ_ACT); a.srd(rSH, 8, D*8)
    KR, VR, WR = 16, 28, 36
    a.vmem(f"buffer_load_dwordx4 {vr(WR)}, v9, s[{rSH}:{rSH+3}], 0 offen", "k")
    for r in range(1, 12):
        a.vmem(f"buffer_load_dword v{KR+r}, v{6+r//4}, s[{rK}:{rK+3}], 0 offen offset:{(r%4)*1152} {nt}", "k")
    a.srd(rV, 6, SZ_ACT)
    for r in range(8):
        rr = r + 4
        a.vmem(f"buffer_load_dword v{VR+r}, v{6+rr//4}, s[{rV}:{rV+3}], 0 offen offset:{(rr%4)*1152} {nt}", "v")
    a.e(f"""
    v_mul_u32_u24 v12, {2*528}, v14
    v_and_b32 v11, 255, v4
    v_sub_u32 v11, 248, v11
    v_lshl_add_u32 v12, v11, 1, v12
    v_add_u32 v12, {L_EX}, v12
    s_lshl_b32 s50, s{sWV}, 2
    v_add_u32 v13, s50, v13
    v_mul_u32_u24 v15, 528, v13
    v_lshl_add_u32 v15, v14, 4, v15
    v_add_u32 v15, {L_EX}, v15
    v_lshlrev_b32 v13, 12, v13
    v_lshl_add_u32 v13, v14, 4, v13
    s_lshl_b32 s50, s39, 18
    s_sub_u32 s51, 7, s37
    s_lshl_b32 s51, s51, 9
    s_add_u32 s50, s50, s51
    """)
    if hearly:
        a.srd(rH, 12, D*S*2)
        a.e(f"""
        s_min_u32 s58, s{sWV}, 11
        s_lshr_b32 s59, s58, 1
        s_mul_i32 s59, s59, {RS}
        s_and_b32 s60, s58, 1
        s_lshl_b32 s60, s60, 11
        s_add_u32 s59, s59, s60
        s_add_u32 m0, s59, {HB+512}
        s_mul_i32 s60, s3, {6*4096}
        s_lshl_b32 s58, s58, 11
        s_add_u32 s60, s60, s58
        v_lshlrev_b32 v10, 4, v0
        """)
        for i in range(2):
            a.vmem(f"buffer_load_dwordx4 v10, s[{rH}:{rH+3}], s60 offen offset:{i*1024} {nt} lds", "h")
    a.wait_vm("k")
    KF, WFl, U, VF, P = 40, 52, 56, 72, 80
    uns = [lambda d, s: f"v_lshlrev_b32 v{d}, 16, v{s}", lambda d, s: f"v_and_b32 v{d}, 0xffff0000, v{s}"]
    for ch in range(2):
        un = uns[ch]; Uc = U + ch*8
        for r in range(1, 12): a.e(un(KF+r, KR+r))
        a.e(f"v_lshlrev_b32 v{WFl}, 16, v{WR+2*ch}")
        a.e(f"v_and_b32 v{WFl+1}, 0xffff0000, v{WR+2*ch}")
        a.e(f"v_lshlrev_b32 v{WFl+2}, 16, v{WR+2*ch+1}")
        a.e(f"v_and_b32 v{WFl+3}, 0xffff0000, v{WR+2*ch+1}")
        for e in range(8): a.e(f"v_mul_f32 v{Uc+e}, v{KF+e+1}, v{WFl+3}")
        for j in (2, 1, 0):
            for e in range(8): a.e(f"v_fma_f32 v{Uc+e}, v{KF+e+4-j}, v{WFl+j}, v{Uc+e}")
    a.wait_vm("v")
    lab = a.newlabel("nv")
    a.e(f"s_cmp_lg_u32 s{sWV}, 0")
    a.e(f"s_cbranch_scc1 {lab}")
    a.e(f"buffer_load_dword v127, v126, s[{rD}:{rD+3}], 0 offen sc1")
    a.label(lab)
    for ch in range(2):
        un = uns[ch]; Uc = U + ch*8
        for r in range(8): a.e(un(VF+r, VR+r))
        for e in range(8): a.e(f"v_mul_f32 v{Uc+e}, v{Uc+e}, v{VF+e}")
        PP = P + ch*4
        for m in range(4):
            a.e(f"v_cvt_pk_bf16_f32 v{PP+m}, v{Uc+7-2*m}, v{Uc+6-2*m}")
        a.e(f"ds_write_b128 v12, {vr(PP)} offset:{ch*528}")
    a.e("s_waitcnt lgkmcnt(0)")
    a.e("s_barrier")
    for i in range(2): a.lds(f"ds_read_b128 {vr(16+4*i)}, v15 offset:{i*2*528}", i)
    for i in range(2):
        a.wait_lg(i)
        a.e(f"buffer_store_dwordx4 {vr(16+4*i)}, v13, s[{rU}:{rU+3}], s50 offen sc1")
        a.e(f"s_add_u32 s50, s50, {2*URP}")
    a.stamp(8)
    a.e(f"s_cmp_lg_u32 s{sWV}, 0")
    a.e("s_cbranch_scc1 p_val_ok")
    poll_bytes(a, 126, rD, sBUD, 127, "p_val", 4, pre=True)
    a.srd_off(rD, 10, OFF_FF, FFB)
    pub_bar(a, sWV, 0, rD, 52, "pr_pub")
    a.stamp(9)
    a.e("s_branch sd_conv")
    a.label("sd_nop")
    a.e(f"s_cmp_lg_u32 s{sWV}, 0")
    a.e("s_cbranch_scc1 s_val_ok")
    poll_bytes(a, 126, rD, sBUD, 127, "s_val", 8)
    a.label("sd_conv")
    a.e(f"s_cmp_lt_u32 s{sWV}, 12")
    a.e("s_cbranch_scc1 sd_act")
    if EARLY[0]:
        a.e("s_movk_i32 s99, 7")
        a.e(f"s_branch {done}")
    a.ldarg(62, "w4")
    for _ in range(2): a.e("s_barrier")
    if w4pf:
        a.e(f"""
        s_lshr_b32 s48, s3, 3
        s_lshl_b32 s48, s48, 2
        s_add_u32 s48, s48, s{sWV}
        s_sub_u32 s48, s48, 12
        s_and_b32 s49, s3, 3
        s_mul_i32 s49, s49, {2*576*1152}
        v_lshlrev_b32 v4, 7, v0
        s_waitcnt lgkmcnt(0)
        """)
        a.srd(rK, 62, D*F*2)
        if w4pf == 1:
            a.e("s_bfe_u32 s50, s3, 0x10002")
            a.e(f"s_mul_i32 s50, s50, {576*1152}")
            a.e("s_add_u32 s49, s49, s50")
        nblk = 81 if w4pf == 1 else 162
        for i in range((nblk + 47) // 48):
            a.e(f"s_add_u32 s50, s48, {48*i}")
            a.e(f"s_min_u32 s50, s50, {nblk-1}")
            a.e(f"s_lshl_b32 s50, s50, 13")
            a.e(f"s_add_u32 s50, s50, s49")
            a.e(f"buffer_load_dword v100, v4, s[{rK}:{rK+3}], s50 offen")
    for _ in range(5): a.e("s_barrier")
    a.e(f"s_branch {done}")
    a.label("sd_act")
    a.reset()
    a.e(f"""
    s_lshr_b32 s36, s{sWV}, 1
    s_and_b32 s37, s{sWV}, 1
    s_mul_i32 s39, s36, {RS}
    s_mul_i32 s48, s3, 6
    s_add_u32 s48, s48, s36
    s_and_b32 s49, s48, 0xfffe
    s_lshl_b32 s49, s49, 1
    s_load_dword s54, s[56:57], s49
    v_lshlrev_b32 v4, 4, v0
    s_lshl_b32 s50, s48, 12
    s_lshl_b32 s51, s37, 11
    s_add_u32 s49, s50, s51
    s_add_u32 s51, s51, s39
    """)
    a.srd(rH, 12, D*S*2)
    a.e(f"s_add_u32 m0, s51, {HB+512}")
    if hearly:
        a.e("s_cmp_lt_u32 s3, 72")
        a.e("s_cbranch_scc1 cv_hs")
    a.e("s_nop 0")
    for i in range(2):
        a.vmem(f"buffer_load_dwordx4 v4, s[{rH}:{rH+3}], s49 offen offset:{i*1024} {nt} lds")
    a.label("cv_hs")
    a.srd_off(rZ, 10, OFF_Z4, SZ_ACT)
    if cpf and not MONO[0]:
        a.e("s_lshr_b32 s58, s3, 3")
        a.e("s_mul_i32 s58, s58, 12")
        a.e(f"s_add_u32 s58, s58, s{sWV}")
        a.code_pf("k3_kernel", 58, cpf, 60, 59, f"(k3_end-k3_kernel)/{cpf*64}")
    a.e(f"""
    v_mov_b32 v8, 0
    v_mov_b32 v9, 0
    v_mov_b32 v10, 0
    v_mov_b32 v11, 0
    v_add_u32 v5, s39, v4
    s_mov_b32 exec_hi, 0xf
    ds_write_b128 v5, v[8:11] offset:{HB-64}
    s_mov_b64 exec, 0xf
    ds_write_b128 v5, v[8:11] offset:4096
    ds_write_b128 v5, v[8:11] offset:{4160+4096}
    ds_write_b128 v5, v[8:11] offset:{2*4160+4096}
    s_mov_b64 exec, -1
    v_lshrrev_b32 v5, 2, v2
    v_sub_u32 v5, 3, v5
    v_lshl_add_u32 v5, v3, 1, v5
    v_lshlrev_b32 v5, 3, v5
    v_and_b32 v6, 3, v2
    v_xor_b32 v6, 3, v6
    v_mul_u32_u24 v6, 4160, v6
    s_xor_b32 s49, s37, 1
    s_lshl_b32 s49, s49, 8
    s_add_u32 s49, s49, s39
    v_add3_u32 v12, v5, v6, s49
    v_lshlrev_b32 v5, 5, v2
    v_lshl_add_u32 v5, v3, 4, v5
    v_add_u32 v7, s49, v5
    v_add_u32 v7, {HB+32}, v7
    s_mul_i32 s49, s3, 6
    v_bfe_u32 v6, v0, 3, 1
    v_mul_u32_u24 v6, 5, v6
    v_add_u32 v6, s49, v6
    v_lshrrev_b32 v6, 6, v6
    v_add_u32 v6, 16, v6
    v_lshlrev_b32 v6, 8, v6
    v_and_b32 v5, 7, v0
    v_lshl_add_u32 v6, v5, 2, v6
    s_lshl_b32 s49, s37, 11
    s_add_u32 s50, s50, s49
    s_add_u32 s51, s49, s39
    """)
    a.stamp(2)
    a.srd_off(rD, 10, OFF_FF, FFB)
    a.e(f"s_cmp_lg_u32 s{sWV}, 0")
    a.e("s_cbranch_scc1 cv_poll_ok")
    poll_bytes(a, 6, rD, sBUD, 5, "cv_poll", psl)
    a.e("s_barrier")
    a.stamp(3)
    a.e("s_mov_b32 m0, s51")
    a.e("s_nop 0")
    for i in range(2):
        a.e(f"buffer_load_dwordx4 v4, s[{rU}:{rU+3}], s50 offen offset:{i*1024} sc1 lds")
    a.e(f"""
    v_add_u32 v5, s51, v4
    s_waitcnt vmcnt(0) lgkmcnt(0)
    s_barrier
    ds_read_b128 v[16:19], v5
    ds_read_b64 v[20:21], v5 offset:16
    ds_read_b128 v[24:27], v5 offset:1024
    ds_read_b64 v[28:29], v5 offset:1040
    """)
    for i in range(2):
        d = 16 + 8*i; o = 32 + 12*i
        a.e(f"s_waitcnt lgkmcnt({2 if i == 0 else 3})")
        for kk in range(4): a.e(f"v_alignbit_b32 v{o+kk}, v{d+kk+1}, v{d+kk}, 16")
        a.e(f"ds_write_b128 v5, {vr(o)} offset:{4160+1024*i}")
        for kk in range(4): a.e(f"v_mov_b32 v{o+4+kk}, v{d+kk+1}")
        a.e(f"ds_write_b128 v5, {vr(o+4)} offset:{2*4160+1024*i}")
        for kk in range(4): a.e(f"v_alignbit_b32 v{o+8+kk}, v{d+kk+2}, v{d+kk+1}, 16")
        a.e(f"ds_write_b128 v5, {vr(o+8)} offset:{3*4160+1024*i}")
    a.e("s_waitcnt lgkmcnt(0)")
    a.e("s_barrier")
    a.stamp(4)
    a.reset()
    ACC = 16; FB = 48
    NLA = 2 if MONO[0] else 6
    def treg(rl, x): return (FB if rl % 2 == 0 or x >= NLA else 112) + x*4
    def greg(rl, x): return (FB+32 if rl % 2 == 0 or x >= NLA else 112+4*NLA) + x*4
    def loads(rl):
        rho = 4 + rl; out = []
        for x in range(8):
            p = 8*x + rho
            boff = 64*(63-p)
            t = treg(rl, x)
            out.append((f"ds_read_b64 {vr(t,2)}, v12 offset:{boff}", (rl, x)))
            out.append((f"ds_read_b64 {vr(t+2,2)}, v12 offset:{boff+8}", (rl, x)))
            n = 8*x - rho
            out.append((f"ds_read_b128 {vr(greg(rl, x))}, v7 offset:{64*(n+7)}", (rl, x)))
        return out
    q = loads(0)
    for _ in range(12): a.lds(*q.pop(0))
    for rl in range(4):
        nxt = loads(rl+1) if rl < 3 else []
        q += nxt[:3*NLA]
        for c in range(8):
            while any(t == (rl, c) for _, t in q): a.lds(*q.pop(0))
            a.wait_lg_if((rl, c))
            for x in range(c+1):
                first = (rl == 0 and x == 0)
                a.mfma(vr(ACC+c*4), vr(treg(rl, x)), vr(greg(rl, c-x)), "0" if first else None)
                if q and len(a.lg) < 14: a.lds(*q.pop(0))
                elif q and len(a.lg) >= 14 and (x % 2 == 1):
                    a.e("s_waitcnt lgkmcnt(8)"); a.lg = a.lg[-8:]
                    a.lds(*q.pop(0))
        q += nxt[3*NLA:]
    assert not q
    a.stamp(5)
    a.e(f"""
    s_lshl_b32 s49, s37, 12
    s_add_u32 s49, s49, s39
    s_add_u32 s49, s49, 4160
    v_add_u32 v5, s49, v4
    s_xor_b32 s49, s37, 1
    s_lshl_b32 s49, s49, 12
    s_add_u32 s49, s49, s39
    s_add_u32 s49, s49, 4160
    v_add_u32 v6, s49, v4
    s_barrier
    s_cmp_eq_u32 s37, 0
    s_cbranch_scc1 cv_h0
    """)
    for c in range(4): a.e(f"ds_write_b128 v5, {vr(ACC+c*4)} offset:{c*1024}")
    for r in range(16): a.e(f"v_mov_b32 v{64+r}, v{ACC+16+r}")
    a.e("s_branch cv_hj")
    a.label("cv_h0")
    for c in range(4): a.e(f"ds_write_b128 v5, {vr(ACC+16+c*4)} offset:{c*1024}")
    for r in range(16): a.e(f"v_mov_b32 v{64+r}, v{ACC+r}")
    a.label("cv_hj")
    a.e(f"""
    v_lshlrev_b32 v8, 5, v2
    v_lshl_add_u32 v8, v3, 3, v8
    v_sub_u32 v9, 504, v8
    s_xor_b32 s49, s37, 1
    s_lshl_b32 s49, s49, 11
    s_add_u32 s49, s49, s39
    v_add_u32 v9, s49, v9
    s_mul_i32 s49, s37, {2048+128}
    s_add_u32 s49, s49, s39
    v_add_u32 v8, s49, v8
    s_bitcmp1_b32 s48, 0
    s_cselect_b32 s49, 0, 16
    s_lshl_b32 s54, s54, s49
    s_and_b32 s54, s54, 0xffff0000
    """)
    U = 48
    for cl in range(4): a.e(f"ds_read_b64 {vr(U+2*cl,2)}, v9 offset:{512*(3-cl)}")
    a.e("s_waitcnt lgkmcnt(0)")
    a.e("s_barrier")
    for cl in range(4): a.e(f"ds_read_b128 {vr(80+cl*4)}, v6 offset:{cl*1024}")
    for cl in range(4):
        t = 96 + cl*4
        a.e(f"v_and_b32 v{t}, 0xffff0000, v{U+2*cl+1}")
        a.e(f"v_lshlrev_b32 v{t+1}, 16, v{U+2*cl+1}")
        a.e(f"v_and_b32 v{t+2}, 0xffff0000, v{U+2*cl}")
        a.e(f"v_lshlrev_b32 v{t+3}, 16, v{U+2*cl}")
        for r in range(4): a.e(f"v_fma_f32 v{t+r}, v{t+r}, s54, v{64+cl*4+r}")
    a.e("s_waitcnt lgkmcnt(0)")
    for cl in range(4):
        t = 96 + cl*4
        for r in range(4): a.e(f"v_add_f32 v{t+r}, v{t+r}, v{80+cl*4+r}")
        a.e(f"v_cvt_pk_bf16_f32 v{t}, v{t}, v{t+1}")
        a.e(f"v_cvt_pk_bf16_f32 v{t+1}, v{t+2}, v{t+3}")
        a.e(f"ds_write_b64 v8, {vr(t,2)} offset:{HB+512*cl}")
    a.e(f"""
    v_bfe_u32 v5, v0, 2, 1
    v_mul_u32_u24 v5, {RS}, v5
    v_bfe_u32 v6, v0, 3, 1
    v_mul_u32_u24 v6, {2048+128}, v6
    v_add_u32 v5, v5, v6
    v_lshl_add_u32 v5, v3, 5, v5
    v_and_b32 v6, 3, v0
    v_lshl_add_u32 v5, v6, 3, v5
    s_lshr_b32 s49, s{sWV}, 2
    s_mul_i32 s50, s49, {2*RS}
    s_and_b32 s51, s{sWV}, 3
    s_lshl_b32 s52, s51, 9
    s_add_u32 s50, s50, s52
    v_add_u32 v5, s50, v5
    v_lshlrev_b32 v6, 2, v0
    s_mul_i32 s50, s3, 3
    s_add_u32 s50, s50, s49
    s_lshl_b32 s50, s50, 13
    s_lshl_b32 s51, s51, 10
    s_add_u32 s50, s50, s51
    s_add_u32 s51, s50, 4096
    s_waitcnt lgkmcnt(0)
    s_barrier
    """)
    a.reset()
    for j in range(4):
        a.lds(f"ds_read_b64_tr_b16 {vr(16+2*j,2)}, v5 offset:{HB+128*j}", j)
    sc = "sc1" if MONO[0] else ""
    if MONO[0]:
        a.wait_lg0()
        a.e("s_barrier")
    for j in range(4):
        a.wait_lg_if(j)
        a.e(f"buffer_store_dword v{16+2*j}, v6, s[{rZ}:{rZ+3}], s50 offen offset:{256*j} {sc}")
        a.e(f"buffer_store_dword v{17+2*j}, v6, s[{rZ}:{rZ+3}], s51 offen offset:{256*j} {sc}")
    a.stamp(6)
    if MONO[0]:
        a.e("s_lshl_b32 s52, s3, 2")
        publish(a, 12, L_CNT+4, rD, 52, "z_pub", F_Z)
    a.e(f"s_branch {done}")

def colsum12(a, done, win=18, w2pf=True, ns=4, vfirst=False):
    a.reset()
    rW, rC = 16, 20
    a.ldarg(4, "w3"); a.ldarg(10, "ws"); a.ldarg(14, "dbg"); a.ldarg(6, "w2")
    a.e(f"""
    v_lshrrev_b32 v1, 8, v0
    v_and_b32 v6, 255, v0
    v_readfirstlane_b32 s38, v1
    v_lshrrev_b32 v1, 3, v6
    v_and_b32 v2, 7, v6
    v_mul_u32_u24 v3, 9216, v1
    v_lshl_add_u32 v3, v2, 4, v3
    s_sub_u32 s37, 255, s2
    s_mul_i32 s39, s37, {ns}
    s_add_u32 s39, s39, s38
    s_add_u32 s40, s37, {16*ns - 16}
    s_cmp_ge_u32 s37, 16
    s_cselect_b32 s39, s40, s39
    s_cselect_b32 s40, 1, {ns}
    s_cmp_ge_u32 s39, 72
    s_cselect_b32 s40, 0, s40
    s_waitcnt lgkmcnt(0)
    s_cmp_lg_u32 s2, 216
    s_cbranch_scc1 cs_nz
    """)
    a.srd_off(24, 10, OFF_FLAG, flag_bytes())
    a.srd_off(32, 10, OFF_FF, FFB)
    a.srd(28, 14, 256)
    a.e(f"""
    v_mov_b32 v88, 0
    v_mov_b32 v89, 0
    v_mov_b32 v90, 0
    v_mov_b32 v91, 0
    v_lshlrev_b32 v94, 4, v0
    buffer_store_dwordx4 v[88:91], v94, s[32:35], 0 offen sc1
    buffer_store_dwordx4 v[88:91], v94, s[24:27], 0 offen sc1
    s_mov_b32 s41, 0
    """)
    pub_bar(a, 101, 0, 28, 41, "cs_nz")
    a.e(f"""
    s_cmp_lt_u32 s38, s40
    s_cbranch_scc1 cs_go
    """)
    if w2pf:
        a.e(f"""
        s_cmp_lt_u32 s37, 16
        s_cbranch_scc1 cs_npf
        s_sub_u32 s41, s2, 216
        s_lshl_b32 s41, s41, 2
        s_add_u32 s41, s41, s101
        s_sub_u32 s41, s41, 12
        s_cmp_lt_u32 s101, 12
        s_cbranch_scc1 cs_npf
        s_lshl_b32 s41, s41, 13
        v_and_b32 v4, 63, v0
        v_lshlrev_b32 v4, 7, v4
        """)
        a.srd(16, 6, D*D*2)
        a.e(f"""
        buffer_load_dword v100, v4, s[16:19], s41 offen
        cs_npf:
        """)
    a.e(f"""
    s_barrier
    s_branch cs_end
    cs_go:
    """)
    a.srd(rW, 4, D*F*2)
    a.srd_off(rC, 10, OFF_CS3, F*4)
    a.e(f"""
    s_min_u32 s36, s39, 71
    s_lshl_b32 s36, s36, 7
    s_cmp_ge_u32 s39, 72
    s_cselect_b32 s18, 0, s18
    """)
    def cld(i):
        a.vmem(f"buffer_load_dwordx4 {vr(16+4*i)}, v3, s[{rW}:{rW+3}], s36 offen", i)
        a.e(f"s_add_u32 s36, s36, {32*9216}")
    if vfirst:
        a.srd(28, 14, 256)
        a.e("v_mov_b32 v17, 0")
        a.e("s_mov_b32 s54, 0x8000")
        poll_bytes(a, 17, 28, 54, 18, "c_val0", 8)
    for i in range(win): cld(i)
    a.e(f"""
    s_lshl_b32 s40, s38, 13
    s_add_u32 s40, s40, {L_CS2}
    v_lshl_add_u32 v7, v6, 5, s40
    v_lshl_add_u32 v93, v6, 2, s40
    v_lshlrev_b32 v94, 2, v6
    """)
    for i in range(18):
        a.wait_vm(i)
        if i + win < 18: cld(i + win)
        for r in range(4):
            x = 16+4*i+r
            if i == 0:
                a.e(f"v_lshlrev_b32 v{8+2*r}, 16, v{x}")
                a.e(f"v_and_b32 v{9+2*r}, 0xffff0000, v{x}")
            else:
                a.e(f"v_lshlrev_b32 v4, 16, v{x}")
                a.e(f"v_and_b32 v5, 0xffff0000, v{x}")
                a.e(f"v_add_f32 v{8+2*r}, v{8+2*r}, v4")
                a.e(f"v_add_f32 v{9+2*r}, v{9+2*r}, v5")
    a.e(f"""
    ds_write_b128 v7, v[8:11]
    ds_write_b128 v7, v[12:15] offset:16
    s_waitcnt lgkmcnt(0)
    s_barrier
    v_cmp_gt_u32 vcc, 64, v6
    s_and_saveexec_b64 s[52:53], vcc
    s_cbranch_execz cs_ns
    """)
    for qq in range(4):
        for r in range(8):
            a.e(f"ds_read_b32 v{16+qq*8+r}, v93 offset:{(qq*8+r)*256}")
        a.e("s_waitcnt lgkmcnt(0)")
    for r in range(1, 32): a.e(f"v_add_f32 v16, v16, v{16+r}")
    a.e(f"""
    s_lshl_b32 s36, s39, 8
    buffer_store_dword v16, v94, s[{rC}:{rC+3}], s36 offen {"sc1" if MONO[0] else ""}
    """)
    if MONO[0]:
        a.srd(28, 14, 256)
        a.srd_off(32, 10, OFF_FF, FFB)
        a.e("v_mov_b32 v17, 0")
        a.e("s_mov_b32 s54, 0x8000")
        poll_bytes(a, 17, 28, 54, 18, "c_val", 8)
        a.e(f"""
        s_mul_i32 s41, s39, 7282
        s_lshr_b32 s41, s41, 16
        s_mul_i32 s42, s41, 9
        s_sub_u32 s42, s39, s42
        s_lshl_b32 s41, s41, 8
        s_lshl_b32 s42, s42, 2
        s_add_u32 s41, s41, s42
        s_add_u32 s41, s41, {F_CS}
        v_mov_b32 v18, 1
        s_mov_b64 exec, 1
        buffer_store_dword v18, v17, s[32:35], s41 offen sc1
        """)
    a.e(f"""
    cs_ns:
    s_mov_b64 exec, s[52:53]
    cs_end:
    s_cmp_lt_u32 s2, 240
    s_cbranch_scc1 kf_sd
    """)
    if EARLY[0]:
        a.e("s_movk_i32 s99, 1")
        a.e("s_cmp_ge_u32 s101, 12")
        a.e(f"s_cbranch_scc1 {done}")
    if MONO[0]: a.e("s_barrier")
    a.e(f"s_branch {done}")

def kfront(a, g={}, sd={}, cs={}):
    name = "k1_kernel"
    a.begin(name)
    done = "k1_done"
    a.e(f"""
    s_cmp_ge_u32 s2, 256
    s_cbranch_scc1 {done}_x
    """)
    a.pstart()
    a.e(f"""
    s_cmp_ge_u32 s2, 144
    s_cbranch_scc1 kf_side
    s_mov_b32 s3, s2
    """)
    lds = gemm12(a, done, **g)
    a.launch(name, (256,1,1), 768, lds)
    a.label("kf_side")
    a.e("s_cmp_lt_u32 s2, 216")
    a.e("s_cbranch_scc1 kf_sd")
    colsum12(a, done, **cs)
    a.label("kf_sd")
    a.e("s_sub_u32 s3, s2, 144")
    side(a, done, **sd)
    a.label(done)
    a.pend(1)
    a.label(done + "_x")
    a.e("s_endpgm")
    a.end(name, 160, 102)


def kmono(a, k34, g={}, sd={}, cs={}, fast=False, **kw):
    MONO[0] = True
    EARLY[0] = kw.get('early', False)
    name = KNAME
    a.launches.append("; @launch grid=(256,1,1) block=(1024,1,1) lds=163840")
    a.begin(name)
    a.e(f"""
    s_cmp_ge_u32 s2, 256
    s_cbranch_scc1 k3_done_x
    """)
    a.pstart()
    if fast:
        a.e(f"""
        s_load_dword s98, s[0:1], 0
        s_load_dword s99, s[0:1], 64
        v_lshrrev_b32 v1, 6, v0
        s_mov_b32 s3, s2
        v_readfirstlane_b32 s101, v1
        s_cmp_ge_u32 s2, 216
        s_cbranch_scc1 kf_side
        s_cmp_lt_u32 s2, 144
        s_cbranch_scc1 kf_g
        """)
        done = "k3_entry"
        a.label("kf_sd")
        a.e("s_sub_u32 s3, s2, 144")
        side(a, done, **sd)
        a.label("kf_g")
        gemm12(a, done, **g)
        a.label("kf_side")
        colsum12(a, done, **cs)
    else:
        a.e(f"""
        v_lshrrev_b32 v1, 6, v0
        s_nop 0
        v_readfirstlane_b32 s101, v1
        s_cmp_ge_u32 s2, 144
        s_cbranch_scc1 kf_side
        s_mov_b32 s3, s2
        """)
        done = "k3_entry"
        gemm12(a, done, **g)
        a.label("kf_side")
        a.e("s_cmp_lt_u32 s2, 216")
        a.e("s_cbranch_scc1 kf_sd")
        colsum12(a, done, **cs)
        a.label("kf_sd")
        a.e("s_sub_u32 s3, s2, 144")
        side(a, done, **sd)
    k34(a, mono=True, front=True, **kw)
    MONO[0] = False
```

```python
import sys
from gen import *
import k12, kf
from k34 import k34, k5

def build(path, prof=False, dup=False, pre=None, k1={}, k2={}, wsbase=0, scs={}, fl=(5, 2), rt=False, kff={}, lst=True, dbgwg=None, warm=None, echo=None, **kw):
    k12.FL.update(FG=fl[0], FS=fl[1])
    k12.SC.update(dict(hs='', ur='', x1='', z='')); k12.SC.update(scs)
    a = K()
    a.wsbase = wsbase; a.rt = rt; a.dbgwg = dbgwg; a.echo = echo
    a.prof = prof
    mono = kw.pop("mono", False)
    if mono:
        kf.kmono(a, k34, **kff, **kw)
    elif kw.get("front"):
        kf.kfront(a, **kff)
    else:
        (k12.k1b if k2.get('cs') else k12.k1)(a, **k1); k12.k2(a, **k2)
    if not mono: k34(a, **kw)
    if kw.get('ext'): k5(a)
    if dup: a.launches.append(a.launches[-1])
    if pre: a.launches = [a.launches[i] for i in pre]
    roles = {1: [(0,144,0,4,"g1ld"),(0,144,4,12,"gemm1"),(144,216,0,8,"prep"),(216,256,0,8,"help")], 2: [(144,288,0,4,"gemm2"),(0,144,0,4,"conv"),(288,360,0,4,"colsum")],
             3: [(0,256,8,12,"g0"),(0,256,12,16,"g1"),(0,256,4,8,"g2"),(0,256,0,4,"ld")]}
    if kw.get("front"): roles[1] = [(0,144,0,4,"gld"),(0,144,4,12,"gemm"),(144,216,0,8,"prep"),(216,240,0,12,"conv"),(240,256,0,8,"colsum")]
    if mono:
        roles = {3: [(0,144,0,4,"G.ld"),(0,144,4,8,"G.g2"),(0,144,8,12,"G.g0"),(144,216,0,4,"P.ld"),(144,216,4,8,"P.g2"),(216,240,0,4,"C.ld"),(240,256,0,4,"S.ld")]}
        if kw.get("early"): roles = {3: [(0,144,12,16,"G.ld"),(0,144,4,8,"G.g2"),(144,216,12,16,"P.ld"),(144,216,4,8,"P.g2"),(216,240,12,16,"C.ld"),(240,256,12,16,"S.ld")]}
        if lst: a.launches = [f"; @launch kernel={kf.KNAME} grid=(256,1,1) block=(1024,1,1) lds=163840"]
    if warm is not None:
        nm = "warm_kernel"
        a.launches.insert(0, f"; @launch kernel={nm} grid=(256,1,1) block=(256,1,1) lds=0")
        a.begin(nm)
        if warm >= 1:
            lstb = [("ws", 0x2500000), ("w1", D*D*2), ("w2", D*D*2), ("w3", D*F*2), ("w4", D*F*2), ("ssmk", D*S*2), ("out", SZ_ACT), ("q", SZ_ACT), ("k", SZ_ACT), ("v", SZ_ACT), ("gw", D*2), ("shk", D*8), ("ssmD", D*2)]
            for i, (n, sz) in enumerate(lstb): a.ldarg(24 + 2*i, n)
            a.e("v_lshlrev_b32 v5, 18, v0")
            a.e("s_waitcnt lgkmcnt(0)")
            for i, (n, sz) in enumerate(lstb):
                a.srd(8 + 4*(i % 2), 24 + 2*i, sz)
                a.e(f"buffer_load_dword v6, v5, s[{8+4*(i%2)}:{11+4*(i%2)}], 0 offen")
        if warm >= 2:
            a.e("v_lshrrev_b32 v1, 6, v0"); a.e("s_nop 0"); a.e("v_readfirstlane_b32 s20, v1")
            a.e("s_lshr_b32 s58, s2, 3"); a.e("s_lshl_b32 s58, s58, 2"); a.e("s_add_u32 s58, s58, s20")
            a.e("s_getpc_b64 s[60:61]"); a.label("wpc")
            a.e(f"s_sub_u32 s60, s60, wpc-{kf.KNAME}"); a.e("s_subb_u32 s61, s61, 0")
            a.e(f"s_min_u32 s58, s58, (k3_end-{kf.KNAME})/448"); a.e("s_mul_i32 s58, s58, 448")
            a.e("s_add_u32 s60, s60, s58"); a.e("s_addc_u32 s61, s61, 0")
            for i in range(7): a.e(f"s_load_dword s59, s[60:61], {i*64}")
        a.e("s_waitcnt vmcnt(0) lgkmcnt(0)")
        a.e("s_endpgm"); a.end(nm, 16, 64)
    open(path, "w").write(a.text(HEADER + ("\n; roles " + repr(roles) if prof else "")))

BASE = dict(k1=dict(ntkv="nt", NW0=2, NX0=2, rot=1), k2=dict(nth="nt", cs=4), mapB=True, spf=0, lspf=6, g0w=51, g1n=15,
            skip=(49, 50, 63, 67), dr0=7, p0=10, l0=14, p1=11)
if __name__ == "__main__":
    base = dict(BASE)
    ff = dict(sd=dict(w2pf=False), g=dict(w2late=False))
    f3 = dict(g=dict(w2late=2, t1late=True))
    bl = {**base, "lc": True, "p0": 19, "l0": 25, "p1": 11, "zt": 52, "fg": 78, "serp": True}
    build("gated_mix__ssm_conv_h3__mixer_s_mlp__prompt.s", mono=True, kff=f3, lst=False, **bl)
    build("va.s", mono=True, kff=f3, **bl)
    g3 = dict(w2late=2, t1late=True)
    build("vb.s", mono=True, kff=f3, **{**bl, "g0w": 52, "skip": (50, 51, 63, 67), "zt": 58, "fg": 78})
    build("vc.s", mono=True, kff=f3, **{**bl, "g0w": 52, "skip": (51, 63, 67), "zt": 52})
    build("vd.s", mono=True, kff=f3, **{**bl, "g0w": 52, "skip": (51, 52, 63, 67), "zt": 50})
    build("ve.s", mono=True, kff=f3, **{**bl, "zt": 70})
```

```python
from gen import *

OFF_FLAG = 0x2000000
FL = dict(FG=5, FS=2)
def flag_bytes(): return 384 << FL['FG']
RING = 73728
SLOT = 12288
NSLOT = 7
L_CS = RING + NSLOT*SLOT
L_CONST = L_CS + 3072

def k34(a, nt_w="", nogelu=False, nored=False, mapB=True, xtile0=False, LA=6, trace=False, spf=1, st0=1, st1=0, dr0=5, dr1=5, p0=15, l0=21, bo=4, hv=1, ldp=1, cw=3, sc="sc1", free_at=12, p1=9, a2=24, spn=27, pro=6, skip=(40, 41, 52, 53, 63, 67), d2=40, lspf=0, lx2=0, g0w=42, g1n=17, ext=False, wb=False, front=False, mono=False, psl=4, xa=0, pipe=False, lc=False, zt=30, tp=False, fg=0, fn=8, serp=False, ep=False, cw7=0, pad=True, early=False, pre2=2, osc='', share=0):
    name = "k3_kernel"
    done = "k3_done"
    hs = "sc1" if mono else ""
    if mono:
        from kf import OFF_FF, FFB, F_X1, F_CS, F_Z, poll_bytes, poll_pipe, KNAME
        name = KNAME
        a.label("k3_entry")
        a.e("s_waitcnt lgkmcnt(0)")
        a.e("v_mbcnt_lo_u32_b32 v0, -1, 0")
        a.e("v_mbcnt_hi_u32_b32 v0, -1, v0")
        a.e("s_lshl_b32 s14, s101, 6")
        a.e("v_add_u32 v0, s14, v0")
        a.stamp(11)
    else:
        a.launch(name, (256,1,1), 1024, L_CONST + 1024)
        a.begin(name)
        a.e(f"s_cmp_ge_u32 s2, 256")
        a.e(f"s_cbranch_scc1 {done}_x")
        a.pstart()
    a.reset()
    rW3, rW4, rX, rS, rP, rF, rQ, rZ, rG, rO = 16, 20, 24, 28, 32, 36, 40, 44, 48, 52
    sSP, sTL, sG, sI, sBASE, sRET, sBUD = 56, 57, 58, 59, 60, 61, 3
    a.ldarg(4, "w3"); a.ldarg(6, "w4"); a.ldarg(8, "q"); a.ldarg(10, "ws"); a.ldarg(12, "out")
    if mapB == 2:
        a.e(f"""
        s_and_b32 s14, s2, 1
        s_lshl_b32 s14, s14, 2
        s_bfe_u32 s15, s2, 0x20003
        s_add_u32 s{sSP}, s14, s15
        s_bfe_u32 s14, s2, 0x20001
        s_lshl_b32 s14, s14, 3
        s_lshr_b32 s15, s2, 5
        s_add_u32 s{sTL}, s14, s15
        """)
    elif mapB:
        a.e(f"""
        s_and_b32 s14, s2, 3
        s_lshl_b32 s14, s14, 1
        s_bfe_u32 s15, s2, 0x10003
        s_add_u32 s{sSP}, s14, s15
        s_bfe_u32 s14, s2, 0x10002
        s_lshl_b32 s14, s14, 4
        s_lshr_b32 s15, s2, 4
        s_add_u32 s{sTL}, s14, s15
        """)
    else:
        a.e(f"""
        s_and_b32 s{sSP}, s2, 7
        s_lshr_b32 s{sTL}, s2, 3
        """)
    if xtile0: a.e(f"s_mov_b32 s{sTL}, 0")
    a.e(f"""
    v_lshrrev_b32 v1, 6, v0
    v_and_b32 v0, 63, v0
    v_readfirstlane_b32 s14, v1
    s_mov_b32 s{sBUD}, 0x4000
    s_lshr_b32 s15, s14, 2
    s_lshl_b32 s15, s15, 1
    s_lshr_b32 s{sG}, {0xc9 if early else 0x4b}, s15
    s_and_b32 s{sG}, s{sG}, 3
    s_and_b32 s{sI}, s14, 3
    v_and_b32 v9, 15, v0
    v_lshrrev_b32 v10, 4, v0
    v_lshlrev_b32 v7, 4, v0
    v_mov_b32 v2, 0
    v_mov_b32 v3, 0
    v_mov_b32 v11, 0
    v_mov_b32 v12, 0
    v_mov_b32 v13, 0
    s_cmp_lg_u32 s{sG}, 3
    s_cbranch_scc1 k3_comp
    """)
    cut = len(a.lines)
    a.label("k3_comp")
    def late_srds():
        a.srd_off(rP, 10, OFF_PART, 32*3*6*4*8*1024)
        a.srd_off(rF, 10, OFF_FLAG, flag_bytes())
        a.srd(rQ, 8, SZ_ACT)
        a.srd_off(rZ, 10, OFF_Z4, SZ_ACT)
        a.srd_off(rG, 10, OFF_G, S*4)
        a.srd(rO, 12, SZ_ACT)
    FB = [16, 44]; ACC = 72
    VA = [120, 121, 122, 123, 124, 125, 126]
    a.e(f"""
    v_add_u32 v8, 0x10000, v7
    v_lshrrev_b32 v5, 2, v0
    v_mul_u32_u24 v5, 384, v5
    v_and_b32 v4, 3, v0
    v_lshl_add_u32 v5, v4, 3, v5
    v_add_u32 v5, {RING}, v5
    v_bfe_u32 v4, v0, 3, 2
    v_xor_b32 v4, s{sI}, v4
    v_lshl_add_u32 v1, v4, 5, v5
    s_mov_b32 s{sRET}, 0
    s_waitcnt lgkmcnt(0)
    """)
    a.srd_off(rS, 10, OFF_ST, (18 if front else 9)*S*8)
    ST = 72
    if mono and not early:
        a.srd_off(rW4, 10, OFF_FF, FFB)
        a.e(f"""
        s_cmp_lg_u32 s101, 12
        s_cbranch_scc1 m_poll_ok
        v_min_u32 v13, 17, v0
        v_cmp_lt_u32 vcc, 8, v13
        s_lshr_b32 s14, s{sTL}, 1
        s_lshl_b32 s14, s14, 8
        s_add_u32 s14, s14, {F_X1}
        s_lshl_b32 s15, s{sSP}, 8
        s_add_u32 s15, s15, {F_CS - 36}
        v_mov_b32 v14, s14
        v_mov_b32 v15, s15
        v_cndmask_b32 v14, v14, v15, vcc
        v_lshl_add_u32 v13, v13, 2, v14
        """)
        if pipe: poll_pipe(a, 13, rW4, sBUD, 112, "m_poll", psl)
        else: poll_bytes(a, 13, rW4, sBUD, 14, "m_poll", psl)
        a.e("s_barrier")
        a.stamp(12)
    def stats_loads():
        a.e(f"""
    s_cmp_lg_u32 s{sG}, 2
    s_cbranch_scc1 k3_ns
    s_lshl_b32 s14, s{sTL}, 2
    s_add_u32 s14, s14, s{sI}
    s_lshl_b32 s14, s14, 4
    v_add_u32 v13, s14, v9
    v_lshlrev_b32 v13, 3, v13
    v_lshl_add_u32 v13, v10, 14, v13
    s_mov_b32 s14, 0x10000
    s_mov_b32 s15, 0x20000
    buffer_load_dwordx2 {vr(ST,2)}, v13, s[{rS}:{rS+3}], 0 offen {hs}
    buffer_load_dwordx2 {vr(ST+2,2)}, v13, s[{rS}:{rS+3}], s14 offen {hs}
    buffer_load_dwordx2 {vr(ST+4,2)}, v13, s[{rS}:{rS+3}], s15 offen {hs}
    s_mov_b32 s14, 0x30000
    s_mov_b32 s15, 0x40000
    buffer_load_dwordx2 {vr(ST+6,2)}, v13, s[{rS}:{rS+3}], s14 offen {hs}
    buffer_load_dwordx2 {vr(ST+8,2)}, v13, s[{rS}:{rS+3}], s15 offen {hs}
    k3_ns:
        """)
    if not early: stats_loads()
    a.srd_off(rX, 10, OFF_X1, SZ_ACT)
    late_srds()
    a.e(f"""
    s_mul_i32 s14, s{sSP}, {576*1152}
    s_mul_i32 s15, s{sTL}, {18*1152}
    s_add_u32 s14, s14, s15
    s_lshl_b32 s15, s{sI}, 6
    s_add_u32 s14, s14, s15
    s_add_u32 s16, s6, s14
    s_addc_u32 s17, s7, 0
    """)
    grp = sorted(range(81), key=lambda g: min(((g*256 + k*64) % 1152) // 384 for k in range(4)))
    def spf_ticks(t_end, per, lst):
        while T[0] < t_end:
            for _ in range(per):
                if lst: a.e(f"s_load_dword s2, s[16:17], {lst.pop(0)*256}")
            bar()
    T = [0]
    LIM = [10**9]
    def bar(n=1):
        n = min(n, LIM[0] - T[0])
        for _ in range(n): a.e("s_barrier")
        T[0] += n
    def upto(t):
        assert t >= T[0], (t, T[0])
        bar(t - T[0])
    def set_va(base):
        for j in range(7):
            a.e(f"v_add_u32 v{VA[j]}, {((base + j) % NSLOT)*SLOT}, v1")
    a.e(f"s_cmp_eq_u32 s{sG}, 1")
    a.e(f"s_cbranch_scc1 k3_g1")
    a.e(f"s_cmp_eq_u32 s{sG}, 0")
    a.e(f"s_cbranch_scc1 k3_g0")
    T[0] = -2
    a.reset()
    set_va(36)
    if early:
        upto(-1)
        stats_loads()
    upto(cw + (3 if early else 0))
    a.e("s_waitcnt vmcnt(0)")
    for n in (1, 2, 3, 4):
        a.e(f"v_add_f32 v{ST}, v{ST}, v{ST+2*n}")
        a.e(f"v_add_f32 v{ST+1}, v{ST+1}, v{ST+2*n+1}")
    a.xsum4(ST, 14); a.xsum4(ST+1, 14)
    bar()
    a.ln_consts(ST, ST+1, 84, 85, 86, 87, 14)
    a.e(f"s_lshl_b32 s14, s{sI}, 8")
    a.e(f"s_add_u32 s14, s14, {L_CONST}")
    a.e(f"v_lshl_add_u32 v13, v9, 4, s14")
    bar()
    a.e("s_mov_b64 exec, 0xffff")
    a.e(f"ds_write_b128 v13, v[84:87]")
    a.e("s_mov_b64 exec, -1")
    bar(2)
    a.e("s_waitcnt lgkmcnt(0)")
    l2 = grp[spn:] if spf else []
    spf_ticks(26, spf, l2)
    assert not l2, len(l2)
    upto(35)
    a.e("s_branch k3_body")
    a.label("k3_g1")
    T[0] = -2
    set_va(18)
    upto(0)
    l1 = grp[:spn] if spf else []
    spf_ticks(9, spf, l1)
    assert not l1
    upto(17)
    a.e("s_branch k3_body")
    a.label("k3_g0")
    set_va(0)
    a.e("s_barrier")
    a.label("k3_body")
    a.reset()
    def reads(k):
        fb = FB[k & 1]
        out = []
        va = VA[k % 7]
        for tt in range(4):
            off = k*4096 + tt*1024
            base = 7 if off < 65536 else 8
            out.append((f"ds_read_b128 {vr(fb+tt*4)}, v{base} offset:{off & 65535}", (k, "x")))
        for j in range(3):
            out.append((f"ds_read_b64_tr_b16 {vr(fb+16+j*4,2)}, v{va} offset:{128*j}", (k, j)))
            out.append((f"ds_read_b64_tr_b16 {vr(fb+16+j*4+2,2)}, v{va} offset:{128*j+6144}", (k, j)))
        return out
    a.e("s_setprio 2")
    for (s, t) in reads(0): a.lds(s, t)
    a.e("s_barrier")
    def tick(k, barrier=True):
        fb = FB[k & 1]
        rd = reads(k+1) if k < 17 else []
        ri = 0
        for m in range(12):
            j, tt = m // 4, m % 4
            if tt == 0: a.wait_lg_if((k, j))
            if serp and j == 1: tt = 3 - tt
            a.mfma(vr(ACC+(j*4+tt)*4), vr(fb+16+j*4), vr(fb+tt*4), "0" if k == 0 else None)
            if ri < len(rd):
                a.lds(*rd[ri]); ri += 1
            if k == free_at and m == 10 and barrier: a.e(f"s_cmp_eq_u32 s{sRET}, 2")
        if k > free_at:
            a.e(f"s_cbranch_scc1 k3_nb{k}")
        a.e("s_barrier")
        if k > free_at: a.label(f"k3_nb{k}")
    for k in range(18): tick(k)
    a.e("s_setprio 0")
    a.e(f"s_cmp_ge_u32 s{sRET}, 1")
    a.e(f"s_cbranch_scc1 k3_red")
    CO, CSR, TMP = 16, 32, 44
    a.e(f"""
    s_mul_i32 s14, s{sG}, 12
    s_add_u32 s14, s14, s{sI}
    s_lshl_b32 s62, s14, 6
    s_add_u32 s62, s62, {L_CS}
    v_lshl_add_u32 v4, v10, 4, s62
    v_lshlrev_b32 v3, 4, v9
    v_add_u32 v3, {L_CONST}, v3
    """)
    for tt in range(4): a.e(f"ds_read_b128 {vr(CO+tt*4)}, v3 offset:{tt*256}")
    for jj in range(3): a.e(f"ds_read_b128 {vr(CSR+jj*4)}, v4 offset:{jj*256}")
    a.e(f"""
    s_mul_i32 s14, s{sG}, 6
    s_add_u32 s15, s14, s{sI}
    s_lshl_b32 s15, s15, 12
    v_add_u32 v5, s15, v7
    s_lshr_b32 s15, s{sI}, 1
    s_add_u32 s15, s15, s14
    s_add_u32 s15, s15, 4
    s_lshl_b32 s15, s15, 12
    s_and_b32 s14, s{sI}, 1
    s_lshl_b32 s14, s14, 3
    s_add_u32 s15, s15, s14
    v_add_u32 v6, s15, v7
    s_mov_b32 s{sRET}, 1
    """)
    if not share:
        a.e(f"""
        s_cmp_eq_u32 s{sG}, 1
        s_cbranch_scc1 k3_ge1
        """)
    if share < 2:
        a.e(f"""
        s_cmp_eq_u32 s{sG}, 2
        s_cbranch_scc1 k3_ge2
        """)
    def gelu_ins(jjs):
        out = []
        for jj in jjs:
            for half in range(2):
                seqs = []
                for r in range(8):
                    tt = half*2 + r // 4
                    x, t = ACC + jj*16 + half*8 + r, TMP + r
                    c = CO + tt*4
                    seqs.append([f"v_fma_f32 v{x}, v{c}, v{CSR+jj*4+r%4}, v{x}"] + a.gelu_seq(x, t, c+1, c+2, c+3))
                ins = interleave(seqs)
                if nogelu: ins = ins[:8]
                out += [(x, 2 if ("exp" in x or "rcp" in x) else 1) for x in ins]
                for q in range(2):
                    b = ACC + half*8 + q*4 + (0, 2, 32)[jj]; t = TMP + q*4
                    out.append((f"v_cvt_pk_bf16_f32 v{b}, v{t}, v{t+1}", 1))
                    out.append((f"v_cvt_pk_bf16_f32 v{b+1}, v{t+2}, v{t+3}", 1))
        return out
    def paced(ins, nticks):
        tot = sum(c for _, c in ins); acc_c = 0; tk = 0
        for (x, c) in ins:
            a.e(x); acc_c += c
            if tk < nticks and acc_c >= tot*(tk+1)/nticks - 1e-9:
                tk += 1
                if tk == nticks: a.e("s_setprio 3")
                bar()
        assert tk == nticks
    def hw01():
        for tt in range(4): a.e(f"ds_write_b128 v5, {vr(ACC+tt*4)} offset:{tt*1024}")
    def hw2():
        for tt in range(4): a.e(f"ds_write_b64 v6, {vr(ACC+32+tt*4,2)} offset:{tt*1024}")
    def fin(g, tend):
        if hv >= 1 and g < 2 and T[0] + 1 < tend:
            bar()
        a.e("s_setprio 0")
        set_va(54 + 18*g)
        a.e("s_waitcnt lgkmcnt(0)")
        upto(tend)
        a.e("s_branch k3_body")
    def hwall():
        if hv == 2:
            hw01(); bar(); hw2()
        elif hv == 3:
            for tt in range(4):
                a.e(f"ds_write_b128 v5, {vr(ACC+tt*4)} offset:{tt*1024}")
                if tt == 1: bar()
            bar(); hw2()
        elif hv == 4:
            hw01()
        else:
            hw01(); hw2()
    def gstart(t):
        T[0] = t
        bar()
        a.e("s_waitcnt lgkmcnt(0)")
    def g2tail():
        gi = gelu_ins([2])
        gi = gi[:8] + [("s_waitcnt lgkmcnt(0)", 0)] + gi[8:]
        paced(gi, 4)
    if share == 2:
        gstart(0)
        paced(gelu_ins([0, 1]), 9)
        a.e(f"s_cmp_lg_u32 s{sG}, 2")
        a.e("s_cbranch_scc1 k3_gs1")
        hw01()
        a.label("k3_gs1")
        a.e("s_setprio 0")
        g2tail()
        n = T[0]
        a.e(f"s_cmp_eq_u32 s{sG}, 2")
        a.e("s_cbranch_scc1 k3_ge2")
        a.e(f"s_cmp_eq_u32 s{sG}, 1")
        a.e("s_cbranch_scc1 k3_ge1")
        T[0] = 18 + n; upto(g0w); hwall(); fin(0, 53)
        a.label("k3_ge1")
        T[0] = 36 + n; upto(37 + g1n); hwall(); fin(1, 71)
        a.label("k3_ge2")
        T[0] = 54 + n
        a.e(f"s_mov_b32 s{sRET}, 2")
        hw2(); fin(2, 89)
    else:
        if share == 1:
            gstart(0)
            paced(gelu_ins([0, 1, 2]), g1n)
            n = T[0]
            a.e(f"s_cmp_eq_u32 s{sG}, 1")
            a.e("s_cbranch_scc1 k3_ge1")
            T[0] = 18 + n; upto(g0w); hwall(); fin(0, 53)
            a.label("k3_ge1")
            T[0] = 36 + n; hwall(); fin(1, 71)
        else:
            gstart(18)
            paced(gelu_ins([0, 1, 2]), 18)
            upto(g0w)
            hwall(); fin(0, 53)
            a.label("k3_ge1")
            gstart(36)
            paced(gelu_ins([0, 1, 2]), g1n)
            hwall(); fin(1, 71)
        a.label("k3_ge2")
        gstart(54)
        paced(gelu_ins([0, 1]), 9)
        hw01()
        a.e("s_setprio 0")
        g2tail()
        a.e(f"s_mov_b32 s{sRET}, 2")
        hw2(); fin(2, 89)
    P = [True]
    def pb(n=1):
        if P[0]: bar(n)
    sJ = 62
    TT, SUM, PA = 88, 104, 16
    class RS_: pass
    def mk(v, sb):
        r = RS_(); r.X1, r.Q, r.Z, r.GG, r.OM, r.GA, r.VO = v; r.s = sb; return r
    SA = mk((72, 76, 80, 84, 85, 96, 3), 8)
    SB = mk((48, 52, 56, 84, 85, 0, 0), 16)
    SC = mk((60, 64, 68, 84, 85, 0, 0), 64 if not a.prof else 28)
    def unpack(d, s, n=2):
        for k in range(n):
            a.e(f"v_lshlrev_b32 v{d+2*k}, 16, v{s+k}")
            a.e(f"v_and_b32 v{d+2*k+1}, 0xffff0000, v{s+k}")
    def rnd8(d, t):
        for k in range(4): a.e(f"v_cvt_pk_bf16_f32 v{t+k}, v{d+2*k}, v{d+2*k+1}")
        unpack(d, t, 4)
    def cons_common():
        a.e(f"""
        s_mul_i32 s61, s{sSP}, 3
        s_add_u32 s61, s61, s{sI}
        s_lshr_b32 s4, s61, 3
        s_lshl_b32 s4, s4, 2
        s_and_b32 s6, s61, 3
        s_add_u32 s4, s4, s6
        s_bfe_u32 s6, s61, 0x10002
        s_lshl_b32 s7, s{sTL}, 2
        s_lshl_b32 s6, s6, 1
        s_add_u32 s7, s7, s6
        s_mul_i32 s5, s7, 18432
        s_lshl_b32 s7, s7, 4
        v_and_b32 v1, 31, v0
        v_add_u32 v1, s7, v1
        v_lshrrev_b32 v5, 5, v0
        v_lshlrev_b32 v2, 2, v1
        v_mul_u32_u24 v3, 1152, v1
        v_lshl_add_u32 v3, v5, 4, v3
        v_lshlrev_b32 v4, {2 if front else 3}, v1
        v_lshl_add_u32 v4, v5, 15, v4
        v_add_u32 v12, 8192, v4
        v_and_b32 v11, 1, v10
        v_mul_u32_u24 v11, 18432, v11
        v_lshl_add_u32 v11, v5, 9, v11
        v_lshl_add_u32 v11, v9, 4, v11
        v_and_b32 v5, 7, v0
        v_lshlrev_b32 v5, {FL['FS']}, v5
        """)
    def cons_addr(j, R):
        b = R.s
        a.e(f"""
        s_add_u32 s6, s4, {12*j}
        s_lshr_b32 s7, s6, 1
        s_lshl_b32 s7, s7, 10
        s_add_u32 s{b}, s5, s7
        s_and_b32 s7, s6, 1
        s_lshl_b32 s7, s7, 3
        s_add_u32 s{b}, s{b}, s7
        s_lshl_b32 s{b+2}, s6, 5
        s_lshl_b32 s{b+4}, s6, 16
        s_add_u32 s{b+3}, s{b+4}, 16384
        s_mul_i32 s6, s{sTL}, 3
        s_add_u32 s6, s6, {j}
        s_lshl_b32 s{b+5}, s6, 2
        s_and_b32 s7, s61, 3
        s_add_u32 s{b+5}, s{b+5}, s7
        s_lshl_b32 s{b+5}, s{b+5}, {FL['FG']}
        s_mul_i32 s{b+7}, s6, 24
        s_add_u32 s{b+7}, s{b+7}, s61
        s_lshl_b32 s{b+7}, s{b+7}, 13
        s_add_u32 s{b+6}, s{b+7}, 4096
        """)
    def cons_aux(R):
        b = R.s
        a.vmem(f"buffer_load_dwordx4 {vr(R.Q)}, v3, s[{rQ}:{rQ+3}], s{b+2} offen", "aux")
        if front:
            a.vmem(f"buffer_load_dword v{R.Z}, v4, s[{rZ}:{rZ+3}], s{b+4} offen {hs}", "aux")
            a.vmem(f"buffer_load_dword v{R.Z+1}, v12, s[{rZ}:{rZ+3}], s{b+4} offen {hs}", "aux")
            a.vmem(f"buffer_load_dword v{R.Z+2}, v4, s[{rZ}:{rZ+3}], s{b+3} offen {hs}", "aux")
            a.vmem(f"buffer_load_dword v{R.Z+3}, v12, s[{rZ}:{rZ+3}], s{b+3} offen {hs}", "aux")
        else:
            a.vmem(f"buffer_load_dwordx2 {vr(R.Z,2)}, v4, s[{rZ}:{rZ+3}], s{b+4} offen {hs}", "aux")
            a.vmem(f"buffer_load_dwordx2 {vr(R.Z+2,2)}, v4, s[{rZ}:{rZ+3}], s{b+3} offen {hs}", "aux")
        if R is SA: a.vmem(f"buffer_load_dword v{R.GG}, v2, s[{rG}:{rG+3}], 0 offen {hs}", "aux")
        a.vmem(f"buffer_load_dwordx2 {vr(R.X1,2)}, v11, s[{rX}:{rX+3}], s{b} offen {hs}", "aux")
        a.vmem(f"buffer_load_dwordx2 {vr(R.X1+2,2)}, v11, s[{rX}:{rX+3}], s{b} offen offset:256 {hs}", "aux")
    def cons_ga(R, D=None):
        D = D or R
        a.e(f"v_sub_f32 v{D.OM}, 1.0, v{R.GG}")
        a.bf16r(D.OM, D.OM)
        unpack(D.GA, R.Q, 4)
        unpack(TT, R.Z, 4)
        for r in range(8): a.e(f"v_mul_f32 v{D.GA+r}, v{D.GA+r}, v{TT+r}")
        pb()
        rnd8(D.GA, TT)
        for r in range(8): a.e(f"v_mul_f32 v{D.GA+r}, v{R.GG}, v{D.GA+r}")
        pb()
        rnd8(D.GA, TT)
        unpack(D.Q, R.X1, 4)
        pb()
    def poll_issue():
        a.vmem(f"buffer_load_dword v14, v5, s[{rF}:{rF+3}], s13 offen sc1", "pl")
    def cons_loads(backoff):
        lab = a.newlabel("poll")
        a.stamp(8)
        a.label(lab)
        a.e("s_waitcnt vmcnt(0)")
        a.e("v_cmp_ne_u32 vcc, 1, v14")
        a.e(f"s_cbranch_vccz {lab}_ok")
        a.e(f"s_sub_u32 s{sBUD}, s{sBUD}, 1")
        a.e(f"s_cbranch_scc1 {lab}_ok")
        if backoff: a.e(f"s_sleep {backoff}")
        poll_issue()
        a.e(f"s_branch {lab}")
        a.label(f"{lab}_ok")
        a.stamp(9)
        a.reset()
        for p in range(8):
            a.vmem(f"buffer_load_dwordx4 {vr(PA+4*p)}, v7, s[{rP}:{rP+3}], s{15 if p < 4 else 14} offen offset:{(p%4)*1024} sc1", p)
    def cons_fin():
        R = SA
        for p in range(8):
            a.wait_vm_if(p)
            unpack(SUM if p == 0 else TT, PA + 4*p, 4)
            if p:
                for k in range(8): a.e(f"v_add_f32 v{SUM+k}, v{SUM+k}, v{TT+k}")
            if p % 2 == 1: pb()
        a.stamp(10)
        rnd8(SUM, TT)
        for r in range(8): a.e(f"v_add_f32 v{SUM+r}, v{SUM+r}, v{R.Q+r}")
        rnd8(SUM, TT)
        pb()
        for r in range(8): a.e(f"v_mul_f32 v{SUM+r}, v{R.OM}, v{SUM+r}")
        rnd8(SUM, TT)
        for r in range(8): a.e(f"v_add_f32 v{SUM+r}, v{SUM+r}, v{R.GA+r}")
        for k in range(4): a.e(f"v_cvt_pk_bf16_f32 v{112+k}, v{SUM+2*k}, v{SUM+2*k+1}")
        a.e(f"buffer_store_dwordx4 {vr(112)}, v3, s[{rO}:{rO+3}], s10 offen")
    a.label("k3_red")
    a.stamp(0)
    if nored: a.e(f"s_branch {done}_x")
    a.reset()
    a.e(f"""
    s_mul_i32 s14, s{sTL}, 3
    s_add_u32 s14, s14, s{sG}
    s_mul_i32 s15, s14, 24
    s_add_u32 s15, s15, s{sI}
    s_lshl_b32 s15, s15, 3
    s_add_u32 s15, s15, s{sSP}
    s_lshl_b32 s15, s15, 10
    s_setprio 3
    """)
    def cv(c):
        jj, h = c >> 1, c & 1
        q = 16 + c*4
        for e in range(2):
            b = ACC + (jj*4 + 2*h + e)*4
            a.e(f"v_cvt_pk_bf16_f32 v{q+2*e}, v{b}, v{b+1}")
            a.e(f"v_cvt_pk_bf16_f32 v{q+2*e+1}, v{b+2}, v{b+3}")
    cv(0)
    for c in range(6):
        q = 16 + c*4
        if c < 5: cv(c+1)
        else: a.e("s_nop 1")
        a.e(f"v_permlane16_swap_b32 v{q}, v{q+2}")
        a.e(f"v_permlane16_swap_b32 v{q+1}, v{q+3}")
        a.e(f"buffer_store_dwordx4 {vr(q)}, v7, s[{rP}:{rP+3}], s15 offen {sc}")
        a.e("s_add_u32 s15, s15, 32768")
    a.e(f"""
    s_setprio 0
    s_lshl_b32 s14, s14, 2
    s_add_u32 s14, s14, s{sI}
    s_lshl_b32 s14, s14, {FL['FG']}
    s_lshl_b32 s63, s{sSP}, {FL['FS']}
    s_add_u32 s63, s63, s14
    v_mov_b32 v6, 0
    v_mov_b32 v15, 1
    """)
    a.stamp(1)
    if ext:
        a.e(f"s_cmp_eq_u32 s{sG}, 2")
        a.e(f"s_cbranch_scc1 {done}")
        for _ in range(4): a.e("s_barrier")
        if wb:
            a.e("s_waitcnt vmcnt(0)")
            a.e("s_barrier")
            a.e(f"s_cmp_lg_u32 s{sI}, 0")
            a.e(f"s_cbranch_scc1 {done}_x")
            a.e("buffer_wbl2 sc1")
            for _ in range(free_at + 1 - 5): a.e("s_barrier")
        a.e(f"s_branch {done}_x")
    a.e(f"s_cmp_eq_u32 s{sG}, 2")
    a.e("s_cbranch_scc1 k3_flag")
    T[0] = 0
    bar()
    if not lc: cons_common()
    if mono and not lc:
        a.e(f"""
        v_min_u32 v13, 11, v0
        v_lshrrev_b32 v14, 2, v13
        v_mul_u32_u24 v14, 192, v14
        v_and_b32 v13, 3, v13
        v_mul_u32_u24 v13, 6, v13
        v_min_u32 v13, 15, v13
        s_lshl_b32 s6, s4, 4
        v_add3_u32 v13, v13, v14, s6
        v_min_u32 v13, 575, v13
        v_mul_u32_u24 v13, 10923, v13
        v_lshrrev_b32 v13, 16, v13
        v_lshlrev_b32 v13, 2, v13
        v_add_u32 v13, {F_Z}, v13
        buffer_load_dword v127, v13, s[{rW4}:{rW4+3}], 0 offen sc1
        """)
    upto(dr0)
    a.label("k3_flag")
    a.e("s_waitcnt vmcnt(0)")
    a.e("s_mov_b64 exec, 1")
    a.e(f"buffer_store_dword v15, v6, s[{rF}:{rF+3}], s63 offen sc1")
    a.e("s_mov_b64 exec, -1")
    a.stamp(2)
    a.e(f"s_cmp_eq_u32 s{sG}, 2")
    a.e(f"s_cbranch_scc1 {done}")
    tsave = T[0]
    if lc:
        for _ in range(free_at + 1 - tsave): a.e("s_barrier")
        a.e(f"s_branch {done}_x")
        lcut = len(a.lines)
    a.e(f"s_cmp_eq_u32 s{sI}, 3")
    a.e(f"s_cbranch_scc1 k3_w3")
    a.e(f"s_cmp_eq_u32 s{sG}, 1")
    a.e(f"s_cbranch_scc1 k3_w3")
    P[0] = True; LIM[0] = 18 + free_at + 1
    a.reset()
    bar()
    cons_addr(0, SA); bar()
    upto(max(p0, T[0]))
    if mono:
        a.e("v_cmp_ne_u32 vcc, 1, v127")
        a.e("s_cbranch_vccz z_chk_ok")
        poll_bytes(a, 13, rW4, sBUD, 127, "z_chk", 4)
    poll_issue()
    def nxt_aux():
        a.e("s_add_u32 s8, s8, 6144")
        a.e("s_add_u32 s10, s10, 384")
        a.e(f"s_add_u32 s11, s11, {12<<16}")
        a.e(f"s_add_u32 s12, s12, {12<<16}")
    def nxt_part():
        a.e("s_add_u32 s10, s10, 384")
        a.e(f"s_add_u32 s13, s13, {4 << FL['FG']}")
        a.e(f"s_add_u32 s14, s14, {24<<13}")
        a.e(f"s_add_u32 s15, s15, {24<<13}")
    SB.s = SC.s = 8
    cons_aux(SA); nxt_aux(); cons_aux(SB); nxt_aux(); cons_aux(SC)
    a.e("s_sub_u32 s10, s10, 768")
    upto(l0)
    cons_loads(0)
    bar()
    cons_ga(SA)
    upto(max(l0 + 6, T[0]))
    cons_fin()
    nxt_part()
    bar()
    cons_ga(SB, SA)
    upto(max(18 + p1, T[0]))
    poll_issue()
    a.e("s_mov_b32 s9, 0")
    upto(18+free_at+1); P[0] = False
    a.label("k3_tail")
    cons_loads(bo)
    cons_fin()
    a.e("s_cmp_eq_u32 s9, 1")
    a.e(f"s_cbranch_scc1 {done}")
    a.e("s_mov_b32 s9, 1")
    nxt_part()
    cons_ga(SC, SA)
    poll_issue()
    a.e("s_branch k3_tail")
    a.label("k3_w3")
    for _ in range(free_at + 1 - tsave): a.e("s_barrier")
    a.e(f"s_branch {done}_x")
    if lc: a.lines = a.lines[:lcut]
    a.label("k3_loader")
    a.reset()
    for e in range(3):
        a.e(f"""
        v_add_u32 v12, {64*e}, v0
        v_mul_u32_u24 v13, 2731, v12
        v_lshrrev_b32 v13, 16, v13
        v_mul_u32_u24 v14, 24, v13
        v_sub_u32 v14, v12, v14
        v_and_b32 v11, 6, v13
        v_xor_b32 v14, v14, v11
        v_lshlrev_b32 v14, 4, v14
        v_subrev_u32 v14, {1024*e}, v14
        v_mul_u32_u24 v11, 9216, v13
        v_add_u32 v{16+e}, v14, v11
        v_mul_u32_u24 v11, 1152, v13
        v_add_u32 v{20+e}, v14, v11
        """)
    a.e("s_waitcnt lgkmcnt(0)")
    a.stamp(7)
    a.srd(rW3, 4, D*F*2)
    a.srd_off(rX, 10, OFF_X1, SZ_ACT)
    a.srd(rW4, 6, F*D*2)
    a.srd_off(rG, 10, OFF_CS3, F*4)
    a.e(f"""
    s_mul_i32 s14, s{sSP}, {576*1152}
    s_mul_i32 s15, s{sTL}, {18*1152}
    s_add_u32 s14, s14, s15
    s_lshl_b32 s15, s{sI}, 6
    s_add_u32 s14, s14, s15
    s_add_u32 s28, s6, s14
    s_addc_u32 s29, s7, 0
    """)
    lgrp = list(grp) if lspf else []
    a.e(f"""
    s_mul_i32 s4, s{sSP}, 1152
    s_mul_i32 s6, s{sI}, {8*9216}
    s_add_u32 s4, s4, s6
    s_mul_i32 s5, s{sSP}, {576*1152}
    s_mul_i32 s6, s{sI}, {8*1152}
    s_add_u32 s5, s5, s6
    s_mul_i32 s6, s{sI}, 3072
    s_add_u32 s6, s6, {RING}
    s_lshl_b32 s14, s{sTL}, 2
    s_add_u32 s14, s14, s{sI}
    s_mul_i32 s62, s14, 18432
    s_lshl_b32 s63, s{sI}, 10
    s_lshr_b32 s14, s{sI}, 1
    s_mul_i32 s14, s14, {48*1152}
    s_add_u32 s60, s5, s14
    s_setprio {ldp}
    """)
    def xissue(u):
        a.e(f"s_add_u32 m0, s63, {u*4096}")
        a.e(f"s_add_u32 s7, s62, {u*1024}")
        a.vmem(f"buffer_load_dwordx4 v7, s[{rX}:{rX+3}], s7 offen {hs} lds", u)
    def csissue(u):
        a.e(f"s_min_u32 s14, s{sI}, 2")
        a.e(f"s_lshl_b32 s14, s14, 10")
        a.e(f"s_add_u32 m0, s14, {L_CS}")
        a.e(f"s_mul_i32 s15, s{sSP}, 2304")
        a.e(f"s_add_u32 s15, s15, s14")
        a.vmem(f"buffer_load_dwordx4 v7, s[{rG}:{rG+3}], s15 offen {hs} lds", u)
    xn = [0]
    fill = []
    if lc and fg:
        GA_, T_ = 96, 104
        def up(d, s_, n):
            o = []
            for k in range(n):
                o += [f"v_lshlrev_b32 v{d+2*k}, 16, v{s_+k}", f"v_and_b32 v{d+2*k+1}, 0xffff0000, v{s_+k}"]
            return o
        for j in range(3):
            fill += up(GA_, 24+4*j, 4) + up(T_, 48+4*j, 4)
            fill += [f"v_mul_f32 v{GA_+r}, v{GA_+r}, v{T_+r}" for r in range(8)]
            fill += [f"v_cvt_pk_bf16_f32 v{T_+k}, v{GA_+2*k}, v{GA_+2*k+1}" for k in range(4)] + up(GA_, T_, 4)
            fill += [f"v_mul_f32 v{GA_+r}, v62, v{GA_+r}" for r in range(8)]
            fill += [f"v_cvt_pk_bf16_f32 v{24+4*j+k}, v{GA_+2*k}, v{GA_+2*k+1}" for k in range(4)]
        assert fg >= zt + 6
    def issue(u):
        ph, ks = u // 18, u % 18
        which, th = ph // 3, ph % 3
        pitch = 9216 if which == 0 else 1152
        rW = (rW3, rW4)[which]
        if not (mono and u < pro):
            while xn[0] < min(18, u + 1 + xa):
                xissue(xn[0]); xn[0] += 1
        a.e(f"s_add_u32 m0, s6, {(u % NSLOT)*SLOT}")
        if which == 1 and ks % 6 < 4:
            a.e(f"s_add_u32 s7, s60, {((ks//6)*192 + (ks%6)*16)*1152 + th*384}")
        else:
            a.e(f"s_add_u32 s7, s{4+which}, {ks*32*pitch + th*384}")
        for e in range(3):
            a.vmem(f"buffer_load_dwordx4 v{16+4*which+e}, s[{rW}:{rW+3}], s7 offen offset:{e*1024} {nt_w} lds", u)
            if fg and u - LA >= fg and e < 2:
                for _ in range(fn):
                    if fill: a.e(fill.pop(0))
            if u >= lspf and (e == 0 or (e == 1 and 18 <= u < 18 + lx2)) and lgrp:
                a.e(f"s_load_dword s2, s[28:29], {lgrp.pop(0)*256}")
        if u == (8 if mono else 2): csissue(u)
    nxt = [0]
    def issue_upto(lim, cnt):
        while cnt > 0 and nxt[0] < min(lim, 108):
            issue(nxt[0]); nxt[0] += 1; cnt -= 1
    if not early: issue_upto(pro, pro)
    LQ, LX1, LZ, LG, LFL, PA0, PA1 = 24, 36, 48, 62, 63, 64, 96
    if lc:
        a.srd_off(rP, 10, 0, 0x2200000)
        a.srd(rQ, 8, SZ_ACT)
        a.srd(rO, 12, SZ_ACT)
        a.e(f"""
        s_cmp_eq_u32 s{sI}, 3
        s_cselect_b32 s{rP+2}, 0, s{rP+2}
        s_cselect_b32 s{rQ+2}, 0, s{rQ+2}
        s_cselect_b32 s{rO+2}, 0, s{rO+2}
        s_cselect_b32 s12, 0, 1
        s_mul_i32 s61, s{sSP}, 3
        s_add_u32 s61, s61, s{sI}
        s_min_u32 s61, s61, 23
        s_lshr_b32 s30, s61, 3
        s_lshl_b32 s30, s30, 2
        s_and_b32 s31, s61, 3
        s_add_u32 s30, s30, s31
        s_lshl_b32 s8, s30, 5
        s_lshl_b32 s9, s30, 16
        s_add_u32 s9, s9, {OFF_Z4}
        s_mul_i32 s14, s{sTL}, 12
        s_add_u32 s10, s14, s31
        s_lshl_b32 s10, s10, {FL['FG']}
        s_add_u32 s10, s10, {OFF_FLAG}
        s_mul_i32 s11, s{sTL}, 72
        s_add_u32 s11, s11, s61
        s_lshl_b32 s11, s11, 13
        s_add_u32 s11, s11, {OFF_PART}
        s_bfe_u32 s14, s61, 0x10002
        s_lshl_b32 s15, s{sTL}, 6
        s_lshl_b32 s31, s14, 5
        s_add_u32 s15, s15, s31
        v_and_b32 v1, 31, v0
        v_add_u32 v1, s15, v1
        v_lshrrev_b32 v5, 5, v0
        v_lshlrev_b32 v2, 2, v1
        v_mul_u32_u24 v3, 1152, v1
        v_lshl_add_u32 v3, v5, 4, v3
        v_lshl_add_u32 v4, v5, 15, v2
        v_add_u32 v12, 8192, v4
        v_add_u32 v8, 16384, v4
        v_add_u32 v6, 24576, v4
        v_add_u32 v2, {OFF_G}, v2
        s_lshr_b32 s15, s30, 1
        s_lshl_b32 s15, s15, 12
        s_lshl_b32 s14, s14, 11
        s_add_u32 s15, s15, s14
        s_and_b32 s14, s30, 1
        s_lshl_b32 s14, s14, 3
        s_add_u32 s15, s15, s14
        v_and_b32 v11, 1, v10
        v_lshlrev_b32 v11, 10, v11
        v_lshl_add_u32 v11, v5, 9, v11
        v_lshl_add_u32 v11, v9, 4, v11
        v_add_u32 v11, s15, v11
        v_and_b32 v5, 7, v0
        v_lshlrev_b32 v5, {FL['FS']}, v5
        v_min_u32 v13, 11, v0
        v_lshrrev_b32 v14, 2, v13
        v_mul_u32_u24 v14, 192, v14
        v_and_b32 v13, 3, v13
        v_mul_u32_u24 v13, 6, v13
        v_min_u32 v13, 15, v13
        s_lshl_b32 s14, s30, 4
        v_add3_u32 v13, v13, v14, s14
        v_mul_u32_u24 v13, 10923, v13
        v_lshrrev_b32 v13, 16, v13
        v_lshlrev_b32 v13, 2, v13
        v_add_u32 v13, {OFF_FF + F_Z}, v13
        """)
        for j in range(3):
            a.vmem(f"buffer_load_dwordx4 {vr(LQ+4*j)}, v3, s[{rQ}:{rQ+3}], s8 offen offset:{384*j}", "q")
    def lchk(vaddr, soff, lab):
        a.e(f"v_cmp_ne_u32 vcc, s12, v{LFL}")
        a.e(f"s_cbranch_vccz {lab}_ok")
        a.label(lab)
        if bo: a.e(f"s_sleep {bo}")
        a.e(f"buffer_load_dword v{LFL}, v{vaddr}, s[{rP}:{rP+3}], {soff} offen sc1")
        a.e("s_waitcnt vmcnt(0)")
        a.e(f"v_cmp_ne_u32 vcc, s12, v{LFL}")
        a.e(f"s_cbranch_vccz {lab}_ok")
        a.e(f"s_sub_u32 s{sBUD}, s{sBUD}, 1")
        a.e(f"s_cbranch_scc0 {lab}")
        a.label(f"{lab}_ok")
    def lpart(PA):
        a.e("s_add_u32 s14, s11, 4096")
        for p in range(8):
            a.vmem(f"buffer_load_dwordx4 {vr(PA+4*p)}, v7, s[{rP}:{rP+3}], s{11 if p < 4 else 14} offen offset:{(p%4)*1024} sc1", ("p", p))
        a.e(f"s_add_u32 s11, s11, {24<<13}")
        a.e(f"s_add_u32 s10, s10, {4 << FL['FG']}")
    def lextra(u):
        if not lc: return
        if u == 20:
            for j in range(3):
                a.e(f"ds_read_b64 {vr(LX1+4*j,2)}, v11 offset:{24576*j}")
                a.e(f"ds_read_b64 {vr(LX1+4*j+2,2)}, v11 offset:{24576*j+256}")
        if u == zt - 6:
            a.vmem(f"buffer_load_dword v{LFL}, v13, s[{rP}:{rP+3}], 0 offen sc1", "f")
            a.vmem(f"buffer_load_dword v{LG}, v2, s[{rP}:{rP+3}], 0 offen sc1", "f")
        if u == zt:
            assert "f" not in a.vm
            lchk(13, "0", "lz")
            for j in range(3):
                for m, va in enumerate((4, 12, 8, 6)):
                    a.vmem(f"buffer_load_dword v{LZ+4*j+m}, v{va}, s[{rP}:{rP+3}], s9 offen sc1", "z")
                a.e(f"s_add_u32 s9, s9, {12<<16}")
        if u in (72 + p0, 90 + p1):
            a.vmem(f"buffer_load_dword v{LFL}, v5, s[{rP}:{rP+3}], s10 offen sc1", "f")
        if u == 72 + l0:
            assert "f" not in a.vm
            lchk(5, "s10", "lp0")
            lpart(PA0)
    if early:
        a.e("s_load_dwordx2 s[30:31], s[0:1], 112")
        a.e(f"""
        v_min_u32 v15, 17, v0
        v_cmp_lt_u32 vcc, 8, v15
        s_lshr_b32 s14, s{sTL}, 1
        s_lshl_b32 s14, s14, 8
        s_add_u32 s14, s14, {F_X1}
        s_lshl_b32 s15, s{sSP}, 8
        s_add_u32 s15, s15, {F_CS - 36}
        v_mov_b32 v14, s14
        v_mov_b32 v60, s15
        v_cndmask_b32 v14, v14, v60, vcc
        v_lshl_add_u32 v15, v15, 2, v14
        s_waitcnt lgkmcnt(0)
        """)
        a.srd_off(rZ, 30, OFF_FF, FFB)
        a.e(f"""
        k3_fb:
        s_cmp_le_u32 s99, 1
        s_cbranch_scc1 k3_fbe
        s_barrier
        s_sub_u32 s99, s99, 1
        s_branch k3_fb
        k3_fbe:
        s_barrier
        """)
        a.vmem(f"buffer_load_dword v60, v15, s[{rZ}:{rZ+3}], 0 offen sc1", "g")
        issue_upto(pre2, pre2)
        a.wait_vm("g")
        a.e("v_cmp_ne_u32 vcc, 1, v60")
        a.e("s_cbranch_vccz k3_xgo")
        sv = list(a.vm); n0 = nxt[0]
        issue_upto(pro, pro)
        poll_bytes(a, 15, rZ, sBUD, 60, "m_poll", psl)
        for u in range(pro): xissue(u)
        a.e("s_waitcnt vmcnt(%d)" % (pro - 1))
        a.e("s_branch k3_xj")
        a.label("k3_xgo")
        a.vm = sv; nxt[0] = n0
        for u in range(pre2): xissue(u)
        xn[0] = 99
        for u in range(pre2, pro):
            issue_upto(u+1, 1); xissue(u)
        a.wait_vm(0)
        a.label("k3_xj")
        xn[0] = pro
        a.vm = list(range(1, pro))
    elif mono:
        a.e("s_barrier")
        while xn[0] < pro + xa:
            xissue(xn[0]); xn[0] += 1
    a.stamp(8)
    a.wait_vm_if(0)
    a.stamp(9)
    a.e("s_barrier")
    a.stamp(10)
    marks = [-1, 17, 35, 53, 71, 89, 101]
    def ltick(u):
        if trace and u >= 0:
            a.e("s_waitcnt lgkmcnt(0)")
            a.e(f"v_writelane_b32 v{60 + u//64}, s92, {u % 64}")
        if u + 2 < 108: a.wait_vm_if(u+2)
        a.e("s_barrier")
        if trace: a.e("s_memtime s[92:93]")
        if u in marks: a.stamp(marks.index(u))
    last = 108 - LA
    for u in range(-1, last):
        if u not in skip: issue_upto(u + LA + 1, 2)
        lextra(u)
        ltick(u)
    def tdump():
        if trace:
            a.e("s_load_dwordx2 s[16:17], s[0:1], 112")
            a.e("s_waitcnt lgkmcnt(0)")
            a.srd_off(20, 16, 0x5000000, 0x100000)
            a.e("s_lshl_b32 s16, s100, 2")
            a.e(f"s_add_u32 s16, s16, s{sI}")
            a.e("s_lshl_b32 s16, s16, 9")
            a.e("v_lshlrev_b32 v12, 2, v0")
            a.e("buffer_store_dword v60, v12, s[20:23], s16 offen")
            a.e("buffer_store_dword v61, v12, s[20:23], s16 offen offset:256")
    lastbar = 90 + free_at
    assert lastbar >= last - 1
    for u in range(last, lastbar + 1):
        if u == lastbar:
            if lc and cw7: a.wait_vm(107)
            else: a.wait_vm0()
        if u < lastbar: ltick(u)
        else: a.e("s_barrier")
    a.e("s_setprio 0")
    tdump()
    if lc and not nored:
        a.e(f"s_cmp_eq_u32 s{sI}, 3")
        a.e(f"s_cbranch_scc1 {done}_x")
        LS, LT, LO = 16, 8, 1
        if cw7:
            for p in range(8):
                unpack(LS if p == 0 else LT, PA0 + 4*p, 4)
                if p:
                    for k in range(8): a.e(f"v_add_f32 v{LS+k}, v{LS+k}, v{LT+k}")
                if p == cw7:
                    a.wait_vm0()
                    lchk(5, "s10", "lp1")
                    lpart(PA1)
        a.stamp(0)
        if not cw7:
            a.reset()
            lchk(5, "s10", "lp1")
        a.stamp(1)
        if not cw7: lpart(PA1)
        LS, LT, LO = 16, 8, 1
        a.e("s_waitcnt lgkmcnt(0)")
        a.e(f"v_sub_f32 v{LO}, 1.0, v{LG}")
        a.bf16r(LO, LO)
        assert not fill
        def lga(j, GA, XF):
            unpack(GA, LQ+4*j, 4)
            if fg:
                unpack(XF, LX1+4*j, 4)
                return
            unpack(LT, LZ+4*j, 4)
            for r in range(8): a.e(f"v_mul_f32 v{GA+r}, v{GA+r}, v{LT+r}")
            rnd8(GA, LT)
            for r in range(8): a.e(f"v_mul_f32 v{GA+r}, v{LG}, v{GA+r}")
            rnd8(GA, LT)
            unpack(XF, LX1+4*j, 4)
        def lsum(PA, wait):
            for p in range(8):
                if wait: a.wait_vm_if(("p", p))
                unpack(LS if p == 0 else LT, PA + 4*p, 4)
                if p:
                    for k in range(0, 8, 2): a.e(f"v_pk_add_f32 v[{LS+k}:{LS+k+1}], v[{LS+k}:{LS+k+1}], v[{LT+k}:{LT+k+1}]")
        def lfin(GA, XF, OUT):
            rnd8(LS, LT)
            for r in range(0, 8, 2): a.e(f"v_pk_add_f32 v[{LS+r}:{LS+r+1}], v[{LS+r}:{LS+r+1}], v[{XF+r}:{XF+r+1}]")
            rnd8(LS, LT)
            for r in range(8): a.e(f"v_mul_f32 v{LS+r}, v{LO}, v{LS+r}")
            rnd8(LS, LT)
            for r in range(0, 8, 2): a.e(f"v_pk_add_f32 v[{LS+r}:{LS+r+1}], v[{LS+r}:{LS+r+1}], v[{GA+r}:{GA+r+1}]")
            for k in range(4): a.e(f"v_cvt_pk_bf16_f32 v{OUT+k}, v{LS+2*k}, v{LS+2*k+1}")
            a.e(f"buffer_store_dwordx4 {vr(OUT)}, v3, s[{rO}:{rO+3}], s8 offen {osc}")
            a.e("s_add_u32 s8, s8, 384")
        if not cw7: lsum(PA0, False)
        lga(0, PA0, PA0+8)
        lfin(PA0, PA0+8, PA0+16)
        lga(1, PA0, PA0+8)
        a.stamp(2)
        if ep:
            a.e("s_waitcnt vmcnt(5)")
            a.e(f"buffer_load_dword v{LFL}, v5, s[{rP}:{rP+3}], s10 offen sc1")
        a.e("s_mov_b32 s13, 0")
        a.label("k3_lt")
        a.stamp(9)
        lsum(PA1, True)
        a.stamp(10)
        lfin(PA0, PA0+8, PA0+20)
        a.e("s_cmp_eq_u32 s13, 1")
        a.e(f"s_cbranch_scc1 {done}")
        a.e("s_mov_b32 s13, 1")
        lga(2, PA0, PA0+8)
        a.stamp(8)
        if tp:
            a.e("v_add_u32 v5, s10, v5")
            poll_pipe(a, 5, rP, sBUD, 48, "lp2", bo)
        else:
            if ep: a.e("s_waitcnt vmcnt(1)")
            else:
                a.e(f"v_mov_b32 v{LFL}, 0")
                a.e("s_nop 0")
            lchk(5, "s10", "lp2")
        a.reset()
        lpart(PA1)
        a.e("s_branch k3_lt")
    else:
        a.e(f"s_branch {done}")
    i0 = a.lines.index("k3_loader:")
    blk = a.lines[i0:]
    a.lines = a.lines[:cut] + blk + a.lines[cut:i0]
    a.label(done)
    a.pend(3)
    a.label(done + "_x")
    a.e("s_endpgm")
    a.label("k3_end")
    if pad:
        for _ in range(13): a.e("s_endpgm\n" * 16)
    a.end(name, 128, 102)


def k5(a):
    name = "k5_kernel"
    a.launch(name, (576,1,1), 256, 0)
    a.begin(name)
    a.reset()
    done = "k5_done"
    a.e(f"s_cmp_ge_u32 s2, 576")
    a.e(f"s_cbranch_scc1 {done}_x")
    a.pstart()
    rX, rP, rQ, rZ, rG, rO = 24, 32, 40, 44, 48, 52
    a.ldarg(8, "q"); a.ldarg(10, "ws"); a.ldarg(12, "out")
    a.e(f"""
    v_lshrrev_b32 v1, 6, v0
    v_and_b32 v0, 63, v0
    v_readfirstlane_b32 s59, v1
    s_mul_i32 s57, s2, 3641
    s_lshr_b32 s57, s57, 16
    s_mul_i32 s14, s57, 18
    s_sub_u32 s14, s2, s14
    s_lshr_b32 s4, s14, 1
    s_lshl_b32 s4, s4, 2
    s_add_u32 s6, s4, s59
    s_and_b32 s5, s14, 1
    s_lshl_b32 s7, s57, 2
    s_lshl_b32 s5, s5, 1
    s_add_u32 s7, s7, s5
    s_mul_i32 s5, s7, 18432
    s_lshl_b32 s7, s7, 4
    v_and_b32 v9, 15, v0
    v_lshrrev_b32 v10, 4, v0
    v_lshlrev_b32 v7, 4, v0
    v_and_b32 v1, 31, v0
    v_add_u32 v1, s7, v1
    v_lshrrev_b32 v5, 5, v0
    v_lshlrev_b32 v2, 2, v1
    v_mul_u32_u24 v3, 1152, v1
    v_lshl_add_u32 v3, v5, 4, v3
    v_lshlrev_b32 v4, 3, v1
    v_lshl_add_u32 v4, v5, 15, v4
    v_and_b32 v11, 1, v10
    v_mul_u32_u24 v11, 18432, v11
    v_lshl_add_u32 v11, v5, 9, v11
    v_lshl_add_u32 v11, v9, 4, v11
    s_lshr_b32 s7, s6, 1
    s_lshl_b32 s7, s7, 10
    s_add_u32 s16, s5, s7
    s_and_b32 s7, s6, 1
    s_lshl_b32 s7, s7, 3
    s_add_u32 s16, s16, s7
    s_lshl_b32 s18, s6, 5
    s_lshl_b32 s20, s6, 16
    s_add_u32 s19, s20, 16384
    s_lshl_b32 s23, s2, 2
    s_add_u32 s23, s23, s59
    s_lshl_b32 s23, s23, 13
    s_add_u32 s22, s23, 4096
    s_waitcnt lgkmcnt(0)
    """)
    a.srd_off(rP, 10, OFF_PART, 32*3*6*4*8*1024)
    X1, Q, Z, GG, OM, GA, TT, SUM, PA = 72, 76, 80, 84, 85, 96, 88, 104, 16
    for p in range(8):
        a.vmem(f"buffer_load_dwordx4 {vr(PA+4*p)}, v7, s[{rP}:{rP+3}], s{23 if p < 4 else 22} offen offset:{(p%4)*1024}", p)
    a.srd(rQ, 8, SZ_ACT)
    a.srd_off(rZ, 10, OFF_Z4, SZ_ACT)
    a.srd_off(rG, 10, OFF_G, S*4)
    a.srd_off(rX, 10, OFF_X1, SZ_ACT)
    a.srd(rO, 12, SZ_ACT)
    a.vmem(f"buffer_load_dwordx4 {vr(Q)}, v3, s[{rQ}:{rQ+3}], s18 offen", "aux")
    a.vmem(f"buffer_load_dwordx2 {vr(Z,2)}, v4, s[{rZ}:{rZ+3}], s20 offen", "aux")
    a.vmem(f"buffer_load_dwordx2 {vr(Z+2,2)}, v4, s[{rZ}:{rZ+3}], s19 offen", "aux")
    a.vmem(f"buffer_load_dword v{GG}, v2, s[{rG}:{rG+3}], 0 offen", "aux")
    a.vmem(f"buffer_load_dwordx2 {vr(X1,2)}, v11, s[{rX}:{rX+3}], s16 offen", "aux")
    a.vmem(f"buffer_load_dwordx2 {vr(X1+2,2)}, v11, s[{rX}:{rX+3}], s16 offen offset:256", "aux")
    def unpack(d, s, n=2):
        for k in range(n):
            a.e(f"v_lshlrev_b32 v{d+2*k}, 16, v{s+k}")
            a.e(f"v_and_b32 v{d+2*k+1}, 0xffff0000, v{s+k}")
    def rnd8(d, t):
        for k in range(4): a.e(f"v_cvt_pk_bf16_f32 v{t+k}, v{d+2*k}, v{d+2*k+1}")
        unpack(d, t, 4)
    for p in range(8):
        a.wait_vm(p)
        unpack(SUM if p == 0 else TT, PA + 4*p, 4)
        if p:
            for k in range(8): a.e(f"v_add_f32 v{SUM+k}, v{SUM+k}, v{TT+k}")
    rnd8(SUM, TT)
    a.wait_vm0()
    a.e(f"v_sub_f32 v{OM}, 1.0, v{GG}")
    a.bf16r(OM, OM)
    unpack(GA, Q, 4)
    unpack(TT, Z, 4)
    for r in range(8): a.e(f"v_mul_f32 v{GA+r}, v{GA+r}, v{TT+r}")
    rnd8(GA, TT)
    for r in range(8): a.e(f"v_mul_f32 v{GA+r}, v{GG}, v{GA+r}")
    rnd8(GA, TT)
    unpack(Q, X1, 4)
    for r in range(8): a.e(f"v_add_f32 v{SUM+r}, v{SUM+r}, v{Q+r}")
    rnd8(SUM, TT)
    for r in range(8): a.e(f"v_mul_f32 v{SUM+r}, v{OM}, v{SUM+r}")
    rnd8(SUM, TT)
    for r in range(8): a.e(f"v_add_f32 v{SUM+r}, v{SUM+r}, v{GA+r}")
    for k in range(4): a.e(f"v_cvt_pk_bf16_f32 v{112+k}, v{SUM+2*k}, v{SUM+2*k+1}")
    a.e(f"buffer_store_dwordx4 {vr(112)}, v3, s[{rO}:{rO+3}], s18 offen")
    a.label(done)
    a.pend(5)
    a.label(done + "_x")
    a.e("s_endpgm")
    a.end(name, 116, 102)
```

```python
import sys
from gen import *
import k12, kf
from k34 import k34, k5

def build(path, prof=False, dup=False, pre=None, k1={}, k2={}, wsbase=0, scs={}, fl=(5, 2), rt=False, kff={}, lst=True, dbgwg=None, warm=None, echo=None, **kw):
    k12.FL.update(FG=fl[0], FS=fl[1])
    k12.SC.update(dict(hs='', ur='', x1='', z='')); k12.SC.update(scs)
    a = K()
    a.wsbase = wsbase; a.rt = rt; a.dbgwg = dbgwg; a.echo = echo
    a.prof = prof
    mono = kw.pop("mono", False)
    if mono:
        kf.kmono(a, k34, **kff, **kw)
    elif kw.get("front"):
        kf.kfront(a, **kff)
    else:
        (k12.k1b if k2.get('cs') else k12.k1)(a, **k1); k12.k2(a, **k2)
    if not mono: k34(a, **kw)
    if kw.get('ext'): k5(a)
    if dup: a.launches.append(a.launches[-1])
    if pre: a.launches = [a.launches[i] for i in pre]
    roles = {1: [(0,144,0,4,"g1ld"),(0,144,4,12,"gemm1"),(144,216,0,8,"prep"),(216,256,0,8,"help")], 2: [(144,288,0,4,"gemm2"),(0,144,0,4,"conv"),(288,360,0,4,"colsum")],
             3: [(0,256,8,12,"g0"),(0,256,12,16,"g1"),(0,256,4,8,"g2"),(0,256,0,4,"ld")]}
    if kw.get("front"): roles[1] = [(0,144,0,4,"gld"),(0,144,4,12,"gemm"),(144,216,0,8,"prep"),(216,240,0,12,"conv"),(240,256,0,8,"colsum")]
    if mono:
        roles = {3: [(0,144,0,4,"G.ld"),(0,144,4,8,"G.g2"),(0,144,8,12,"G.g0"),(144,216,0,4,"P.ld"),(144,216,4,8,"P.g2"),(216,240,0,4,"C.ld"),(240,256,0,4,"S.ld")]}
        if kw.get("early"): roles = {3: [(0,144,12,16,"G.ld"),(0,144,4,8,"G.g2"),(144,216,12,16,"P.ld"),(144,216,4,8,"P.g2"),(216,240,12,16,"C.ld"),(240,256,12,16,"S.ld")]}
        if lst: a.launches = [f"; @launch kernel={kf.KNAME} grid=(256,1,1) block=(1024,1,1) lds=163840"]
    if warm is not None:
        nm = "warm_kernel"
        a.launches.insert(0, f"; @launch kernel={nm} grid=(256,1,1) block=(256,1,1) lds=0")
        a.begin(nm)
        if warm >= 1:
            lstb = [("ws", 0x2500000), ("w1", D*D*2), ("w2", D*D*2), ("w3", D*F*2), ("w4", D*F*2), ("ssmk", D*S*2), ("out", SZ_ACT), ("q", SZ_ACT), ("k", SZ_ACT), ("v", SZ_ACT), ("gw", D*2), ("shk", D*8), ("ssmD", D*2)]
            for i, (n, sz) in enumerate(lstb): a.ldarg(24 + 2*i, n)
            a.e("v_lshlrev_b32 v5, 18, v0")
            a.e("s_waitcnt lgkmcnt(0)")
            for i, (n, sz) in enumerate(lstb):
                a.srd(8 + 4*(i % 2), 24 + 2*i, sz)
                a.e(f"buffer_load_dword v6, v5, s[{8+4*(i%2)}:{11+4*(i%2)}], 0 offen")
        if warm >= 2:
            a.e("v_lshrrev_b32 v1, 6, v0"); a.e("s_nop 0"); a.e("v_readfirstlane_b32 s20, v1")
            a.e("s_lshr_b32 s58, s2, 3"); a.e("s_lshl_b32 s58, s58, 2"); a.e("s_add_u32 s58, s58, s20")
            a.e("s_getpc_b64 s[60:61]"); a.label("wpc")
            a.e(f"s_sub_u32 s60, s60, wpc-{kf.KNAME}"); a.e("s_subb_u32 s61, s61, 0")
            a.e(f"s_min_u32 s58, s58, (k3_end-{kf.KNAME})/448"); a.e("s_mul_i32 s58, s58, 448")
            a.e("s_add_u32 s60, s60, s58"); a.e("s_addc_u32 s61, s61, 0")
            for i in range(7): a.e(f"s_load_dword s59, s[60:61], {i*64}")
        a.e("s_waitcnt vmcnt(0) lgkmcnt(0)")
        a.e("s_endpgm"); a.end(nm, 16, 64)
    open(path, "w").write(a.text(HEADER + ("\n; roles " + repr(roles) if prof else "")))

BASE = dict(k1=dict(ntkv="nt", NW0=2, NX0=2, rot=1), k2=dict(nth="nt", cs=4), mapB=True, spf=0, lspf=6, g0w=51, g1n=15,
            skip=(49, 50, 63, 67), dr0=7, p0=10, l0=14, p1=11)
if __name__ == "__main__":
    base = dict(BASE)
    ff = dict(sd=dict(w2pf=False), g=dict(w2late=False))
    f3 = dict(g=dict(w2late=2, t1late=True, cpf=False))
    bl = {**base, "lc": True, "p0": 19, "l0": 25, "p1": 11, "zt": 52, "fg": 78, "serp": True, "pad": False}
    build("gated_mix__ssm_conv_h3__mixer_s_mlp__prompt.s", mono=True, kff=f3, lst=False, **bl)
    build("va.s", mono=True, kff=f3, **bl)
    g3 = dict(w2late=2, t1late=True, cpf=False)
    build("vb.s", mono=True, kff=f3, share=1, **bl)
    build("vc.s", mono=True, kff=f3, share=2, **bl)
```
